```python
import torch

def _softmax(x, axis=-1):
    return torch.softmax(x, dim=axis)
def _gelu(x):
    return torch.nn.functional.gelu(x, approximate="tanh")
def _silu(x):
    return torch.nn.functional.silu(x)
def _sigmoid(x):
    return torch.sigmoid(x)
def _layernorm(x, axis=-1, eps=1e-5):
    m = x.mean(dim=axis, keepdim=True)
    v = x.var(dim=axis, keepdim=True, unbiased=False)
    return (x - m) / torch.sqrt(v + eps)
def _scatter_add(tgt, idx, src, axis=0):
    return tgt.clone().index_add_(axis, idx, src)
def _segment_sum(src, seg, n):
    out = torch.zeros((n,) + src.shape[1:], dtype=src.dtype)
    return out.index_add_(0, seg, src)
def _pad(x, pw):
    flat = tuple(v for pair in reversed(pw) for v in pair)
    return torch.nn.functional.pad(x, flat)

kernel_name = 'interleave_layers__linear_attn_block__swiglu_ffn__prompt'

def setup_inputs():

    _w = (lambda a: (lambda t: t.to(torch.bfloat16) if t.is_floating_point() else t)(torch.as_tensor(a)))
    def _A_setup():
        B, S, D = 1, 2048, 1024
        return {
            "x": _w((lambda *s: torch.randn(*s, dtype=torch.bfloat16) * 0.05)(B, S, D)),
            "wqkv": _w((lambda *s: torch.randn(*s, dtype=torch.bfloat16) * 0.05)(D, 3 * D)),
            "wo": _w((lambda *s: torch.randn(*s, dtype=torch.bfloat16) * 0.05)(D, D)),
        }
    _A_in = _A_setup()

    def _B_setup():
        B, S, D, F = 1, 2048, 1024, 3584
        return {
            "x": _w((lambda *s: torch.randn(*s, dtype=torch.bfloat16) * 0.05)(B, S, D)),
            "w_gate": _w((lambda *s: torch.randn(*s, dtype=torch.bfloat16) * 0.05)(D, F)),
            "w_up": _w((lambda *s: torch.randn(*s, dtype=torch.bfloat16) * 0.05)(D, F)),
            "w_down": _w((lambda *s: torch.randn(*s, dtype=torch.bfloat16) * 0.05)(F, D)),
        }
    _B_in = _B_setup()

    return {
        "A_x": _A_in["x"],
        "A_wqkv": _A_in["wqkv"],
        "A_wo": _A_in["wo"],
        "B_x": _B_in["x"],
        "B_w_gate": _B_in["w_gate"],
        "B_w_up": _B_in["w_up"],
        "B_w_down": _B_in["w_down"],
    }

def reference(A_x, A_wqkv, A_wo, B_x, B_w_gate, B_w_up, B_w_down):
    def _A_ref(x, wqkv, wo):
        B, S, D = x.shape
        H = 32; Dh = D // H
        qkv = (lambda x, *d: x.permute(*d))((x @ wqkv).reshape(B, S, 3, H, Dh), 2, 0, 3, 1, 4)
        q, k, v = qkv[0], qkv[1], qkv[2]
        phi = lambda t: torch.where(t > 0, t + 1, torch.exp(t)) + 1e-6
        pq, pk = phi(q), phi(k)
        kv = torch.einsum("bhsd,bhse->bhde", pk, v)
        z = torch.einsum("bhsd->bhd", pk)
        num = torch.einsum("bhqd,bhde->bhqe", pq, kv)
        den = torch.einsum("bhqd,bhd->bhq", pq, z)[..., None] + 1e-6
        o = num / den
        return (lambda x, *d: x.permute(*d))(o, 0, 2, 1, 3).reshape(B, S, D) @ wo

    def _B_ref(x, w_gate, w_up, w_down):
        g = _silu(x @ w_gate)
        u = x @ w_up
        return (g * u) @ w_down

    x = A_x
    x = x + _A_ref(_layernorm(x, axis=-1), A_wqkv, A_wo)
    x = x + _B_ref(_layernorm(x, axis=-1), B_w_gate, B_w_up, B_w_down)
    x = x + _A_ref(_layernorm(x, axis=-1), A_wqkv, A_wo)
    x = x + _B_ref(_layernorm(x, axis=-1), B_w_gate, B_w_up, B_w_down)
    return x
```

```python
class Asm:
    def __init__(self):
        self.lines = []
        self.kernels = []
        self.launches = []
    def e(self, s=""):
        self.lines.append("    " + s if s and not s.endswith(":") else s)
    def label(self, l):
        self.lines.append(l + ":")
    def c(self, s):
        self.lines.append("    ; " + s)
    def begin_kernel(self, name):
        self.lines += ["", ".p2align 8", f".globl {name}", f".type {name},@function", f"{name}:"]
    def add_desc(self, name, vgpr, sgpr, accum):
        self.kernels.append((name, vgpr, sgpr, accum))
    def launch(self, name, grid, block, lds):
        self.launches.append(f"; @launch kernel={name} grid=({grid},1,1) block=({block},1,1) lds={lds}")
    def text(self, header=""):
        out = []
        if header:
            out.append(header.rstrip("\n"))
        out += self.launches
        out += ['.amdgcn_target "amdgcn-amd-amdhsa--gfx950"', ".text"]
        out += self.lines
        out += ["", '.section .rodata,"a"']
        for (name, vgpr, sgpr, accum) in self.kernels:
            out += [".p2align 6", f".amdhsa_kernel {name}",
                    f"  .amdhsa_next_free_vgpr {vgpr}",
                    f"  .amdhsa_next_free_sgpr {sgpr}",
                    f"  .amdhsa_accum_offset {accum}",
                    "  .amdhsa_group_segment_fixed_size 0",
                    "  .amdhsa_kernarg_size 80",
                    "  .amdhsa_user_sgpr_count 2",
                    "  .amdhsa_user_sgpr_kernarg_segment_ptr 1",
                    "  .amdhsa_system_sgpr_workgroup_id_x 1",
                    ".end_amdhsa_kernel"]
        return "\n".join(out) + "\n"
```

```python
import sys, math
from asmlib import Asm

S, D, F = 2048, 1024, 3584
MB = 1 << 20
WS_X, WS_PQ, WS_O, WS_H = 0, 4 * MB, 8 * MB, 12 * MB
WS_KV, WS_ST, WS_CS = 27 * MB, 31 * MB, 31 * MB + 512 * 1024
CS_N = 10240
WS_DBG = 40 * MB
KA = dict(x=0, wqkv=8, wo=16, bx=24, wg=32, wu=40, wd=48, out=56, dbg=64, ws=72)
LOG2E = 0x3fb8aa3b
NLOG2E = 0xbfb8aa3b

def f2u(x):
    import struct
    return struct.unpack("<I", struct.pack("<f", x))[0]

class Stream:
    def __init__(self):
        self.ops = []
    def i(self, s): self.ops.append(("i", s))
    def vm(self, s, tag): self.ops.append(("vm", s, tag))
    def ds(self, s, tag): self.ops.append(("ds", s, tag))
    def wait(self, vm=None, ds=None): self.ops.append(("w", vm, ds))

def resolve(pro, bodies):
    vq, dq = [], []
    def cnt(q, tags):
        if not tags: return None
        idx = -1
        for t in tags:
            assert t in q, ("wait on never-issued tag", t)
            idx = max(idx, len(q) - 1 - q[::-1].index(t))
        return len(q) - 1 - idx
    def run(st):
        res = []
        for op in st.ops:
            if op[0] == "vm": vq.append(op[2]); res.append(None)
            elif op[0] == "ds": dq.append(op[2]); res.append(None)
            elif op[0] == "w": res.append((cnt(vq, op[1]), cnt(dq, op[2])))
            else: res.append(None)
        return res
    def lines(st, res):
        out = []
        for op, r in zip(st.ops, res):
            if op[0] == "w":
                v, d = r
                parts = []
                if v is not None and v < 63: parts.append(f"vmcnt({v})")
                if d is not None and d < 15: parts.append(f"lgkmcnt({d})")
                if v is not None and v >= 63: parts.append("vmcnt(63)")
                if d is not None and d >= 15: parts.append("lgkmcnt(15)")
                if parts: out.append("s_waitcnt " + " ".join(parts))
            else:
                out.append(op[1])
        return out
    rp = run(pro)
    rs = [run(b) for b in bodies]
    for b in bodies[1:]:
        assert [o[1] for o in b.ops if o[0] != "w"] == [o[1] for o in bodies[0].ops if o[0] != "w"]
    merged = []
    for k in range(len(bodies[0].ops)):
        if bodies[0].ops[k][0] == "w":
            vs = [r[k][0] for r in rs if r[k][0] is not None]
            dsx = [r[k][1] for r in rs if r[k][1] is not None]
            merged.append((min(vs) if vs else None, min(dsx) if dsx else None))
        else:
            merged.append(None)
    return lines(pro, rp), lines(bodies[0], merged)

STAMP = False
def stamp(A, k):
    if STAMP:
        A.e(f"s_memtime s[{60+2*k}:{61+2*k}]")
def stamp_real(A, k):
    if STAMP:
        A.e(f"s_memrealtime s[{60+2*k}:{61+2*k}]")
def stamp_out(A, name, n):
    if not STAMP: return
    e = A.e
    e("s_waitcnt vmcnt(0) lgkmcnt(0)")
    stamp(A, n - 2)
    stamp_real(A, n - 1)
    e(f"s_load_dwordx2 s[56:57], s[0:1], {KA['ws']}")
    e("s_getreg_b32 s59, hwreg(HW_REG_XCC_ID)")
    e("s_waitcnt lgkmcnt(0)")
    e("v_cmp_gt_u32 vcc, 1, v0")
    e("s_and_saveexec_b64 s[50:51], vcc")
    e(f"s_cbranch_execz {name}_end")
    srd_off(A, 52, "s56", "s57", WS_DBG, 65536)
    e("s_lshl_b32 s58, s2, 6")
    e("v_mov_b32 v1, 0")
    for k in range(n):
        e(f"v_mov_b32 v2, s{60+2*k}")
        e(f"buffer_store_dword v2, v1, s[52:55], s58 offen offset:{4*k}")
    e(f"v_mov_b32 v2, s59")
    e(f"buffer_store_dword v2, v1, s[52:55], s58 offen offset:60")

def srd(A, r, lo, hi, size):
    A.e(f"s_mov_b32 s{r}, {lo}"); A.e(f"s_mov_b32 s{r+1}, {hi}")
    A.e(f"s_mov_b32 s{r+2}, {size}"); A.e(f"s_mov_b32 s{r+3}, 0x00020000")

def srd_off(A, r, lo, hi, off, size):
    A.e(f"s_add_u32 s{r}, {lo}, {off}"); A.e(f"s_addc_u32 s{r+1}, {hi}, 0")
    A.e(f"s_mov_b32 s{r+2}, {size}"); A.e(f"s_mov_b32 s{r+3}, 0x00020000")

class Gemm:
    def __init__(self, A, name, T, NB, RG, K, STAGES, XT, NWR, npieces, stage_bytes, piece_lds, frag_addr,
                 acc, wfrag0, xfrag0, vpiece0, vxoff, srd_w, srd_x, s_woff, s_xoff, s_ldsw, s_it, ldw, swap=None,
                 opt=None, BK=64):
        self.__dict__.update(locals())
        self.kstep = 512 // T
        self.KS = BK // self.kstep
        self.SB = RG * (32 // T)
        self.NT = K // BK
        self.UN = STAGES * XT // math.gcd(STAGES, XT)
        while self.UN % 4: self.UN *= 2
        assert self.NT % self.UN == 0, (self.NT, self.UN)
        assert (self.UN * self.KS * NB) % NWR == 0 and NWR <= self.KS * NB
        self.swap = swap or [False] * NB
        self.opt = opt or {}
        self.op = "v_mfma_f32_32x32x16_bf16" if T == 32 else "v_mfma_f32_16x16x32_bf16"
        self.FPT = BK // 16
        self.LOOK = max(XT, STAGES - 1)
        self.RING = min(8, self.UN)
        assert self.UN % self.RING == 0 and self.LOOK <= self.RING
        self.s_tq, self.s_sd, self.s_p, self.s_t1 = 84, 92, 96, 97
    def order_init(self, s_r):
        A = self.A
        A.e(f"s_mov_b32 s{self.s_p}, 0")
        for i in range(4):
            if s_r is None:
                A.e(f"s_mov_b32 s{self.s_sd+i}, 0")
            else:
                A.e(f"s_cmp_eq_u32 s{s_r}, {i}")
                A.e(f"s_cselect_b32 s{self.s_sd+i}, 3, -1")
    def order_next(self, p):
        t = self.s_tq + p % self.RING; t1 = self.s_t1; NT = self.NT
        l = [f"s_add_u32 s{t}, s{self.s_p}, s{self.s_sd + p % 4}",
             f"s_add_u32 s{t1}, s{t}, {NT}",
             f"s_min_u32 s{t}, s{t}, s{t1}",
             f"s_sub_u32 s{t1}, s{t}, {NT}",
             f"s_min_u32 s{t}, s{t}, s{t1}"]
        if self.opt.get("wrapk"): l.append(f"s_and_b32 s{t}, s{t}, {self.opt['wrapk']}")
        l += [f"s_cmp_ge_u32 s{self.s_p}, {NT}\n    s_cselect_b32 s{t}, {NT * self.RG}, s{t}",
              f"s_add_u32 s{self.s_p}, s{self.s_p}, 1"]
        return l
    def set_woff(self, st, p):
        st.i(f"s_mul_i32 s{self.s_woff}, s{self.s_tq + p % self.RING}, {self.BK * self.ldw}")
    def set_xoff(self, st, p):
        st.i(f"s_mul_i32 s{self.s_xoff}, s{self.s_tq + p % self.RING}, {self.FPT * 1024}")
    def wreg(self, f):
        return self.wfrag0 + (f % self.NWR) * 4
    def xreg(self, q, sb):
        return self.xfrag0 + ((q % (self.XT * self.KS)) * self.SB + sb) * 4
    def dma(self, st, tile, j):
        stage = tile % self.STAGES
        st.i(f"s_add_u32 m0, s{self.s_ldsw}, {stage * self.stage_bytes + self.piece_lds(j)}")
        st.i("s_nop 0")
        st.vm(f"buffer_load_dwordx4 v{self.vpiece0 + j}, s[{self.srd_w}:{self.srd_w+3}], s{self.s_woff} offen lds", ("W", tile, j))
    def xload(self, st, q, sb):
        r = self.xreg(q, sb)
        ks = q % self.KS
        if self.T == 32: rg, idx = sb, ks
        else: rg, idx = sb // 2, ks * 2 + sb % 2
        off = f" offset:{idx*1024}" if idx else ""
        st.vm(f"buffer_load_dwordx4 v[{r}:{r+3}], v{self.vxoff + rg}, s[{self.srd_x}:{self.srd_x+3}], s{self.s_xoff} offen{off}", ("X", q, sb))
    def wread(self, st, f, rd):
        q, nb = divmod(f, self.NB)
        tile, ks = divmod(q, self.KS)
        base, off = self.frag_addr(tile % self.STAGES, ks, nb, rd)
        assert 0 <= off < 65536, off
        r = self.wreg(f) + 2 * rd
        st.ds(f"ds_read_b64_tr_b16 v[{r}:{r+1}], v{base} offset:{off}", ("R", f, rd))
    def slots(self):
        tot = self.KS * self.NB * self.SB
        bpos = (self.KS * self.NB - self.NWR) * self.SB
        pos = [(bpos + 1 + (j * tot) // self.npieces + self.opt.get("dma_shift", 0)) % tot for j in range(self.npieces)]
        assert bpos not in pos
        return bpos, pos
    def prologue_loads(self, st):
        bpos, pos = self.slots()
        for t in range(self.LOOK):
            for l in self.order_next(t): st.i(l)
            if t < self.STAGES - 1:
                self.set_woff(st, t)
                for j in range(self.npieces):
                    if t < self.STAGES - 2 or pos[j] > bpos:
                        self.dma(st, t, j)
            if t < self.XT:
                self.set_xoff(st, t)
                for ks in range(self.KS):
                    for sb in range(self.SB):
                        self.xload(st, t * self.KS + ks, sb)
    def prologue_reads(self, st):
        st.wait(vm=[("W", 0, j) for j in range(self.npieces)])
        st.i("s_barrier")
        for f in range(self.NWR):
            for rd in range(2):
                self.wread(st, f, rd)
    def body(self, it):
        st = Stream()
        KS, NB, SB = self.KS, self.NB, self.SB
        bpos, pos = self.slots()
        o = self.opt
        nomfma, noread, noload, nox, now, nobar = (o.get(k) for k in ("nomfma", "noread", "noload", "nox", "now", "nobar"))
        for tt in range(self.UN):
            t = it * self.UN + tt
            pend = self.order_next(t + self.LOOK)
            per = -(-len(pend) // max(1, min((NB - 1) * SB, bpos if bpos else 1)))
            for ks in range(KS):
                q = t * KS + ks
                for nb in range(NB):
                    f = q * NB + nb
                    for sb in range(SB):
                        m = (ks * NB + nb) * SB + sb
                        vmw = [("X", q, sb)] if (nb == 0 and not noload and not nox) else None
                        dsw = [("R", f, 0), ("R", f, 1)] if (sb == 0 and not noread) else None
                        if vmw or dsw: st.wait(vm=vmw, ds=dsw)
                        w = self.wreg(f); x = self.xreg(q, sb)
                        a = self.acc(nb, sb)
                        wv, xv = f"v[{w}:{w+3}]", f"v[{x}:{x+3}]"
                        if not nomfma:
                            if self.swap[nb]: st.i(f"{self.op} {a}, {xv}, {wv}, {a}")
                            else: st.i(f"{self.op} {a}, {wv}, {xv}, {a}")
                        if pend:
                            for l in pend[:per]: st.i(l)
                            pend = pend[per:]
                            if not pend: self.set_xoff(st, t + self.XT)
                        if m == bpos:
                            assert not pend
                            if not noload and not now: st.wait(vm=[("W", t + 1, j) for j in range(self.npieces)])
                            if not nobar: st.i("s_barrier")
                            self.set_woff(st, t + self.STAGES - 1)
                        if not noread and sb == SB - 1:
                            self.wread(st, f + self.NWR, 0); self.wread(st, f + self.NWR, 1)
                        if not noload:
                            for j in range(self.npieces):
                                if pos[j] == m and not now:
                                    tgt = t + self.STAGES - 1 if m > bpos else t + self.STAGES - 2
                                    self.dma(st, tgt, j)
                            if nb == NB - 1 and not nox:
                                assert not pend
                                self.xload(st, q + self.XT * KS, sb)
        return st
    def emit(self, pro):
        A = self.A
        nit = self.NT // self.UN
        pl, bl = resolve(pro, [self.body(it) for it in range(nit)])
        for l in pl: A.e(l)
        if STAMP:
            A.e("s_waitcnt lgkmcnt(0)"); stamp(A, 3); A.e("s_waitcnt lgkmcnt(0)")
        if nit > 1:
            A.e(f"s_mov_b32 s{self.s_it}, {nit}")
            A.e(".p2align 6")
            A.label(f"{self.name}_loop")
        for l in bl: A.e(l)
        if nit > 1:
            A.e(f"s_sub_u32 s{self.s_it}, s{self.s_it}, 1")
            A.e(f"s_cmp_lg_u32 s{self.s_it}, 0")
            A.e(f"s_cbranch_scc1 {self.name}_loop")

def lane_consts_fullline(A, T, ldw, vtmp, vpiece_base, vfrag0):
    e = A.e
    t0, t1, t2 = vtmp, vtmp + 1, vtmp + 2
    e(f"v_and_b32 v{t0}, 63, v0")
    e(f"v_lshrrev_b32 v{t1}, 3, v{t0}")
    e(f"v_mul_u32_u24 v{vpiece_base}, {ldw}, v{t1}")
    e(f"v_and_b32 v{t2}, 7, v{t0}")
    if T == 32:
        e(f"v_and_b32 v{t1}, 2, v{t1}")
        e(f"v_lshlrev_b32 v{t1}, 1, v{t1}")
    else:
        e(f"v_and_b32 v{t1}, 6, v{t1}")
    e(f"v_xor_b32 v{t2}, v{t2}, v{t1}")
    e(f"v_lshl_add_u32 v{vpiece_base}, v{t2}, 4, v{vpiece_base}")
    e(f"v_and_b32 v{t1}, 3, v{t0}")
    e(f"v_lshlrev_b32 v{vfrag0}, 3, v{t1}")
    if T == 32:
        e(f"v_lshrrev_b32 v{t1}, 5, v{t0}")
        e(f"v_lshl_add_u32 v{vfrag0}, v{t1}, 9, v{vfrag0}")
        e(f"v_bfe_u32 v{t1}, v{t0}, 2, 2")
        e(f"v_lshl_add_u32 v{vfrag0}, v{t1}, 7, v{vfrag0}")
        e(f"v_bfe_u32 v{t1}, v{t0}, 3, 1")
        e(f"v_lshl_add_u32 v{vfrag0}, v{t1}, 6, v{vfrag0}")
        e(f"v_bfe_u32 v{t1}, v{t0}, 4, 1")
        e(f"v_lshl_add_u32 v{vfrag0}, v{t1}, 5, v{vfrag0}")
        e(f"v_xor_b32 v{vfrag0+1}, 64, v{vfrag0}")
    else:
        e(f"v_lshrrev_b32 v{t1}, 2, v{t0}")
        e(f"v_lshl_add_u32 v{vfrag0}, v{t1}, 7, v{vfrag0}")
        e(f"v_bfe_u32 v{t1}, v{t0}, 3, 2")
        e(f"v_lshl_add_u32 v{vfrag0}, v{t1}, 5, v{vfrag0}")
        for i in range(1, 4):
            e(f"v_xor_b32 v{vfrag0+i}, {32*i}, v{vfrag0}")

def fullline_frag_addr(T, VF, stage_bytes, BK, nbase):
    per = 64 // T
    def fa(stg, ks, nb, rd):
        cg, lo = divmod(nb, per)
        ro, so = nbase(stg)
        rows = (16 * ks + 8 * rd) if T == 32 else (32 * ks + 16 * rd)
        return (VF + ro + lo, so + cg * BK * 128 + rows * 128)
    return fa

def blk_acc(T, pre, base, RG):
    def acc(nb, sb):
        if T == 32:
            r = base + (nb * RG + sb) * 16
            return f"{pre}[{r}:{r+15}]"
        r = base + ((nb // 2) * RG + sb // 2) * 16 + (sb % 2) * 8 + (nb % 2) * 4
        return f"{pre}[{r}:{r+3}]"
    return acc

def stats_finish(o, vs, vt, vmean_neg, vrstd):
    e = o
    for st in (8, 4, 2, 1):
        for i in range(st):
            e(f"v_add_f32 v{vs+i}, v{vs+i}, v{vs+i+st}")
    e(f"v_mov_b32 v{vt}, v{vs}")
    e("s_nop 1")
    e(f"v_permlane32_swap_b32 v{vs}, v{vt}")
    e("s_nop 1")
    e(f"v_mul_f32 v{vmean_neg}, {f2u(-1.0/D):#x}, v{vs}")
    e(f"v_mul_f32 v{vt}, {f2u(1.0/D):#x}, v{vt}")
    e(f"v_fma_f32 v{vt}, -v{vmean_neg}, v{vmean_neg}, v{vt}")
    e(f"v_max_f32 v{vt}, 0, v{vt}")
    e(f"v_add_f32 v{vt}, {f2u(1e-5):#x}, v{vt}")
    e(f"v_rsq_f32 v{vrstd}, v{vt}")
    e("s_nop 0")

def split16(o, v, v2):
    o(f"v_mov_b32 v{v2}, v{v}")
    o("s_nop 1")
    o(f"v_permlane16_swap_b32 v{v}, v{v2}")
    o("s_nop 1")

def stats_emit(A, T, packed, vt):
    e = A.e
    one = vt + 4
    e(f"v_mov_b32 v{one}, 0x3f803f80")
    for i in range(4): e(f"v_mov_b32 v{vt+i}, 0")
    for i, r in enumerate(packed):
        s = vt + 2 * ((i // 4) % 2)
        e(f"v_dot2_f32_bf16 v{s}, v{r}, v{one}, v{s}")
        e(f"v_dot2_f32_bf16 v{s+1}, v{r}, v{r}, v{s+1}")
    e("s_nop 3")
    e(f"v_permlane32_swap_b32 v{vt}, v{vt+1}")
    e(f"v_permlane32_swap_b32 v{vt+2}, v{vt+3}")
    e("s_nop 1")
    e(f"v_add_f32 v{vt}, v{vt}, v{vt+1}")
    e(f"v_add_f32 v{vt+2}, v{vt+2}, v{vt+3}")
    if T == 16:
        e("s_nop 1")
        e(f"v_permlane16_swap_b32 v{vt}, v{vt+2}")
        e("s_nop 1")
    e(f"v_add_f32 v{vt}, v{vt}, v{vt+2}")

def kernel_head(A, name, nwg):
    A.begin_kernel(name)
    A.e(f"s_cmp_ge_u32 s2, {nwg}")
    A.e(f"s_cbranch_scc1 {name}_end")
    stamp_real(A, 0); stamp(A, 1)

def kernel_tail(A, name, vgpr, accum=None):
    stamp(A, 5)
    stamp_out(A, name, 8)
    A.label(f"{name}_end")
    A.e("s_endpgm")
    A.add_desc(name, vgpr, 100, accum if accum else (vgpr + 3) // 4 * 4)

def k_proj(A, name, T, K, ws_a, ka_w, final, opt=None):
    e = A.e
    opt = opt or {}
    BK, STAGES, XT, NWR = 64, opt.get("STAGES", 8), opt.get("XT", 4), opt.get("NWR", 4)
    ldw = D * 2
    kernel_head(A, name, opt.get("nwg", 256))
    e(f"s_load_dwordx2 s[4:5], s[0:1], {ka_w}")
    e(f"s_load_dwordx2 s[6:7], s[0:1], {KA['ws']}")
    if final: e(f"s_load_dwordx2 s[28:29], s[0:1], {KA['out']}")
    VP, VF, VXO, VT = 1, 3, 7, 8
    ACC, RES, WF = 16, 48, 64
    XF = WF + 4 * NWR
    NV = XF + XT * 16
    e(f"v_lshrrev_b32 v{VT+3}, 6, v0")
    lane_consts_fullline(A, T, ldw, VT, VP, VF)
    e(f"v_readfirstlane_b32 s30, v{VT+3}")
    e(f"v_lshlrev_b32 v{VXO}, 4, v{VT}")
    e("s_and_b32 s31, s2, 7"); e("s_lshr_b32 s32, s2, 3")
    e("s_lshr_b32 s33, s31, 1"); e("s_lshl_b32 s33, s33, 2"); e("s_lshr_b32 s34, s32, 3"); e("s_add_u32 s33, s33, s34")
    e("s_and_b32 s34, s31, 1"); e("s_lshl_b32 s34, s34, 3"); e("s_and_b32 s35, s32, 7"); e("s_add_u32 s34, s34, s35")
    e("s_lshl_b32 s35, s33, 2"); e("s_add_u32 s35, s35, s30")
    e(f"s_mul_i32 s36, s30, {8*ldw}"); e("s_lshl_b32 s37, s34, 7"); e("s_add_u32 s36, s36, s37")
    e(f"v_add_u32 v{VP}, s36, v{VP}")
    e(f"v_add_u32 v{VP+1}, {4*8*ldw}, v{VP}")
    e("s_lshl_b32 s40, s30, 10")
    e(f"s_mul_i32 s36, s35, {K*64}"); e(f"s_add_u32 s36, s36, {ws_a}")
    e(f"s_lshl_b32 s37, s35, 16"); e("s_lshl_b32 s38, s34, 12"); e("s_add_u32 s37, s37, s38")
    G = Gemm(A, name, T=T, NB=64 // T, RG=1, K=K, STAGES=STAGES, XT=XT, NWR=NWR, npieces=2, stage_bytes=BK * 128,
             piece_lds=lambda j: j * 4096,
             frag_addr=fullline_frag_addr(T, VF, BK * 128, BK, lambda stg: (0, stg * BK * 128)),
             acc=blk_acc(T, "v", ACC, 1), wfrag0=WF, xfrag0=XF, vpiece0=VP, vxoff=VXO,
             srd_w=8, srd_x=12, s_woff=41, s_xoff=42, s_ldsw=40, s_it=43, ldw=ldw, opt=opt)
    e("s_add_u32 s44, s33, s34"); e("s_and_b32 s44, s44, 3")
    G.order_init(44 if opt.get("skew", 1) else None)
    e("s_waitcnt lgkmcnt(0)")
    srd(A, 8, "s4", "s5", K * ldw)
    srd_off(A, 12, "s6", "s7", "s36", K * 64)
    srd_off(A, 20, "s6", "s7", "s37", 4096)
    stamp(A, 2)
    p = Stream()
    for i in range(4):
        p.vm(f"buffer_load_dwordx4 v[{RES+4*i}:{RES+4*i+3}], v{VXO}, s[20:23], 0 offen offset:{i*1024}", ("RES", i))
    G.prologue_loads(p)
    p.wait(vm=[("RES", 3)])
    for i in range(16):
        p.i(f"v_lshlrev_b32 v{ACC+2*i}, 16, v{RES+i}")
        p.i(f"v_and_b32 v{ACC+2*i+1}, 0xffff0000, v{RES+i}")
    G.prologue_reads(p)
    G.emit(p)
    stamp(A, 4)
    e("s_nop 15")
    for i in range(16):
        e(f"v_cvt_pk_bf16_f32 v{RES+i}, v{ACC+2*i}, v{ACC+2*i+1}")
    if not final:
        for i in range(4):
            e(f"buffer_store_dwordx4 v[{RES+4*i}:{RES+4*i+3}], v{VXO}, s[20:23], 0 offen offset:{i*1024}")
        stats_emit(A, T, [RES + i for i in range(16)], VT)
        e("s_lshl_b32 s36, s35, 12"); e("s_lshr_b32 s37, s34, 2"); e("s_lshl_b32 s37, s37, 10"); e("s_add_u32 s36, s36, s37")
        e("s_and_b32 s37, s34, 3"); e("s_lshl_b32 s37, s37, 2"); e("s_add_u32 s36, s36, s37")
        srd_off(A, 24, "s6", "s7", WS_ST, 64 * 4096)
        e(f"buffer_store_dword v{VT}, v{VXO}, s[24:27], s36 offen")
    else:
        srd(A, 24, "s28", "s29", S * D * 2)
        rowmajor_lane_off(A, T, VT, VT + 1)
        e("s_lshl_b32 s36, s35, 16"); e("s_lshl_b32 s37, s34, 7"); e("s_add_u32 s36, s36, s37")
        if T == 16: e(f"s_add_u32 s37, s36, {16*2048}")
        for i in range(4):
            e(f"v_permlane{T}_swap_b32 v{RES+4*i}, v{RES+4*i+2}")
            e(f"v_permlane{T}_swap_b32 v{RES+4*i+1}, v{RES+4*i+3}")
        e("s_nop 1")
        for i in range(4):
            so, off = rowmajor_frag(T, i, "s36", "s37")
            e(f"buffer_store_dwordx4 v[{RES+4*i}:{RES+4*i+3}], v{VT}, s[24:27], {so} offen offset:{off}")
    kernel_tail(A, name, NV)
    return dict(name=name, grid=opt.get("nwg", 256), block=256, lds=STAGES * BK * 128)

def rowmajor_lane_off(A, T, v, t):
    e = A.e
    e(f"v_and_b32 v{v}, {T-1}, v0"); e(f"v_lshlrev_b32 v{v}, 11, v{v}")
    e(f"v_bfe_u32 v{t}, v0, 5, 1"); e(f"v_lshl_add_u32 v{v}, v{t}, 4, v{v}")
    if T == 16:
        e(f"v_bfe_u32 v{t}, v0, 4, 1"); e(f"v_lshl_add_u32 v{v}, v{t}, 5, v{v}")

def rowmajor_frag(T, i, s_lo, s_hi):
    if T == 32: return s_lo, i * 32
    return (s_hi if i % 2 else s_lo), (i // 2) * 64

def k_ffn(A, name, T, NW, opt=None):
    e = A.e
    opt = opt or {}
    RG = 8 // NW
    BK, STAGES, XT, NWR = 64, opt.get("STAGES", 4), opt.get("XT", 2), 7
    ldw = F * 2
    NP = 7 if NW == 4 else 4
    GU = (14336 if NW == 4 else 16384) + 128
    SBY = 2 * GU
    agpr = NW == 4
    kernel_head(A, name, opt.get("nwg", 256))
    e(f"s_load_dwordx4 s[4:7], s[0:1], {KA['wg']}")
    e(f"s_load_dwordx2 s[28:29], s[0:1], {KA['ws']}")
    VP, VF, VXO, VMN, VRS, VT = 1, 8, 10, 12, 14, 18
    WF = 32; XF = WF + 28
    XE = XF + XT * 16 * RG
    ACC = 0 if agpr else (XE + 15) // 16 * 16
    pre = "a" if agpr else "v"
    NV = XE if agpr else ACC + 112
    e(f"v_lshrrev_b32 v{VT+3}, 6, v0")
    e(f"v_and_b32 v{VT}, 63, v0")
    e(f"v_readfirstlane_b32 s30, v{VT+3}")
    e("s_and_b32 s31, s2, 7"); e("s_lshr_b32 s32, s2, 3")
    e("s_and_b32 s33, s31, 1"); e("s_lshl_b32 s33, s33, 2"); e("s_lshr_b32 s34, s32, 3"); e("s_add_u32 s33, s33, s34")
    e("s_lshr_b32 s34, s31, 1"); e("s_lshl_b32 s34, s34, 3"); e("s_and_b32 s35, s32, 7"); e("s_add_u32 s34, s34, s35")
    e("s_lshl_b32 s35, s33, 3"); e(f"s_mul_i32 s36, s30, {RG}"); e("s_add_u32 s35, s35, s36")
    hw = NW // 2
    e(f"s_and_b32 s36, s30, {hw-1}"); e(f"s_mul_i32 s36, s36, {NP}")
    e(f"s_lshr_b32 s37, s30, {hw.bit_length()-1}")
    e(f"s_mul_i32 s40, s37, {GU}"); e("s_lshl_b32 s38, s36, 10"); e("s_add_u32 s40, s40, s38")
    e("s_lshl_b32 s38, s36, 6")
    e(f"s_mul_i32 s39, s34, 224")
    e("s_and_b32 s45, s34, 1"); e("s_lshl_b32 s46, s45, 1")
    e("s_mov_b32 s47, 4682")
    for j in range(NP):
        u, r, c = VT + 1, VT + 2, VT + 3
        e(f"v_add_u32 v{u}, s38, v{VT}")
        if j: e(f"v_add_u32 v{u}, {64*j}, v{u}")
        e(f"v_mul_u32_u24 v{r}, s47, v{u}"); e(f"v_lshrrev_b32 v{r}, 16, v{r}")
        e(f"v_mul_u32_u24 v{c}, 14, v{r}"); e(f"v_sub_u32 v{c}, v{u}, v{c}")
        if T == 16:
            e(f"v_add_u32 v{c}, s46, v{c}")
            e(f"v_subrev_u32 v{u}, 14, v{c}"); e(f"v_min_u32 v{c}, v{c}, v{u}")
        e(f"v_mul_u32_u24 v{VP+j}, {ldw}, v{r}")
        e(f"v_lshl_add_u32 v{VP+j}, v{c}, 4, v{VP+j}")
        e(f"v_add_u32 v{VP+j}, s39, v{VP+j}")
        if NW == 8:
            e(f"v_lshrrev_b32 v{r}, 6, v{r}"); e(f"v_lshl_add_u32 v{VP+j}, v{r}, 28, v{VP+j}")
    e(f"v_and_b32 v{VT+1}, 3, v{VT}"); e(f"v_lshlrev_b32 v{VF}, 3, v{VT+1}")
    if T == 32:
        e(f"v_lshrrev_b32 v{VT+1}, 5, v{VT}"); e(f"v_bfe_u32 v{VT+2}, v{VT}, 2, 2"); e(f"v_lshl_add_u32 v{VT+1}, v{VT+1}, 2, v{VT+2}")
        e(f"v_mul_u32_u24 v{VT+1}, 224, v{VT+1}"); e(f"v_add_u32 v{VF}, v{VF}, v{VT+1}")
        e(f"v_bfe_u32 v{VT+1}, v{VT}, 4, 1"); e(f"v_mul_u32_u24 v{VT+1}, {GU}, v{VT+1}"); e(f"v_add_u32 v{VF}, v{VF}, v{VT+1}")
        fa = lambda stg, ks, nb, rd: (VF + stg // 2, (stg % 2) * SBY + (16 * ks + 8 * rd) * 224 + 32 * nb)
    else:
        e(f"v_lshrrev_b32 v{VT+1}, 2, v{VT}"); e(f"v_mul_u32_u24 v{VT+1}, 224, v{VT+1}"); e(f"v_add_u32 v{VF}, v{VF}, v{VT+1}")
        fa = lambda stg, ks, nb, rd: (VF + stg // 2, (stg % 2) * SBY + (nb % 2) * GU + (32 * ks + 16 * rd) * 224 + 32 * (nb // 2))
    e(f"v_add_u32 v{VF+1}, {2*SBY}, v{VF}")
    e(f"v_lshlrev_b32 v{VXO}, 4, v{VT}")
    if RG == 2: e(f"v_add_u32 v{VXO+1}, {D*64}, v{VXO}")
    e(f"v_and_b32 v{VT+1}, 15, v{VT}"); e(f"v_bfe_u32 v{VT+2}, v{VT}, 4, 1"); e(f"v_mul_u32_u24 v{VT+2}, {F}, v{VT+2}")
    e(f"v_add_lshl_u32 v{VT+1}, v{VT+1}, v{VT+2}, 2")
    G = Gemm(A, name, T=T, NB=224 // T, RG=RG, K=D, STAGES=STAGES, XT=XT, NWR=NWR, npieces=NP, stage_bytes=SBY,
             piece_lds=lambda j: j * 1024, frag_addr=fa,
             acc=blk_acc(T, pre, ACC, RG), wfrag0=WF, xfrag0=XF, vpiece0=VP, vxoff=VXO,
             srd_w=8, srd_x=12, s_woff=41, s_xoff=42, s_ldsw=40, s_it=43, ldw=ldw, opt=opt)
    e("s_add_u32 s44, s33, s34"); e("s_and_b32 s44, s44, 3")
    G.order_init(44 if opt.get("skew", 1) else None)
    e("s_lshl_b32 s36, s35, 16")
    e("s_lshl_b32 s38, s35, 12"); e(f"s_add_u32 s38, s38, {WS_ST}")
    e(f"s_mul_i32 s39, s34, 448"); e(f"s_add_u32 s39, s39, {WS_CS + 3072*4}")
    e("s_cmp_eq_u32 s37, 0")
    e("s_waitcnt lgkmcnt(0)")
    e("s_cselect_b32 s8, s4, s6"); e("s_cselect_b32 s9, s5, s7"); e(f"s_mov_b32 s10, {D*ldw}"); e("s_mov_b32 s11, 0x00020000")
    srd_off(A, 12, "s28", "s29", "s36", D * 64 * RG)
    srd_off(A, 20, "s28", "s29", "s38", 4096 * RG)
    srd_off(A, 24, "s28", "s29", "s39", (F + 112) * 4)
    if T == 16:
        e("s_lshl_b32 s48, s45, 6")
        e("s_mul_i32 s49, s45, 384"); e("s_sub_u32 s49, 384, s49")
    stamp(A, 2)
    p = Stream()
    ST = XF + 16 * RG * (XT - 1) if False else None
    SC = NV if agpr else NV
    NV2 = SC + 16 * RG + 8
    for rg in range(RG):
        for i in range(4):
            p.vm(f"buffer_load_dwordx4 v[{SC+16*rg+4*i}:{SC+16*rg+4*i+3}], v{VXO}, s[20:23], {'0' if rg == 0 else 's50'} offen offset:{i*1024}", ("ST", rg, i))
        if rg == 0 and RG == 2: p.i("s_mov_b32 s50, 4096")
    CSR = SC + 16 * RG
    for j in range(7):
        if T == 32: so, off = "0", j * 64
        else: so, off = ("s48", j * 64) if j < 6 else ("s49", 0)
        p.vm(f"buffer_load_dword v{CSR+j}, v{VT+1}, s[24:27], {so} offen offset:{off}", ("CS", j))
    G.prologue_loads(p)
    p.wait(vm=[("CS", 6)])
    for rg in range(RG):
        stats_finish(p.i, SC + 16 * rg, VT + 4, VMN + rg, VRS + 2 * rg)
    if T == 32:
        if RG == 2:
            p.i("s_nop 1"); p.i(f"v_permlane32_swap_b32 v{VMN}, v{VMN+1}"); p.i("s_nop 1")
            for j in range(7):
                p.i(f"v_mfma_f32_32x32x1_2b_f32 {pre}[{ACC+32*j}:{ACC+32*j+31}], v{CSR+j}, v{VMN}, 0")
        else:
            p.i(f"v_mul_f32 v{VMN}, 0.5, v{VMN}"); p.i("s_nop 1")
            for j in range(7):
                p.i(f"v_mfma_f32_32x32x2_f32 {pre}[{ACC+16*j}:{ACC+16*j+15}], v{CSR+j}, v{VMN}, 0")
    else:
        for rg in range(RG):
            split16(p.i, VRS + 2 * rg, VRS + 2 * rg + 1)
            split16(p.i, VMN + rg, VT + 4)
            p.i(f"v_permlane32_swap_b32 v{VMN+rg}, v{VT+4}"); p.i("s_nop 1")
        for j in range(7):
            for rg in range(RG):
                r = ACC + (j * RG + rg) * 16
                p.i(f"v_mfma_f32_16x16x1_4b_f32 {pre}[{r}:{r+15}], v{CSR+j}, v{VMN+rg}, 0")
    G.prologue_reads(p)
    G.emit(p)
    stamp(A, 4)
    e("s_waitcnt vmcnt(0) lgkmcnt(0)")
    nrs = RG * 2
    C1, C2 = WF, WF + 8
    for k in range(nrs):
        if T == 32 and k % 2: continue
        e(f"v_mul_f32 v{C1+2*k}, {NLOG2E:#x}, v{VRS+k}")
        e(f"v_mul_f32 v{C2+2*k}, v{VRS+k}, v{VRS+k}")
    e(f"s_mul_i32 s36, s35, {F*64}"); e(f"s_add_u32 s36, s36, {WS_H}")
    srd_off(A, 20, "s28", "s29", "s36", F * 64 * RG)
    if T == 32:
        e("s_mul_i32 s38, s34, 7168")
    else:
        e("s_mul_i32 s38, s34, 7"); e("s_add_u32 s38, s38, s45"); e("s_lshl_b32 s38, s38, 10")
        e("s_mul_i32 s39, s45, 8184"); e("s_add_u32 s46, s38, 6144"); e("s_sub_u32 s39, s46, s39")
    if RG == 2: e(f"v_add_u32 v{VXO+1}, {F*64}, v{VXO}")
    e("s_nop 7")
    TB = XF
    tog = [0]
    def silu8(gr, ur, k, out):
        n = len(gr)
        tb = TB + (tog[0] % 2) * 32; tog[0] += 1
        g, u, t = tb, tb + 8, tb + 16
        if agpr:
            for i in range(n):
                e(f"v_accvgpr_read_b32 v{g+i}, a{gr[i]}"); e(f"v_accvgpr_read_b32 v{u+i}, a{ur[i]}")
        else:
            g, u, t = gr[0], ur[0], TB + (tog[0] % 2) * 8
        for i in range(0, n, 2):
            e(f"v_pk_mul_f32 v[{t+i}:{t+i+1}], v[{g+i}:{g+i+1}], v[{C1+2*k}:{C1+2*k+1}] op_sel_hi:[1,0]")
        for i in range(0, n, 2):
            e(f"v_pk_mul_f32 v[{g+i}:{g+i+1}], v[{g+i}:{g+i+1}], v[{u+i}:{u+i+1}]")
        for i in range(n): e(f"v_exp_f32 v{t+i}, v{t+i}")
        for i in range(0, n, 2):
            e(f"v_pk_mul_f32 v[{g+i}:{g+i+1}], v[{g+i}:{g+i+1}], v[{C2+2*k}:{C2+2*k+1}] op_sel_hi:[1,0]")
        for i in range(0, n, 2):
            e(f"v_pk_add_f32 v[{t+i}:{t+i+1}], v[{t+i}:{t+i+1}], 1.0 op_sel_hi:[1,0]")
        for i in range(n): e(f"v_rcp_f32 v{t+i}, v{t+i}")
        e("s_nop 0")
        for i in range(0, n, 2):
            e(f"v_pk_mul_f32 v[{g+i}:{g+i+1}], v[{g+i}:{g+i+1}], v[{t+i}:{t+i+1}]")
        for i in range(0, n, 2):
            e(f"v_cvt_pk_bf16_f32 v{out+i//2}, v{g+i}, v{g+i+1}")
    OB = WF + 16
    cnt = 0
    for rg in range(RG):
        if T == 32:
            for j in range(7):
                r = ACC + (j * RG + rg) * 16
                ob = OB + 4 * (cnt % 3); cnt += 1
                silu8([r + i for i in range(8)], [r + 8 + i for i in range(8)], 2 * rg, ob)
                if j == 4: e("s_add_u32 s39, s38, 4096")
                so, off = ("s38", j * 1024) if j < 4 else ("s39", (j - 4) * 1024)
                e(f"buffer_store_dwordx4 v[{ob}:{ob+3}], v{VXO+rg}, s[20:23], {so} offen offset:{off}")
        else:
            for pj in range(4):
                for sb in range(2):
                    ob = OB + 4 * (cnt % 3); cnt += 1
                    for jj in range(2 if pj < 3 else 1):
                        r = ACC + ((2 * pj + jj) * RG + rg) * 16 + 8 * sb
                        silu8([r + i for i in range(4)], [r + 4 + i for i in range(4)], 2 * rg + sb, ob + 2 * jj)
                    if pj < 3:
                        if pj == 2 and sb == 0: e("s_add_u32 s46, s38, 4096")
                        so, off = ("s38", pj * 2048 + sb * 1024) if pj < 2 else ("s46", sb * 1024)
                        e(f"buffer_store_dwordx4 v[{ob}:{ob+3}], v{VXO+rg}, s[20:23], {so} offen offset:{off}")
                    else:
                        e(f"buffer_store_dwordx2 v[{ob}:{ob+1}], v{VXO+rg}, s[20:23], s39 offen offset:{sb*1024}")
    if agpr:
        acc_off = (NV2 + 3) // 4 * 4
        kernel_tail(A, name, acc_off + 224, acc_off)
    else:
        kernel_tail(A, name, NV2)
    return dict(name=name, grid=opt.get("nwg", 256), block=NW * 64, lds=STAGES * SBY)

def k_qkv(A, name, opt=None):
    e = A.e
    opt = opt or {}
    T = 16
    BK, STAGES, XT, NWR = 64, opt.get("STAGES", 4), opt.get("XT", 4), opt.get("NWR", 6)
    ldw = 3 * D * 2
    SBY = 3 * BK * 128
    NP = 6
    kernel_head(A, name, 256)
    e(f"s_load_dwordx2 s[4:5], s[0:1], {KA['wqkv']}")
    e(f"s_load_dwordx2 s[28:29], s[0:1], {KA['ws']}")
    VP, VF, VXO, VMN, VMM, VRS, VT = 1, 7, 15, 16, 17, 18, 21
    ACC = 32; WF = ACC + 96; XF = WF + 4 * NWR; SC = XF + XT * 16
    CSR = SC + 16
    NV = CSR + 8
    e(f"v_lshrrev_b32 v{VT+3}, 6, v0")
    lane_consts_fullline(A, T, ldw, VT, VP, VF)
    e(f"v_readfirstlane_b32 s30, v{VT+3}")
    for i in range(4): e(f"v_add_u32 v{VF+4+i}, {2*SBY}, v{VF+i}")
    e(f"v_lshlrev_b32 v{VXO}, 4, v{VT}")
    e("s_and_b32 s31, s2, 7"); e("s_lshr_b32 s32, s2, 3")
    e("s_and_b32 s33, s31, 1"); e("s_lshl_b32 s33, s33, 3"); e("s_lshr_b32 s34, s32, 2"); e("s_add_u32 s33, s33, s34")
    e("s_lshr_b32 s34, s31, 1"); e("s_lshl_b32 s34, s34, 2"); e("s_and_b32 s35, s32, 3"); e("s_add_u32 s34, s34, s35")
    e("s_lshl_b32 s35, s33, 2"); e("s_add_u32 s35, s35, s30")
    e(f"s_mul_i32 s36, s30, {8*ldw}"); e("s_lshl_b32 s37, s34, 7"); e("s_add_u32 s36, s36, s37")
    e(f"v_add_u32 v{VP}, s36, v{VP}")
    for j in range(1, NP):
        e(f"v_add_u32 v{VP+j}, {(j >> 1) * 2048 + (j & 1) * 32 * ldw}, v{VP}")
    e("s_lshl_b32 s40, s30, 10")
    e(f"v_and_b32 v{VT+1}, 31, v{VT}"); e(f"v_lshlrev_b32 v{VT+1}, 2, v{VT+1}")
    e(f"v_and_b32 v{VT+2}, 15, v{VT}"); e(f"v_lshrrev_b32 v{VT+3}, 5, v{VT}"); e(f"v_lshl_add_u32 v{VT+2}, v{VT+3}, 4, v{VT+2}")
    e(f"v_lshlrev_b32 v{VT+2}, 2, v{VT+2}")
    def acc(nb, sb):
        blk, lo = divmod(nb, 2)
        r = ACC + blk * 16 + (sb * 8 + lo * 4 if blk < 2 else lo * 8 + sb * 4)
        return f"v[{r}:{r+3}]"
    G = Gemm(A, name, T=T, NB=12, RG=1, K=D, STAGES=STAGES, XT=XT, NWR=NWR, npieces=NP, stage_bytes=SBY,
             piece_lds=lambda j: (j >> 1) * BK * 128 + (j & 1) * 4096,
             frag_addr=fullline_frag_addr(T, VF, SBY, BK, lambda stg: (4 * (stg // 2), (stg % 2) * SBY)),
             acc=acc, wfrag0=WF, xfrag0=XF, vpiece0=VP, vxoff=VXO,
             srd_w=8, srd_x=12, s_woff=41, s_xoff=42, s_ldsw=40, s_it=43, ldw=ldw,
             swap=[nb >= 4 for nb in range(12)], opt=opt)
    e("s_add_u32 s44, s33, s34"); e("s_and_b32 s44, s44, 3")
    G.order_init(44 if opt.get("skew", 1) else None)
    e("s_lshl_b32 s36, s35, 16")
    e("s_lshl_b32 s38, s35, 12"); e(f"s_add_u32 s38, s38, {WS_ST}")
    e("s_lshl_b32 s39, s34, 8"); e(f"s_add_u32 s39, s39, {WS_CS}")
    e("s_movk_i32 s45, 4096"); e("s_movk_i32 s46, 8192")
    e("s_waitcnt lgkmcnt(0)")
    srd(A, 8, "s4", "s5", D * ldw)
    srd_off(A, 12, "s28", "s29", "s36", D * 64)
    srd_off(A, 20, "s28", "s29", "s38", 4096)
    srd_off(A, 24, "s28", "s29", "s39", 8192 + 256)
    stamp(A, 2)
    p = Stream()
    for i in range(4):
        p.vm(f"buffer_load_dwordx4 v[{SC+4*i}:{SC+4*i+3}], v{VXO}, s[20:23], 0 offen offset:{i*1024}", ("ST", i))
    for b in range(6):
        so = ("0", "s45", "s46")[b // 2]
        p.vm(f"buffer_load_dword v{CSR+b}, v{VT+1 if b < 2 else VT+2}, s[24:27], {so} offen offset:{(b % 2) * 128}", ("CS", b))
    G.prologue_loads(p)
    p.wait(vm=[("CS", 5)])
    stats_finish(p.i, SC, VT + 4, VMN, VRS)
    p.i(f"v_mov_b32 v{VRS+1}, v{VRS}")
    split16(p.i, VRS + 1, VRS + 2)
    p.i(f"v_mov_b32 v{VMM}, v{VMN}")
    split16(p.i, VMM, VT + 4)
    p.i(f"v_permlane32_swap_b32 v{VMM}, v{VT+4}"); p.i("s_nop 1")
    for b in range(6):
        r = ACC + 16 * b
        if b < 2: p.i(f"v_mfma_f32_16x16x1_4b_f32 v[{r}:{r+15}], v{CSR+b}, v{VMM}, 0")
        else: p.i(f"v_mfma_f32_16x16x1_4b_f32 v[{r}:{r+15}], v{VMN}, v{CSR+b}, 0")
    RR = SC
    p.i(f"v_mov_b32 v{VT+4}, 1.0"); p.i("s_nop 1")
    p.i(f"v_mfma_f32_16x16x1_4b_f32 v[{RR}:{RR+15}], v{VRS}, v{VT+4}, 0")
    G.prologue_reads(p)
    G.emit(p)
    stamp(A, 4)
    e("s_waitcnt vmcnt(0) lgkmcnt(0)")
    e("s_barrier")
    TB = XF
    EPS = "s47"
    e(f"s_mov_b32 s47, {f2u(1e-6):#x}")
    QL = VT + 4; KL = RR + 8
    for sb in range(2): e(f"v_mul_f32 v{QL+sb}, {LOG2E:#x}, v{VRS+1+sb}")
    for i in range(8): e(f"v_mul_f32 v{KL+i}, {LOG2E:#x}, v{RR+i}")
    def phi(regs, rs, rl, out, tb):
        n = len(regs)
        for i in range(n): e(f"v_mul_f32 v{tb+i}, v{regs[i]}, v{rl[i]}")
        for i in range(n): e(f"v_exp_f32 v{tb+i}, v{tb+i} clamp")
        for i in range(n): e(f"v_max_f32 v{regs[i]}, 0, v{regs[i]}")
        for i in range(n): e(f"v_add_f32 v{tb+i}, {EPS}, v{tb+i}")
        for i in range(n): e(f"v_fma_f32 v{regs[i]}, v{regs[i]}, v{rs[i]}, v{tb+i}")
        for i in range(0, n, 2): e(f"v_cvt_pk_bf16_f32 v{out+i//2}, v{regs[i]}, v{regs[i+1]}")
    PK = WF; VV = TB + 16
    ONE = TB + 32
    for i in range(4): e(f"v_mov_b32 v{ONE+i}, 0x3f803f80")
    for hh in range(2):
        for lo in range(2):
            r = ACC + (2 + hh) * 16 + lo * 8
            phi([r + i for i in range(8)], [RR + i for i in range(8)], [KL + i for i in range(8)], PK + (hh * 2 + lo) * 4, TB + 8 * (lo % 2))
            r = ACC + (4 + hh) * 16 + lo * 8
            for i in range(0, 8, 2):
                e(f"v_pk_mul_f32 v[{r+i}:{r+i+1}], v[{r+i}:{r+i+1}], v[{RR+i}:{RR+i+1}]")
            for i in range(0, 8, 2):
                e(f"v_cvt_pk_bf16_f32 v{VV+(hh*2+lo)*4+i//2}, v{r+i}, v{r+i+1}")
    e("s_nop 1")
    KVR = ACC + 32
    ZR = ACC + 64
    for hh in range(2):
        for et in range(2):
            for dt in range(2):
                r = KVR + hh * 16 + et * 8 + dt * 4
                a = PK + (hh * 2 + dt) * 4; b = VV + (hh * 2 + et) * 4
                e(f"v_mfma_f32_16x16x32_bf16 v[{r}:{r+3}], v[{a}:{a+3}], v[{b}:{b+3}], 0")
        for dt in range(2):
            r = ZR + hh * 8 + dt * 4; a = PK + (hh * 2 + dt) * 4
            e(f"v_mfma_f32_16x16x32_bf16 v[{r}:{r+3}], v[{a}:{a+3}], v[{ONE}:{ONE+3}], 0")
    e(f"s_lshl_b32 s36, s35, 16"); e("s_lshl_b32 s37, s34, 12"); e("s_add_u32 s36, s36, s37"); e(f"s_add_u32 s36, s36, {WS_PQ}")
    srd_off(A, 20, "s28", "s29", "s36", 4096)
    OB = TB + 40
    for hh in range(2):
        for sb in range(2):
            r = ACC + hh * 16 + sb * 8
            ob = OB + (hh * 2 + sb) * 4
            phi([r + i for i in range(8)], [VRS + 1 + sb] * 8, [QL + sb] * 8, ob, TB + 8 * sb)
            e(f"buffer_store_dwordx4 v[{ob}:{ob+3}], v{VXO}, s[20:23], 0 offen offset:{(hh*2+sb)*1024}")
    e(f"v_add_u32 v{VT}, s40, v{VXO}")
    for qd in range(12):
        e(f"ds_write_b128 v{VT}, v[{KVR+4*qd}:{KVR+4*qd+3}] offset:{qd*4096}")
    e("s_mul_i32 s36, s30, 12288")
    e(f"v_add_u32 v{VT+1}, s36, v{VXO}")
    e("s_waitcnt lgkmcnt(0)")
    e("s_barrier")
    RB = ACC
    for k in range(12):
        e(f"ds_read_b128 v[{RB+4*k}:{RB+4*k+3}], v{VT+1} offset:{k*1024}")
    e("s_lshl_b32 s37, s34, 4"); e("s_add_u32 s37, s37, s33"); e("s_mul_i32 s37, s37, 12288")
    e("s_mul_i32 s36, s30, 3072"); e("s_add_u32 s37, s37, s36"); e(f"s_add_u32 s37, s37, {WS_KV}")
    srd_off(A, 24, "s28", "s29", "s37", 3072)
    for k in range(3):
        e(f"s_waitcnt lgkmcnt({8-4*k})")
        r = RB + 16 * k
        for i in range(0, 4, 2):
            e(f"v_pk_add_f32 v[{r+i}:{r+i+1}], v[{r+i}:{r+i+1}], v[{r+4+i}:{r+5+i}]")
            e(f"v_pk_add_f32 v[{r+8+i}:{r+9+i}], v[{r+8+i}:{r+9+i}], v[{r+12+i}:{r+13+i}]")
        for i in range(0, 4, 2):
            e(f"v_pk_add_f32 v[{r+i}:{r+i+1}], v[{r+i}:{r+i+1}], v[{r+8+i}:{r+9+i}]")
        e(f"buffer_store_dwordx4 v[{r}:{r+3}], v{VXO}, s[24:27], 0 offen offset:{k*1024}")
    kernel_tail(A, name, NV)
    return dict(name=name, grid=256, block=256, lds=STAGES * SBY)

def k_attn(A, name):
    e = A.e
    kernel_head(A, name, 256)
    e(f"s_load_dwordx2 s[28:29], s[0:1], {KA['ws']}")
    VXO, VT = 1, 2
    P = 8; PQ = P + 192
    e("v_lshrrev_b32 v4, 6, v0"); e("v_and_b32 v5, 63, v0")
    e("v_readfirstlane_b32 s30, v4")
    e(f"v_lshlrev_b32 v{VXO}, 4, v5")
    e("s_and_b32 s31, s2, 7"); e("s_lshr_b32 s32, s2, 3")
    e("s_lshl_b32 s34, s31, 1"); e("s_and_b32 s35, s32, 1"); e("s_add_u32 s34, s34, s35")
    e("s_lshr_b32 s33, s32, 1")
    e("s_lshl_b32 s35, s33, 2"); e("s_add_u32 s35, s35, s30")
    e(f"s_mul_i32 s36, s34, {16*12288}"); e("s_mul_i32 s37, s30, 3072"); e("s_add_u32 s36, s36, s37"); e(f"s_add_u32 s36, s36, {WS_KV}")
    e("s_lshl_b32 s38, s35, 16"); e("s_lshl_b32 s39, s34, 12"); e("s_add_u32 s38, s38, s39")
    e(f"s_add_u32 s39, s38, {WS_O}"); e(f"s_add_u32 s38, s38, {WS_PQ}")
    e("s_waitcnt lgkmcnt(0)")
    srd_off(A, 8, "s28", "s29", "s36", 16 * 12288)
    srd_off(A, 12, "s28", "s29", "s38", 4096)
    srd_off(A, 16, "s28", "s29", "s39", 4096)
    stamp(A, 2)
    for m in range(16):
        if m: e(f"s_mov_b32 s40, {m*12288}")
        for k in range(3):
            r = P + (k * 16 + m) * 4
            e(f"buffer_load_dwordx4 v[{r}:{r+3}], v{VXO}, s[8:11], {'s40' if m else '0'} offen offset:{k*1024}")
    for i in range(4):
        e(f"buffer_load_dwordx4 v[{PQ+4*i}:{PQ+4*i+3}], v{VXO}, s[12:15], 0 offen offset:{i*1024}")
    e(f"s_mul_i32 s37, s30, 3")
    for m in range(1, 16):
        e(f"s_waitcnt vmcnt({4 + 3 * (15 - m)})")
        for k in range(3):
            r0 = P + k * 64; r = r0 + 4 * m
            for i in range(0, 4, 2):
                e(f"v_pk_add_f32 v[{r0+i}:{r0+i+1}], v[{r0+i}:{r0+i+1}], v[{r+i}:{r+i+1}]")
    stamp(A, 3)
    for k in range(3):
        r0 = P + k * 64
        e(f"v_cvt_pk_bf16_f32 v{r0+4}, v{r0}, v{r0+1}"); e(f"v_cvt_pk_bf16_f32 v{r0+5}, v{r0+2}, v{r0+3}")
        e(f"s_add_u32 s40, s37, {k}"); e("s_lshr_b32 s41, s40, 1"); e("s_lshl_b32 s41, s41, 10")
        e("s_and_b32 s40, s40, 1"); e("s_lshl_b32 s40, s40, 3"); e("s_add_u32 s41, s41, s40")
        e(f"v_add_u32 v{VT}, s41, v{VXO}")
        e(f"ds_write_b64 v{VT}, v[{r0+4}:{r0+5}]")
    e("s_waitcnt lgkmcnt(0)")
    e("s_barrier")
    FR = P
    for f in range(6):
        e(f"ds_read_b128 v[{FR+4*f}:{FR+4*f+3}], v{VXO} offset:{f*1024}")
    e("s_waitcnt vmcnt(0) lgkmcnt(0)")
    NUM = P + 32; DEN = P + 64
    for hh in range(2):
        for sb in range(2):
            i = hh * 2 + sb
            b = PQ + 4 * i
            for et in range(2):
                r = NUM + i * 8 + et * 4; a = FR + (hh * 2 + et) * 4
                e(f"v_mfma_f32_16x16x32_bf16 v[{r}:{r+3}], v[{a}:{a+3}], v[{b}:{b+3}], 0")
            r = DEN + i * 4; a = FR + (4 + hh) * 4
            e(f"v_mfma_f32_16x16x32_bf16 v[{r}:{r+3}], v[{a}:{a+3}], v[{b}:{b+3}], 0")
    e("s_nop 7")
    stamp(A, 4)
    for i in range(4): e(f"v_add_f32 v{DEN+4*i}, {f2u(1e-6):#x}, v{DEN+4*i}")
    for i in range(4): e(f"v_rcp_f32 v{DEN+4*i}, v{DEN+4*i}")
    e("s_nop 0")
    for i in range(4):
        r = NUM + i * 8
        for j in range(0, 8, 2):
            e(f"v_pk_mul_f32 v[{r+j}:{r+j+1}], v[{r+j}:{r+j+1}], v[{DEN+4*i}:{DEN+4*i+1}] op_sel_hi:[1,0]")
        for j in range(0, 8, 2):
            e(f"v_cvt_pk_bf16_f32 v{PQ+4*i+j//2}, v{r+j}, v{r+j+1}")
        e(f"buffer_store_dwordx4 v[{PQ+4*i}:{PQ+4*i+3}], v{VXO}, s[16:19], 0 offen offset:{i*1024}")
    kernel_tail(A, name, PQ + 16)
    return dict(name=name, grid=256, block=256, lds=6144)

def k_prep(A, name):
    e = A.e
    T = 16
    kernel_head(A, name, 416)
    e(f"s_load_dwordx4 s[4:7], s[0:1], {KA['x']}")
    e(f"s_load_dwordx4 s[24:27], s[0:1], {KA['wg']}")
    e(f"s_load_dwordx2 s[28:29], s[0:1], {KA['ws']}")
    e("v_lshrrev_b32 v4, 6, v0"); e("v_and_b32 v5, 63, v0")
    e("v_readfirstlane_b32 s30, v4")
    e("v_lshlrev_b32 v1, 4, v5")
    e("s_cmp_lt_u32 s2, 160")
    e(f"s_cbranch_scc1 {name}_cs")
    e("s_sub_u32 s31, s2, 160"); e("s_lshl_b32 s31, s31, 2"); e("s_add_u32 s31, s31, s30")
    e("s_lshr_b32 s35, s31, 4"); e("s_and_b32 s34, s31, 15")
    rowmajor_lane_off(A, T, 2, 3)
    e("s_lshl_b32 s36, s35, 16"); e("s_lshl_b32 s37, s34, 7"); e("s_add_u32 s36, s36, s37"); e(f"s_add_u32 s37, s36, {16*2048}")
    e("s_lshl_b32 s38, s35, 16"); e("s_lshl_b32 s39, s34, 12"); e("s_add_u32 s38, s38, s39")
    e("s_waitcnt lgkmcnt(0)")
    srd(A, 8, "s4", "s5", S * D * 2)
    srd_off(A, 12, "s28", "s29", "s38", 4096)
    R = 16
    for i in range(4):
        so, off = rowmajor_frag(T, i, "s36", "s37")
        e(f"buffer_load_dwordx4 v[{R+4*i}:{R+4*i+3}], v2, s[8:11], {so} offen offset:{off}")
    e("s_lshl_b32 s36, s35, 12"); e("s_lshr_b32 s37, s34, 2"); e("s_lshl_b32 s37, s37, 10"); e("s_add_u32 s36, s36, s37")
    e("s_and_b32 s37, s34, 3"); e("s_lshl_b32 s37, s37, 2"); e("s_add_u32 s36, s36, s37")
    srd_off(A, 16, "s28", "s29", WS_ST, 64 * 4096)
    e("s_waitcnt vmcnt(0)")
    for i in range(4):
        e(f"v_permlane16_swap_b32 v{R+4*i}, v{R+4*i+2}")
        e(f"v_permlane16_swap_b32 v{R+4*i+1}, v{R+4*i+3}")
    e("s_nop 1")
    for i in range(4):
        e(f"buffer_store_dwordx4 v[{R+4*i}:{R+4*i+3}], v1, s[12:15], 0 offen offset:{i*1024}")
    stats_emit(A, T, [R + i for i in range(16)], 8)
    e("buffer_store_dword v8, v1, s[16:19], s36 offen")
    e(f"s_branch {name}_fin")
    A.label(f"{name}_cs")
    e("s_waitcnt lgkmcnt(0)")
    e("s_cmp_lt_u32 s2, 104")
    e("s_cselect_b32 s8, s24, s26"); e("s_cselect_b32 s9, s25, s27"); e("s_cselect_b32 s33, 48, 104")
    e("s_cmp_lt_u32 s2, 48")
    e("s_cselect_b32 s8, s6, s8"); e("s_cselect_b32 s9, s7, s9"); e("s_cselect_b32 s33, 0, s33")
    e("s_cselect_b32 s32, 6, 7"); e("s_lshl_b32 s32, s32, 10")
    e("s_lshl_b32 s10, s32, 10"); e("s_mov_b32 s11, 0x00020000")
    e("s_sub_u32 s31, s2, s33")
    e("v_lshrrev_b32 v2, 3, v5"); e("v_mul_lo_u32 v2, s32, v2"); e("v_and_b32 v3, 7, v5"); e("v_lshl_add_u32 v2, v3, 4, v2")
    e("s_lshl_b32 s36, s31, 7"); e("s_lshl_b32 s37, s32, 8"); e("s_mul_i32 s37, s37, s30"); e("s_add_u32 s36, s36, s37")
    e("s_lshl_b32 s37, s32, 3")
    L = 32
    for i in range(32):
        e(f"buffer_load_dwordx4 v[{L+4*i}:{L+4*i+3}], v2, s[8:11], s36 offen")
        if i < 31: e("s_add_u32 s36, s36, s37")
    for i in range(8): e(f"v_mov_b32 v{8+i}, 0")
    for i in range(32):
        e(f"s_waitcnt vmcnt({31-i})")
        t = 16 + 8 * (i % 2)
        for j in range(4):
            e(f"v_lshlrev_b32 v{t+2*j}, 16, v{L+4*i+j}"); e(f"v_and_b32 v{t+2*j+1}, 0xffff0000, v{L+4*i+j}")
        for j in range(4):
            e(f"v_pk_add_f32 v[{8+2*j}:{9+2*j}], v[{8+2*j}:{9+2*j}], v[{t+2*j}:{t+2*j+1}]")
    e("v_lshlrev_b32 v2, 5, v0")
    e("ds_write_b128 v2, v[8:11]"); e("ds_write_b128 v2, v[12:15] offset:16")
    e("s_waitcnt lgkmcnt(0)")
    e("s_barrier")
    e("s_cmp_lg_u32 s30, 0")
    e(f"s_cbranch_scc1 {name}_fin")
    e("v_lshlrev_b32 v2, 2, v5")
    for i in range(32):
        e(f"ds_read_b32 v{L+i}, v2 offset:{i*256}")
    e("s_lshl_b32 s36, s2, 8")
    srd_off(A, 16, "s28", "s29", WS_CS, CS_N * 4)
    e("s_waitcnt lgkmcnt(0)")
    for st in (16, 8, 4, 2, 1):
        for i in range(st): e(f"v_add_f32 v{L+i}, v{L+i}, v{L+i+st}")
    e(f"buffer_store_dword v{L}, v2, s[16:19], s36 offen")
    A.label(f"{name}_fin")
    kernel_tail(A, name, L + 128)
    return dict(name=name, grid=416, block=256, lds=8192)

HEADER = """; interleave_layers: (linear attention block, SwiGLU FFN) x 2, pre-LN residual ; generated by work/gen.py
"""
def build_all(path, stamp_on=False):
    global STAMP
    STAMP = stamp_on
    A = Asm()
    prep = k_prep(A, "prep_kernel")
    qkv = k_qkv(A, "qkv_kernel")
    att = k_attn(A, "attn_kernel")
    wo = k_proj(A, "wo_kernel", 16, D, WS_O, KA["wo"], False)
    ffn = k_ffn(A, "ffn_kernel", 16, 8)
    dn = k_proj(A, "down_kernel", 16, F, WS_H, KA["wd"], False)
    dnf = k_proj(A, "downf_kernel", 16, F, WS_H, KA["wd"], True)
    for k in (prep, qkv, att, wo, ffn, dn, qkv, att, wo, ffn, dnf):
        A.launch(k["name"], k["grid"], k["block"], k["lds"])
    open(path, "w").write(A.text(HEADER))

if __name__ == "__main__":
    build_all("full_stamp.s", True)
    build_all("interleave_layers__linear_attn_block__swiglu_ffn__prompt.s", False)
```

```python
import sys, math
from asmlib import Asm

S, D, F = 2048, 1024, 3584
MB = 1 << 20
WS_X, WS_PQ, WS_O, WS_H = 0, 4 * MB, 8 * MB, 12 * MB
WS_KV, WS_Z, WS_ST, WS_CS = 27 * MB, 29 * MB, 31 * MB, 31 * MB + 512 * 1024
CS_N = 10240
WS_DBG = 40 * MB
KA = dict(x=0, wqkv=8, wo=16, bx=24, wg=32, wu=40, wd=48, out=56, dbg=64, ws=72)
LOG2E = 0x3fb8aa3b
NLOG2E = 0xbfb8aa3b

def f2u(x):
    import struct
    return struct.unpack("<I", struct.pack("<f", x))[0]

class Stream:
    def __init__(self):
        self.ops = []
    def i(self, s): self.ops.append(("i", s))
    def vm(self, s, tag): self.ops.append(("vm", s, tag))
    def ds(self, s, tag): self.ops.append(("ds", s, tag))
    def wait(self, vm=None, ds=None): self.ops.append(("w", vm, ds))

def resolve(pro, bodies):
    vq, dq = [], []
    def cnt(q, tags):
        if not tags: return None
        idx = -1
        for t in tags:
            assert t in q, ("wait on never-issued tag", t)
            idx = max(idx, len(q) - 1 - q[::-1].index(t))
        return len(q) - 1 - idx
    def run(st):
        res = []
        for op in st.ops:
            if op[0] == "vm": vq.append(op[2]); res.append(None)
            elif op[0] == "ds": dq.append(op[2]); res.append(None)
            elif op[0] == "w": res.append((cnt(vq, op[1]), cnt(dq, op[2])))
            else: res.append(None)
        return res
    def lines(st, res):
        out = []
        for op, r in zip(st.ops, res):
            if op[0] == "w":
                v, d = r
                parts = []
                if v is not None and v < 63: parts.append(f"vmcnt({v})")
                if d is not None and d < 15: parts.append(f"lgkmcnt({d})")
                if v is not None and v >= 63: parts.append("vmcnt(63)")
                if d is not None and d >= 15: parts.append("lgkmcnt(15)")
                if parts: out.append("s_waitcnt " + " ".join(parts))
            else:
                out.append(op[1])
        return out
    rp = run(pro)
    rs = [run(b) for b in bodies]
    for b in bodies[1:]:
        assert [o[1] for o in b.ops if o[0] != "w"] == [o[1] for o in bodies[0].ops if o[0] != "w"]
    merged = []
    for k in range(len(bodies[0].ops)):
        if bodies[0].ops[k][0] == "w":
            vs = [r[k][0] for r in rs if r[k][0] is not None]
            dsx = [r[k][1] for r in rs if r[k][1] is not None]
            merged.append((min(vs) if vs else None, min(dsx) if dsx else None))
        else:
            merged.append(None)
    return lines(pro, rp), lines(bodies[0], merged)

STAMP = False
def stamp(A, k):
    if STAMP:
        A.e(f"s_memtime s[{60+2*k}:{61+2*k}]")
def stamp_real(A, k):
    if STAMP:
        A.e(f"s_memrealtime s[{60+2*k}:{61+2*k}]")
def stamp_out(A, name, n):
    if not STAMP: return
    e = A.e
    e("s_waitcnt vmcnt(0) lgkmcnt(0)")
    stamp(A, n - 2)
    stamp_real(A, n - 1)
    e(f"s_load_dwordx2 s[56:57], s[0:1], {KA['ws']}")
    e(f"s_load_dword s79, s[0:1], {KA['dbg']}")
    e("s_getreg_b32 s59, hwreg(HW_REG_XCC_ID)")
    e("s_waitcnt lgkmcnt(0)")
    e("v_cmp_gt_u32 vcc, 1, v0")
    e("s_and_saveexec_b64 s[50:51], vcc")
    e(f"s_cbranch_execz {name}_end")
    srd_off(A, 52, "s56", "s57", WS_DBG, 32 * 65536)
    e("s_lshl_b32 s58, s2, 6")
    e("s_lshr_b32 s79, s79, 9"); e("s_and_b32 s79, s79, 31"); e("s_lshl_b32 s79, s79, 16"); e("s_add_u32 s58, s58, s79")
    e("v_mov_b32 v1, 0")
    for k in range(n):
        e(f"v_mov_b32 v2, s{60+2*k}")
        e(f"buffer_store_dword v2, v1, s[52:55], s58 offen offset:{4*k}")
    e(f"v_mov_b32 v2, s59")
    e(f"buffer_store_dword v2, v1, s[52:55], s58 offen offset:60")

def srd(A, r, lo, hi, size):
    A.e(f"s_mov_b32 s{r}, {lo}"); A.e(f"s_mov_b32 s{r+1}, {hi}")
    A.e(f"s_mov_b32 s{r+2}, {size}"); A.e(f"s_mov_b32 s{r+3}, 0x00020000")

def srd_off(A, r, lo, hi, off, size):
    A.e(f"s_add_u32 s{r}, {lo}, {off}"); A.e(f"s_addc_u32 s{r+1}, {hi}, 0")
    A.e(f"s_mov_b32 s{r+2}, {size}"); A.e(f"s_mov_b32 s{r+3}, 0x00020000")

class Gemm:
    def __init__(self, A, name, T, NB, RG, K, STAGES, XT, NWR, npieces, stage_bytes, piece_lds, frag_addr,
                 acc, wfrag0, xfrag0, vpiece0, vxoff, srd_w, srd_x, s_woff, s_xoff, s_ldsw, s_it, ldw, swap=None,
                 opt=None, BK=64, LA=None, WG=1):
        self.__dict__.update(locals())
        self.opt = opt or {}
        self.LA = LA or NWR
        self.kstep = 512 // T
        self.KS = BK // self.kstep
        self.SB = RG * (32 // T)
        self.NT = K // BK
        self.skew = self.opt.get("skew", 1)
        self.UN = STAGES * XT // math.gcd(STAGES, XT)
        while (self.skew and self.UN % (4 * self.skew)) or (self.UN * self.KS * NB) % NWR: self.UN *= 2
        assert self.NT % self.UN == 0, (self.NT, self.UN)
        assert self.LA <= NWR and self.LA <= self.KS * NB
        self.swap = swap or [False] * NB
        self.op = "v_mfma_f32_32x32x16_bf16" if T == 32 else "v_mfma_f32_16x16x32_bf16"
        self.XB = BK * 64
        self.LOOK = max(XT, STAGES - 1)
        self.RING = min(8, self.UN)
        if self.skew: assert self.UN % self.RING == 0 and self.LOOK <= self.RING
        self.s_tq, self.s_sd, self.s_p, self.s_t1 = 84, 92, 96, 97
        assert self.skew in (0, 1, 2)
    def order_init(self, s_r):
        A = self.A
        if not self.skew:
            A.e(f"s_mov_b32 s{self.s_woff}, {-self.BK * self.ldw & 0xffffffff:#x}")
            A.e(f"s_mov_b32 s{self.s_xoff}, {-self.XB & 0xffffffff:#x}")
            return
        A.e(f"s_mov_b32 s{self.s_p}, 0")
        for i in range(4):
            A.e(f"s_cmp_eq_u32 s{s_r}, {i}")
            A.e(f"s_cselect_b32 s{self.s_sd+i}, {3 * self.skew}, {-self.skew}")
    def order_next(self, p):
        if not self.skew: return []
        t = self.s_tq + p % self.RING; t1 = self.s_t1; NT = self.NT
        l = [f"s_add_u32 s{t}, s{self.s_p}, s{self.s_sd + (p // self.skew) % 4}",
             f"s_add_u32 s{t1}, s{t}, {NT}",
             f"s_min_u32 s{t}, s{t}, s{t1}",
             f"s_sub_u32 s{t1}, s{t}, {NT}",
             f"s_min_u32 s{t}, s{t}, s{t1}"]
        l += [f"s_cmp_ge_u32 s{self.s_p}, {NT}\n    s_cselect_b32 s{t}, {NT * self.RG}, s{t}",
              f"s_add_u32 s{self.s_p}, s{self.s_p}, 1"]
        return l
    def set_woff(self, st, p):
        if self.skew: st.i(f"s_mul_i32 s{self.s_woff}, s{self.s_tq + p % self.RING}, {self.BK * self.ldw}")
        else: st.i(f"s_add_u32 s{self.s_woff}, s{self.s_woff}, {self.BK * self.ldw}")
    def set_xoff(self, st, p):
        if self.skew: st.i(f"s_mul_i32 s{self.s_xoff}, s{self.s_tq + p % self.RING}, {self.XB}")
        else:
            assert self.RG == 1
            st.i(f"s_add_u32 s{self.s_xoff}, s{self.s_xoff}, {self.XB}")
    def wreg(self, f):
        return self.wfrag0 + (f % self.NWR) * 4
    def xreg(self, q, sb):
        return self.xfrag0 + ((q % (self.XT * self.KS)) * self.SB + sb) * 4
    def dma_m0(self, st, tile, j):
        st.i(f"s_add_u32 m0, s{self.s_ldsw}, {(tile % self.STAGES) * self.stage_bytes + self.piece_lds(j)}")
    def dma_ld(self, st, tile, j):
        st.vm(f"buffer_load_dwordx4 v{self.vpiece0 + j}, s[{self.srd_w}:{self.srd_w+3}], s{self.s_woff} offen lds", ("W", tile, j))
    def dma(self, st, tile, j):
        self.dma_m0(st, tile, j); st.i("s_nop 0"); self.dma_ld(st, tile, j)
    def xload(self, st, q, sb):
        r = self.xreg(q, sb)
        ks = q % self.KS
        if self.T == 32: rg, off = sb, (ks >> 1) * 2048 + (ks & 1) * 512
        else: rg, off = sb // 2, (ks * 2 + sb % 2) * 1024
        off = f" offset:{off}" if off else ""
        st.vm(f"buffer_load_dwordx4 v[{r}:{r+3}], v{self.vxoff + rg}, s[{self.srd_x}:{self.srd_x+3}], s{self.s_xoff} offen{off}", ("X", q, sb))
    def wread(self, st, f, rd):
        q, nb = divmod(f, self.NB)
        tile, ks = divmod(q, self.KS)
        row = (32 * (ks >> 1) + 8 * (ks & 1) + 16 * rd) if self.T == 32 else (32 * ks + 16 * rd)
        base, off = self.frag_addr(tile % self.STAGES, row, nb)
        assert 0 <= off < 65536, off
        r = self.wreg(f) + 2 * rd
        st.ds(f"ds_read_b64_tr_b16 v[{r}:{r+1}], v{base} offset:{off}", ("R", f, rd))
    def slots(self):
        tot = self.KS * self.NB * self.SB
        bpos = (self.KS * self.NB - self.LA) * self.SB
        pos = [(bpos + 2 + (j * tot) // self.npieces + self.opt.get("dma_shift", 0)) % tot for j in range(self.npieces)]
        assert len(set(pos)) == len(pos)
        return bpos, pos
    def pro_tile(self, st, t, w=True, x=True):
        bpos, pos = self.slots()
        if w and t < self.STAGES - 1:
            self.set_woff(st, t)
            for j in range(self.npieces):
                if t < self.STAGES - 2 or pos[j] > bpos:
                    self.dma(st, t, j)
        if x and t < self.XT:
            self.set_xoff(st, t)
            for ks in range(self.KS):
                for sb in range(self.SB):
                    self.xload(st, t * self.KS + ks, sb)
    def prologue_first(self, st):
        n0 = self.opt.get("first", 1)
        for t in range(n0):
            for l in self.order_next(t): st.i(l)
            if self.opt.get("xfirst"):
                self.pro_tile(st, t, w=False); self.pro_tile(st, t, x=False)
            else: self.pro_tile(st, t)
    def prologue_reads(self, st):
        st.wait(vm=[("W", 0, j) for j in range(self.npieces)])
        st.i("s_barrier")
        if STAMP: st.i("s_memtime s[66:67]\n    s_waitcnt lgkmcnt(0)")
        for f in range(self.LA):
            for rd in range(2):
                self.wread(st, f, rd)
    def prologue_rest(self, st):
        for t in range(self.opt.get("first", 1), self.LOOK):
            for l in self.order_next(t): st.i(l)
            self.pro_tile(st, t)
    def body(self, it):
        st = Stream()
        KS, NB, SB, LA = self.KS, self.NB, self.SB, self.LA
        bpos, pos = self.slots()
        o = self.opt
        nomfma, noread, noload, nox, now, nobar = (o.get(k) for k in ("nomfma", "noread", "noload", "nox", "now", "nobar"))
        spread = LA < self.NWR and SB >= 2
        for tt in range(self.UN):
            t = it * self.UN + tt
            pend = self.order_next(t + self.LOOK)
            lim = max(1, min((NB - 1) * SB, bpos if bpos else 1))
            per = max(1, -(-len(pend) // lim))
            xset = False
            for ks in range(KS):
                q = t * KS + ks
                for nb in range(NB):
                    f = q * NB + nb
                    for sb in range(SB):
                        m = (ks * NB + nb) * SB + sb
                        vmw = [("X", q, sb)] if (nb == 0 and not noload and not nox) else None
                        dsw = None
                        if sb == 0 and not noread and f % self.WG == 0:
                            dsw = [("R", f + i, rd) for i in range(self.WG) for rd in range(2)]
                        if vmw or dsw: st.wait(vm=vmw, ds=dsw)
                        w = self.wreg(f); x = self.xreg(q, sb)
                        a = self.acc(nb, sb)
                        wv, xv = f"v[{w}:{w+3}]", f"v[{x}:{x+3}]"
                        dj = [j for j in range(self.npieces) if pos[j] == m and not now and not noload]
                        tgt = t + self.STAGES - 1 if m > bpos else t + self.STAGES - 2
                        for j in dj: self.dma_m0(st, tgt, j)
                        if not nomfma:
                            if self.swap[nb]: st.i(f"{self.op} {a}, {xv}, {wv}, {a}")
                            else: st.i(f"{self.op} {a}, {wv}, {xv}, {a}")
                        elif dj: st.i("s_nop 0")
                        for j in dj: self.dma_ld(st, tgt, j)
                        for l in pend[:per]: st.i(l)
                        pend = pend[per:]
                        if not pend and not xset:
                            self.set_xoff(st, t + self.XT); xset = True
                        if m == bpos:
                            assert not pend
                            if not noload and not now: st.wait(vm=[("W", t + 1, j) for j in range(self.npieces)])
                            if not nobar: st.i("s_barrier")
                            self.set_woff(st, t + self.STAGES - 1)
                        if not noread:
                            if spread:
                                if sb == 0: self.wread(st, f + LA, 0)
                                if sb == SB // 2: self.wread(st, f + LA, 1)
                            elif sb == SB - 1:
                                self.wread(st, f + LA, 0); self.wread(st, f + LA, 1)
                        if not noload and nb == NB - 1 and not nox:
                            assert xset
                            self.xload(st, q + self.XT * KS, sb)
        return st
    def emit(self, pro, loop_end=None):
        A = self.A
        nit = self.NT // self.UN
        pl, bl = resolve(pro, [self.body(it) for it in range(nit)])
        for l in pl: A.e(l)
        if STAMP:
            A.e("s_waitcnt lgkmcnt(0)"); stamp(A, 4); A.e("s_waitcnt lgkmcnt(0)")
        if nit > 1:
            A.e(f"s_mov_b32 s{self.s_it}, {nit}")
            A.e(".p2align 6")
            A.label(f"{self.name}_loop")
        for l in bl: A.e(l)
        if nit > 1:
            A.e(f"s_sub_u32 s{self.s_it}, s{self.s_it}, 1")
            if loop_end: loop_end()
            A.e(f"s_cmp_lg_u32 s{self.s_it}, 0")
            A.e(f"s_cbranch_scc1 {self.name}_loop")

def lane_consts_fullline(A, T, ldw, vtmp, vpiece_base, vfrag0):
    e = A.e
    t0, t1, t2 = vtmp, vtmp + 1, vtmp + 2
    e(f"v_and_b32 v{t0}, 63, v0")
    e(f"v_lshrrev_b32 v{t1}, 3, v{t0}")
    e(f"v_mul_u32_u24 v{vpiece_base}, {ldw}, v{t1}")
    e(f"v_and_b32 v{t2}, 7, v{t0}")
    if T == 32:
        e(f"v_and_b32 v{t1}, 2, v{t1}")
        e(f"v_lshlrev_b32 v{t1}, 1, v{t1}")
    else:
        e(f"v_and_b32 v{t1}, 6, v{t1}")
    e(f"v_xor_b32 v{t2}, v{t2}, v{t1}")
    e(f"v_lshl_add_u32 v{vpiece_base}, v{t2}, 4, v{vpiece_base}")
    e(f"v_and_b32 v{t1}, 3, v{t0}")
    e(f"v_lshlrev_b32 v{vfrag0}, 3, v{t1}")
    if T == 32:
        e(f"v_lshrrev_b32 v{t1}, 5, v{t0}")
        e(f"v_lshl_add_u32 v{vfrag0}, v{t1}, 9, v{vfrag0}")
        e(f"v_bfe_u32 v{t1}, v{t0}, 2, 2")
        e(f"v_lshl_add_u32 v{vfrag0}, v{t1}, 7, v{vfrag0}")
        e(f"v_bfe_u32 v{t1}, v{t0}, 3, 1")
        e(f"v_lshl_add_u32 v{vfrag0}, v{t1}, 6, v{vfrag0}")
        e(f"v_bfe_u32 v{t1}, v{t0}, 4, 1")
        e(f"v_lshl_add_u32 v{vfrag0}, v{t1}, 5, v{vfrag0}")
        e(f"v_xor_b32 v{vfrag0+1}, 64, v{vfrag0}")
    else:
        e(f"v_lshrrev_b32 v{t1}, 2, v{t0}")
        e(f"v_lshl_add_u32 v{vfrag0}, v{t1}, 7, v{vfrag0}")
        e(f"v_bfe_u32 v{t1}, v{t0}, 3, 2")
        e(f"v_lshl_add_u32 v{vfrag0}, v{t1}, 5, v{vfrag0}")
        for i in range(1, 4):
            e(f"v_xor_b32 v{vfrag0+i}, {32*i}, v{vfrag0}")

def fullline_frag_addr(T, VF, BK, nbase):
    per = 64 // T
    def fa(stg, row, nb):
        cg, lo = divmod(nb, per)
        ro, so = nbase(stg)
        return (VF + ro + lo, so + cg * BK * 128 + row * 128)
    return fa

def blk_acc(T, pre, base, RG):
    def acc(nb, sb):
        if T == 32:
            r = base + (nb * RG + sb) * 16
            return f"{pre}[{r}:{r+15}]"
        r = base + ((nb // 2) * RG + sb // 2) * 16 + (sb % 2) * 8 + (nb % 2) * 4
        return f"{pre}[{r}:{r+3}]"
    return acc

def stats_finish(o, vs, vt, vmean_neg, vrstd):
    e = o
    for st in (8, 4, 2, 1):
        for i in range(st):
            e(f"v_add_f32 v{vs+i}, v{vs+i}, v{vs+i+st}")
    e(f"v_mov_b32 v{vt}, v{vs}")
    e("s_nop 1")
    e(f"v_permlane32_swap_b32 v{vs}, v{vt}")
    e("s_nop 1")
    e(f"v_mul_f32 v{vmean_neg}, {f2u(-1.0/D):#x}, v{vs}")
    e(f"v_mul_f32 v{vt}, {f2u(1.0/D):#x}, v{vt}")
    e(f"v_fma_f32 v{vt}, -v{vmean_neg}, v{vmean_neg}, v{vt}")
    e(f"v_max_f32 v{vt}, 0, v{vt}")
    e(f"v_add_f32 v{vt}, {f2u(1e-5):#x}, v{vt}")
    e(f"v_rsq_f32 v{vrstd}, v{vt}")
    e("s_nop 0")

def split16(o, v, v2):
    o(f"v_mov_b32 v{v2}, v{v}")
    o("s_nop 1")
    o(f"v_permlane16_swap_b32 v{v}, v{v2}")
    o("s_nop 1")

def stats_emit(A, T, packed, vt):
    e = A.e
    one = vt + 4
    e(f"v_mov_b32 v{one}, 0x3f803f80")
    for i in range(4): e(f"v_mov_b32 v{vt+i}, 0")
    for i, r in enumerate(packed):
        s = vt + 2 * ((i // 4) % 2)
        e(f"v_dot2_f32_bf16 v{s}, v{r}, v{one}, v{s}")
        e(f"v_dot2_f32_bf16 v{s+1}, v{r}, v{r}, v{s+1}")
    e("s_nop 3")
    e(f"v_permlane32_swap_b32 v{vt}, v{vt+1}")
    e(f"v_permlane32_swap_b32 v{vt+2}, v{vt+3}")
    e("s_nop 1")
    e(f"v_add_f32 v{vt}, v{vt}, v{vt+1}")
    e(f"v_add_f32 v{vt+2}, v{vt+2}, v{vt+3}")
    if T == 16:
        e("s_nop 1")
        e(f"v_permlane16_swap_b32 v{vt}, v{vt+2}")
        e("s_nop 1")
    e(f"v_add_f32 v{vt}, v{vt}, v{vt+2}")

def kernel_head(A, name, nwg):
    A.begin_kernel(name)
    A.e(f"s_cmp_ge_u32 s2, {nwg}")
    A.e(f"s_cbranch_scc1 {name}_end")
    stamp_real(A, 0); stamp(A, 1)

def kernel_tail(A, name, vgpr, accum=None):
    stamp(A, 6)
    stamp_out(A, name, 9)
    A.label(f"{name}_end")
    A.e("s_endpgm")
    A.add_desc(name, vgpr, 100, accum if accum else (vgpr + 3) // 4 * 4)

def rowmajor_lane_off(A, v, t):
    e = A.e
    e(f"v_and_b32 v{v}, 15, v0"); e(f"v_lshlrev_b32 v{v}, 11, v{v}")
    e(f"v_bfe_u32 v{t}, v0, 5, 1"); e(f"v_lshl_add_u32 v{v}, v{t}, 4, v{v}")
    e(f"v_bfe_u32 v{t}, v0, 4, 1"); e(f"v_lshl_add_u32 v{v}, v{t}, 5, v{v}")

def rowmajor_frag(i, s_lo, s_hi):
    return (s_hi if i % 2 else s_lo), (i // 2) * 64

def k_proj(A, name, K, ws_a, ka_w, final, opt=None):
    e = A.e
    opt = opt or {}
    T = 16
    BK, STAGES, XT, NWR, LA = 64, opt.get("STAGES", 4), opt.get("XT", 2), opt.get("NWR", 8), opt.get("LA", 4)
    ldw = D * 2
    kernel_head(A, name, opt.get("nwg", 256))
    e(f"s_load_dwordx2 s[4:5], s[0:1], {ka_w}")
    e(f"s_load_dwordx2 s[6:7], s[0:1], {KA['ws']}")
    if final: e(f"s_load_dwordx2 s[28:29], s[0:1], {KA['out']}")
    VP, VF, VXO, VT = 1, 3, 7, 8
    ACC, RES, WF = 16, 48, 64
    XF = WF + 4 * NWR
    NV = XF + XT * 16
    e(f"v_lshrrev_b32 v{VT+3}, 6, v0")
    lane_consts_fullline(A, T, ldw, VT, VP, VF)
    e(f"v_readfirstlane_b32 s30, v{VT+3}")
    e(f"v_lshlrev_b32 v{VXO}, 4, v{VT}")
    e("s_and_b32 s31, s2, 7"); e("s_lshr_b32 s32, s2, 3")
    e("s_lshr_b32 s33, s31, 1"); e("s_lshl_b32 s33, s33, 2"); e("s_lshr_b32 s34, s32, 3"); e("s_add_u32 s33, s33, s34")
    e("s_and_b32 s34, s31, 1"); e("s_lshl_b32 s34, s34, 3"); e("s_and_b32 s35, s32, 7"); e("s_add_u32 s34, s34, s35")
    e("s_lshl_b32 s35, s33, 2"); e("s_add_u32 s35, s35, s30")
    e(f"s_mul_i32 s36, s30, {8*ldw}"); e("s_lshl_b32 s37, s34, 7"); e("s_add_u32 s36, s36, s37")
    e(f"v_add_u32 v{VP}, s36, v{VP}")
    e(f"v_add_u32 v{VP+1}, {4*8*ldw}, v{VP}")
    e("s_lshl_b32 s40, s30, 10")
    e(f"s_mul_i32 s36, s35, {K*64}"); e(f"s_add_u32 s36, s36, {ws_a}")
    e(f"s_lshl_b32 s37, s35, 16"); e("s_lshl_b32 s38, s34, 12"); e("s_add_u32 s37, s37, s38")
    G = Gemm(A, name, T=T, NB=4, RG=1, K=K, STAGES=STAGES, XT=XT, NWR=NWR, LA=LA, WG=opt.get("WG", 2), npieces=2, stage_bytes=BK * 128,
             piece_lds=lambda j: j * 4096,
             frag_addr=fullline_frag_addr(T, VF, BK, lambda stg: (0, stg * BK * 128)),
             acc=blk_acc(T, "v", ACC, 1), wfrag0=WF, xfrag0=XF, vpiece0=VP, vxoff=VXO,
             srd_w=8, srd_x=12, s_woff=41, s_xoff=42, s_ldsw=40, s_it=43, ldw=ldw, opt=opt)
    e("s_add_u32 s44, s33, s34"); e("s_and_b32 s44, s44, 3")
    G.order_init(44)
    e(f"s_mov_b32 s10, {K * ldw}"); e("s_mov_b32 s11, 0x00020000")
    e(f"s_mov_b32 s14, {K * 64}"); e("s_mov_b32 s15, 0x00020000")
    e("s_mov_b32 s22, 4096"); e("s_mov_b32 s23, 0x00020000")
    e("s_waitcnt lgkmcnt(0)")
    e("s_mov_b32 s8, s4"); e("s_mov_b32 s9, s5")
    e("s_add_u32 s12, s6, s36"); e("s_addc_u32 s13, s7, 0")
    e("s_add_u32 s20, s6, s37"); e("s_addc_u32 s21, s7, 0")
    stamp(A, 2)
    p = Stream()
    for i in range(4):
        p.vm(f"buffer_load_dwordx4 v[{RES+4*i}:{RES+4*i+3}], v{VXO}, s[20:23], 0 offen offset:{i*1024}", ("RES", i))
    G.prologue_first(p)
    p.wait(vm=[("RES", 3)])
    for i in range(16):
        p.i(f"v_lshlrev_b32 v{ACC+2*i}, 16, v{RES+i}")
        p.i(f"v_and_b32 v{ACC+2*i+1}, 0xffff0000, v{RES+i}")
    G.prologue_reads(p)
    G.prologue_rest(p)
    G.emit(p)
    stamp(A, 5)
    st = opt.get("st", "")
    if not final:
        e("s_lshl_b32 s36, s35, 12"); e("s_lshr_b32 s37, s34, 2"); e("s_lshl_b32 s37, s37, 10"); e("s_add_u32 s36, s36, s37")
        e("s_and_b32 s37, s34, 3"); e("s_lshl_b32 s37, s37, 2"); e("s_add_u32 s36, s36, s37")
        srd_off(A, 24, "s6", "s7", WS_ST, 64 * 4096)
        for i in range(16):
            e(f"v_cvt_pk_bf16_f32 v{RES+i}, v{ACC+2*i}, v{ACC+2*i+1}")
            if i % 4 == 3:
                e(f"buffer_store_dwordx4 v[{RES+i-3}:{RES+i}], v{VXO}, s[20:23], 0 offen offset:{(i//4)*1024}{st}")
        stats_emit(A, T, [RES + i for i in range(16)], VT)
        e(f"buffer_store_dword v{VT}, v{VXO}, s[24:27], s36 offen")
    else:
        srd(A, 24, "s28", "s29", S * D * 2)
        rowmajor_lane_off(A, VT, VT + 1)
        e("s_lshl_b32 s36, s35, 16"); e("s_lshl_b32 s37, s34, 7"); e("s_add_u32 s36, s36, s37")
        e(f"s_add_u32 s37, s36, {16*2048}")
        for i in range(16):
            e(f"v_cvt_pk_bf16_f32 v{RES+i}, v{ACC+2*i}, v{ACC+2*i+1}")
        e("s_nop 0")
        for i in range(4):
            e(f"v_permlane16_swap_b32 v{RES+4*i}, v{RES+4*i+2}")
            e(f"v_permlane16_swap_b32 v{RES+4*i+1}, v{RES+4*i+3}")
        e("s_nop 1")
        for i in range(4):
            so, off = rowmajor_frag(i, "s36", "s37")
            e(f"buffer_store_dwordx4 v[{RES+4*i}:{RES+4*i+3}], v{VT}, s[24:27], {so} offen offset:{off}{st}")
    kernel_tail(A, name, NV)
    return dict(name=name, grid=opt.get("nwg", 256), block=256, lds=STAGES * BK * 128)

def k_ffn(A, name, opt=None):
    e = A.e
    opt = dict(opt or {}); opt.setdefault("skew", 0)
    T, NW = 16, 8
    BK, STAGES, XT, NWR, LA = 64, opt.get("STAGES", 4), opt.get("XT", 1), opt.get("NWR", 8), opt.get("LA", 7)
    ldw = F * 2
    NP = 4
    GU = 16384
    SBY = 2 * GU
    kernel_head(A, name, opt.get("nwg", 256))
    e(f"s_load_dwordx4 s[4:7], s[0:1], {KA['wg']}")
    e(f"s_load_dwordx2 s[28:29], s[0:1], {KA['ws']}")
    VP, VF, VXO, VMN, VRS, VT = 1, 5, 7, 8, 10, 12
    WF = 20; XF = WF + 4 * NWR
    ACC = XF + XT * 16
    SC = ACC + 112; CSR = SC + 16
    NV = CSR + 14
    e(f"v_lshrrev_b32 v{VT+3}, 6, v0")
    e(f"v_and_b32 v{VT}, 63, v0")
    e(f"v_readfirstlane_b32 s30, v{VT+3}")
    e("s_and_b32 s31, s2, 7"); e("s_lshr_b32 s32, s2, 3")
    e("s_and_b32 s33, s31, 1"); e("s_lshl_b32 s33, s33, 2"); e("s_lshr_b32 s34, s32, 3"); e("s_add_u32 s33, s33, s34")
    e("s_lshr_b32 s34, s31, 1"); e("s_lshl_b32 s34, s34, 3"); e("s_and_b32 s35, s32, 7"); e("s_add_u32 s34, s34, s35")
    e("s_lshl_b32 s35, s33, 3"); e("s_add_u32 s35, s35, s30")
    e("s_lshr_b32 s37, s30, 2")
    e("s_lshl_b32 s40, s30, 12")
    e("s_and_b32 s38, s30, 3"); e("s_lshl_b32 s38, s38, 8")
    e(f"s_mul_i32 s39, s34, 224")
    e("s_and_b32 s45, s34, 1"); e("s_lshl_b32 s46, s45, 1")
    e("s_movk_i32 s47, 4682")
    for j in range(NP):
        u, r, c = VT + 1, VT + 2, VT + 3
        e(f"v_add_u32 v{u}, s38, v{VT}")
        if j: e(f"v_add_u32 v{u}, {64*j}, v{u}")
        e(f"v_mul_u32_u24 v{r}, s47, v{u}"); e(f"v_lshrrev_b32 v{r}, 16, v{r}")
        e(f"v_mul_u32_u24 v{c}, 14, v{r}"); e(f"v_sub_u32 v{c}, v{u}, v{c}")
        e(f"v_add_u32 v{c}, s46, v{c}")
        e(f"v_subrev_u32 v{u}, 14, v{c}"); e(f"v_min_u32 v{c}, v{c}, v{u}")
        e(f"v_mul_u32_u24 v{VP+j}, {ldw}, v{r}")
        e(f"v_lshl_add_u32 v{VP+j}, v{c}, 4, v{VP+j}")
        e(f"v_add_u32 v{VP+j}, s39, v{VP+j}")
        if j >= 2:
            e(f"v_lshrrev_b32 v{r}, 6, v{r}"); e(f"v_lshl_add_u32 v{VP+j}, v{r}, 28, v{VP+j}")
    e(f"v_lshlrev_b32 v{VXO}, 4, v{VT}")
    G = Gemm(A, name, T=T, NB=14, RG=1, K=D, STAGES=STAGES, XT=XT, NWR=NWR, LA=LA, WG=opt.get("WG", 2), npieces=NP, stage_bytes=SBY,
             piece_lds=lambda j: j * 1024,
             frag_addr=lambda stg, row, nb: (VF + stg // 2, (stg % 2) * SBY + (nb % 2) * GU + row * 224 + 32 * (nb // 2)),
             acc=blk_acc(T, "v", ACC, 1), wfrag0=WF, xfrag0=XF, vpiece0=VP, vxoff=VXO,
             srd_w=8, srd_x=12, s_woff=41, s_xoff=42, s_ldsw=40, s_it=43, ldw=ldw, opt=opt)
    e("s_add_u32 s44, s33, s34"); e("s_and_b32 s44, s44, 3")
    G.order_init(44)
    e("s_lshl_b32 s36, s35, 16")
    e(f"s_mov_b32 s10, {D*ldw}"); e("s_mov_b32 s11, 0x00020000")
    e(f"s_mov_b32 s14, {D*64}"); e("s_mov_b32 s15, 0x00020000")
    e("s_cmp_eq_u32 s37, 0")
    e("s_waitcnt lgkmcnt(0)")
    e("s_cselect_b32 s8, s4, s6"); e("s_cselect_b32 s9, s5, s7")
    e("s_add_u32 s12, s28, s36"); e("s_addc_u32 s13, s29, 0")
    stamp(A, 2)
    p = Stream()
    G.prologue_first(p)
    o = p.i
    o(f"v_and_b32 v{VT+1}, 3, v{VT}"); o(f"v_lshlrev_b32 v{VF}, 3, v{VT+1}")
    o(f"v_lshrrev_b32 v{VT+1}, 2, v{VT}"); o(f"v_mul_u32_u24 v{VT+1}, 224, v{VT+1}"); o(f"v_add_u32 v{VF}, v{VF}, v{VT+1}")
    o(f"v_add_u32 v{VF+1}, {2*SBY}, v{VF}")
    o(f"v_and_b32 v{VT+1}, 15, v{VT}"); o(f"v_bfe_u32 v{VT+2}, v{VT}, 4, 1"); o(f"v_mul_u32_u24 v{VT+2}, {F}, v{VT+2}")
    o(f"v_add_lshl_u32 v{VT+1}, v{VT+1}, v{VT+2}, 4")
    o(f"v_lshrrev_b32 v{VT+2}, 5, v{VT}"); o(f"v_lshl_add_u32 v{VT+1}, v{VT+2}, 3, v{VT+1}")
    o("s_lshl_b32 s38, s35, 12"); o(f"s_add_u32 s38, s38, {WS_ST}")
    o(f"s_mul_i32 s39, s34, {112*16}"); o(f"s_add_u32 s39, s39, {WS_CS + 3072*16}")
    o("s_add_u32 s20, s28, s38"); o("s_addc_u32 s21, s29, 0"); o("s_movk_i32 s22, 4096"); o("s_mov_b32 s23, 0x00020000")
    o("s_add_u32 s24, s28, s39"); o("s_addc_u32 s25, s29, 0"); o(f"s_mov_b32 s26, {(F+112)*16}"); o("s_mov_b32 s27, 0x00020000")
    o("s_lshl_b32 s48, s45, 8")
    o("s_mul_i32 s49, s45, 1536"); o("s_sub_u32 s49, 1536, s49")
    nit = G.NT // G.UN
    o(f"s_sub_u32 s51, {nit - 1}, s37")
    for i in range(112): o(f"v_mov_b32 v{ACC+i}, 0")
    G.prologue_reads(p)
    G.prologue_rest(p)
    for i in range(4):
        p.vm(f"buffer_load_dwordx4 v[{SC+4*i}:{SC+4*i+3}], v{VXO}, s[20:23], 0 offen offset:{i*1024}", ("ST", i))
    for j in range(7):
        so, off = ("s48", j * 256) if j < 6 else ("s49", 0)
        p.vm(f"buffer_load_dwordx2 v[{CSR+2*j}:{CSR+2*j+1}], v{VT+1}, s[24:27], {so} offen offset:{off}", ("CS", j))
    def fix():
        e(f"s_cmp_lg_u32 s43, s51")
        e(f"s_cbranch_scc1 {name}_nofix")
        stats_finish(e, SC, VT + 4, VMN, VRS)
        for j in range(7): e(f"v_add_f32 v{CSR+2*j}, v{CSR+2*j}, v{CSR+2*j+1}")
        for j in range(7): e(f"v_mov_b32 v{CSR+2*j+1}, v{CSR+2*j}")
        split16(e, VRS, VRS + 1)
        for j in range(7): e(f"v_permlane32_swap_b32 v{CSR+2*j}, v{CSR+2*j+1}")
        split16(e, VMN, VT + 4)
        for j in range(7): e(f"v_add_f32 v{CSR+2*j}, v{CSR+2*j}, v{CSR+2*j+1}")
        e(f"v_permlane32_swap_b32 v{VMN}, v{VT+4}"); e("s_nop 1")
        for j in range(7):
            r = ACC + j * 16
            e(f"v_mfma_f32_16x16x1_4b_f32 v[{r}:{r+15}], v{CSR+2*j}, v{VMN}, v[{r}:{r+15}]")
        A.label(f"{name}_nofix")
    G.emit(p, loop_end=fix)
    stamp(A, 5)
    C1, C2 = SC, SC + 4
    for k in range(2):
        e(f"v_mul_f32 v{C1+2*k}, {NLOG2E:#x}, v{VRS+k}")
        e(f"v_mul_f32 v{C2+2*k}, v{VRS+k}, v{VRS+k}")
    e(f"s_mul_i32 s36, s35, {F*64}"); e(f"s_add_u32 s36, s36, {WS_H}")
    srd_off(A, 20, "s28", "s29", "s36", F * 64)
    e("s_mul_i32 s38, s34, 7"); e("s_add_u32 s38, s38, s45"); e("s_lshl_b32 s38, s38, 10")
    e("s_mul_i32 s39, s45, 8184"); e("s_add_u32 s46, s38, 6144"); e("s_sub_u32 s39, s46, s39")
    e("s_add_u32 s46, s38, 4096")
    TB = SC + 8
    OB = CSR + (CSR % 2)
    st = opt.get("st", "")
    def silu(blocks, k, out):
        for b, r in enumerate(blocks):
            for i in (0, 2): e(f"v_pk_mul_f32 v[{TB+4*b+i}:{TB+4*b+i+1}], v[{r+i}:{r+i+1}], v[{C1+2*k}:{C1+2*k+1}] op_sel_hi:[1,0]")
        for b, r in enumerate(blocks):
            for i in (0, 2): e(f"v_pk_mul_f32 v[{r+i}:{r+i+1}], v[{r+i}:{r+i+1}], v[{r+4+i}:{r+5+i}]")
        for i in range(4 * len(blocks)): e(f"v_exp_f32 v{TB+i}, v{TB+i}")
        for b, r in enumerate(blocks):
            for i in (0, 2): e(f"v_pk_mul_f32 v[{r+i}:{r+i+1}], v[{r+i}:{r+i+1}], v[{C2+2*k}:{C2+2*k+1}] op_sel_hi:[1,0]")
        for i in range(0, 4 * len(blocks), 2): e(f"v_pk_add_f32 v[{TB+i}:{TB+i+1}], v[{TB+i}:{TB+i+1}], 1.0 op_sel_hi:[1,0]")
        for i in range(4 * len(blocks)): e(f"v_rcp_f32 v{TB+i}, v{TB+i}")
        e("s_nop 0")
        for b, r in enumerate(blocks):
            for i in (0, 2): e(f"v_pk_mul_f32 v[{r+i}:{r+i+1}], v[{r+i}:{r+i+1}], v[{TB+4*b+i}:{TB+4*b+i+1}]")
        for b, r in enumerate(blocks):
            for i in (0, 2): e(f"v_cvt_pk_bf16_f32 v{out+2*b+i//2}, v{r+i}, v{r+i+1}")
    cnt = 0
    for pj in range(4):
        for sb in range(2):
            ob = OB + 4 * (cnt % 3); cnt += 1
            silu([ACC + (2 * pj + jj) * 16 + 8 * sb for jj in range(2 if pj < 3 else 1)], sb, ob)
            if pj < 3:
                so, off = ("s38", pj * 2048 + sb * 1024) if pj < 2 else ("s46", sb * 1024)
                e(f"buffer_store_dwordx4 v[{ob}:{ob+3}], v{VXO}, s[20:23], {so} offen offset:{off}{st}")
            else:
                e(f"buffer_store_dwordx2 v[{ob}:{ob+1}], v{VXO}, s[20:23], s39 offen offset:{sb*1024}{st}")
    kernel_tail(A, name, NV)
    return dict(name=name, grid=opt.get("nwg", 256), block=NW * 64, lds=STAGES * SBY)

def k_qkv(A, name, opt=None):
    e = A.e
    opt = dict(opt or {})
    T = 32
    BK, STAGES, XT, NWR, LA = 64, opt.get("STAGES", 4), opt.get("XT", 2), opt.get("NWR", 6), opt.get("LA", 6)
    ldw = 3 * D * 2
    SBY = 3 * BK * 128
    NP = 6
    kernel_head(A, name, 256)
    e(f"s_load_dwordx2 s[4:5], s[0:1], {KA['wqkv']}")
    e(f"s_load_dwordx2 s[28:29], s[0:1], {KA['ws']}")
    VP, VF, VXO, VL16, VMN, VRS, VT = 1, 7, 11, 12, 13, 14, 16
    ACC = 32; WF = ACC + 96; XF = WF + 4 * NWR; SC = XF + max(XT * 16, 48)
    CSR = SC + 16; RR = CSR + 12
    NV = RR + 16
    e(f"v_lshrrev_b32 v{VT+3}, 6, v0")
    lane_consts_fullline(A, T, ldw, VT, VP, VF)
    e(f"v_readfirstlane_b32 s30, v{VT+3}")
    e(f"v_lshlrev_b32 v{VL16}, 4, v{VT}")
    e(f"v_and_b32 v{VT+1}, 15, v{VT}"); e(f"v_lshlrev_b32 v{VXO}, 4, v{VT+1}")
    e(f"v_lshrrev_b32 v{VT+2}, 5, v{VT}"); e(f"v_lshl_add_u32 v{VXO}, v{VT+2}, 8, v{VXO}")
    e(f"v_bfe_u32 v{VT+1}, v{VT}, 4, 1"); e(f"v_lshl_add_u32 v{VXO}, v{VT+1}, 10, v{VXO}")
    e(f"v_and_b32 v{VT+1}, 31, v{VT}"); e(f"v_lshlrev_b32 v{VT+1}, 4, v{VT+1}"); e(f"v_lshl_add_u32 v{VT+1}, v{VT+2}, 3, v{VT+1}")
    e("s_and_b32 s31, s2, 7"); e("s_lshr_b32 s32, s2, 3")
    e("s_and_b32 s33, s31, 1"); e("s_lshl_b32 s33, s33, 3"); e("s_lshr_b32 s34, s32, 2"); e("s_add_u32 s33, s33, s34")
    e("s_lshr_b32 s34, s31, 1"); e("s_lshl_b32 s34, s34, 2"); e("s_and_b32 s35, s32, 3"); e("s_add_u32 s34, s34, s35")
    e("s_lshl_b32 s35, s33, 2"); e("s_add_u32 s35, s35, s30")
    e(f"s_mul_i32 s36, s30, {8*ldw}"); e("s_lshl_b32 s37, s34, 7"); e("s_add_u32 s36, s36, s37")
    e(f"v_add_u32 v{VP}, s36, v{VP}")
    for j in range(1, NP):
        e(f"v_add_u32 v{VP+j}, {(j >> 1) * 2048 + (j & 1) * 32 * ldw}, v{VP}")
    e("s_lshl_b32 s40, s30, 10")
    G = Gemm(A, name, T=T, NB=6, RG=1, K=D, STAGES=STAGES, XT=XT, NWR=NWR, LA=LA, WG=opt.get("WG", 2), npieces=NP, stage_bytes=SBY,
             piece_lds=lambda j: (j >> 1) * BK * 128 + (j & 1) * 4096,
             frag_addr=fullline_frag_addr(T, VF, BK, lambda stg: (2 * (stg // 2), (stg % 2) * SBY)),
             acc=blk_acc(T, "v", ACC, 1), wfrag0=WF, xfrag0=XF, vpiece0=VP, vxoff=VXO,
             srd_w=8, srd_x=12, s_woff=41, s_xoff=42, s_ldsw=40, s_it=43, ldw=ldw,
             swap=[nb >= 2 for nb in range(6)], opt=opt)
    e("s_add_u32 s44, s33, s34"); e("s_and_b32 s44, s44, 3")
    G.order_init(44)
    e("s_lshl_b32 s36, s35, 16")
    e("s_lshl_b32 s38, s35, 12"); e(f"s_add_u32 s38, s38, {WS_ST}")
    e("s_lshl_b32 s39, s34, 10"); e(f"s_add_u32 s39, s39, {WS_CS}")
    e("s_movk_i32 s45, 16384"); e("s_mov_b32 s46, 32768")
    e(f"s_mov_b32 s10, {D*ldw}"); e("s_mov_b32 s11, 0x00020000")
    e(f"s_mov_b32 s14, {D*64}"); e("s_mov_b32 s15, 0x00020000")
    e("s_movk_i32 s22, 4096"); e("s_mov_b32 s23, 0x00020000")
    e(f"s_mov_b32 s26, {32768+1024}"); e("s_mov_b32 s27, 0x00020000")
    e("s_waitcnt lgkmcnt(0)")
    e("s_add_u32 s20, s28, s38"); e("s_addc_u32 s21, s29, 0")
    e("s_add_u32 s24, s28, s39"); e("s_addc_u32 s25, s29, 0")
    e("s_mov_b32 s8, s4"); e("s_mov_b32 s9, s5")
    e("s_add_u32 s12, s28, s36"); e("s_addc_u32 s13, s29, 0")
    stamp(A, 2)
    p = Stream()
    for i in range(4):
        p.vm(f"buffer_load_dwordx4 v[{SC+4*i}:{SC+4*i+3}], v{VL16}, s[20:23], 0 offen offset:{i*1024}", ("ST", i))
    for b in range(6):
        so = ("0", "s45", "s46")[b // 2]
        p.vm(f"buffer_load_dwordx2 v[{CSR+2*b}:{CSR+2*b+1}], v{VT+1}, s[24:27], {so} offen offset:{(b % 2) * 512}", ("CS", b))
    G.prologue_first(p)
    for i in range(2): p.i(f"v_add_u32 v{VF+2+i}, {2*SBY}, v{VF+i}")
    p.i(f"v_mov_b32 v{VT+5}, 0.5")
    p.wait(vm=[("ST", 3)])
    stats_finish(p.i, SC, VT + 4, VMN, VRS)
    p.wait(vm=[("CS", 5)])
    for b in range(6): p.i(f"v_add_f32 v{CSR+2*b}, v{CSR+2*b}, v{CSR+2*b+1}")
    p.i("s_nop 0")
    for b in range(6):
        r = ACC + 16 * b
        if b < 2: p.i(f"v_mfma_f32_32x32x2_f32 v[{r}:{r+15}], v{CSR+2*b}, v{VMN}, 0")
        else: p.i(f"v_mfma_f32_32x32x2_f32 v[{r}:{r+15}], v{VMN}, v{CSR+2*b}, 0")
    p.i(f"v_mfma_f32_32x32x2_f32 v[{RR}:{RR+15}], v{VRS}, v{VT+5}, 0")
    G.prologue_reads(p)
    G.prologue_rest(p)
    KL = SC; QL = VRS + 1
    p.i(f"v_mul_f32 v{QL}, {LOG2E:#x}, v{VRS}")
    for i in range(16): p.i(f"v_mul_f32 v{KL+i}, {LOG2E:#x}, v{RR+i}")
    G.emit(p)
    stamp(A, 5)
    e(f"s_mov_b32 s47, {f2u(1e-6):#x}")
    e(f"s_lshl_b32 s36, s35, 16"); e("s_lshl_b32 s37, s34, 12"); e("s_add_u32 s36, s36, s37"); e(f"s_add_u32 s36, s36, {WS_PQ}")
    e("s_add_u32 s20, s28, s36"); e("s_addc_u32 s21, s29, 0")
    e("s_lshl_b32 s37, s34, 4"); e("s_add_u32 s37, s37, s33")
    e("s_lshl_b32 s38, s37, 13"); e("s_lshl_b32 s36, s30, 11"); e("s_add_u32 s38, s38, s36"); e(f"s_add_u32 s38, s38, {WS_KV}")
    e("s_add_u32 s24, s28, s38"); e("s_addc_u32 s25, s29, 0"); e("s_movk_i32 s26, 2048")
    e("s_lshl_b32 s38, s37, 8"); e(f"s_add_u32 s38, s38, {WS_Z}")
    srd_off(A, 16, "s28", "s29", "s38", 256)
    e("s_waitcnt vmcnt(0) lgkmcnt(0)")
    e("s_barrier")
    TB = VT
    def phi(regs, rs, rl, outs):
        n = len(regs)
        for i in range(n): e(f"v_mul_f32 v{TB+i}, v{regs[i]}, v{rl[i]}")
        for i in range(n): e(f"v_exp_f32 v{TB+i}, v{TB+i} clamp")
        for i in range(n): e(f"v_max_f32 v{regs[i]}, 0, v{regs[i]}")
        for i in range(0, n, 2): e(f"v_pk_add_f32 v[{TB+i}:{TB+i+1}], v[{TB+i}:{TB+i+1}], s[46:47] op_sel:[0,1]")
        for i in range(n): e(f"v_fma_f32 v{regs[i]}, v{regs[i]}, v{rs[i]}, v{TB+i}")
        for i in range(0, n, 2): e(f"v_cvt_pk_bf16_f32 v{outs[i//2]}, v{regs[i]}, v{regs[i+1]}")
    PK = WF; VV = XF; ONE = XF + 16; OB = XF + 24
    for i in range(4): e(f"v_mov_b32 v{ONE+i}, 0x3f803f80")
    KVR = ACC + 32; ZR = ACC + 64
    for hh in range(2):
        r = ACC + (2 + hh) * 16
        phi([r + i for i in range(16)], [RR + i for i in range(16)], [KL + i for i in range(16)], [PK + hh * 8 + i for i in range(8)])
        r = ACC + (4 + hh) * 16
        for i in range(0, 16, 2):
            e(f"v_pk_mul_f32 v[{r+i}:{r+i+1}], v[{r+i}:{r+i+1}], v[{RR+i}:{RR+i+1}]")
        for i in range(0, 16, 2):
            e(f"v_cvt_pk_bf16_f32 v{VV+hh*8+i//2}, v{r+i}, v{r+i+1}")
        e("s_nop 1")
        for ks in range(2):
            a = PK + hh * 8 + 4 * ks; b = VV + hh * 8 + 4 * ks
            r = KVR + hh * 16
            e(f"v_mfma_f32_32x32x16_bf16 v[{r}:{r+15}], v[{a}:{a+3}], v[{b}:{b+3}], {'0' if ks == 0 else f'v[{r}:{r+15}]'}")
        for ks in range(2):
            a = PK + hh * 8 + 4 * ks
            r = ZR + hh * 16
            e(f"v_mfma_f32_32x32x16_bf16 v[{r}:{r+15}], v[{ONE}:{ONE+3}], v[{a}:{a+3}], {'0' if ks == 0 else f'v[{r}:{r+15}]'}")
    e(f"v_and_b32 v{VP}, 0x3ff, v{VXO}"); e(f"v_lshrrev_b32 v{VP+1}, 10, v{VXO}"); e(f"v_lshl_add_u32 v{VP}, v{VP+1}, 13, v{VP}")
    e(f"v_add_u32 v{VP}, s40, v{VP}")
    e(f"v_lshrrev_b32 v{VP+2}, 2, v{VL16}"); e("s_lshl_b32 s36, s30, 8"); e(f"v_add_u32 v{VP+3}, s36, v{VP+2}")
    e("s_lshl_b32 s36, s30, 13"); e(f"v_add_u32 v{VP+1}, s36, v{VL16}")
    def q_part(hh):
        r = ACC + hh * 16
        ob = OB + hh * 8
        outs = [ob + 0, ob + 1, ob + 4, ob + 5, ob + 2, ob + 3, ob + 6, ob + 7]
        phi([r + i for i in range(16)], [VRS] * 16, [QL] * 16, outs)
        for k in range(2):
            e(f"buffer_store_dwordx4 v[{ob+4*k}:{ob+4*k+3}], v{VXO}, s[20:23], 0 offen offset:{hh*2048 + k*512}")
    q_part(0)
    for hh in range(2):
        for rq in range(4):
            r = KVR + hh * 16 + 4 * rq
            e(f"ds_write_b128 v{VP}, v[{r}:{r+3}] offset:{hh*16384 + (rq >> 1)*4096 + (rq & 1)*512}")
    e(f"v_permlane32_swap_b32 v{ZR}, v{ZR+16}")
    e("s_nop 1")
    e(f"ds_write_b32 v{VP+3}, v{ZR} offset:32768")
    e("s_waitcnt lgkmcnt(0)")
    e("s_barrier")
    RB = KVR
    for k in range(8):
        e(f"ds_read_b128 v[{RB+4*k}:{RB+4*k+3}], v{VP+1} offset:{k*1024}")
    for k in range(4):
        e(f"ds_read_b32 v{ZR+k}, v{VP+2} offset:{32768 + k*256}")
    q_part(1)
    e("s_waitcnt lgkmcnt(0)")
    for k in range(2):
        r = RB + 16 * k
        for i in (0, 2):
            e(f"v_pk_add_f32 v[{r+i}:{r+i+1}], v[{r+i}:{r+i+1}], v[{r+4+i}:{r+5+i}]")
            e(f"v_pk_add_f32 v[{r+8+i}:{r+9+i}], v[{r+8+i}:{r+9+i}], v[{r+12+i}:{r+13+i}]")
        for i in (0, 2):
            e(f"v_pk_add_f32 v[{r+i}:{r+i+1}], v[{r+i}:{r+i+1}], v[{r+8+i}:{r+9+i}]")
        e(f"buffer_store_dwordx4 v[{r}:{r+3}], v{VL16}, s[24:27], 0 offen offset:{k*1024}")
    e(f"v_pk_add_f32 v[{ZR}:{ZR+1}], v[{ZR}:{ZR+1}], v[{ZR+2}:{ZR+3}]")
    e(f"v_add_f32 v{ZR}, v{ZR}, v{ZR+1}")
    e(f"buffer_store_dword v{ZR}, v{VP+2}, s[16:19], s36 offen")
    kernel_tail(A, name, NV)
    return dict(name=name, grid=256, block=256, lds=STAGES * SBY)

def colsum_part(A, name, s_item, mats, fin):
    e = A.e
    e(f"s_lshr_b32 s31, s{s_item}, 2"); e(f"s_and_b32 s34, s{s_item}, 3")
    first, lo, hi, ld = mats[-1]
    e(f"s_mov_b32 s8, s{lo}"); e(f"s_mov_b32 s9, s{hi}"); e(f"s_mov_b32 s33, {first}"); e(f"s_mov_b32 s32, {ld}")
    for k in range(len(mats) - 2, -1, -1):
        first, lo, hi, ld = mats[k]
        e(f"s_cmp_lt_u32 s31, {mats[k+1][0]}")
        e(f"s_cselect_b32 s8, s{lo}, s8"); e(f"s_cselect_b32 s9, s{hi}, s9"); e(f"s_cselect_b32 s33, {first}, s33"); e(f"s_cselect_b32 s32, {ld}, s32")
    e("s_lshl_b32 s32, s32, 10")
    e("s_lshl_b32 s10, s32, 10"); e("s_mov_b32 s11, 0x00020000")
    e("s_sub_u32 s33, s31, s33")
    e("v_lshrrev_b32 v2, 3, v5"); e("v_mul_lo_u32 v2, s32, v2"); e("v_and_b32 v3, 7, v5"); e("v_lshl_add_u32 v2, v3, 4, v2")
    e("s_lshl_b32 s36, s34, 2"); e("s_add_u32 s36, s36, s30"); e("s_lshl_b32 s36, s36, 6"); e("s_mul_i32 s36, s36, s32")
    e("s_lshl_b32 s37, s33, 7"); e("s_add_u32 s36, s36, s37")
    e("s_lshl_b32 s37, s32, 3")
    L = 32
    for i in range(8):
        e(f"buffer_load_dwordx4 v[{L+4*i}:{L+4*i+3}], v2, s[8:11], s36 offen")
        if i < 7: e("s_add_u32 s36, s36, s37")
    for i in range(8):
        e(f"s_waitcnt vmcnt({7-i})")
        t = (8 if i == 0 else 16 + 8 * (i % 2))
        for j in range(4):
            e(f"v_lshlrev_b32 v{t+2*j}, 16, v{L+4*i+j}"); e(f"v_and_b32 v{t+2*j+1}, 0xffff0000, v{L+4*i+j}")
        if i:
            for j in range(4):
                e(f"v_pk_add_f32 v[{8+2*j}:{9+2*j}], v[{8+2*j}:{9+2*j}], v[{t+2*j}:{t+2*j+1}]")
    e("v_lshlrev_b32 v2, 5, v0")
    e("ds_write_b128 v2, v[8:11]"); e("ds_write_b128 v2, v[12:15] offset:16")
    e("s_waitcnt lgkmcnt(0)")
    e("s_barrier")
    e("s_cmp_lg_u32 s30, 0")
    e(f"s_cbranch_scc1 {fin}")
    e("v_lshlrev_b32 v2, 2, v5")
    for i in range(32):
        e(f"ds_read_b32 v{L+i}, v2 offset:{i*256}")
    e("s_lshl_b32 s36, s31, 10"); e("s_lshl_b32 s37, s34, 2"); e("s_add_u32 s36, s36, s37")
    srd_off(A, 16, "s28", "s29", WS_CS, CS_N * 16)
    e("v_lshlrev_b32 v2, 4, v5")
    e("s_waitcnt lgkmcnt(0)")
    for st in (16, 8, 4, 2, 1):
        for i in range(st): e(f"v_add_f32 v{L+i}, v{L+i}, v{L+i+st}")
    e(f"buffer_store_dword v{L}, v2, s[16:19], s36 offen")

def warm_part(A, s_item, lo, hi, size):
    e = A.e
    srd(A, 8, f"s{lo}", f"s{hi}", size)
    e(f"s_lshl_b32 s36, s{s_item}, 15")
    e("v_lshlrev_b32 v2, 4, v0")
    for i in range(8):
        e(f"buffer_load_dwordx4 v[{32+4*i}:{35+4*i}], v2, s[8:11], s36 offen")
        if i < 7: e("s_add_u32 s36, s36, 4096")

def k_attn(A, name, extra):
    e = A.e
    nwg = 256 + (448 + 224 if extra else 0)
    kernel_head(A, name, nwg)
    e(f"s_load_dwordx2 s[28:29], s[0:1], {KA['ws']}")
    if extra:
        e(f"s_load_dwordx4 s[24:27], s[0:1], {KA['wg']}")
        e(f"s_load_dwordx2 s[22:23], s[0:1], {KA['wd']}")
    VXO, VT = 1, 2
    P = 8; Z = P + 64; PQ = Z + 8
    e("v_lshrrev_b32 v4, 6, v0"); e("v_and_b32 v5, 63, v0")
    e("v_readfirstlane_b32 s30, v4")
    if extra:
        e("s_cmp_ge_u32 s2, 256")
        e(f"s_cbranch_scc1 {name}_extra")
    e(f"v_lshlrev_b32 v{VXO}, 4, v5")
    e("s_and_b32 s31, s2, 7"); e("s_lshr_b32 s32, s2, 3")
    e("s_lshl_b32 s34, s31, 2"); e("s_and_b32 s35, s32, 3"); e("s_add_u32 s34, s34, s35")
    e("s_lshr_b32 s33, s32, 2")
    e("s_lshl_b32 s35, s33, 3"); e("s_lshl_b32 s36, s30, 1"); e("s_add_u32 s35, s35, s36")
    e("s_lshr_b32 s37, s34, 1"); e("s_and_b32 s40, s34, 1")
    e("s_lshl_b32 s36, s37, 17"); e("s_lshl_b32 s41, s40, 12"); e("s_add_u32 s36, s36, s41")
    e("s_lshl_b32 s41, s30, 10"); e("s_add_u32 s36, s36, s41"); e(f"s_add_u32 s36, s36, {WS_KV}")
    e("s_lshl_b32 s37, s37, 12"); e("s_lshl_b32 s41, s40, 7"); e("s_add_u32 s37, s37, s41"); e(f"s_add_u32 s37, s37, {WS_Z}")
    e("s_lshl_b32 s38, s35, 16"); e("s_lshl_b32 s39, s34, 11"); e("s_add_u32 s38, s38, s39")
    e(f"s_add_u32 s39, s38, {WS_O}"); e(f"s_add_u32 s38, s38, {WS_PQ}")
    e("v_and_b32 v6, 15, v5"); e("v_lshlrev_b32 v6, 8, v6"); e("v_lshrrev_b32 v7, 4, v5"); e("v_lshl_add_u32 v6, v7, 4, v6")
    e("s_mov_b32 s42, 65536")
    e("s_waitcnt lgkmcnt(0)")
    srd_off(A, 8, "s28", "s29", "s36", 16 * 8192)
    srd_off(A, 20, "s28", "s29", "s37", 4096)
    srd_off(A, 12, "s28", "s29", "s38", 65536 + 2048)
    srd_off(A, 16, "s28", "s29", "s39", 65536 + 2048)
    stamp(A, 2)
    for m in range(16):
        if m: e(f"s_mov_b32 s40, {m*8192}")
        e(f"buffer_load_dwordx4 v[{P+4*m}:{P+4*m+3}], v{VXO}, s[8:11], {'s40' if m else '0'} offen")
    for k in range(2):
        e(f"buffer_load_dwordx4 v[{Z+4*k}:{Z+4*k+3}], v6, s[20:23], 0 offen offset:{k*64}")
    for i in range(4):
        e(f"buffer_load_dwordx4 v[{PQ+4*i}:{PQ+4*i+3}], v{VXO}, s[12:15], {'s42' if i >= 2 else '0'} offen offset:{(i%2)*1024}")
    e("s_lshr_b32 s41, s30, 1"); e("s_lshl_b32 s41, s41, 10"); e("s_and_b32 s40, s30, 1"); e("s_lshl_b32 s40, s40, 3"); e("s_add_u32 s41, s41, s40")
    e(f"v_add_u32 v{VT}, s41, v{VXO}")
    for m in range(2, 16):
        if m % 2 == 0: e(f"s_waitcnt vmcnt({6 + 14 - m})")
        r0 = P + 4 * (m % 2); r = P + 4 * m
        for i in (0, 2):
            e(f"v_pk_add_f32 v[{r0+i}:{r0+i+1}], v[{r0+i}:{r0+i+1}], v[{r+i}:{r+i+1}]")
    for i in (0, 2):
        e(f"v_pk_add_f32 v[{P+i}:{P+i+1}], v[{P+i}:{P+i+1}], v[{P+4+i}:{P+5+i}]")
    e(f"v_cvt_pk_bf16_f32 v{P+4}, v{P}, v{P+1}"); e(f"v_cvt_pk_bf16_f32 v{P+5}, v{P+2}, v{P+3}")
    e(f"ds_write_b64 v{VT}, v[{P+4}:{P+5}]")
    stamp(A, 4)
    e("s_waitcnt vmcnt(4)")
    for sh in (8, 4, 2, 1):
        for i in range(8):
            e(f"v_add_f32_dpp v{Z+i}, v{Z+i}, v{Z+i} row_ror:{sh} row_mask:0xf bank_mask:0xf")
    ZF = P + 16
    for i in range(4): e(f"v_cvt_pk_bf16_f32 v{ZF+i}, v{Z+2*i}, v{Z+2*i+1}")
    e("s_waitcnt lgkmcnt(0)")
    e("s_barrier")
    FR = P + 8
    for f in range(2):
        e(f"ds_read_b128 v[{FR+4*f}:{FR+4*f+3}], v{VXO} offset:{f*1024}")
    NUM = P + 20; DEN = P + 52
    e("s_waitcnt vmcnt(0)")
    for i in range(4):
        e(f"v_mfma_f32_16x16x32_bf16 v[{DEN+4*i}:{DEN+4*i+3}], v[{ZF}:{ZF+3}], v[{PQ+4*i}:{PQ+4*i+3}], 0")
    e("s_waitcnt lgkmcnt(0)")
    for i in range(4):
        for et in range(2):
            r = NUM + i * 8 + et * 4
            e(f"v_mfma_f32_16x16x32_bf16 v[{r}:{r+3}], v[{FR+4*et}:{FR+4*et+3}], v[{PQ+4*i}:{PQ+4*i+3}], 0")
    stamp(A, 5)
    for i in range(4): e(f"v_add_f32 v{DEN+4*i}, {f2u(1e-6):#x}, v{DEN+4*i}")
    for i in range(4): e(f"v_rcp_f32 v{DEN+4*i}, v{DEN+4*i}")
    e("s_nop 0")
    for i in range(4):
        r = NUM + i * 8
        for j in range(0, 8, 2):
            e(f"v_pk_mul_f32 v[{r+j}:{r+j+1}], v[{r+j}:{r+j+1}], v[{DEN+4*i}:{DEN+4*i+1}] op_sel_hi:[1,0]")
        for j in range(0, 8, 2):
            e(f"v_cvt_pk_bf16_f32 v{PQ+4*i+j//2}, v{r+j}, v{r+j+1}")
        e(f"buffer_store_dwordx4 v[{PQ+4*i}:{PQ+4*i+3}], v{VXO}, s[16:19], {'s42' if i >= 2 else '0'} offen offset:{(i%2)*1024}")
    if extra:
        e(f"s_branch {name}_fin")
        A.label(f"{name}_extra")
        e("s_waitcnt lgkmcnt(0)")
        e(f"s_cmp_ge_u32 s2, {256+448}")
        e(f"s_cbranch_scc1 {name}_warm")
        e(f"s_sub_u32 s44, s2, {256 - 48*4}")
        colsum_part(A, name, 44, [(48, 24, 25, 7), (104, 26, 27, 7)], f"{name}_fin")
        e(f"s_branch {name}_fin")
        A.label(f"{name}_warm")
        e(f"s_sub_u32 s44, s2, {256+448}")
        warm_part(A, 44, 22, 23, F * D * 2)
        A.label(f"{name}_fin")
    kernel_tail(A, name, PQ + 16)
    return dict(name=name, grid=nwg, block=256, lds=8192 if extra else 2048)

def k_prep(A, name):
    e = A.e
    kernel_head(A, name, 512)
    e(f"s_load_dwordx4 s[4:7], s[0:1], {KA['x']}")
    e(f"s_load_dwordx2 s[22:23], s[0:1], {KA['wo']}")
    e(f"s_load_dwordx2 s[28:29], s[0:1], {KA['ws']}")
    e("v_lshrrev_b32 v4, 6, v0"); e("v_and_b32 v5, 63, v0")
    e("v_readfirstlane_b32 s30, v4")
    e("v_lshlrev_b32 v1, 4, v5")
    e("s_cmp_ge_u32 s2, 256")
    e(f"s_cbranch_scc1 {name}_cs")
    e("s_lshl_b32 s31, s2, 2"); e("s_add_u32 s31, s31, s30")
    e("s_lshr_b32 s35, s31, 4"); e("s_and_b32 s34, s31, 15")
    rowmajor_lane_off(A, 2, 3)
    e("s_lshl_b32 s36, s35, 16"); e("s_lshl_b32 s37, s34, 7"); e("s_add_u32 s36, s36, s37"); e(f"s_add_u32 s37, s36, {16*2048}")
    e("s_lshl_b32 s38, s35, 16"); e("s_lshl_b32 s39, s34, 12"); e("s_add_u32 s38, s38, s39")
    e("s_waitcnt lgkmcnt(0)")
    srd(A, 8, "s4", "s5", S * D * 2)
    srd_off(A, 12, "s28", "s29", "s38", 4096)
    R = 16
    for i in range(4):
        so, off = rowmajor_frag(i, "s36", "s37")
        e(f"buffer_load_dwordx4 v[{R+4*i}:{R+4*i+3}], v2, s[8:11], {so} offen offset:{off}")
    e("s_lshl_b32 s36, s35, 12"); e("s_lshr_b32 s37, s34, 2"); e("s_lshl_b32 s37, s37, 10"); e("s_add_u32 s36, s36, s37")
    e("s_and_b32 s37, s34, 3"); e("s_lshl_b32 s37, s37, 2"); e("s_add_u32 s36, s36, s37")
    srd_off(A, 16, "s28", "s29", WS_ST, 64 * 4096)
    e("s_waitcnt vmcnt(0)")
    for i in range(4):
        e(f"v_permlane16_swap_b32 v{R+4*i}, v{R+4*i+2}")
        e(f"v_permlane16_swap_b32 v{R+4*i+1}, v{R+4*i+3}")
    e("s_nop 1")
    for i in range(4):
        e(f"buffer_store_dwordx4 v[{R+4*i}:{R+4*i+3}], v1, s[12:15], 0 offen offset:{i*1024}")
    stats_emit(A, 16, [R + i for i in range(16)], 8)
    e("buffer_store_dword v8, v1, s[16:19], s36 offen")
    e(f"s_branch {name}_fin")
    A.label(f"{name}_cs")
    e("s_waitcnt lgkmcnt(0)")
    e(f"s_cmp_ge_u32 s2, {256+192}")
    e(f"s_cbranch_scc1 {name}_warm")
    e("s_sub_u32 s44, s2, 256")
    colsum_part(A, name, 44, [(0, 6, 7, 6)], f"{name}_fin")
    e(f"s_branch {name}_fin")
    A.label(f"{name}_warm")
    e(f"s_sub_u32 s44, s2, {256+192}")
    warm_part(A, 44, 22, 23, D * D * 2)
    A.label(f"{name}_fin")
    kernel_tail(A, name, 64)
    return dict(name=name, grid=512, block=256, lds=8192)

HEADER = """; interleave_layers: (linear attention block, SwiGLU FFN) x 2, pre-LN residual ; generated by work/gen.py
"""
def build_all(path, stamp_on=False, o=None):
    global STAMP
    STAMP = stamp_on
    o = o or {}
    A = Asm()
    prep = k_prep(A, "prep_kernel")
    qkv = k_qkv(A, "qkv_kernel", o.get("qkv"))
    att1 = k_attn(A, "attn1_kernel", True)
    att = k_attn(A, "attn_kernel", False)
    wo = k_proj(A, "wo_kernel", D, WS_O, KA["wo"], False, o.get("wo"))
    ffn = k_ffn(A, "ffn_kernel", o.get("ffn"))
    dn = k_proj(A, "down_kernel", F, WS_H, KA["wd"], False, o.get("down"))
    dnf = k_proj(A, "downf_kernel", F, WS_H, KA["wd"], True, o.get("down"))
    for k in (prep, qkv, att1, wo, ffn, dn, qkv, att, wo, ffn, dnf):
        A.launch(k["name"], k["grid"], k["block"], k["lds"])
    open(path, "w").write(A.text(HEADER))

if __name__ == "__main__":
    build_all("full_stamp.s", True)
    build_all("interleave_layers__linear_attn_block__swiglu_ffn__prompt.s", False)
```

```python
import sys, math
from asmlib import Asm

S, D, F = 2048, 1024, 3584
MB = 1 << 20
WS_X, WS_PQ, WS_O, WS_H = 0, 4 * MB, 8 * MB, 12 * MB
WS_KV, WS_Z, WS_ST, WS_CS = 27 * MB, 29 * MB, 31 * MB, 31 * MB + 512 * 1024
CS_N = 10240
WS_DBG = 40 * MB
KA = dict(x=0, wqkv=8, wo=16, bx=24, wg=32, wu=40, wd=48, out=56, dbg=64, ws=72)
LOG2E = 0x3fb8aa3b
NLOG2E = 0xbfb8aa3b

def f2u(x):
    import struct
    return struct.unpack("<I", struct.pack("<f", x))[0]

class Stream:
    def __init__(self):
        self.ops = []
        self.pre = set()
    def i(self, s): self.ops.append(("i", s))
    def vm(self, s, tag): self.ops.append(("vm", s, tag))
    def ds(self, s, tag): self.ops.append(("ds", s, tag))
    def wait(self, vm=None, ds=None): self.ops.append(("w", vm, ds))

def resolve(pro, bodies):
    vq, dq = [], []
    def cnt(q, tags):
        if not tags: return None
        idx = -1
        for t in tags:
            if t in pro.pre: continue
            assert t in q, ("wait on never-issued tag", t)
            idx = max(idx, len(q) - 1 - q[::-1].index(t))
        if idx < 0: return None
        return len(q) - 1 - idx
    def run(st):
        res = []
        for op in st.ops:
            if op[0] == "vm": vq.append(op[2]); res.append(None)
            elif op[0] == "ds": dq.append(op[2]); res.append(None)
            elif op[0] == "w": res.append((cnt(vq, op[1]), cnt(dq, op[2])))
            else: res.append(None)
        return res
    def lines(st, res):
        out = []
        for op, r in zip(st.ops, res):
            if op[0] == "w":
                v, d = r
                parts = []
                if v is not None and v < 63: parts.append(f"vmcnt({v})")
                if d is not None and d < 15: parts.append(f"lgkmcnt({d})")
                if v is not None and v >= 63: parts.append("vmcnt(63)")
                if d is not None and d >= 15: parts.append("lgkmcnt(15)")
                if parts: out.append("s_waitcnt " + " ".join(parts))
            else:
                out.append(op[1])
        return out
    rp = run(pro)
    rs = [run(b) for b in bodies]
    for b in bodies[1:]:
        assert [o[1] for o in b.ops if o[0] != "w"] == [o[1] for o in bodies[0].ops if o[0] != "w"]
    merged = []
    for k in range(len(bodies[0].ops)):
        if bodies[0].ops[k][0] == "w":
            vs = [r[k][0] for r in rs if r[k][0] is not None]
            dsx = [r[k][1] for r in rs if r[k][1] is not None]
            merged.append((min(vs) if vs else None, min(dsx) if dsx else None))
        else:
            merged.append(None)
    return lines(pro, rp), lines(bodies[0], merged)

STAMP = False
def stamp(A, k):
    if STAMP:
        A.e(f"s_memtime s[{60+2*k}:{61+2*k}]")
def stamp_real(A, k):
    if STAMP:
        A.e(f"s_memrealtime s[{60+2*k}:{61+2*k}]")
def stamp_out(A, name, n):
    if not STAMP: return
    e = A.e
    e("s_waitcnt vmcnt(0) lgkmcnt(0)")
    stamp(A, n - 2)
    stamp_real(A, n - 1)
    e(f"s_load_dwordx2 s[56:57], s[0:1], {KA['ws']}")
    e(f"s_load_dword s79, s[0:1], {KA['dbg']}")
    e("s_getreg_b32 s59, hwreg(HW_REG_XCC_ID)")
    e("s_waitcnt lgkmcnt(0)")
    e("v_cmp_gt_u32 vcc, 1, v0")
    e("s_and_saveexec_b64 s[50:51], vcc")
    e(f"s_cbranch_execz {name}_end")
    srd_off(A, 52, "s56", "s57", WS_DBG, 32 * 65536)
    e("s_lshl_b32 s58, s2, 6")
    e("s_lshr_b32 s79, s79, 9"); e("s_and_b32 s79, s79, 31"); e("s_lshl_b32 s79, s79, 16"); e("s_add_u32 s58, s58, s79")
    e("v_mov_b32 v1, 0")
    for k in range(n):
        e(f"v_mov_b32 v2, s{60+2*k}")
        e(f"buffer_store_dword v2, v1, s[52:55], s58 offen offset:{4*k}")
    e(f"v_mov_b32 v2, s59")
    e(f"buffer_store_dword v2, v1, s[52:55], s58 offen offset:60")

def srd(A, r, lo, hi, size):
    A.e(f"s_mov_b32 s{r}, {lo}"); A.e(f"s_mov_b32 s{r+1}, {hi}")
    A.e(f"s_mov_b32 s{r+2}, {size}"); A.e(f"s_mov_b32 s{r+3}, 0x00020000")

def srd_off(A, r, lo, hi, off, size):
    A.e(f"s_add_u32 s{r}, {lo}, {off}"); A.e(f"s_addc_u32 s{r+1}, {hi}, 0")
    A.e(f"s_mov_b32 s{r+2}, {size}"); A.e(f"s_mov_b32 s{r+3}, 0x00020000")

class Gemm:
    def __init__(self, A, name, T, NB, RG, K, STAGES, XT, NWR, npieces, stage_bytes, piece_lds, frag_addr,
                 acc, wfrag0, xfrag0, vpiece0, vxoff, srd_w, srd_x, s_woff, s_xoff, s_ldsw, s_it, ldw, swap=None,
                 opt=None, BK=64, LA=None, WG=1):
        self.__dict__.update(locals())
        self.opt = opt or {}
        self.LA = LA or NWR
        self.kstep = 512 // T
        self.KS = BK // self.kstep
        self.SB = RG * (32 // T)
        self.NT = K // BK
        self.skew = self.opt.get("skew", 1)
        self.UN = STAGES * XT // math.gcd(STAGES, XT)
        while (self.skew and self.UN % (4 * self.skew)) or (self.UN * self.KS * NB) % NWR: self.UN *= 2
        assert self.NT % self.UN == 0, (self.NT, self.UN)
        assert self.LA <= NWR and self.LA <= self.KS * NB
        self.swap = swap or [False] * NB
        self.op = "v_mfma_f32_32x32x16_bf16" if T == 32 else "v_mfma_f32_16x16x32_bf16"
        self.XB = BK * 64
        self.LOOK = max(XT, STAGES - 1)
        self.RING = min(8, self.UN)
        if self.skew: assert self.UN % self.RING == 0 and self.LOOK <= self.RING
        self.s_tq, self.s_sd, self.s_p, self.s_t1 = 84, 92, 96, 97
        assert self.skew in (0, 1, 2)
    def order_init(self, s_r):
        A = self.A
        if not self.skew:
            A.e(f"s_mov_b32 s{self.s_woff}, {-self.BK * self.ldw & 0xffffffff:#x}")
            A.e(f"s_mov_b32 s{self.s_xoff}, {-self.XB & 0xffffffff:#x}")
            return
        A.e(f"s_mov_b32 s{self.s_p}, 0")
        for i in range(4):
            A.e(f"s_cmp_eq_u32 s{s_r}, {i}")
            A.e(f"s_cselect_b32 s{self.s_sd+i}, {3 * self.skew}, {-self.skew}")
    def order_next(self, p):
        if not self.skew: return []
        t = self.s_tq + p % self.RING; t1 = self.s_t1; NT = self.NT
        l = [f"s_add_u32 s{t}, s{self.s_p}, s{self.s_sd + (p // self.skew) % 4}",
             f"s_add_u32 s{t1}, s{t}, {NT}",
             f"s_min_u32 s{t}, s{t}, s{t1}",
             f"s_sub_u32 s{t1}, s{t}, {NT}",
             f"s_min_u32 s{t}, s{t}, s{t1}"]
        l += [f"s_cmp_ge_u32 s{self.s_p}, {NT}\n    s_cselect_b32 s{t}, {NT * self.RG}, s{t}",
              f"s_add_u32 s{self.s_p}, s{self.s_p}, 1"]
        return l
    def set_woff(self, st, p):
        if self.skew: st.i(f"s_mul_i32 s{self.s_woff}, s{self.s_tq + p % self.RING}, {self.BK * self.ldw}")
        else: st.i(f"s_add_u32 s{self.s_woff}, s{self.s_woff}, {self.BK * self.ldw}")
    def set_xoff(self, st, p):
        if self.skew: st.i(f"s_mul_i32 s{self.s_xoff}, s{self.s_tq + p % self.RING}, {self.XB}")
        else:
            assert self.RG == 1
            st.i(f"s_add_u32 s{self.s_xoff}, s{self.s_xoff}, {self.XB}")
    def wreg(self, f):
        return self.wfrag0 + (f % self.NWR) * 4
    def xreg(self, q, sb):
        return self.xfrag0 + ((q % (self.XT * self.KS)) * self.SB + sb) * 4
    def dma_m0(self, st, tile, j):
        st.i(f"s_add_u32 m0, s{self.s_ldsw}, {(tile % self.STAGES) * self.stage_bytes + self.piece_lds(j)}")
    def dma_ld(self, st, tile, j):
        st.vm(f"buffer_load_dwordx4 v{self.vpiece0 + j}, s[{self.srd_w}:{self.srd_w+3}], s{self.s_woff} offen lds", ("W", tile, j))
    def dma(self, st, tile, j):
        self.dma_m0(st, tile, j); st.i("s_nop 0"); self.dma_ld(st, tile, j)
    def xload(self, st, q, sb):
        r = self.xreg(q, sb)
        ks = q % self.KS
        if self.T == 32: rg, off = sb, (ks >> 1) * 2048 + (ks & 1) * 512
        else: rg, off = sb // 2, (ks * 2 + sb % 2) * 1024
        off = f" offset:{off}" if off else ""
        st.vm(f"buffer_load_dwordx4 v[{r}:{r+3}], v{self.vxoff + rg}, s[{self.srd_x}:{self.srd_x+3}], s{self.s_xoff} offen{off}", ("X", q, sb))
    def wread(self, st, f, rd):
        q, nb = divmod(f, self.NB)
        tile, ks = divmod(q, self.KS)
        row = (32 * (ks >> 1) + 8 * (ks & 1) + 16 * rd) if self.T == 32 else (32 * ks + 16 * rd)
        base, off = self.frag_addr(tile % self.STAGES, row, nb)
        assert 0 <= off < 65536, off
        r = self.wreg(f) + 2 * rd
        st.ds(f"ds_read_b64_tr_b16 v[{r}:{r+1}], v{base} offset:{off}", ("R", f, rd))
    def slots(self):
        tot = self.KS * self.NB * self.SB
        bpos = (self.KS * self.NB - self.LA) * self.SB
        pos = [(bpos + 2 + (j * tot) // self.npieces + self.opt.get("dma_shift", 0)) % tot for j in range(self.npieces)]
        assert len(set(pos)) == len(pos)
        return bpos, pos
    def pro_tile(self, st, t, w=True, x=True):
        bpos, pos = self.slots()
        if w and t < self.STAGES - 1:
            self.set_woff(st, t)
            for j in range(self.npieces):
                if t < self.STAGES - 2 or pos[j] > bpos:
                    self.dma(st, t, j)
        if x and t < self.XT:
            self.set_xoff(st, t)
            for ks in range(self.KS):
                for sb in range(self.SB):
                    self.xload(st, t * self.KS + ks, sb)
    def prologue_first(self, st):
        n0 = self.opt.get("first", 1)
        for t in range(n0):
            for l in self.order_next(t): st.i(l)
            if self.opt.get("xfirst"):
                self.pro_tile(st, t, w=False); self.pro_tile(st, t, x=False)
            else: self.pro_tile(st, t)
    def prologue_reads(self, st):
        st.wait(vm=[("W", 0, j) for j in range(self.npieces)])
        st.i("s_barrier")
        if STAMP: st.i("s_memtime s[66:67]\n    s_waitcnt lgkmcnt(0)")
        for f in range(self.LA):
            for rd in range(2):
                self.wread(st, f, rd)
    def prologue_rest(self, st):
        for t in range(self.opt.get("first", 1), self.LOOK):
            for l in self.order_next(t): st.i(l)
            self.pro_tile(st, t)
    def body(self, it):
        st = Stream()
        KS, NB, SB, LA = self.KS, self.NB, self.SB, self.LA
        bpos, pos = self.slots()
        o = self.opt
        nomfma, noread, noload, nox, now, nobar = (o.get(k) for k in ("nomfma", "noread", "noload", "nox", "now", "nobar"))
        spread = LA < self.NWR and SB >= 2
        for tt in range(self.UN):
            t = it * self.UN + tt
            pend = self.order_next(t + self.LOOK)
            lim = max(1, min((NB - 1) * SB, bpos if bpos else 1))
            per = max(1, -(-len(pend) // lim))
            xset = False
            for ks in range(KS):
                q = t * KS + ks
                for nb in range(NB):
                    f = q * NB + nb
                    for sb in range(SB):
                        m = (ks * NB + nb) * SB + sb
                        vmw = [("X", q, sb)] if (nb == 0 and not noload and not nox) else None
                        dsw = None
                        if sb == 0 and not noread and f % self.WG == 0:
                            dsw = [("R", f + i, rd) for i in range(self.WG) for rd in range(2)]
                        if vmw or dsw: st.wait(vm=vmw, ds=dsw)
                        w = self.wreg(f); x = self.xreg(q, sb)
                        a = self.acc(nb, sb)
                        wv, xv = f"v[{w}:{w+3}]", f"v[{x}:{x+3}]"
                        dj = [j for j in range(self.npieces) if pos[j] == m and not now and not noload]
                        tgt = t + self.STAGES - 1 if m > bpos else t + self.STAGES - 2
                        for j in dj: self.dma_m0(st, tgt, j)
                        if not nomfma:
                            if self.swap[nb]: st.i(f"{self.op} {a}, {xv}, {wv}, {a}")
                            else: st.i(f"{self.op} {a}, {wv}, {xv}, {a}")
                        elif dj: st.i("s_nop 0")
                        for j in dj: self.dma_ld(st, tgt, j)
                        for l in pend[:per]: st.i(l)
                        pend = pend[per:]
                        if not pend and not xset:
                            self.set_xoff(st, t + self.XT); xset = True
                        if m == bpos:
                            assert not pend
                            if not noload and not now: st.wait(vm=[("W", t + 1, j) for j in range(self.npieces)])
                            if not nobar: st.i("s_barrier")
                            self.set_woff(st, t + self.STAGES - 1)
                        if not noread:
                            if spread:
                                if sb == 0: self.wread(st, f + LA, 0)
                                if sb == SB // 2: self.wread(st, f + LA, 1)
                            elif sb == SB - 1:
                                self.wread(st, f + LA, 0); self.wread(st, f + LA, 1)
                        if not noload and nb == NB - 1 and not nox:
                            assert xset
                            self.xload(st, q + self.XT * KS, sb)
        return st
    def emit(self, pro, loop_end=None):
        A = self.A
        nit = self.NT // self.UN
        pl, bl = resolve(pro, [self.body(it) for it in range(nit)])
        for l in pl: A.e(l)
        if STAMP:
            A.e("s_waitcnt lgkmcnt(0)"); stamp(A, 4); A.e("s_waitcnt lgkmcnt(0)")
        if nit > 1:
            A.e(f"s_mov_b32 s{self.s_it}, {nit}")
            A.e(".p2align 6")
            A.label(f"{self.name}_loop")
        for l in bl: A.e(l)
        if nit > 1:
            A.e(f"s_sub_u32 s{self.s_it}, s{self.s_it}, 1")
            if loop_end: loop_end()
            A.e(f"s_cmp_lg_u32 s{self.s_it}, 0")
            A.e(f"s_cbranch_scc1 {self.name}_loop")

def lane_consts_fullline(A, T, ldw, vtmp, vpiece_base, vfrag0):
    e = A.e
    t0, t1, t2 = vtmp, vtmp + 1, vtmp + 2
    e(f"v_and_b32 v{t0}, 63, v0")
    e(f"v_lshrrev_b32 v{t1}, 3, v{t0}")
    e(f"v_mul_u32_u24 v{vpiece_base}, {ldw}, v{t1}")
    e(f"v_and_b32 v{t2}, 7, v{t0}")
    if T == 32:
        e(f"v_and_b32 v{t1}, 2, v{t1}")
        e(f"v_lshlrev_b32 v{t1}, 1, v{t1}")
    else:
        e(f"v_and_b32 v{t1}, 6, v{t1}")
    e(f"v_xor_b32 v{t2}, v{t2}, v{t1}")
    e(f"v_lshl_add_u32 v{vpiece_base}, v{t2}, 4, v{vpiece_base}")
    if vfrag0 is None: return
    e(f"v_and_b32 v{t1}, 3, v{t0}")
    e(f"v_lshlrev_b32 v{vfrag0}, 3, v{t1}")
    if T == 32:
        e(f"v_lshrrev_b32 v{t1}, 5, v{t0}")
        e(f"v_lshl_add_u32 v{vfrag0}, v{t1}, 9, v{vfrag0}")
        e(f"v_bfe_u32 v{t1}, v{t0}, 2, 2")
        e(f"v_lshl_add_u32 v{vfrag0}, v{t1}, 7, v{vfrag0}")
        e(f"v_bfe_u32 v{t1}, v{t0}, 3, 1")
        e(f"v_lshl_add_u32 v{vfrag0}, v{t1}, 6, v{vfrag0}")
        e(f"v_bfe_u32 v{t1}, v{t0}, 4, 1")
        e(f"v_lshl_add_u32 v{vfrag0}, v{t1}, 5, v{vfrag0}")
        e(f"v_xor_b32 v{vfrag0+1}, 64, v{vfrag0}")
    else:
        e(f"v_lshrrev_b32 v{t1}, 2, v{t0}")
        e(f"v_lshl_add_u32 v{vfrag0}, v{t1}, 7, v{vfrag0}")
        e(f"v_bfe_u32 v{t1}, v{t0}, 3, 2")
        e(f"v_lshl_add_u32 v{vfrag0}, v{t1}, 5, v{vfrag0}")
        for i in range(1, 4):
            e(f"v_xor_b32 v{vfrag0+i}, {32*i}, v{vfrag0}")

def fullline_frag_addr(T, VF, BK, nbase):
    per = 64 // T
    def fa(stg, row, nb):
        cg, lo = divmod(nb, per)
        ro, so = nbase(stg)
        return (VF + ro + lo, so + cg * BK * 128 + row * 128)
    return fa

def blk_acc(T, pre, base, RG):
    def acc(nb, sb):
        if T == 32:
            r = base + (nb * RG + sb) * 16
            return f"{pre}[{r}:{r+15}]"
        r = base + ((nb // 2) * RG + sb // 2) * 16 + (sb % 2) * 8 + (nb % 2) * 4
        return f"{pre}[{r}:{r+3}]"
    return acc

def stats_finish(o, vs, vt, vmean_neg, vrstd):
    e = o
    for st in (8, 4, 2, 1):
        for i in range(st):
            e(f"v_add_f32 v{vs+i}, v{vs+i}, v{vs+i+st}")
    e(f"v_mov_b32 v{vt}, v{vs}")
    e("s_nop 1")
    e(f"v_permlane32_swap_b32 v{vs}, v{vt}")
    e("s_nop 1")
    e(f"v_mul_f32 v{vmean_neg}, {f2u(-1.0/D):#x}, v{vs}")
    e(f"v_mul_f32 v{vt}, {f2u(1.0/D):#x}, v{vt}")
    e(f"v_fma_f32 v{vt}, -v{vmean_neg}, v{vmean_neg}, v{vt}")
    e(f"v_max_f32 v{vt}, 0, v{vt}")
    e(f"v_add_f32 v{vt}, {f2u(1e-5):#x}, v{vt}")
    e(f"v_rsq_f32 v{vrstd}, v{vt}")
    e("s_nop 0")

def split16(o, v, v2):
    o(f"v_mov_b32 v{v2}, v{v}")
    o("s_nop 1")
    o(f"v_permlane16_swap_b32 v{v}, v{v2}")
    o("s_nop 1")

def stats_emit(A, T, packed, vt):
    e = A.e
    one = vt + 4
    e(f"v_mov_b32 v{one}, 0x3f803f80")
    for i in range(4): e(f"v_mov_b32 v{vt+i}, 0")
    for i, r in enumerate(packed):
        s = vt + 2 * ((i // 4) % 2)
        e(f"v_dot2_f32_bf16 v{s}, v{r}, v{one}, v{s}")
        e(f"v_dot2_f32_bf16 v{s+1}, v{r}, v{r}, v{s+1}")
    e("s_nop 3")
    e(f"v_permlane32_swap_b32 v{vt}, v{vt+1}")
    e(f"v_permlane32_swap_b32 v{vt+2}, v{vt+3}")
    e("s_nop 1")
    e(f"v_add_f32 v{vt}, v{vt}, v{vt+1}")
    e(f"v_add_f32 v{vt+2}, v{vt+2}, v{vt+3}")
    if T == 16:
        e("s_nop 1")
        e(f"v_permlane16_swap_b32 v{vt}, v{vt+2}")
        e("s_nop 1")
    e(f"v_add_f32 v{vt}, v{vt}, v{vt+2}")

def kernel_head(A, name, nwg):
    A.begin_kernel(name)
    A.e(f"s_cmp_ge_u32 s2, {nwg}")
    A.e(f"s_cbranch_scc1 {name}_end")
    stamp_real(A, 0); stamp(A, 1)

def kernel_tail(A, name, vgpr, accum=None):
    stamp(A, 6)
    stamp_out(A, name, 9)
    A.label(f"{name}_end")
    A.e("s_endpgm")
    A.add_desc(name, vgpr, 100, accum if accum else (vgpr + 3) // 4 * 4)

def rowmajor_lane_off(A, v, t):
    e = A.e
    e(f"v_and_b32 v{v}, 15, v0"); e(f"v_lshlrev_b32 v{v}, 11, v{v}")
    e(f"v_bfe_u32 v{t}, v0, 5, 1"); e(f"v_lshl_add_u32 v{v}, v{t}, 4, v{v}")
    e(f"v_bfe_u32 v{t}, v0, 4, 1"); e(f"v_lshl_add_u32 v{v}, v{t}, 5, v{v}")

def rowmajor_frag(i, s_lo, s_hi):
    return (s_hi if i % 2 else s_lo), (i // 2) * 64

def k_proj(A, name, K, ws_a, ka_w, final, opt=None):
    e = A.e
    opt = opt or {}
    T = 16
    BK, STAGES, XT, NWR, LA = 64, opt.get("STAGES", 4), opt.get("XT", 2), opt.get("NWR", 8), opt.get("LA", 4)
    ldw = D * 2
    kernel_head(A, name, opt.get("nwg", 256))
    e(f"s_load_dwordx2 s[4:5], s[0:1], {ka_w}")
    e(f"s_load_dwordx2 s[6:7], s[0:1], {KA['ws']}")
    if final: e(f"s_load_dwordx2 s[28:29], s[0:1], {KA['out']}")
    VP, VF, VXO, VT = 1, 3, 7, 8
    ACC, RES, WF = 16, 48, 64
    XF = WF + 4 * NWR
    NV = XF + XT * 16
    e(f"v_lshrrev_b32 v{VT+3}, 6, v0")
    lane_consts_fullline(A, T, ldw, VT, VP, VF)
    e(f"v_readfirstlane_b32 s30, v{VT+3}")
    e(f"v_lshlrev_b32 v{VXO}, 4, v{VT}")
    e("s_and_b32 s31, s2, 7"); e("s_lshr_b32 s32, s2, 3")
    e("s_lshr_b32 s33, s31, 1"); e("s_lshl_b32 s33, s33, 2"); e("s_lshr_b32 s34, s32, 3"); e("s_add_u32 s33, s33, s34")
    e("s_and_b32 s34, s31, 1"); e("s_lshl_b32 s34, s34, 3"); e("s_and_b32 s35, s32, 7"); e("s_add_u32 s34, s34, s35")
    e("s_lshl_b32 s35, s33, 2"); e("s_add_u32 s35, s35, s30")
    e(f"s_mul_i32 s36, s30, {8*ldw}"); e("s_lshl_b32 s37, s34, 7"); e("s_add_u32 s36, s36, s37")
    e(f"v_add_u32 v{VP}, s36, v{VP}")
    e(f"v_add_u32 v{VP+1}, {4*8*ldw}, v{VP}")
    e("s_lshl_b32 s40, s30, 10")
    e(f"s_mul_i32 s36, s35, {K*64}"); e(f"s_add_u32 s36, s36, {ws_a}")
    e(f"s_lshl_b32 s37, s35, 16"); e("s_lshl_b32 s38, s34, 12"); e("s_add_u32 s37, s37, s38")
    G = Gemm(A, name, T=T, NB=4, RG=1, K=K, STAGES=STAGES, XT=XT, NWR=NWR, LA=LA, WG=opt.get("WG", 2), npieces=2, stage_bytes=BK * 128,
             piece_lds=lambda j: j * 4096,
             frag_addr=fullline_frag_addr(T, VF, BK, lambda stg: (0, stg * BK * 128)),
             acc=blk_acc(T, "v", ACC, 1), wfrag0=WF, xfrag0=XF, vpiece0=VP, vxoff=VXO,
             srd_w=8, srd_x=12, s_woff=41, s_xoff=42, s_ldsw=40, s_it=43, ldw=ldw, opt=opt)
    e("s_add_u32 s44, s33, s34"); e("s_and_b32 s44, s44, 3")
    G.order_init(44)
    e(f"s_mov_b32 s10, {K * ldw}"); e("s_mov_b32 s11, 0x00020000")
    e(f"s_mov_b32 s14, {K * 64}"); e("s_mov_b32 s15, 0x00020000")
    e("s_mov_b32 s22, 4096"); e("s_mov_b32 s23, 0x00020000")
    e("s_waitcnt lgkmcnt(0)")
    e("s_mov_b32 s8, s4"); e("s_mov_b32 s9, s5")
    e("s_add_u32 s12, s6, s36"); e("s_addc_u32 s13, s7, 0")
    e("s_add_u32 s20, s6, s37"); e("s_addc_u32 s21, s7, 0")
    stamp(A, 2)
    p = Stream()
    for i in range(4):
        p.vm(f"buffer_load_dwordx4 v[{RES+4*i}:{RES+4*i+3}], v{VXO}, s[20:23], 0 offen offset:{i*1024}", ("RES", i))
    G.prologue_first(p)
    p.wait(vm=[("RES", 3)])
    for i in range(16):
        p.i(f"v_lshlrev_b32 v{ACC+2*i}, 16, v{RES+i}")
        p.i(f"v_and_b32 v{ACC+2*i+1}, 0xffff0000, v{RES+i}")
    G.prologue_reads(p)
    G.prologue_rest(p)
    G.emit(p)
    stamp(A, 5)
    st = opt.get("st", "")
    if not final:
        e("s_lshl_b32 s36, s35, 12"); e("s_lshr_b32 s37, s34, 2"); e("s_lshl_b32 s37, s37, 10"); e("s_add_u32 s36, s36, s37")
        e("s_and_b32 s37, s34, 3"); e("s_lshl_b32 s37, s37, 2"); e("s_add_u32 s36, s36, s37")
        srd_off(A, 24, "s6", "s7", WS_ST, 64 * 4096)
        for i in range(16):
            e(f"v_cvt_pk_bf16_f32 v{RES+i}, v{ACC+2*i}, v{ACC+2*i+1}")
            if i % 4 == 3:
                e(f"buffer_store_dwordx4 v[{RES+i-3}:{RES+i}], v{VXO}, s[20:23], 0 offen offset:{(i//4)*1024}{st}")
        stats_emit(A, T, [RES + i for i in range(16)], VT)
        e(f"buffer_store_dword v{VT}, v{VXO}, s[24:27], s36 offen")
    else:
        srd(A, 24, "s28", "s29", S * D * 2)
        rowmajor_lane_off(A, VT, VT + 1)
        e("s_lshl_b32 s36, s35, 16"); e("s_lshl_b32 s37, s34, 7"); e("s_add_u32 s36, s36, s37")
        e(f"s_add_u32 s37, s36, {16*2048}")
        for i in range(16):
            e(f"v_cvt_pk_bf16_f32 v{RES+i}, v{ACC+2*i}, v{ACC+2*i+1}")
        e("s_nop 0")
        for i in range(4):
            e(f"v_permlane16_swap_b32 v{RES+4*i}, v{RES+4*i+2}")
            e(f"v_permlane16_swap_b32 v{RES+4*i+1}, v{RES+4*i+3}")
        e("s_nop 1")
        for i in range(4):
            so, off = rowmajor_frag(i, "s36", "s37")
            e(f"buffer_store_dwordx4 v[{RES+4*i}:{RES+4*i+3}], v{VT}, s[24:27], {so} offen offset:{off}{st}")
    kernel_tail(A, name, NV)
    return dict(name=name, grid=opt.get("nwg", 256), block=256, lds=STAGES * BK * 128)

def k_ffn(A, name, opt=None):
    e = A.e
    opt = dict(opt or {}); opt.setdefault("skew", 0)
    T, NW = 16, 8
    BK, STAGES, XT, NWR, LA = 64, opt.get("STAGES", 4), opt.get("XT", 1), opt.get("NWR", 8), opt.get("LA", 7)
    ldw = F * 2
    NP = 4
    GU = 16384
    SBY = 2 * GU
    kernel_head(A, name, opt.get("nwg", 256))
    e(f"s_load_dwordx4 s[4:7], s[0:1], {KA['wg']}")
    e(f"s_load_dwordx2 s[28:29], s[0:1], {KA['ws']}")
    VP, VF, VXO, VMN, VRS, VT = 1, 5, 7, 8, 10, 12
    WF = 20; XF = WF + 4 * NWR
    ACC = XF + XT * 16
    SC = ACC + 112; CSR = SC + 16
    NV = CSR + 14
    e(f"v_lshrrev_b32 v{VT+3}, 6, v0")
    e(f"v_and_b32 v{VT}, 63, v0")
    e(f"v_readfirstlane_b32 s30, v{VT+3}")
    e("s_and_b32 s31, s2, 7"); e("s_lshr_b32 s32, s2, 3")
    e("s_and_b32 s33, s31, 1"); e("s_lshl_b32 s33, s33, 2"); e("s_lshr_b32 s34, s32, 3"); e("s_add_u32 s33, s33, s34")
    e("s_lshr_b32 s34, s31, 1"); e("s_lshl_b32 s34, s34, 3"); e("s_and_b32 s35, s32, 7"); e("s_add_u32 s34, s34, s35")
    e("s_lshl_b32 s35, s33, 3"); e("s_add_u32 s35, s35, s30")
    e("s_lshr_b32 s37, s30, 2")
    e("s_lshl_b32 s40, s30, 12")
    e("s_and_b32 s38, s30, 3"); e("s_lshl_b32 s38, s38, 8")
    e(f"s_mul_i32 s39, s34, 224")
    e("s_and_b32 s45, s34, 1"); e("s_lshl_b32 s46, s45, 1")
    e("s_movk_i32 s47, 4682")
    for j in range(NP):
        u, r, c = VT + 1, VT + 2, VT + 3
        e(f"v_add_u32 v{u}, s38, v{VT}")
        if j: e(f"v_add_u32 v{u}, {64*j}, v{u}")
        e(f"v_mul_u32_u24 v{r}, s47, v{u}"); e(f"v_lshrrev_b32 v{r}, 16, v{r}")
        e(f"v_mul_u32_u24 v{c}, 14, v{r}"); e(f"v_sub_u32 v{c}, v{u}, v{c}")
        e(f"v_add_u32 v{c}, s46, v{c}")
        e(f"v_subrev_u32 v{u}, 14, v{c}"); e(f"v_min_u32 v{c}, v{c}, v{u}")
        e(f"v_mul_u32_u24 v{VP+j}, {ldw}, v{r}")
        e(f"v_lshl_add_u32 v{VP+j}, v{c}, 4, v{VP+j}")
        e(f"v_add_u32 v{VP+j}, s39, v{VP+j}")
        if j >= 2:
            e(f"v_lshrrev_b32 v{r}, 6, v{r}"); e(f"v_lshl_add_u32 v{VP+j}, v{r}, 28, v{VP+j}")
    e(f"v_lshlrev_b32 v{VXO}, 4, v{VT}")
    G = Gemm(A, name, T=T, NB=14, RG=1, K=D, STAGES=STAGES, XT=XT, NWR=NWR, LA=LA, WG=opt.get("WG", 2), npieces=NP, stage_bytes=SBY,
             piece_lds=lambda j: j * 1024,
             frag_addr=lambda stg, row, nb: (VF + stg // 2, (stg % 2) * SBY + (nb % 2) * GU + row * 224 + 32 * (nb // 2)),
             acc=blk_acc(T, "v", ACC, 1), wfrag0=WF, xfrag0=XF, vpiece0=VP, vxoff=VXO,
             srd_w=8, srd_x=12, s_woff=41, s_xoff=42, s_ldsw=40, s_it=43, ldw=ldw, opt=opt)
    e("s_add_u32 s44, s33, s34"); e("s_and_b32 s44, s44, 3")
    G.order_init(44)
    e("s_lshl_b32 s36, s35, 16")
    e(f"s_mov_b32 s10, {D*ldw}"); e("s_mov_b32 s11, 0x00020000")
    e(f"s_mov_b32 s14, {D*64}"); e("s_mov_b32 s15, 0x00020000")
    e("s_cmp_eq_u32 s37, 0")
    e("s_waitcnt lgkmcnt(0)")
    e("s_cselect_b32 s8, s4, s6"); e("s_cselect_b32 s9, s5, s7")
    e("s_add_u32 s12, s28, s36"); e("s_addc_u32 s13, s29, 0")
    stamp(A, 2)
    p = Stream()
    G.prologue_first(p)
    o = p.i
    o(f"v_and_b32 v{VT+1}, 3, v{VT}"); o(f"v_lshlrev_b32 v{VF}, 3, v{VT+1}")
    o(f"v_lshrrev_b32 v{VT+1}, 2, v{VT}"); o(f"v_mul_u32_u24 v{VT+1}, 224, v{VT+1}"); o(f"v_add_u32 v{VF}, v{VF}, v{VT+1}")
    o(f"v_add_u32 v{VF+1}, {2*SBY}, v{VF}")
    o(f"v_and_b32 v{VT+1}, 15, v{VT}"); o(f"v_bfe_u32 v{VT+2}, v{VT}, 4, 1"); o(f"v_mul_u32_u24 v{VT+2}, {F}, v{VT+2}")
    o(f"v_add_lshl_u32 v{VT+1}, v{VT+1}, v{VT+2}, 4")
    o(f"v_lshrrev_b32 v{VT+2}, 5, v{VT}"); o(f"v_lshl_add_u32 v{VT+1}, v{VT+2}, 3, v{VT+1}")
    o("s_lshl_b32 s38, s35, 12"); o(f"s_add_u32 s38, s38, {WS_ST}")
    o(f"s_mul_i32 s39, s34, {112*16}"); o(f"s_add_u32 s39, s39, {WS_CS + 3072*16}")
    o("s_add_u32 s20, s28, s38"); o("s_addc_u32 s21, s29, 0"); o("s_movk_i32 s22, 4096"); o("s_mov_b32 s23, 0x00020000")
    o("s_add_u32 s24, s28, s39"); o("s_addc_u32 s25, s29, 0"); o(f"s_mov_b32 s26, {(F+112)*16}"); o("s_mov_b32 s27, 0x00020000")
    o("s_lshl_b32 s48, s45, 8")
    o("s_mul_i32 s49, s45, 1536"); o("s_sub_u32 s49, 1536, s49")
    nit = G.NT // G.UN
    o(f"s_sub_u32 s51, {nit - 1}, s37")
    for i in range(112): o(f"v_mov_b32 v{ACC+i}, 0")
    G.prologue_reads(p)
    G.prologue_rest(p)
    for i in range(4):
        p.vm(f"buffer_load_dwordx4 v[{SC+4*i}:{SC+4*i+3}], v{VXO}, s[20:23], 0 offen offset:{i*1024}", ("ST", i))
    for j in range(7):
        so, off = ("s48", j * 256) if j < 6 else ("s49", 0)
        p.vm(f"buffer_load_dwordx2 v[{CSR+2*j}:{CSR+2*j+1}], v{VT+1}, s[24:27], {so} offen offset:{off}", ("CS", j))
    def fix():
        e(f"s_cmp_lg_u32 s43, s51")
        e(f"s_cbranch_scc1 {name}_nofix")
        stats_finish(e, SC, VT + 4, VMN, VRS)
        for j in range(7): e(f"v_add_f32 v{CSR+2*j}, v{CSR+2*j}, v{CSR+2*j+1}")
        for j in range(7): e(f"v_mov_b32 v{CSR+2*j+1}, v{CSR+2*j}")
        split16(e, VRS, VRS + 1)
        for j in range(7): e(f"v_permlane32_swap_b32 v{CSR+2*j}, v{CSR+2*j+1}")
        split16(e, VMN, VT + 4)
        for j in range(7): e(f"v_add_f32 v{CSR+2*j}, v{CSR+2*j}, v{CSR+2*j+1}")
        e(f"v_permlane32_swap_b32 v{VMN}, v{VT+4}"); e("s_nop 1")
        for j in range(7):
            r = ACC + j * 16
            e(f"v_mfma_f32_16x16x1_4b_f32 v[{r}:{r+15}], v{CSR+2*j}, v{VMN}, v[{r}:{r+15}]")
        A.label(f"{name}_nofix")
    G.emit(p, loop_end=fix)
    stamp(A, 5)
    C1, C2 = SC, SC + 4
    for k in range(2):
        e(f"v_mul_f32 v{C1+2*k}, {NLOG2E:#x}, v{VRS+k}")
        e(f"v_mul_f32 v{C2+2*k}, v{VRS+k}, v{VRS+k}")
    e(f"s_mul_i32 s36, s35, {F*64}"); e(f"s_add_u32 s36, s36, {WS_H}")
    srd_off(A, 20, "s28", "s29", "s36", F * 64)
    e("s_mul_i32 s38, s34, 7"); e("s_add_u32 s38, s38, s45"); e("s_lshl_b32 s38, s38, 10")
    e("s_mul_i32 s39, s45, 8184"); e("s_add_u32 s46, s38, 6144"); e("s_sub_u32 s39, s46, s39")
    e("s_add_u32 s46, s38, 4096")
    TB = SC + 8
    OB = CSR + (CSR % 2)
    st = opt.get("st", "")
    def silu(blocks, k, out):
        for b, r in enumerate(blocks):
            for i in (0, 2): e(f"v_pk_mul_f32 v[{TB+4*b+i}:{TB+4*b+i+1}], v[{r+i}:{r+i+1}], v[{C1+2*k}:{C1+2*k+1}] op_sel_hi:[1,0]")
        for b, r in enumerate(blocks):
            for i in (0, 2): e(f"v_pk_mul_f32 v[{r+i}:{r+i+1}], v[{r+i}:{r+i+1}], v[{r+4+i}:{r+5+i}]")
        for i in range(4 * len(blocks)): e(f"v_exp_f32 v{TB+i}, v{TB+i}")
        for b, r in enumerate(blocks):
            for i in (0, 2): e(f"v_pk_mul_f32 v[{r+i}:{r+i+1}], v[{r+i}:{r+i+1}], v[{C2+2*k}:{C2+2*k+1}] op_sel_hi:[1,0]")
        for i in range(0, 4 * len(blocks), 2): e(f"v_pk_add_f32 v[{TB+i}:{TB+i+1}], v[{TB+i}:{TB+i+1}], 1.0 op_sel_hi:[1,0]")
        for i in range(4 * len(blocks)): e(f"v_rcp_f32 v{TB+i}, v{TB+i}")
        e("s_nop 0")
        for b, r in enumerate(blocks):
            for i in (0, 2): e(f"v_pk_mul_f32 v[{r+i}:{r+i+1}], v[{r+i}:{r+i+1}], v[{TB+4*b+i}:{TB+4*b+i+1}]")
        for b, r in enumerate(blocks):
            for i in (0, 2): e(f"v_cvt_pk_bf16_f32 v{out+2*b+i//2}, v{r+i}, v{r+i+1}")
    cnt = 0
    for pj in range(4):
        for sb in range(2):
            ob = OB + 4 * (cnt % 3); cnt += 1
            silu([ACC + (2 * pj + jj) * 16 + 8 * sb for jj in range(2 if pj < 3 else 1)], sb, ob)
            if pj < 3:
                so, off = ("s38", pj * 2048 + sb * 1024) if pj < 2 else ("s46", sb * 1024)
                e(f"buffer_store_dwordx4 v[{ob}:{ob+3}], v{VXO}, s[20:23], {so} offen offset:{off}{st}")
            else:
                e(f"buffer_store_dwordx2 v[{ob}:{ob+1}], v{VXO}, s[20:23], s39 offen offset:{sb*1024}{st}")
    kernel_tail(A, name, NV)
    return dict(name=name, grid=opt.get("nwg", 256), block=NW * 64, lds=STAGES * SBY)

def k_qkv(A, name, opt=None):
    e = A.e
    opt = dict(opt or {})
    T = 32
    BK, STAGES, XT, NWR, LA = 64, opt.get("STAGES", 4), opt.get("XT", 2), opt.get("NWR", 6), opt.get("LA", 6)
    ldw = 3 * D * 2
    SBY = 3 * BK * 128
    NP = 6
    kernel_head(A, name, 256)
    e(f"s_load_dwordx2 s[4:5], s[0:1], {KA['wqkv']}")
    e(f"s_load_dwordx2 s[28:29], s[0:1], {KA['ws']}")
    VP, VF, VXO, VL16, VMN, VRS, VT = 1, 7, 11, 12, 13, 14, 16
    ACC = 32; WF = ACC + 96; XF = WF + 4 * NWR; SC = XF + max(XT * 16, 48)
    CSR = SC + 16; RR = CSR + 12
    NV = RR + 16
    e(f"v_lshrrev_b32 v{VT+3}, 6, v0")
    lane_consts_fullline(A, T, ldw, VT, VP, VF)
    e(f"v_readfirstlane_b32 s30, v{VT+3}")
    e(f"v_lshlrev_b32 v{VL16}, 4, v{VT}")
    e(f"v_and_b32 v{VT+1}, 15, v{VT}"); e(f"v_lshlrev_b32 v{VXO}, 4, v{VT+1}")
    e(f"v_lshrrev_b32 v{VT+2}, 5, v{VT}"); e(f"v_lshl_add_u32 v{VXO}, v{VT+2}, 8, v{VXO}")
    e(f"v_bfe_u32 v{VT+1}, v{VT}, 4, 1"); e(f"v_lshl_add_u32 v{VXO}, v{VT+1}, 10, v{VXO}")
    e(f"v_and_b32 v{VT+1}, 31, v{VT}"); e(f"v_lshlrev_b32 v{VT+1}, 4, v{VT+1}"); e(f"v_lshl_add_u32 v{VT+1}, v{VT+2}, 3, v{VT+1}")
    e("s_and_b32 s31, s2, 7"); e("s_lshr_b32 s32, s2, 3")
    e("s_and_b32 s33, s31, 1"); e("s_lshl_b32 s33, s33, 3"); e("s_lshr_b32 s34, s32, 2"); e("s_add_u32 s33, s33, s34")
    e("s_lshr_b32 s34, s31, 1"); e("s_lshl_b32 s34, s34, 2"); e("s_and_b32 s35, s32, 3"); e("s_add_u32 s34, s34, s35")
    e("s_lshl_b32 s35, s33, 2"); e("s_add_u32 s35, s35, s30")
    e(f"s_mul_i32 s36, s30, {8*ldw}"); e("s_lshl_b32 s37, s34, 7"); e("s_add_u32 s36, s36, s37")
    e(f"v_add_u32 v{VP}, s36, v{VP}")
    for j in range(1, NP):
        e(f"v_add_u32 v{VP+j}, {(j >> 1) * 2048 + (j & 1) * 32 * ldw}, v{VP}")
    e("s_lshl_b32 s40, s30, 10")
    G = Gemm(A, name, T=T, NB=6, RG=1, K=D, STAGES=STAGES, XT=XT, NWR=NWR, LA=LA, WG=opt.get("WG", 2), npieces=NP, stage_bytes=SBY,
             piece_lds=lambda j: (j >> 1) * BK * 128 + (j & 1) * 4096,
             frag_addr=fullline_frag_addr(T, VF, BK, lambda stg: (2 * (stg // 2), (stg % 2) * SBY)),
             acc=blk_acc(T, "v", ACC, 1), wfrag0=WF, xfrag0=XF, vpiece0=VP, vxoff=VXO,
             srd_w=8, srd_x=12, s_woff=41, s_xoff=42, s_ldsw=40, s_it=43, ldw=ldw,
             swap=[nb >= 2 for nb in range(6)], opt=opt)
    e("s_add_u32 s44, s33, s34"); e("s_and_b32 s44, s44, 3")
    G.order_init(44)
    e("s_lshl_b32 s36, s35, 16")
    e("s_lshl_b32 s38, s35, 12"); e(f"s_add_u32 s38, s38, {WS_ST}")
    e("s_lshl_b32 s39, s34, 10"); e(f"s_add_u32 s39, s39, {WS_CS}")
    e("s_movk_i32 s45, 16384"); e("s_mov_b32 s46, 32768")
    e(f"s_mov_b32 s10, {D*ldw}"); e("s_mov_b32 s11, 0x00020000")
    e(f"s_mov_b32 s14, {D*64}"); e("s_mov_b32 s15, 0x00020000")
    e("s_movk_i32 s22, 4096"); e("s_mov_b32 s23, 0x00020000")
    e(f"s_mov_b32 s26, {32768+1024}"); e("s_mov_b32 s27, 0x00020000")
    e("s_waitcnt lgkmcnt(0)")
    e("s_add_u32 s20, s28, s38"); e("s_addc_u32 s21, s29, 0")
    e("s_add_u32 s24, s28, s39"); e("s_addc_u32 s25, s29, 0")
    e("s_mov_b32 s8, s4"); e("s_mov_b32 s9, s5")
    e("s_add_u32 s12, s28, s36"); e("s_addc_u32 s13, s29, 0")
    stamp(A, 2)
    p = Stream()
    for i in range(4):
        p.vm(f"buffer_load_dwordx4 v[{SC+4*i}:{SC+4*i+3}], v{VL16}, s[20:23], 0 offen offset:{i*1024}", ("ST", i))
    for b in range(6):
        so = ("0", "s45", "s46")[b // 2]
        p.vm(f"buffer_load_dwordx2 v[{CSR+2*b}:{CSR+2*b+1}], v{VT+1}, s[24:27], {so} offen offset:{(b % 2) * 512}", ("CS", b))
    G.prologue_first(p)
    for i in range(2): p.i(f"v_add_u32 v{VF+2+i}, {2*SBY}, v{VF+i}")
    p.i(f"v_mov_b32 v{VT+5}, 0.5")
    p.wait(vm=[("ST", 3)])
    stats_finish(p.i, SC, VT + 4, VMN, VRS)
    p.wait(vm=[("CS", 5)])
    for b in range(6): p.i(f"v_add_f32 v{CSR+2*b}, v{CSR+2*b}, v{CSR+2*b+1}")
    p.i("s_nop 0")
    for b in range(6):
        r = ACC + 16 * b
        if b < 2: p.i(f"v_mfma_f32_32x32x2_f32 v[{r}:{r+15}], v{CSR+2*b}, v{VMN}, 0")
        else: p.i(f"v_mfma_f32_32x32x2_f32 v[{r}:{r+15}], v{VMN}, v{CSR+2*b}, 0")
    p.i(f"v_mfma_f32_32x32x2_f32 v[{RR}:{RR+15}], v{VRS}, v{VT+5}, 0")
    G.prologue_reads(p)
    G.prologue_rest(p)
    KL = SC; QL = VRS + 1
    p.i(f"v_mul_f32 v{QL}, {LOG2E:#x}, v{VRS}")
    for i in range(16): p.i(f"v_mul_f32 v{KL+i}, {LOG2E:#x}, v{RR+i}")
    G.emit(p)
    stamp(A, 5)
    e(f"s_mov_b32 s47, {f2u(1e-6):#x}")
    e(f"s_lshl_b32 s36, s35, 16"); e("s_lshl_b32 s37, s34, 12"); e("s_add_u32 s36, s36, s37"); e(f"s_add_u32 s36, s36, {WS_PQ}")
    e("s_add_u32 s20, s28, s36"); e("s_addc_u32 s21, s29, 0")
    e("s_lshl_b32 s37, s34, 4"); e("s_add_u32 s37, s37, s33")
    e("s_lshl_b32 s38, s37, 13"); e("s_lshl_b32 s36, s30, 11"); e("s_add_u32 s38, s38, s36"); e(f"s_add_u32 s38, s38, {WS_KV}")
    e("s_add_u32 s24, s28, s38"); e("s_addc_u32 s25, s29, 0"); e("s_movk_i32 s26, 2048")
    e("s_lshl_b32 s38, s37, 8"); e(f"s_add_u32 s38, s38, {WS_Z}")
    srd_off(A, 16, "s28", "s29", "s38", 256)
    e("s_waitcnt vmcnt(0) lgkmcnt(0)")
    e("s_barrier")
    TB = VT
    def phi(regs, rs, rl, outs):
        n = len(regs)
        for i in range(n): e(f"v_mul_f32 v{TB+i}, v{regs[i]}, v{rl[i]}")
        for i in range(n): e(f"v_exp_f32 v{TB+i}, v{TB+i} clamp")
        for i in range(n): e(f"v_max_f32 v{regs[i]}, 0, v{regs[i]}")
        for i in range(0, n, 2): e(f"v_pk_add_f32 v[{TB+i}:{TB+i+1}], v[{TB+i}:{TB+i+1}], s[46:47] op_sel:[0,1]")
        for i in range(n): e(f"v_fma_f32 v{regs[i]}, v{regs[i]}, v{rs[i]}, v{TB+i}")
        for i in range(0, n, 2): e(f"v_cvt_pk_bf16_f32 v{outs[i//2]}, v{regs[i]}, v{regs[i+1]}")
    PK = WF; VV = XF; ONE = XF + 16; OB = XF + 24
    for i in range(4): e(f"v_mov_b32 v{ONE+i}, 0x3f803f80")
    KVR = ACC + 32; ZR = ACC + 64
    for hh in range(2):
        r = ACC + (2 + hh) * 16
        phi([r + i for i in range(16)], [RR + i for i in range(16)], [KL + i for i in range(16)], [PK + hh * 8 + i for i in range(8)])
        r = ACC + (4 + hh) * 16
        for i in range(0, 16, 2):
            e(f"v_pk_mul_f32 v[{r+i}:{r+i+1}], v[{r+i}:{r+i+1}], v[{RR+i}:{RR+i+1}]")
        for i in range(0, 16, 2):
            e(f"v_cvt_pk_bf16_f32 v{VV+hh*8+i//2}, v{r+i}, v{r+i+1}")
        e("s_nop 1")
        for ks in range(2):
            a = PK + hh * 8 + 4 * ks; b = VV + hh * 8 + 4 * ks
            r = KVR + hh * 16
            e(f"v_mfma_f32_32x32x16_bf16 v[{r}:{r+15}], v[{a}:{a+3}], v[{b}:{b+3}], {'0' if ks == 0 else f'v[{r}:{r+15}]'}")
        for ks in range(2):
            a = PK + hh * 8 + 4 * ks
            r = ZR + hh * 16
            e(f"v_mfma_f32_32x32x16_bf16 v[{r}:{r+15}], v[{ONE}:{ONE+3}], v[{a}:{a+3}], {'0' if ks == 0 else f'v[{r}:{r+15}]'}")
    e(f"v_and_b32 v{VP}, 0x3ff, v{VXO}"); e(f"v_lshrrev_b32 v{VP+1}, 10, v{VXO}"); e(f"v_lshl_add_u32 v{VP}, v{VP+1}, 13, v{VP}")
    e(f"v_add_u32 v{VP}, s40, v{VP}")
    e(f"v_lshrrev_b32 v{VP+2}, 2, v{VL16}"); e("s_lshl_b32 s36, s30, 8"); e(f"v_add_u32 v{VP+3}, s36, v{VP+2}")
    e("s_lshl_b32 s36, s30, 13"); e(f"v_add_u32 v{VP+1}, s36, v{VL16}")
    def q_part(hh):
        r = ACC + hh * 16
        ob = OB + hh * 8
        outs = [ob + 0, ob + 1, ob + 4, ob + 5, ob + 2, ob + 3, ob + 6, ob + 7]
        phi([r + i for i in range(16)], [VRS] * 16, [QL] * 16, outs)
        for k in range(2):
            e(f"buffer_store_dwordx4 v[{ob+4*k}:{ob+4*k+3}], v{VXO}, s[20:23], 0 offen offset:{hh*2048 + k*512}")
    q_part(0)
    for hh in range(2):
        for rq in range(4):
            r = KVR + hh * 16 + 4 * rq
            e(f"ds_write_b128 v{VP}, v[{r}:{r+3}] offset:{hh*16384 + (rq >> 1)*4096 + (rq & 1)*512}")
    e(f"v_permlane32_swap_b32 v{ZR}, v{ZR+16}")
    e("s_nop 1")
    e(f"ds_write_b32 v{VP+3}, v{ZR} offset:32768")
    e("s_waitcnt lgkmcnt(0)")
    e("s_barrier")
    RB = KVR
    for k in range(8):
        e(f"ds_read_b128 v[{RB+4*k}:{RB+4*k+3}], v{VP+1} offset:{k*1024}")
    for k in range(4):
        e(f"ds_read_b32 v{ZR+k}, v{VP+2} offset:{32768 + k*256}")
    q_part(1)
    e("s_waitcnt lgkmcnt(0)")
    for k in range(2):
        r = RB + 16 * k
        for i in (0, 2):
            e(f"v_pk_add_f32 v[{r+i}:{r+i+1}], v[{r+i}:{r+i+1}], v[{r+4+i}:{r+5+i}]")
            e(f"v_pk_add_f32 v[{r+8+i}:{r+9+i}], v[{r+8+i}:{r+9+i}], v[{r+12+i}:{r+13+i}]")
        for i in (0, 2):
            e(f"v_pk_add_f32 v[{r+i}:{r+i+1}], v[{r+i}:{r+i+1}], v[{r+8+i}:{r+9+i}]")
        e(f"buffer_store_dwordx4 v[{r}:{r+3}], v{VL16}, s[24:27], 0 offen offset:{k*1024}")
    e(f"v_pk_add_f32 v[{ZR}:{ZR+1}], v[{ZR}:{ZR+1}], v[{ZR+2}:{ZR+3}]")
    e(f"v_add_f32 v{ZR}, v{ZR}, v{ZR+1}")
    e(f"buffer_store_dword v{ZR}, v{VP+2}, s[16:19], s36 offen")
    kernel_tail(A, name, NV)
    return dict(name=name, grid=256, block=256, lds=STAGES * SBY)

def colsum_part(A, name, s_item, mats, fin):
    e = A.e
    e(f"s_lshr_b32 s31, s{s_item}, 2"); e(f"s_and_b32 s34, s{s_item}, 3")
    first, lo, hi, ld = mats[-1]
    e(f"s_mov_b32 s8, s{lo}"); e(f"s_mov_b32 s9, s{hi}"); e(f"s_mov_b32 s33, {first}"); e(f"s_mov_b32 s32, {ld}")
    for k in range(len(mats) - 2, -1, -1):
        first, lo, hi, ld = mats[k]
        e(f"s_cmp_lt_u32 s31, {mats[k+1][0]}")
        e(f"s_cselect_b32 s8, s{lo}, s8"); e(f"s_cselect_b32 s9, s{hi}, s9"); e(f"s_cselect_b32 s33, {first}, s33"); e(f"s_cselect_b32 s32, {ld}, s32")
    e("s_lshl_b32 s32, s32, 10")
    e("s_lshl_b32 s10, s32, 10"); e("s_mov_b32 s11, 0x00020000")
    e("s_sub_u32 s33, s31, s33")
    e("v_lshrrev_b32 v2, 3, v5"); e("v_mul_lo_u32 v2, s32, v2"); e("v_and_b32 v3, 7, v5"); e("v_lshl_add_u32 v2, v3, 4, v2")
    e("s_lshl_b32 s36, s34, 2"); e("s_add_u32 s36, s36, s30"); e("s_lshl_b32 s36, s36, 6"); e("s_mul_i32 s36, s36, s32")
    e("s_lshl_b32 s37, s33, 7"); e("s_add_u32 s36, s36, s37")
    e("s_lshl_b32 s37, s32, 3")
    L = 32
    for i in range(8):
        e(f"buffer_load_dwordx4 v[{L+4*i}:{L+4*i+3}], v2, s[8:11], s36 offen")
        if i < 7: e("s_add_u32 s36, s36, s37")
    for i in range(8):
        e(f"s_waitcnt vmcnt({7-i})")
        t = (8 if i == 0 else 16 + 8 * (i % 2))
        for j in range(4):
            e(f"v_lshlrev_b32 v{t+2*j}, 16, v{L+4*i+j}"); e(f"v_and_b32 v{t+2*j+1}, 0xffff0000, v{L+4*i+j}")
        if i:
            for j in range(4):
                e(f"v_pk_add_f32 v[{8+2*j}:{9+2*j}], v[{8+2*j}:{9+2*j}], v[{t+2*j}:{t+2*j+1}]")
    e("v_lshlrev_b32 v2, 5, v0")
    e("ds_write_b128 v2, v[8:11]"); e("ds_write_b128 v2, v[12:15] offset:16")
    e("s_waitcnt lgkmcnt(0)")
    e("s_barrier")
    e("s_cmp_lg_u32 s30, 0")
    e(f"s_cbranch_scc1 {fin}")
    e("v_lshlrev_b32 v2, 2, v5")
    for i in range(32):
        e(f"ds_read_b32 v{L+i}, v2 offset:{i*256}")
    e("s_lshl_b32 s36, s31, 10"); e("s_lshl_b32 s37, s34, 2"); e("s_add_u32 s36, s36, s37")
    srd_off(A, 16, "s28", "s29", WS_CS, CS_N * 16)
    e("v_lshlrev_b32 v2, 4, v5")
    e("s_waitcnt lgkmcnt(0)")
    for st in (16, 8, 4, 2, 1):
        for i in range(st): e(f"v_add_f32 v{L+i}, v{L+i}, v{L+i+st}")
    e(f"buffer_store_dword v{L}, v2, s[16:19], s36 offen")

def warm_part(A, s_item, lo, hi, size):
    e = A.e
    srd(A, 8, f"s{lo}", f"s{hi}", size)
    e(f"s_lshl_b32 s36, s{s_item}, 15")
    e("v_lshlrev_b32 v2, 4, v0")
    for i in range(8):
        e(f"buffer_load_dwordx4 v[{32+4*i}:{35+4*i}], v2, s[8:11], s36 offen")
        if i < 7: e("s_add_u32 s36, s36, 4096")

def k_attn(A, name, extra):
    e = A.e
    nwg = 256 + (448 + 224 if extra else 0)
    kernel_head(A, name, nwg)
    e(f"s_load_dwordx2 s[28:29], s[0:1], {KA['ws']}")
    if extra:
        e(f"s_load_dwordx4 s[24:27], s[0:1], {KA['wg']}")
        e(f"s_load_dwordx2 s[22:23], s[0:1], {KA['wd']}")
    VXO, VT = 1, 2
    P = 8; Z = P + 64; PQ = Z + 8
    e("v_lshrrev_b32 v4, 6, v0"); e("v_and_b32 v5, 63, v0")
    e("v_readfirstlane_b32 s30, v4")
    if extra:
        e("s_cmp_ge_u32 s2, 256")
        e(f"s_cbranch_scc1 {name}_extra")
    e(f"v_lshlrev_b32 v{VXO}, 4, v5")
    e("s_and_b32 s31, s2, 7"); e("s_lshr_b32 s32, s2, 3")
    e("s_lshl_b32 s34, s31, 2"); e("s_and_b32 s35, s32, 3"); e("s_add_u32 s34, s34, s35")
    e("s_lshr_b32 s33, s32, 2")
    e("s_lshl_b32 s35, s33, 3"); e("s_lshl_b32 s36, s30, 1"); e("s_add_u32 s35, s35, s36")
    e("s_lshr_b32 s37, s34, 1"); e("s_and_b32 s40, s34, 1")
    e("s_lshl_b32 s36, s37, 17"); e("s_lshl_b32 s41, s40, 12"); e("s_add_u32 s36, s36, s41")
    e("s_lshl_b32 s41, s30, 10"); e("s_add_u32 s36, s36, s41"); e(f"s_add_u32 s36, s36, {WS_KV}")
    e("s_lshl_b32 s37, s37, 12"); e("s_lshl_b32 s41, s40, 7"); e("s_add_u32 s37, s37, s41"); e(f"s_add_u32 s37, s37, {WS_Z}")
    e("s_lshl_b32 s38, s35, 16"); e("s_lshl_b32 s39, s34, 11"); e("s_add_u32 s38, s38, s39")
    e(f"s_add_u32 s39, s38, {WS_O}"); e(f"s_add_u32 s38, s38, {WS_PQ}")
    e("v_and_b32 v6, 15, v5"); e("v_lshlrev_b32 v6, 8, v6"); e("v_lshrrev_b32 v7, 4, v5"); e("v_lshl_add_u32 v6, v7, 4, v6")
    e("s_mov_b32 s42, 65536")
    e("s_waitcnt lgkmcnt(0)")
    srd_off(A, 8, "s28", "s29", "s36", 16 * 8192)
    srd_off(A, 20, "s28", "s29", "s37", 4096)
    srd_off(A, 12, "s28", "s29", "s38", 65536 + 2048)
    srd_off(A, 16, "s28", "s29", "s39", 65536 + 2048)
    stamp(A, 2)
    for m in range(16):
        if m: e(f"s_mov_b32 s40, {m*8192}")
        e(f"buffer_load_dwordx4 v[{P+4*m}:{P+4*m+3}], v{VXO}, s[8:11], {'s40' if m else '0'} offen")
    for k in range(2):
        e(f"buffer_load_dwordx4 v[{Z+4*k}:{Z+4*k+3}], v6, s[20:23], 0 offen offset:{k*64}")
    for i in range(4):
        e(f"buffer_load_dwordx4 v[{PQ+4*i}:{PQ+4*i+3}], v{VXO}, s[12:15], {'s42' if i >= 2 else '0'} offen offset:{(i%2)*1024}")
    e("s_lshr_b32 s41, s30, 1"); e("s_lshl_b32 s41, s41, 10"); e("s_and_b32 s40, s30, 1"); e("s_lshl_b32 s40, s40, 3"); e("s_add_u32 s41, s41, s40")
    e(f"v_add_u32 v{VT}, s41, v{VXO}")
    for m in range(2, 16):
        if m % 2 == 0: e(f"s_waitcnt vmcnt({6 + 14 - m})")
        r0 = P + 4 * (m % 2); r = P + 4 * m
        for i in (0, 2):
            e(f"v_pk_add_f32 v[{r0+i}:{r0+i+1}], v[{r0+i}:{r0+i+1}], v[{r+i}:{r+i+1}]")
    for i in (0, 2):
        e(f"v_pk_add_f32 v[{P+i}:{P+i+1}], v[{P+i}:{P+i+1}], v[{P+4+i}:{P+5+i}]")
    e(f"v_cvt_pk_bf16_f32 v{P+4}, v{P}, v{P+1}"); e(f"v_cvt_pk_bf16_f32 v{P+5}, v{P+2}, v{P+3}")
    e(f"ds_write_b64 v{VT}, v[{P+4}:{P+5}]")
    stamp(A, 4)
    e("s_waitcnt vmcnt(4)")
    for sh in (8, 4, 2, 1):
        for i in range(8):
            e(f"v_add_f32_dpp v{Z+i}, v{Z+i}, v{Z+i} row_ror:{sh} row_mask:0xf bank_mask:0xf")
    ZF = P + 16
    for i in range(4): e(f"v_cvt_pk_bf16_f32 v{ZF+i}, v{Z+2*i}, v{Z+2*i+1}")
    e("s_waitcnt lgkmcnt(0)")
    e("s_barrier")
    FR = P + 8
    for f in range(2):
        e(f"ds_read_b128 v[{FR+4*f}:{FR+4*f+3}], v{VXO} offset:{f*1024}")
    NUM = P + 20; DEN = P + 52
    e("s_waitcnt vmcnt(0)")
    for i in range(4):
        e(f"v_mfma_f32_16x16x32_bf16 v[{DEN+4*i}:{DEN+4*i+3}], v[{ZF}:{ZF+3}], v[{PQ+4*i}:{PQ+4*i+3}], 0")
    e("s_waitcnt lgkmcnt(0)")
    for i in range(4):
        for et in range(2):
            r = NUM + i * 8 + et * 4
            e(f"v_mfma_f32_16x16x32_bf16 v[{r}:{r+3}], v[{FR+4*et}:{FR+4*et+3}], v[{PQ+4*i}:{PQ+4*i+3}], 0")
    stamp(A, 5)
    for i in range(4): e(f"v_add_f32 v{DEN+4*i}, {f2u(1e-6):#x}, v{DEN+4*i}")
    for i in range(4): e(f"v_rcp_f32 v{DEN+4*i}, v{DEN+4*i}")
    e("s_nop 0")
    for i in range(4):
        r = NUM + i * 8
        for j in range(0, 8, 2):
            e(f"v_pk_mul_f32 v[{r+j}:{r+j+1}], v[{r+j}:{r+j+1}], v[{DEN+4*i}:{DEN+4*i+1}] op_sel_hi:[1,0]")
        for j in range(0, 8, 2):
            e(f"v_cvt_pk_bf16_f32 v{PQ+4*i+j//2}, v{r+j}, v{r+j+1}")
        e(f"buffer_store_dwordx4 v[{PQ+4*i}:{PQ+4*i+3}], v{VXO}, s[16:19], {'s42' if i >= 2 else '0'} offen offset:{(i%2)*1024}")
    if extra:
        e(f"s_branch {name}_fin")
        A.label(f"{name}_extra")
        e("s_waitcnt lgkmcnt(0)")
        e(f"s_cmp_ge_u32 s2, {256+448}")
        e(f"s_cbranch_scc1 {name}_warm")
        e(f"s_sub_u32 s44, s2, {256 - 48*4}")
        colsum_part(A, name, 44, [(48, 24, 25, 7), (104, 26, 27, 7)], f"{name}_fin")
        e(f"s_branch {name}_fin")
        A.label(f"{name}_warm")
        e(f"s_sub_u32 s44, s2, {256+448}")
        warm_part(A, 44, 22, 23, F * D * 2)
        A.label(f"{name}_fin")
    kernel_tail(A, name, PQ + 16)
    return dict(name=name, grid=nwg, block=256, lds=8192 if extra else 2048)

def k_prep(A, name):
    e = A.e
    kernel_head(A, name, 512)
    e(f"s_load_dwordx4 s[4:7], s[0:1], {KA['x']}")
    e(f"s_load_dwordx2 s[22:23], s[0:1], {KA['wo']}")
    e(f"s_load_dwordx2 s[28:29], s[0:1], {KA['ws']}")
    e("v_lshrrev_b32 v4, 6, v0"); e("v_and_b32 v5, 63, v0")
    e("v_readfirstlane_b32 s30, v4")
    e("v_lshlrev_b32 v1, 4, v5")
    e("s_cmp_ge_u32 s2, 256")
    e(f"s_cbranch_scc1 {name}_cs")
    e("s_lshl_b32 s31, s2, 2"); e("s_add_u32 s31, s31, s30")
    e("s_lshr_b32 s35, s31, 4"); e("s_and_b32 s34, s31, 15")
    rowmajor_lane_off(A, 2, 3)
    e("s_lshl_b32 s36, s35, 16"); e("s_lshl_b32 s37, s34, 7"); e("s_add_u32 s36, s36, s37"); e(f"s_add_u32 s37, s36, {16*2048}")
    e("s_lshl_b32 s38, s35, 16"); e("s_lshl_b32 s39, s34, 12"); e("s_add_u32 s38, s38, s39")
    e("s_waitcnt lgkmcnt(0)")
    srd(A, 8, "s4", "s5", S * D * 2)
    srd_off(A, 12, "s28", "s29", "s38", 4096)
    R = 16
    for i in range(4):
        so, off = rowmajor_frag(i, "s36", "s37")
        e(f"buffer_load_dwordx4 v[{R+4*i}:{R+4*i+3}], v2, s[8:11], {so} offen offset:{off}")
    e("s_lshl_b32 s36, s35, 12"); e("s_lshr_b32 s37, s34, 2"); e("s_lshl_b32 s37, s37, 10"); e("s_add_u32 s36, s36, s37")
    e("s_and_b32 s37, s34, 3"); e("s_lshl_b32 s37, s37, 2"); e("s_add_u32 s36, s36, s37")
    srd_off(A, 16, "s28", "s29", WS_ST, 64 * 4096)
    e("s_waitcnt vmcnt(0)")
    for i in range(4):
        e(f"v_permlane16_swap_b32 v{R+4*i}, v{R+4*i+2}")
        e(f"v_permlane16_swap_b32 v{R+4*i+1}, v{R+4*i+3}")
    e("s_nop 1")
    for i in range(4):
        e(f"buffer_store_dwordx4 v[{R+4*i}:{R+4*i+3}], v1, s[12:15], 0 offen offset:{i*1024}")
    stats_emit(A, 16, [R + i for i in range(16)], 8)
    e("buffer_store_dword v8, v1, s[16:19], s36 offen")
    e(f"s_branch {name}_fin")
    A.label(f"{name}_cs")
    e("s_waitcnt lgkmcnt(0)")
    e(f"s_cmp_ge_u32 s2, {256+192}")
    e(f"s_cbranch_scc1 {name}_warm")
    e("s_sub_u32 s44, s2, 256")
    colsum_part(A, name, 44, [(0, 6, 7, 6)], f"{name}_fin")
    e(f"s_branch {name}_fin")
    A.label(f"{name}_warm")
    e(f"s_sub_u32 s44, s2, {256+192}")
    warm_part(A, 44, 22, 23, D * D * 2)
    A.label(f"{name}_fin")
    kernel_tail(A, name, 64)
    return dict(name=name, grid=512, block=256, lds=8192)

HEADER = """; interleave_layers: (linear attention block, SwiGLU FFN) x 2, pre-LN residual ; generated by work/gen.py
"""
def build_all(path, stamp_on=False, o=None):
    global STAMP
    STAMP = stamp_on
    o = o or {}
    A = Asm()
    prep = k_prep(A, "prep_kernel")
    qkv = k_qkv(A, "qkv_kernel", o.get("qkv"))
    att1 = k_attn(A, "attn1_kernel", True)
    att = k_attn(A, "attn_kernel", False)
    wo = k_proj(A, "wo_kernel", D, WS_O, KA["wo"], False, o.get("wo"))
    ffn = k_ffn(A, "ffn_kernel", o.get("ffn"))
    dn = k_proj(A, "down_kernel", F, WS_H, KA["wd"], False, o.get("down"))
    dnf = k_proj(A, "downf_kernel", F, WS_H, KA["wd"], True, o.get("down"))
    for k in (prep, qkv, att1, wo, ffn, dn, qkv, att, wo, ffn, dnf):
        A.launch(k["name"], k["grid"], k["block"], k["lds"])
    open(path, "w").write(A.text(HEADER))

if __name__ == "__main__":
    build_all("full_stamp.s", True)
    build_all("interleave_layers__linear_attn_block__swiglu_ffn__prompt.s", False)
```

```python
import sys, math
import gen
from gen import *

WS_FL = 30 * MB
WS_KV2 = 32 * MB
cQ, cA, cO, cU, cD, cDUMMY = 0, 16, 24, 32, 40, 63
LDS_P = 131072
LDS_R = 98304
LDS_Z = LDS_P + 24576
WS_CS2 = WS_CS + 65536
V_RES = 228
S_DUMP = 77
SC1 = " sc1"
S_WV, S_LAYER, S_SIG, S_POFF, S_PTGT, S_PH = 3, 98, 99, 100, 101, 78
FL = 80
NAME = "mega_kernel"

def rs(A, k):
    if gen.STAMP: A.e(f"s_memrealtime s[{60+2*k}:{61+2*k}]")
def rs_s(st, k):
    if gen.STAMP: st.i(f"s_memrealtime s[{60+2*k}:{61+2*k}]\n    s_waitcnt lgkmcnt(0)")
uid = [0]
def stamps_flush(A):
    if not gen.STAMP: return
    e = A.e
    uid[0] += 1
    l = f"sf{uid[0]}"
    rs(A, 5); e("s_memtime s[74:75]")
    e(f"s_cmp_lg_u32 s{S_WV}, 0"); e(f"s_cbranch_scc1 {l}")
    srd_off(A, 52, "s28", "s29", WS_DBG, 32 * 65536)
    e("s_lshl_b32 s58, s2, 6"); e(f"s_lshl_b32 s59, s{S_PH}, 16"); e("s_add_u32 s58, s58, s59")
    e("s_waitcnt lgkmcnt(0)")
    e("s_mov_b64 s[56:57], exec"); e("s_mov_b64 exec, 1")
    e("v_mov_b32 v254, 0")
    for k in range(8):
        e(f"v_mov_b32 v255, s{60+2*k}")
        e(f"buffer_store_dword v255, v254, s[52:55], s58 offen offset:{4*k}")
    e("s_mov_b64 exec, s[56:57]")
    A.label(l)
    e(f"s_add_u32 s{S_PH}, s{S_PH}, 1")

def phase_begin(A):
    rs(A, 0)
    if gen.STAMP: A.e("s_memtime s[72:73]")

def set_poll(A, idx_sgpr, base, target, prev_layer=False):
    e = A.e
    e(f"s_lshl_b32 s{S_POFF}, s{S_LAYER}, 6"); e(f"s_add_u32 s{S_POFF}, s{S_POFF}, s{idx_sgpr}")
    if prev_layer:
        e(f"s_add_u32 s{S_POFF}, s{idx_sgpr}, {base}")
        e(f"s_mul_i32 s{S_PTGT}, s{S_LAYER}, {target}")
    else:
        e(f"s_add_u32 s{S_POFF}, s{S_POFF}, {base}")
        e(f"s_mov_b32 s{S_PTGT}, {target}")
    e(f"s_lshl_b32 s{S_POFF}, s{S_POFF}, 7")

def set_signal(A, idx_sgpr, base):
    e = A.e
    e(f"s_lshl_b32 s{S_SIG}, s{S_LAYER}, 6"); e(f"s_add_u32 s{S_SIG}, s{S_SIG}, s{idx_sgpr}")
    e(f"s_add_u32 s{S_SIG}, s{S_SIG}, {base}"); e(f"s_lshl_b32 s{S_SIG}, s{S_SIG}, 7")

def do_signal(o, va, vb, wait=True):
    if gen.STAMP: o("s_memrealtime s[60:61]")
    o("s_mov_b64 exec, 1")
    o(f"v_mov_b32 v{va}, 0"); o(f"v_mov_b32 v{vb}, 1")
    o(f"buffer_atomic_add v{vb}, v{va}, s[{FL}:{FL+3}], s{S_SIG} offen sc1")
    if wait:
        o("s_waitcnt vmcnt(0)")
        if gen.STAMP: o("s_memrealtime s[62:63]")
    o("s_mov_b64 exec, -1")

def do_poll(o, va, vb, tag):
    o("s_mov_b64 exec, 1")
    o(f"v_mov_b32 v{va}, 0")
    o("s_mov_b32 s50, 0x40000")
    o(f"{tag}_poll:")
    o(f"buffer_load_dword v{vb}, v{va}, s[{FL}:{FL+3}], s{S_POFF} offen sc1")
    o("s_sub_u32 s50, s50, 1")
    o(f"s_cbranch_scc1 {tag}_pdone")
    o("s_waitcnt vmcnt(0)")
    o(f"v_readfirstlane_b32 s51, v{vb}")
    o(f"s_cmp_lt_u32 s51, s{S_PTGT}")
    o(f"s_cbranch_scc1 {tag}_poll")
    o(f"{tag}_pdone:")
    if gen.STAMP:
        o("s_memrealtime s[64:65]")
        o(f"s_add_u32 s52, s28, {WS_DBG}"); o("s_addc_u32 s53, s29, 0"); o(f"s_mov_b32 s54, {32*65536}"); o("s_mov_b32 s55, 0x00020000")
        o("s_lshl_b32 s58, s2, 6"); o(f"s_lshl_b32 s59, s{S_PH}, 16"); o("s_add_u32 s58, s58, s59")
        o("s_waitcnt lgkmcnt(0)")
        for k, r in enumerate((60, 62, 64, 50)):
            o(f"v_mov_b32 v{vb}, s{r}")
            o(f"buffer_store_dword v{vb}, v{va}, s[52:55], s58 offen offset:{32+4*k}")
    o("s_mov_b64 exec, -1")

def bar_loop(A, tag, n, body=None):
    e = A.e
    if n <= 2 and not body:
        for _ in range(n): e("s_barrier")
        return
    e(f"s_mov_b32 s43, {n}")
    A.label(tag)
    e("s_barrier")
    if body: body()
    e("s_sub_u32 s43, s43, 1"); e("s_cmp_lg_u32 s43, 0"); e(f"s_cbranch_scc1 {tag}")

def warm(A, offs, adv):
    for o in offs: A.e(f"s_load_dword s{S_DUMP}, s[12:13], {o:#x}")
    A.e(f"s_add_u32 s12, s12, {adv}"); A.e("s_addc_u32 s13, s13, 0")

def idle_head(A, tag, skip_first=False, early=None):
    e = A.e
    A.label(f"{tag}_idle")
    e("s_waitcnt vmcnt(0)")
    e("s_barrier")
    e(f"s_cmp_lg_u32 s{S_WV}, 4"); e(f"s_cbranch_scc1 {tag}_i1")
    if skip_first:
        e(f"s_cmp_eq_u32 s{S_LAYER}, 0"); e(f"s_cbranch_scc1 {tag}_i1")
    do_signal(e, 1, 2, wait=False)
    A.label(f"{tag}_i1")
    if early: early()
    e(f"s_cmp_lg_u32 s{S_WV}, 4"); e(f"s_cbranch_scc1 {tag}_i2")
    if skip_first:
        e(f"s_cmp_eq_u32 s{S_LAYER}, 0"); e(f"s_cbranch_scc1 {tag}_i2")
    e("s_waitcnt vmcnt(0)")
    if gen.STAMP: e("s_memrealtime s[62:63]")
    do_poll(e, 1, 2, tag)
    A.label(f"{tag}_i2")
    e("s_barrier")

def idle_tail(A, nxt):
    if gen.STAMP: A.e(f"s_add_u32 s{S_PH}, s{S_PH}, 1")
    A.e(f"s_branch {nxt}")

def wd_warm_base(A):
    e = A.e
    e(f"s_load_dwordx2 s[12:13], s[0:1], {KA['wd']}")
    e(f"s_lshl_b32 s16, s2, 2"); e(f"s_add_u32 s16, s16, s{S_WV}"); e("s_sub_u32 s16, s16, 4"); e("s_mul_i32 s16, s16, 7168")
    e("s_waitcnt lgkmcnt(0)")
    e("s_add_u32 s12, s12, s16"); e("s_addc_u32 s13, s13, 0")

class MGemm(Gemm):
    def xload(self, st, q, sb):
        super().xload(st, q, sb)
        op = st.ops[-1]; st.ops[-1] = (op[0], op[1] + SC1, op[2])
    def pro_w(self, st, t0, t1):
        for t in range(t0, t1): self.pro_tile(st, t, x=False)
    def pro_w_pre(self, st):
        tmp = Stream()
        self.pro_w(tmp, 0, self.STAGES - 1)
        st.pre |= {op[2] for op in tmp.ops if op[0] == "vm"}
        if self.skew: self.set_woff(st, self.STAGES - 2)
        else: st.i(f"s_mov_b32 s{self.s_woff}, {(self.STAGES - 2) * self.BK * self.ldw}")
    def pro_w_emit(self):
        tmp = Stream()
        self.pro_w(tmp, 0, self.STAGES - 1)
        for op in tmp.ops: self.A.e(op[1])
    def pro_x(self, st):
        for t in range(self.XT): self.pro_tile(st, t, w=False)
    def pro_order(self, o):
        for t in range(self.LOOK):
            for l in self.order_next(t): o(l)
    def sync2(self, st):
        st.i("s_barrier")
        rs_s(st, 2)
    def reads(self, st):
        for f in range(self.LA):
            for rd in range(2): self.wread(st, f, rd)
    def emit(self, pro, loop_end=None):
        A = self.A
        nit = self.NT // self.UN
        pl, bl = resolve(pro, [self.body(it) for it in range(nit)])
        for l in pl: A.e(l)
        if gen.STAMP: A.e("s_waitcnt lgkmcnt(0)"); rs(A, 3); A.e("s_waitcnt lgkmcnt(0)")
        A.e(f"s_mov_b32 s{self.s_it}, {nit}")
        A.e(".p2align 6")
        A.label(f"{self.name}_loop")
        for l in bl: A.e(l)
        A.e(f"s_sub_u32 s{self.s_it}, s{self.s_it}, 1")
        if loop_end: loop_end()
        A.e(f"s_cmp_lg_u32 s{self.s_it}, 0")
        A.e(f"s_cbranch_scc1 {self.name}_loop")
        rs(A, 4)

def sync1(A):
    A.e("s_waitcnt vmcnt(0)")
    A.e("s_barrier")
    rs(A, 1)

def proj_coords(A, sm, sn, t0, t1):
    e = A.e
    e(f"s_and_b32 s{t0}, s2, 7"); e(f"s_lshr_b32 s{t1}, s2, 3")
    e(f"s_lshr_b32 s{sm}, s{t0}, 1"); e(f"s_lshl_b32 s{sm}, s{sm}, 2"); e(f"s_lshr_b32 s{sn}, s{t1}, 3"); e(f"s_add_u32 s{sm}, s{sm}, s{sn}")
    e(f"s_and_b32 s{sn}, s{t0}, 1"); e(f"s_lshl_b32 s{sn}, s{sn}, 3"); e(f"s_and_b32 s{t1}, s{t1}, 7"); e(f"s_add_u32 s{sn}, s{sn}, s{t1}")

def proj_wsetup(A, tag, K, VP, VF, VT, sm, sn, t0, t1, opt, regs, sw=(8, 40, 41)):
    e = A.e
    ldw = D * 2
    lane_consts_fullline(A, 16, ldw, VT, VP, VF)
    e(f"s_and_b32 s{t1}, s{S_WV}, 3")
    e(f"s_lshl_b32 s{sw[1]}, s{t1}, 10"); e(f"s_add_u32 s{sw[1]}, s{sw[1]}, {LDS_P}")
    e(f"s_mul_i32 s{t0}, s{t1}, {8*ldw}"); e(f"s_lshl_b32 s{t1}, s{sn}, 7"); e(f"s_add_u32 s{t0}, s{t0}, s{t1}")
    e(f"v_add_u32 v{VP}, s{t0}, v{VP}")
    e(f"v_add_u32 v{VP+1}, {4*8*ldw}, v{VP}")
    ACC, WF, XF, VXO = regs
    G = MGemm(A, tag, T=16, NB=4, RG=1, K=K, STAGES=4, XT=opt.get("XT", 2), NWR=8, LA=4, WG=2, npieces=2, stage_bytes=8192,
              piece_lds=lambda j: j * 4096,
              frag_addr=fullline_frag_addr(16, VF or 0, 64, lambda stg: (0, stg * 8192)),
              acc=blk_acc(16, "v", ACC, 1), wfrag0=WF, xfrag0=XF, vpiece0=VP, vxoff=VXO,
              srd_w=sw[0], srd_x=12, s_woff=sw[2], s_xoff=42, s_ldsw=sw[1], s_it=43, ldw=ldw, opt=opt)
    assert G.skew
    e(f"s_add_u32 s{t0}, s{sm}, s{sn}"); e(f"s_and_b32 s{t0}, s{t0}, 3")
    G.order_init(t0)
    G.pro_order(e)
    return G

def proj_prefetch(A, K, ka_w, vt, opt):
    h = {}
    def setup():
        A.e(f"s_load_dwordx2 s[4:5], s[0:1], {ka_w}")
        proj_coords(A, 16, 17, 18, 19)
        h["G"] = proj_wsetup(A, "x", K, vt, None, vt + 2, 16, 17, 18, 19, opt or {}, (0, 0, 0, 0), sw=(24, 36, 37))
        A.e("s_waitcnt lgkmcnt(0)")
        srd(A, 24, "s4", "s5", K * D * 2)
    return setup, lambda: h["G"].pro_w_emit()

def p_proj(A, tag, K, ws_a, ka_w, down, nxt, pre=None, opt=None):
    e = A.e
    opt = opt or {}
    T = 16
    ldw = D * 2
    A.label(tag)
    phase_begin(A)
    e(f"s_load_dwordx2 s[4:5], s[0:1], {ka_w}")
    if down: e(f"s_load_dwordx2 s[6:7], s[0:1], {KA['out']}")
    proj_coords(A, 33, 34, 31, 32)
    e("s_lshr_b32 s45, s33, 1")
    set_poll(A, 45, cU if down else cA, 32)
    e(f"s_cmp_ge_u32 s{S_WV}, 4"); e(f"s_cbranch_scc1 {tag}_idle")
    VP, VF, VXO, VT = 1, 3, 7, 8
    ACC, RES, WF = 16, V_RES, 64
    XF = WF + 32
    e(f"v_and_b32 v{VXO}, 63, v0"); e(f"v_lshlrev_b32 v{VXO}, 4, v{VXO}")
    e(f"s_lshl_b32 s35, s33, 2"); e(f"s_add_u32 s35, s35, s{S_WV}")
    e(f"s_lshl_b32 s37, s35, 16"); e("s_lshl_b32 s38, s34, 12"); e("s_add_u32 s37, s37, s38")
    srd_off(A, 20, "s28", "s29", "s37", 4096)
    G = proj_wsetup(A, tag, K, VP, VF, VT, 33, 34, 36, 37, opt, (ACC, WF, XF, VXO))
    for i in range(4): e(f"v_add_u32 v{VF+i}, {LDS_P}, v{VF+i}")
    e(f"s_mul_i32 s36, s35, {F*64}"); e(f"s_add_u32 s36, s36, {WS_H}")
    srd_off(A, 12, "s28", "s29", "s36", K * 64)
    e("s_waitcnt lgkmcnt(0)")
    srd(A, 8, "s4", "s5", K * ldw)
    sync1(A)
    p = Stream()
    G.pro_w_pre(p)
    G.reads(p)
    for i in range(16):
        p.i(f"v_lshlrev_b32 v{ACC+2*i}, 16, v{RES+i}")
        p.i(f"v_and_b32 v{ACC+2*i+1}, 0xffff0000, v{RES+i}")
    G.sync2(p)
    G.pro_x(p)
    G.emit(p)
    if down:
        e(f"s_cmp_lg_u32 s{S_LAYER}, 0"); e(f"s_cbranch_scc1 {tag}_final")
    e("s_lshl_b32 s36, s35, 12"); e("s_lshr_b32 s37, s34, 2"); e("s_lshl_b32 s37, s37, 10"); e("s_add_u32 s36, s36, s37")
    e("s_and_b32 s37, s34, 3"); e("s_lshl_b32 s37, s37, 2"); e("s_add_u32 s36, s36, s37")
    srd_off(A, 24, "s28", "s29", WS_ST, 64 * 4096)
    for i in range(16):
        e(f"v_cvt_pk_bf16_f32 v{RES+i}, v{ACC+2*i}, v{ACC+2*i+1}")
        if i % 4 == 3:
            e(f"buffer_store_dwordx4 v[{RES+i-3}:{RES+i}], v{VXO}, s[20:23], 0 offen offset:{(i//4)*1024}{SC1}")
    stats_emit(A, T, [RES + i for i in range(16)], VT)
    e(f"buffer_store_dword v{VT}, v{VXO}, s[24:27], s36 offen{SC1}")
    stamps_flush(A)
    A.label(f"{tag}_out")
    if down:
        set_signal(A, 33, cD)
        e(f"s_cmp_lg_u32 s{S_LAYER}, 0"); e(f"s_cbranch_scc1 {NAME}_end")
        e(f"s_mov_b32 s{S_LAYER}, 1")
    else:
        set_signal(A, 45, cO)
    e(f"s_branch {nxt}")
    if down:
        A.label(f"{tag}_final")
        srd(A, 24, "s6", "s7", S * D * 2)
        rowmajor_lane_off(A, VT, VT + 1)
        e("s_lshl_b32 s36, s35, 16"); e("s_lshl_b32 s37, s34, 7"); e("s_add_u32 s36, s36, s37")
        e(f"s_add_u32 s37, s36, {16*2048}")
        for i in range(16):
            e(f"v_cvt_pk_bf16_f32 v{RES+i}, v{ACC+2*i}, v{ACC+2*i+1}")
        e("s_nop 0")
        for i in range(4):
            e(f"v_permlane16_swap_b32 v{RES+4*i}, v{RES+4*i+2}")
            e(f"v_permlane16_swap_b32 v{RES+4*i+1}, v{RES+4*i+3}")
        e("s_nop 1")
        for i in range(4):
            so, off = rowmajor_frag(i, "s36", "s37")
            e(f"buffer_store_dwordx4 v[{RES+4*i}:{RES+4*i+3}], v{VT}, s[24:27], {so} offen offset:{off}")
        if gen.STAMP: e("s_waitcnt vmcnt(0)")
        stamps_flush(A)
        e(f"s_branch {NAME}_end")
    if down:
        idle_head(A, tag)
        pre[0]()
        bar_loop(A, f"{tag}_i3", G.NT - 2)
        e(f"s_cmp_lg_u32 s{S_LAYER}, 0"); e(f"s_cbranch_scc1 {tag}_i5")
        pre[1]()
        A.label(f"{tag}_i5")
        bar_loop(A, f"{tag}_i4", 2)
    else:
        def early():
            e(f"s_cmp_lg_u32 s{S_LAYER}, 0"); e(f"s_cbranch_scc1 {tag}_nw")
            warm(A, [64 * i for i in range(14)], 896)
            A.label(f"{tag}_nw")
        idle_head(A, tag, early=early)
        e(f"s_cmp_lg_u32 s{S_LAYER}, 0"); e(f"s_cbranch_scc1 {tag}_i5")
        bar_loop(A, f"{tag}_i3", G.NT, body=lambda: warm(A, [64 * i for i in range(5)], 320))
        idle_tail(A, f"{tag}_out")
        A.label(f"{tag}_i5")
        bar_loop(A, f"{tag}_i4", G.NT)
    idle_tail(A, f"{tag}_out")

def ffn_coords(A, sm, sn, t0, t1):
    e = A.e
    e(f"s_and_b32 s{t0}, s2, 7"); e(f"s_lshr_b32 s{t1}, s2, 3")
    e(f"s_and_b32 s{sm}, s{t0}, 1"); e(f"s_lshl_b32 s{sm}, s{sm}, 2"); e(f"s_lshr_b32 s{sn}, s{t1}, 3"); e(f"s_add_u32 s{sm}, s{sm}, s{sn}")
    e(f"s_lshr_b32 s{sn}, s{t0}, 1"); e(f"s_lshl_b32 s{sn}, s{sn}, 3"); e(f"s_and_b32 s{t1}, s{t1}, 7"); e(f"s_add_u32 s{sn}, s{sn}, s{t1}")

FGU = 16384
def ffn_wsetup(A, tag, VP, VF, VT, sn, t0, opt, regs):
    e = A.e
    ldw = F * 2
    e(f"v_and_b32 v{VT}, 63, v0")
    e(f"s_and_b32 s{t0}, s{S_WV}, 3"); e(f"s_lshl_b32 s{t0}, s{t0}, 8")
    e(f"s_mul_i32 s{t0+1}, s{sn}, 224")
    e(f"s_and_b32 s{t0+2}, s{sn}, 1"); e(f"s_lshl_b32 s{t0+2}, s{t0+2}, 1")
    e(f"s_movk_i32 s{t0+3}, 4682")
    for j in range(4):
        u, r, c = VT + 1, VT + 2, VT + 3
        e(f"v_add_u32 v{u}, s{t0}, v{VT}")
        if j: e(f"v_add_u32 v{u}, {64*j}, v{u}")
        e(f"v_mul_u32_u24 v{r}, s{t0+3}, v{u}"); e(f"v_lshrrev_b32 v{r}, 16, v{r}")
        e(f"v_mul_u32_u24 v{c}, 14, v{r}"); e(f"v_sub_u32 v{c}, v{u}, v{c}")
        e(f"v_add_u32 v{c}, s{t0+2}, v{c}")
        e(f"v_subrev_u32 v{u}, 14, v{c}"); e(f"v_min_u32 v{c}, v{c}, v{u}")
        e(f"v_mul_u32_u24 v{VP+j}, {ldw}, v{r}")
        e(f"v_lshl_add_u32 v{VP+j}, v{c}, 4, v{VP+j}")
        e(f"v_add_u32 v{VP+j}, s{t0+1}, v{VP+j}")
        if j >= 2:
            e(f"v_lshrrev_b32 v{r}, 6, v{r}"); e(f"v_lshl_add_u32 v{VP+j}, v{r}, 28, v{VP+j}")
    ACC, WF, XF, VXO = regs
    SBY = 2 * FGU
    assert not opt["skew"]
    return MGemm(A, tag, T=16, NB=14, RG=1, K=D, STAGES=4, XT=opt.get("XT", 1), NWR=8, LA=7, WG=2, npieces=4, stage_bytes=SBY,
                 piece_lds=lambda j: j * 1024,
                 frag_addr=lambda stg, row, nb: (VF + stg // 2, (stg % 2) * SBY + (nb % 2) * FGU + row * 224 + 32 * (nb // 2)),
                 acc=blk_acc(16, "v", ACC, 1), wfrag0=WF, xfrag0=XF, vpiece0=VP, vxoff=VXO,
                 srd_w=8, srd_x=12, s_woff=41, s_xoff=42, s_ldsw=40, s_it=43, ldw=ldw, opt=opt)

def ffn_prefetch(A, vt, opt):
    opt = dict(opt or {}); opt.setdefault("skew", 0)
    h = {}
    def setup():
        A.e(f"s_load_dwordx4 s[4:7], s[0:1], {KA['wg']}")
        ffn_coords(A, 16, 17, 18, 19)
        h["G"] = ffn_wsetup(A, "x", vt, 0, vt + 4, 17, 20, opt, (0, 0, 0, 0))
        A.e("s_waitcnt lgkmcnt(0)")
    def issue():
        G = h["G"]
        tiles = []
        for t in range(G.STAGES - 1):
            for m in range(2):
                srd(A, 8, f"s{4+2*m}", f"s{5+2*m}", D * F * 2)
                A.e(f"s_and_b32 s40, s{S_WV}, 3"); A.e("s_lshl_b32 s40, s40, 12")
                if m: A.e(f"s_add_u32 s40, s40, {FGU}")
                A.e(f"s_mov_b32 s41, {((t - 1) * 64 * F * 2) & 0xffffffff:#x}")
                tmp = Stream(); G.pro_w(tmp, t, t + 1)
                for op in tmp.ops: A.e(op[1])
    return setup, issue

def p_ffn(A, tag, nxt, pre, opt=None):
    e = A.e
    opt = dict(opt or {}); opt.setdefault("skew", 0)
    XT = opt.get("XT", 1)
    ldw = F * 2
    SBY = 2 * FGU
    A.label(tag)
    phase_begin(A)
    e(f"s_load_dwordx4 s[4:7], s[0:1], {KA['wg']}")
    VP, VF, VXO, VMN, VRS, VT = 1, 5, 7, 8, 10, 12
    WF = 20; XF = WF + 32
    ACC = XF + XT * 16
    SC = ACC + 112; CSR = SC + 16
    assert CSR + 28 <= 254
    ffn_coords(A, 33, 34, 31, 32)
    set_poll(A, 33, cO, 32)
    e(f"s_lshl_b32 s35, s33, 3"); e(f"s_add_u32 s35, s35, s{S_WV}")
    e(f"s_lshr_b32 s37, s{S_WV}, 2")
    e(f"s_lshl_b32 s40, s{S_WV}, 12")
    e("s_and_b32 s45, s34, 1")
    e(f"v_and_b32 v{VT}, 63, v0")
    e(f"v_lshlrev_b32 v{VXO}, 4, v{VT}")
    e("s_lshl_b32 s36, s35, 16")
    srd_off(A, 12, "s28", "s29", "s36", D * 64)
    e(f"v_and_b32 v{VT+1}, 3, v{VT}"); e(f"v_lshlrev_b32 v{VF}, 3, v{VT+1}")
    e(f"v_lshrrev_b32 v{VT+1}, 2, v{VT}"); e(f"v_mul_u32_u24 v{VT+1}, 224, v{VT+1}"); e(f"v_add_u32 v{VF}, v{VF}, v{VT+1}")
    e(f"v_add_u32 v{VF+1}, {2*SBY}, v{VF}")
    e("s_lshl_b32 s38, s35, 12"); e(f"s_add_u32 s38, s38, {WS_ST}")
    e(f"s_mul_i32 s39, s34, {112*32}"); e(f"s_add_u32 s39, s39, {WS_CS2}")
    srd_off(A, 20, "s28", "s29", "s38", 4096)
    srd_off(A, 24, "s28", "s29", "s39", (F + 112) * 32)
    e(f"s_mov_b32 s10, {D*ldw}"); e("s_mov_b32 s11, 0x00020000")
    e("s_cmp_eq_u32 s37, 0")
    e("s_waitcnt lgkmcnt(0)")
    e("s_cselect_b32 s8, s4, s6"); e("s_cselect_b32 s9, s5, s7")
    sync1(A)
    e(f"s_cmp_lg_u32 s{S_WV}, 7"); e(f"s_cbranch_scc1 {tag}_nosig")
    do_signal(e, VT + 4, VT + 5, wait=False)
    A.label(f"{tag}_nosig")
    G = ffn_wsetup(A, tag, VP, VF, VT, 34, 46, opt, (ACC, WF, XF, VXO))
    G.order_init(None)
    e(f"v_and_b32 v{VT+1}, 15, v{VT}"); e(f"v_bfe_u32 v{VT+2}, v{VT}, 4, 1"); e(f"v_mul_u32_u24 v{VT+2}, {F}, v{VT+2}")
    e(f"v_add_lshl_u32 v{VT+1}, v{VT+1}, v{VT+2}, 5")
    e(f"v_lshrrev_b32 v{VT+2}, 5, v{VT}"); e(f"v_lshl_add_u32 v{VT+1}, v{VT+2}, 4, v{VT+1}")
    e("s_lshl_b32 s48, s45, 9")
    e("s_mul_i32 s49, s45, 3072"); e("s_sub_u32 s49, 3072, s49")
    nit = G.NT // G.UN
    e(f"s_sub_u32 s30, {nit - 1}, s37")
    p = Stream()
    G.pro_w_pre(p)
    G.reads(p)
    for i in range(0, 112, 2): p.i(f"v_pk_mov_b32 v[{ACC+i}:{ACC+i+1}], 0, 0")
    p.i(f"s_cmp_lg_u32 s{S_WV}, 7"); p.i(f"s_cbranch_scc1 {tag}_nopoll")
    p.i("s_waitcnt vmcnt(0)")
    if gen.STAMP: p.i("s_memrealtime s[62:63]")
    do_poll(p.i, VT + 4, VT + 5, tag)
    p.i(f"{tag}_nopoll:")
    G.sync2(p)
    G.pro_x(p)
    for i in range(4):
        p.vm(f"buffer_load_dwordx4 v[{SC+4*i}:{SC+4*i+3}], v{VXO}, s[20:23], 0 offen offset:{i*1024}{SC1}", ("ST", i))
    for j in range(7):
        so, off = ("s48", j * 512) if j < 6 else ("s49", 0)
        p.vm(f"buffer_load_dwordx4 v[{CSR+4*j}:{CSR+4*j+3}], v{VT+1}, s[24:27], {so} offen offset:{off}{SC1}", ("CS", j))
    def fix():
        e(f"s_cmp_lg_u32 s43, s30")
        e(f"s_cbranch_scc1 {tag}_nofix")
        stats_finish(e, SC, VT + 4, VMN, VRS)
        for j in range(7): e(f"v_pk_add_f32 v[{CSR+4*j}:{CSR+4*j+1}], v[{CSR+4*j}:{CSR+4*j+1}], v[{CSR+4*j+2}:{CSR+4*j+3}]")
        for j in range(7): e(f"v_add_f32 v{CSR+4*j}, v{CSR+4*j}, v{CSR+4*j+1}")
        for j in range(7): e(f"v_mov_b32 v{CSR+4*j+1}, v{CSR+4*j}")
        split16(e, VRS, VRS + 1)
        for j in range(7): e(f"v_permlane32_swap_b32 v{CSR+4*j}, v{CSR+4*j+1}")
        split16(e, VMN, VT + 4)
        for j in range(7): e(f"v_add_f32 v{CSR+4*j}, v{CSR+4*j}, v{CSR+4*j+1}")
        e(f"v_permlane32_swap_b32 v{VMN}, v{VT+4}"); e("s_nop 1")
        for j in range(7):
            r = ACC + j * 16
            e(f"v_mfma_f32_16x16x1_4b_f32 v[{r}:{r+15}], v{CSR+4*j}, v{VMN}, v[{r}:{r+15}]")
        A.label(f"{tag}_nofix")
        e("s_cmp_lg_u32 s43, 1"); e(f"s_cbranch_scc1 {tag}_nopre")
        e(f"s_cmp_lt_u32 s{S_WV}, 4"); e(f"s_cbranch_scc1 {tag}_res")
        pre[0](); pre[1]()
        e(f"s_branch {tag}_nopre")
        A.label(f"{tag}_res")
        proj_coords(A, 16, 17, 18, 19)
        e(f"s_lshl_b32 s16, s16, 2"); e(f"s_add_u32 s16, s16, s{S_WV}"); e("s_lshl_b32 s16, s16, 16"); e("s_lshl_b32 s17, s17, 12"); e("s_add_u32 s16, s16, s17")
        srd_off(A, 24, "s28", "s29", "s16", 4096)
        for i in range(4):
            e(f"buffer_load_dwordx4 v[{V_RES+4*i}:{V_RES+3+4*i}], v{VXO}, s[24:27], 0 offen offset:{i*1024}{SC1}")
        A.label(f"{tag}_nopre")
    assert CSR + 28 <= V_RES and nit >= 4
    G.emit(p, loop_end=fix)
    C1, C2 = SC, SC + 4
    for k in range(2):
        e(f"v_mul_f32 v{C1+2*k}, {NLOG2E:#x}, v{VRS+k}")
        e(f"v_mul_f32 v{C2+2*k}, v{VRS+k}, v{VRS+k}")
    e(f"s_mul_i32 s36, s35, {F*64}"); e(f"s_add_u32 s36, s36, {WS_H}")
    srd_off(A, 20, "s28", "s29", "s36", F * 64)
    e("s_mul_i32 s38, s34, 7"); e("s_add_u32 s38, s38, s45"); e("s_lshl_b32 s38, s38, 10")
    e("s_mul_i32 s39, s45, 8184"); e("s_add_u32 s46, s38, 6144"); e("s_sub_u32 s39, s46, s39")
    e("s_add_u32 s46, s38, 4096")
    TB = SC + 8
    OB = CSR + (CSR % 2)
    def silu(blocks, k, out):
        for b, r in enumerate(blocks):
            for i in (0, 2): e(f"v_pk_mul_f32 v[{TB+4*b+i}:{TB+4*b+i+1}], v[{r+i}:{r+i+1}], v[{C1+2*k}:{C1+2*k+1}] op_sel_hi:[1,0]")
        for b, r in enumerate(blocks):
            for i in (0, 2): e(f"v_pk_mul_f32 v[{r+i}:{r+i+1}], v[{r+i}:{r+i+1}], v[{r+4+i}:{r+5+i}]")
        for i in range(4 * len(blocks)): e(f"v_exp_f32 v{TB+i}, v{TB+i}")
        for b, r in enumerate(blocks):
            for i in (0, 2): e(f"v_pk_mul_f32 v[{r+i}:{r+i+1}], v[{r+i}:{r+i+1}], v[{C2+2*k}:{C2+2*k+1}] op_sel_hi:[1,0]")
        for i in range(0, 4 * len(blocks), 2): e(f"v_pk_add_f32 v[{TB+i}:{TB+i+1}], v[{TB+i}:{TB+i+1}], 1.0 op_sel_hi:[1,0]")
        for i in range(4 * len(blocks)): e(f"v_rcp_f32 v{TB+i}, v{TB+i}")
        e("s_nop 0")
        for b, r in enumerate(blocks):
            for i in (0, 2): e(f"v_pk_mul_f32 v[{r+i}:{r+i+1}], v[{r+i}:{r+i+1}], v[{TB+4*b+i}:{TB+4*b+i+1}]")
        for b, r in enumerate(blocks):
            for i in (0, 2): e(f"v_cvt_pk_bf16_f32 v{out+2*b+i//2}, v{r+i}, v{r+i+1}")
    cnt = 0
    for pj in range(4):
        for sb in range(2):
            ob = OB + 4 * (cnt % 3); cnt += 1
            silu([ACC + (2 * pj + jj) * 16 + 8 * sb for jj in range(2 if pj < 3 else 1)], sb, ob)
            if pj < 3:
                so, off = ("s38", pj * 2048 + sb * 1024) if pj < 2 else ("s46", sb * 1024)
                e(f"buffer_store_dwordx4 v[{ob}:{ob+3}], v{VXO}, s[20:23], {so} offen offset:{off}{SC1}")
            else:
                e(f"buffer_store_dwordx2 v[{ob}:{ob+1}], v{VXO}, s[20:23], s39 offen offset:{sb*1024}{SC1}")
    stamps_flush(A)
    set_signal(A, 33, cU)
    e(f"s_branch {nxt}")

def qkv_coords(A, sm, sn, t0, t1):
    e = A.e
    e(f"s_and_b32 s{t0}, s2, 7"); e(f"s_lshr_b32 s{t1}, s2, 3")
    e(f"s_and_b32 s{sm}, s{t0}, 1"); e(f"s_lshl_b32 s{sm}, s{sm}, 3"); e(f"s_lshr_b32 s{sn}, s{t1}, 2"); e(f"s_add_u32 s{sm}, s{sm}, s{sn}")
    e(f"s_lshr_b32 s{sn}, s{t0}, 1"); e(f"s_lshl_b32 s{sn}, s{sn}, 2"); e(f"s_and_b32 s{t1}, s{t1}, 3"); e(f"s_add_u32 s{sn}, s{sn}, s{t1}")

QSBY = 3 * 64 * 128
def qkv_wsetup(A, tag, VP, VF, VT, sm, sn, t0, t1, opt, regs):
    e = A.e
    ldw = 3 * D * 2
    lane_consts_fullline(A, 32, ldw, VT, VP, VF)
    e(f"s_and_b32 s{t1}, s{S_WV}, 3")
    e(f"s_lshl_b32 s40, s{t1}, 10")
    e(f"s_mul_i32 s{t0}, s{t1}, {8*ldw}"); e(f"s_lshl_b32 s{t1}, s{sn}, 7"); e(f"s_add_u32 s{t0}, s{t0}, s{t1}")
    e(f"v_add_u32 v{VP}, s{t0}, v{VP}")
    for j in range(1, 6):
        e(f"v_add_u32 v{VP+j}, {(j >> 1) * 2048 + (j & 1) * 32 * ldw}, v{VP}")
    ACC, WF, XF, VXO = regs
    G = MGemm(A, tag, T=32, NB=6, RG=1, K=D, STAGES=4, XT=opt.get("XT", 2), NWR=6, LA=6, WG=2, npieces=6, stage_bytes=QSBY,
              piece_lds=lambda j: (j >> 1) * 8192 + (j & 1) * 4096,
              frag_addr=fullline_frag_addr(32, VF or 0, 64, lambda stg: (2 * (stg // 2), (stg % 2) * QSBY)),
              acc=blk_acc(32, "v", ACC, 1), wfrag0=WF, xfrag0=XF, vpiece0=VP, vxoff=VXO,
              srd_w=8, srd_x=12, s_woff=41, s_xoff=42, s_ldsw=40, s_it=43, ldw=ldw,
              swap=[nb >= 2 for nb in range(6)], opt=opt)
    e(f"s_add_u32 s{t0}, s{sm}, s{sn}"); e(f"s_and_b32 s{t0}, s{t0}, 3")
    G.order_init(t0)
    G.pro_order(e)
    return G

def qkv_prefetch(A, vt, opt):
    h = {}
    def setup():
        A.e(f"s_load_dwordx2 s[4:5], s[0:1], {KA['wqkv']}")
        qkv_coords(A, 16, 17, 18, 19)
        h["G"] = qkv_wsetup(A, "x", vt, None, vt + 6, 16, 17, 18, 19, opt or {}, (0, 0, 0, 0))
        A.e("s_waitcnt lgkmcnt(0)")
        srd(A, 8, "s4", "s5", D * 3 * D * 2)
    return setup, lambda: h["G"].pro_w_emit()

def p_qkv(A, tag, nxt, pres, opt=None):
    e = A.e
    opt = dict(opt or {})
    XT = opt.get("XT", 2)
    ldw = 3 * D * 2
    A.label(tag)
    phase_begin(A)
    e(f"s_load_dwordx2 s[4:5], s[0:1], {KA['wqkv']}")
    qkv_coords(A, 33, 34, 31, 32)
    set_poll(A, 33, cD, 16, prev_layer=True)
    e(f"s_cmp_ge_u32 s{S_WV}, 4"); e(f"s_cbranch_scc1 {tag}_idle")
    VP, VF, VXO, VL16, VMN, VRS, VT = 1, 7, 11, 12, 13, 14, 16
    ACC = 32; WF = ACC + 96; XF = WF + 24; SC = XF + max(XT * 16, 48)
    CSR = SC + 16; RR = CSR + 12
    assert RR + 16 <= 254
    e(f"v_and_b32 v{VL16}, 63, v0"); e(f"v_lshlrev_b32 v{VL16}, 4, v{VL16}")
    e("s_lshl_b32 s39, s34, 10"); e(f"s_add_u32 s39, s39, {WS_CS}")
    e("s_movk_i32 s45, 16384"); e("s_mov_b32 s46, 32768")
    srd_off(A, 24, "s28", "s29", "s39", 32768 + 1024)
    for b in range(3):
        e(f"buffer_load_dwordx4 v[{CSR+4*b}:{CSR+4*b+3}], v{VL16}, s[24:27], {('0', 's45', 's46')[b]} offen")
    G = qkv_wsetup(A, tag, VP, VF, VT, 33, 34, 36, 37, opt, (ACC, WF, XF, VXO))
    e(f"v_and_b32 v{VT+1}, 15, v{VT}"); e(f"v_lshlrev_b32 v{VXO}, 4, v{VT+1}")
    e(f"v_lshrrev_b32 v{VT+2}, 5, v{VT}"); e(f"v_lshl_add_u32 v{VXO}, v{VT+2}, 8, v{VXO}")
    e(f"v_bfe_u32 v{VT+1}, v{VT}, 4, 1"); e(f"v_lshl_add_u32 v{VXO}, v{VT+1}, 10, v{VXO}")
    e(f"s_lshl_b32 s35, s33, 2"); e(f"s_add_u32 s35, s35, s{S_WV}")
    e("s_lshl_b32 s36, s35, 16")
    e("s_lshl_b32 s38, s35, 12"); e(f"s_add_u32 s38, s38, {WS_ST}")
    srd_off(A, 12, "s28", "s29", "s36", D * 64)
    srd_off(A, 20, "s28", "s29", "s38", 4096)
    for i in range(2): e(f"v_add_u32 v{VF+2+i}, {2*QSBY}, v{VF+i}")
    e(f"v_mov_b32 v{VT+5}, 0.5")
    e("s_waitcnt lgkmcnt(0)")
    srd(A, 8, "s4", "s5", D * ldw)
    sync1(A)
    p = Stream()
    G.pro_w_pre(p)
    G.reads(p)
    for b in range(3):
        p.i(f"v_pk_add_f32 v[{CSR+4*b}:{CSR+4*b+1}], v[{CSR+4*b}:{CSR+4*b+1}], v[{CSR+4*b+2}:{CSR+4*b+3}]")
    for b in range(3): p.i(f"v_add_f32 v{CSR+4*b}, v{CSR+4*b}, v{CSR+4*b+1}")
    for i in range(0, 96, 2): p.i(f"v_pk_mov_b32 v[{ACC+i}:{ACC+i+1}], 0, 0")
    G.sync2(p)
    G.pro_x(p)
    for i in range(4):
        p.vm(f"buffer_load_dwordx4 v[{SC+4*i}:{SC+4*i+3}], v{VL16}, s[20:23], 0 offen offset:{i*1024}{SC1}", ("ST", i))
    nit = G.NT // G.UN
    def fix():
        e(f"s_cmp_lg_u32 s43, {nit - 1}")
        e(f"s_cbranch_scc1 {tag}_nofix")
        stats_finish(e, SC, VT + 4, VMN, VRS)
        for b in range(3):
            r = ACC + 32 * b
            if b == 0: e(f"v_mfma_f32_32x32x1_2b_f32 v[{r}:{r+31}], v{CSR+4*b}, v{VMN}, v[{r}:{r+31}]")
            else: e(f"v_mfma_f32_32x32x1_2b_f32 v[{r}:{r+31}], v{VMN}, v{CSR+4*b}, v[{r}:{r+31}]")
        e(f"v_mfma_f32_32x32x2_f32 v[{RR}:{RR+15}], v{VRS}, v{VT+5}, 0")
        A.label(f"{tag}_nofix")
    G.emit(p, loop_end=fix)
    KL = SC; QL = VRS + 1
    e(f"v_mul_f32 v{QL}, {LOG2E:#x}, v{VRS}")
    for i in range(16): e(f"v_mul_f32 v{KL+i}, {LOG2E:#x}, v{RR+i}")
    e(f"s_mov_b32 s47, {f2u(1e-6):#x}")
    e(f"s_mul_i32 s36, s35, {F*64}"); e("s_lshl_b32 s37, s34, 12"); e("s_add_u32 s36, s36, s37"); e(f"s_add_u32 s36, s36, {WS_H}")
    e("s_add_u32 s20, s28, s36"); e("s_addc_u32 s21, s29, 0")
    e(f"s_mul_i32 s39, s{S_LAYER}, {WS_KV2 - WS_KV}")
    e("s_lshl_b32 s37, s34, 4"); e("s_add_u32 s37, s37, s33")
    e(f"s_lshl_b32 s38, s37, 13"); e(f"s_lshl_b32 s36, s{S_WV}, 11"); e("s_add_u32 s38, s38, s36"); e(f"s_add_u32 s38, s38, {WS_KV}")
    e("s_add_u32 s38, s38, s39")
    e("s_add_u32 s24, s28, s38"); e("s_addc_u32 s25, s29, 0"); e("s_movk_i32 s26, 2048")
    e("s_lshl_b32 s38, s37, 8"); e(f"s_add_u32 s38, s38, {WS_Z}"); e("s_add_u32 s38, s38, s39")
    srd_off(A, 16, "s28", "s29", "s38", 256)
    e("s_waitcnt vmcnt(0) lgkmcnt(0)")
    e("s_barrier")
    TB = VT
    def phi(regs, rsr, rl, outs):
        n = len(regs)
        for i in range(n): e(f"v_mul_f32 v{TB+i}, v{regs[i]}, v{rl[i]}")
        for i in range(n): e(f"v_exp_f32 v{TB+i}, v{TB+i} clamp")
        for i in range(n): e(f"v_max_f32 v{regs[i]}, 0, v{regs[i]}")
        for i in range(0, n, 2): e(f"v_pk_add_f32 v[{TB+i}:{TB+i+1}], v[{TB+i}:{TB+i+1}], s[46:47] op_sel:[0,1]")
        for i in range(n): e(f"v_fma_f32 v{regs[i]}, v{regs[i]}, v{rsr[i]}, v{TB+i}")
        for i in range(0, n, 2): e(f"v_cvt_pk_bf16_f32 v{outs[i//2]}, v{regs[i]}, v{regs[i+1]}")
    PK = WF; VV = XF; ONE = XF + 16; OB = XF + 24
    for i in range(4): e(f"v_mov_b32 v{ONE+i}, 0x3f803f80")
    KVR = ACC + 32; ZR = ACC + 64
    for hh in range(2):
        r = ACC + (2 + hh) * 16
        phi([r + i for i in range(16)], [RR + i for i in range(16)], [KL + i for i in range(16)], [PK + hh * 8 + i for i in range(8)])
        r = ACC + (4 + hh) * 16
        for i in range(0, 16, 2):
            e(f"v_pk_mul_f32 v[{r+i}:{r+i+1}], v[{r+i}:{r+i+1}], v[{RR+i}:{RR+i+1}]")
        for i in range(0, 16, 2):
            e(f"v_cvt_pk_bf16_f32 v{VV+hh*8+i//2}, v{r+i}, v{r+i+1}")
        e("s_nop 1")
        for ks in range(2):
            a = PK + hh * 8 + 4 * ks; b = VV + hh * 8 + 4 * ks
            r = KVR + hh * 16
            e(f"v_mfma_f32_32x32x16_bf16 v[{r}:{r+15}], v[{a}:{a+3}], v[{b}:{b+3}], {'0' if ks == 0 else f'v[{r}:{r+15}]'}")
        for ks in range(2):
            a = PK + hh * 8 + 4 * ks
            r = ZR + hh * 16
            e(f"v_mfma_f32_32x32x16_bf16 v[{r}:{r+15}], v[{ONE}:{ONE+3}], v[{a}:{a+3}], {'0' if ks == 0 else f'v[{r}:{r+15}]'}")
    e(f"v_and_b32 v{VP}, 0x3ff, v{VXO}"); e(f"v_lshrrev_b32 v{VP+1}, 10, v{VXO}"); e(f"v_lshl_add_u32 v{VP}, v{VP+1}, 13, v{VP}")
    e(f"s_add_u32 s40, s40, {LDS_R}"); e(f"v_add_u32 v{VP}, s40, v{VP}")
    e(f"v_lshrrev_b32 v{VP+2}, 2, v{VL16}"); e(f"v_add_u32 v{VP+4}, {LDS_Z}, v{VP+2}")
    e(f"s_lshl_b32 s36, s{S_WV}, 8"); e(f"v_add_u32 v{VP+3}, s36, v{VP+4}")
    e(f"s_lshl_b32 s36, s{S_WV}, 13"); e(f"s_add_u32 s37, s36, {LDS_R}"); e(f"v_add_u32 v{VP+1}, s37, v{VL16}")
    def q_part(hh):
        r = ACC + hh * 16
        ob = OB + hh * 8
        outs = [ob + 0, ob + 1, ob + 4, ob + 5, ob + 2, ob + 3, ob + 6, ob + 7]
        phi([r + i for i in range(16)], [VRS] * 16, [QL] * 16, outs)
        for k in range(2):
            e(f"buffer_store_dwordx4 v[{ob+4*k}:{ob+4*k+3}], v{VXO}, s[20:23], 0 offen offset:{hh*2048 + k*512}{SC1}")
    q_part(0)
    for hh in range(2):
        for rq in range(4):
            r = KVR + hh * 16 + 4 * rq
            e(f"ds_write_b128 v{VP}, v[{r}:{r+3}] offset:{hh*16384 + (rq >> 1)*4096 + (rq & 1)*512}")
    e(f"v_permlane32_swap_b32 v{ZR}, v{ZR+16}")
    e("s_nop 1")
    e(f"ds_write_b32 v{VP+3}, v{ZR}")
    e("s_waitcnt lgkmcnt(0)")
    e("s_barrier")
    RB = KVR
    for k in range(8):
        e(f"ds_read_b128 v[{RB+4*k}:{RB+4*k+3}], v{VP+1} offset:{k*1024}")
    for k in range(4):
        e(f"ds_read_b32 v{ZR+k}, v{VP+4} offset:{k*256}")
    q_part(1)
    e("s_waitcnt lgkmcnt(0)")
    for k in range(2):
        r = RB + 16 * k
        for i in (0, 2):
            e(f"v_pk_add_f32 v[{r+i}:{r+i+1}], v[{r+i}:{r+i+1}], v[{r+4+i}:{r+5+i}]")
            e(f"v_pk_add_f32 v[{r+8+i}:{r+9+i}], v[{r+8+i}:{r+9+i}], v[{r+12+i}:{r+13+i}]")
        for i in (0, 2):
            e(f"v_pk_add_f32 v[{r+i}:{r+i+1}], v[{r+i}:{r+i+1}], v[{r+8+i}:{r+9+i}]")
        e(f"buffer_store_dwordx4 v[{r}:{r+3}], v{VL16}, s[24:27], 0 offen offset:{k*1024}{SC1}")
    e(f"v_pk_add_f32 v[{ZR}:{ZR+1}], v[{ZR}:{ZR+1}], v[{ZR+2}:{ZR+3}]")
    e(f"v_add_f32 v{ZR}, v{ZR}, v{ZR+1}")
    e(f"buffer_store_dword v{ZR}, v{VP+2}, s[16:19], s36 offen{SC1}")
    stamps_flush(A)
    A.label(f"{tag}_out")
    set_signal(A, 34, cQ)
    e(f"s_branch {nxt}")
    NST = opt.get("stag", 13)
    def early():
        pres[0][0]()
        e(f"s_cmp_lg_u32 s{S_LAYER}, 0"); e(f"s_cbranch_scc1 {tag}_e1")
        e(f"s_load_dwordx4 s[4:7], s[0:1], {KA['wg']}")
        e(f"s_load_dwordx2 s[12:13], s[0:1], {KA['wo']}")
        e(f"s_lshl_b32 s20, s2, 2"); e(f"s_add_u32 s20, s20, s{S_WV}"); e("s_sub_u32 s20, s20, 4")
        e("s_lshr_b32 s48, s20, 3"); e("s_and_b32 s49, s20, 7")
        e("s_sub_u32 s30, s48, 56"); e("s_min_u32 s30, s30, s48"); e("s_lshl_b32 s30, s30, 7")
        e(f"s_mul_i32 s21, s49, {128*F*2}"); e("s_add_u32 s30, s30, s21")
        e("s_sub_u32 s21, s20, 896"); e("s_lshl_b32 s21, s21, 14")
        e("s_cmp_lt_u32 s48, 56")
        e("s_waitcnt lgkmcnt(0)")
        e("s_cselect_b32 s44, s4, s6"); e("s_cselect_b32 s45, s5, s7"); e("s_mov_b32 s47, 0x00020000")
        e(f"s_mov_b32 s46, {D*F*2}"); e(f"s_movk_i32 s22, {F*2}")
        e("s_cmp_ge_u32 s2, 224")
        e("s_cselect_b32 s44, s12, s44"); e("s_cselect_b32 s45, s13, s45"); e(f"s_cselect_b32 s46, {D*D*2}, s46")
        e("s_cselect_b32 s30, s21, s30"); e("s_cselect_b32 s22, 128, s22")
        e("s_lshl_b32 s23, s22, 3")
        e("v_and_b32 v20, 63, v0")
        e("v_lshrrev_b32 v21, 3, v20"); e("v_mul_lo_u32 v21, s22, v21"); e("v_and_b32 v22, 7, v20"); e("v_lshl_add_u32 v21, v22, 4, v21")
        e("s_lshr_b32 s20, s2, 3"); e("s_and_b32 s21, s2, 7"); e("s_lshl_b32 s21, s21, 1"); e("s_add_u32 s20, s20, s21")
        e(f"s_mul_i32 s21, s20, {65536 // NST + 1}"); e("s_lshr_b32 s21, s21, 16"); e(f"s_mul_i32 s21, s21, {NST}"); e("s_sub_u32 s31, s20, s21")
        A.label(f"{tag}_e1")
    idle_head(A, tag, skip_first=True, early=early)
    e(f"s_cmp_lg_u32 s{S_LAYER}, 0"); e(f"s_cbranch_scc1 {tag}_h1")
    e("s_mov_b32 s43, s31")
    A.label(f"{tag}_i3")
    e("s_cmp_eq_u32 s43, 0"); e(f"s_cbranch_scc1 {tag}_i7")
    e("s_barrier"); e("s_sub_u32 s43, s43, 1"); e(f"s_branch {tag}_i3")
    A.label(f"{tag}_i7")
    L = 64
    for i in range(16):
        e(f"buffer_load_dwordx4 v[{L+4*i}:{L+4*i+3}], v21, s[44:47], s30 offen")
        if i < 15: e("s_add_u32 s30, s30, s23")
    e("s_barrier"); e("s_barrier")
    e("s_waitcnt vmcnt(0)")
    for i in range(16):
        if i == 8: e("s_barrier")
        t = (32 if i == 0 else 40 + 8 * (i % 2))
        for j in range(4):
            e(f"v_lshlrev_b32 v{t+2*j}, 16, v{L+4*i+j}"); e(f"v_and_b32 v{t+2*j+1}, 0xffff0000, v{L+4*i+j}")
        if i:
            for j in range(4):
                e(f"v_pk_add_f32 v[{32+2*j}:{33+2*j}], v[{32+2*j}:{33+2*j}], v[{t+2*j}:{t+2*j+1}]")
    e("s_nop 1")
    for j in range(4): e(f"v_permlane32_swap_b32 v{32+j}, v{36+j}")
    e("s_nop 0")
    for j in (0, 2): e(f"v_pk_add_f32 v[{32+j}:{33+j}], v[{32+j}:{33+j}], v[{36+j}:{37+j}]")
    e("s_nop 1")
    for j in range(2): e(f"v_permlane16_swap_b32 v{32+j}, v{34+j}")
    e("s_nop 1")
    e("v_pk_add_f32 v[32:33], v[32:33], v[34:35]")
    e("s_nop 1")
    for j in range(2): e(f"v_add_f32_dpp v{32+j}, v{32+j}, v{32+j} row_ror:8 row_mask:0xf bank_mask:0xf")
    e("v_and_b32 v21, 8, v20"); e("v_cmp_ne_u32 vcc, 0, v21")
    e("v_lshlrev_b32 v22, 3, v22"); e("v_lshrrev_b32 v21, 3, v20"); e("v_add_lshl_u32 v22, v22, v21, 5")
    e("v_cndmask_b32 v32, v32, v33, vcc")
    srd_off(A, 44, "s28", "s29", WS_CS2, 2 * F * 32)
    e("s_lshl_b32 s48, s48, 11"); e("s_lshl_b32 s49, s49, 2"); e("s_add_u32 s48, s48, s49")
    e(f"buffer_store_dword v32, v22, s[44:47], s48 offen{SC1}")
    assert NST - 1 + 3 < G.NT
    e(f"s_sub_u32 s43, {G.NT - 3}, s31")
    A.label(f"{tag}_i8")
    e("s_barrier"); e("s_sub_u32 s43, s43, 1"); e("s_cmp_lg_u32 s43, 0"); e(f"s_cbranch_scc1 {tag}_i8")
    pres[0][1]()
    e(f"s_branch {tag}_h2")
    A.label(f"{tag}_h1")
    bar_loop(A, f"{tag}_i4", G.NT - 2)
    pres[0][1]()
    bar_loop(A, f"{tag}_i6", 2)
    A.label(f"{tag}_h2")
    e("s_barrier")
    pres[1][0](); pres[1][1]()
    e("s_barrier")
    idle_tail(A, f"{tag}_out")

def p_attn(A, tag, nxt):
    e = A.e
    A.label(tag)
    phase_begin(A)
    e("s_and_b32 s31, s2, 7"); e("s_lshr_b32 s32, s2, 3")
    e("s_lshl_b32 s34, s31, 2"); e("s_and_b32 s35, s32, 3"); e("s_add_u32 s34, s34, s35")
    e("s_lshr_b32 s33, s32, 2")
    e("s_lshr_b32 s37, s34, 1")
    set_poll(A, 37, cQ, 16)
    e(f"s_cmp_ge_u32 s{S_WV}, 4"); e(f"s_cbranch_scc1 {tag}_idle")
    VXO, VT = 1, 2
    P = 8; Z = P + 64; PQ = Z + 8
    e("v_and_b32 v5, 63, v0")
    e(f"v_lshlrev_b32 v{VXO}, 4, v5")
    e(f"s_lshl_b32 s35, s33, 3"); e(f"s_lshl_b32 s36, s{S_WV}, 1"); e("s_add_u32 s35, s35, s36")
    e("s_and_b32 s40, s34, 1")
    e(f"s_mul_i32 s44, s{S_LAYER}, {WS_KV2 - WS_KV}")
    e("s_lshl_b32 s36, s37, 17"); e("s_lshl_b32 s41, s40, 12"); e("s_add_u32 s36, s36, s41")
    e(f"s_lshl_b32 s41, s{S_WV}, 10"); e("s_add_u32 s36, s36, s41"); e(f"s_add_u32 s36, s36, {WS_KV}"); e("s_add_u32 s36, s36, s44")
    e("s_lshl_b32 s37, s37, 12"); e("s_lshl_b32 s41, s40, 7"); e("s_add_u32 s37, s37, s41"); e(f"s_add_u32 s37, s37, {WS_Z}"); e("s_add_u32 s37, s37, s44")
    e(f"s_mul_i32 s38, s35, {F*64}"); e("s_lshl_b32 s39, s34, 11"); e("s_add_u32 s38, s38, s39")
    e(f"s_add_u32 s38, s38, {WS_H}")
    e("v_and_b32 v6, 15, v5"); e("v_lshlrev_b32 v6, 8, v6"); e("v_lshrrev_b32 v7, 4, v5"); e("v_lshl_add_u32 v6, v7, 4, v6")
    e(f"s_mov_b32 s42, {F*64}")
    srd_off(A, 8, "s28", "s29", "s36", 16 * 8192)
    srd_off(A, 20, "s28", "s29", "s37", 4096)
    srd_off(A, 12, "s28", "s29", "s38", F * 64 + 2048)
    e(f"s_lshr_b32 s41, s{S_WV}, 1"); e("s_lshl_b32 s41, s41, 10"); e(f"s_and_b32 s40, s{S_WV}, 1"); e("s_lshl_b32 s40, s40, 3"); e("s_add_u32 s41, s41, s40")
    e(f"s_add_u32 s41, s41, {LDS_R}"); e(f"v_add_u32 v{VT}, s41, v{VXO}"); e(f"v_add_u32 v{VT+1}, {LDS_R}, v{VXO}")
    proj_coords(A, 45, 46, 47, 48)
    e(f"s_lshl_b32 s45, s45, 2"); e(f"s_add_u32 s45, s45, s{S_WV}"); e("s_lshl_b32 s45, s45, 16"); e("s_lshl_b32 s46, s46, 12"); e("s_add_u32 s45, s45, s46")
    srd_off(A, 24, "s28", "s29", "s45", 4096)
    sync1(A)
    e("s_barrier")
    rs(A, 2)
    for m in range(16):
        if m: e(f"s_mov_b32 s40, {m*8192}")
        e(f"buffer_load_dwordx4 v[{P+4*m}:{P+4*m+3}], v{VXO}, s[8:11], {'s40' if m else '0'} offen{SC1}")
    for k in range(2):
        e(f"buffer_load_dwordx4 v[{Z+4*k}:{Z+4*k+3}], v6, s[20:23], 0 offen offset:{k*64}{SC1}")
    for i in range(4):
        e(f"buffer_load_dwordx4 v[{PQ+4*i}:{PQ+4*i+3}], v{VXO}, s[12:15], {'s42' if i >= 2 else '0'} offen offset:{(i%2)*1024}{SC1}")
    for i in range(4):
        e(f"buffer_load_dwordx4 v[{V_RES+4*i}:{V_RES+3+4*i}], v{VXO}, s[24:27], 0 offen offset:{i*1024}{SC1}")
    for m in range(2, 16):
        if m % 2 == 0: e(f"s_waitcnt vmcnt({10 + 14 - m})")
        r0 = P + 4 * (m % 2); r = P + 4 * m
        for i in (0, 2):
            e(f"v_pk_add_f32 v[{r0+i}:{r0+i+1}], v[{r0+i}:{r0+i+1}], v[{r+i}:{r+i+1}]")
    for i in (0, 2):
        e(f"v_pk_add_f32 v[{P+i}:{P+i+1}], v[{P+i}:{P+i+1}], v[{P+4+i}:{P+5+i}]")
    e(f"v_cvt_pk_bf16_f32 v{P+4}, v{P}, v{P+1}"); e(f"v_cvt_pk_bf16_f32 v{P+5}, v{P+2}, v{P+3}")
    e(f"ds_write_b64 v{VT}, v[{P+4}:{P+5}]")
    rs(A, 3)
    e("s_waitcnt vmcnt(8)")
    for sh in (8, 4, 2, 1):
        for i in range(8):
            e(f"v_add_f32_dpp v{Z+i}, v{Z+i}, v{Z+i} row_ror:{sh} row_mask:0xf bank_mask:0xf")
    ZF = P + 16
    for i in range(4): e(f"v_cvt_pk_bf16_f32 v{ZF+i}, v{Z+2*i}, v{Z+2*i+1}")
    e("s_waitcnt lgkmcnt(0)")
    e("s_barrier")
    FR = P + 8
    for f in range(2):
        e(f"ds_read_b128 v[{FR+4*f}:{FR+4*f+3}], v{VT+1} offset:{f*1024}")
    NUM = P + 20; DEN = P + 52
    e("s_waitcnt vmcnt(4)")
    for i in range(4):
        e(f"v_mfma_f32_16x16x32_bf16 v[{DEN+4*i}:{DEN+4*i+3}], v[{ZF}:{ZF+3}], v[{PQ+4*i}:{PQ+4*i+3}], 0")
    e("s_waitcnt lgkmcnt(0)")
    for i in range(4):
        for et in range(2):
            r = NUM + i * 8 + et * 4
            e(f"v_mfma_f32_16x16x32_bf16 v[{r}:{r+3}], v[{FR+4*et}:{FR+4*et+3}], v[{PQ+4*i}:{PQ+4*i+3}], 0")
    rs(A, 4)
    for i in range(4): e(f"v_add_f32 v{DEN+4*i}, {f2u(1e-6):#x}, v{DEN+4*i}")
    for i in range(4): e(f"v_rcp_f32 v{DEN+4*i}, v{DEN+4*i}")
    e("s_nop 0")
    for i in range(4):
        r = NUM + i * 8
        for j in range(0, 8, 2):
            e(f"v_pk_mul_f32 v[{r+j}:{r+j+1}], v[{r+j}:{r+j+1}], v[{DEN+4*i}:{DEN+4*i+1}] op_sel_hi:[1,0]")
        for j in range(0, 8, 2):
            e(f"v_cvt_pk_bf16_f32 v{PQ+4*i+j//2}, v{r+j}, v{r+j+1}")
        e(f"buffer_store_dwordx4 v[{PQ+4*i}:{PQ+4*i+3}], v{VXO}, s[12:15], {'s42' if i >= 2 else '0'} offen offset:{(i%2)*1024}{SC1}")
    stamps_flush(A)
    A.label(f"{tag}_out")
    set_signal(A, 33, cA)
    e(f"s_branch {nxt}")
    def early():
        wd_warm_base(A)
        e(f"s_cmp_lg_u32 s{S_LAYER}, 0"); e(f"s_cbranch_scc1 {tag}_nw")
        warm(A, [64 * i for i in range(14)], 896)
        A.label(f"{tag}_nw")
    idle_head(A, tag, early=early)
    e("s_barrier")
    idle_tail(A, f"{tag}_out")

def k_prep2(A, name):
    e = A.e
    NCS, NWM = 192, 0
    st = gen.STAMP; gen.STAMP = False
    kernel_head(A, name, 256 + NCS + NWM)
    e(f"s_load_dwordx4 s[4:7], s[0:1], {KA['x']}")
    e(f"s_load_dwordx2 s[28:29], s[0:1], {KA['ws']}")
    e("v_lshrrev_b32 v4, 6, v0"); e("v_and_b32 v5, 63, v0")
    e("v_readfirstlane_b32 s30, v4")
    e("v_lshlrev_b32 v1, 4, v5")
    e("s_cmp_ge_u32 s2, 256")
    e(f"s_cbranch_scc1 {name}_cs")
    e("s_lshl_b32 s31, s2, 2"); e("s_add_u32 s31, s31, s30")
    e("s_lshr_b32 s35, s31, 4"); e("s_and_b32 s34, s31, 15")
    rowmajor_lane_off(A, 2, 3)
    e("s_lshl_b32 s36, s35, 16"); e("s_lshl_b32 s37, s34, 7"); e("s_add_u32 s36, s36, s37"); e(f"s_add_u32 s37, s36, {16*2048}")
    e("s_lshl_b32 s38, s35, 16"); e("s_lshl_b32 s39, s34, 12"); e("s_add_u32 s38, s38, s39")
    e("s_waitcnt lgkmcnt(0)")
    srd(A, 8, "s4", "s5", S * D * 2)
    srd_off(A, 12, "s28", "s29", "s38", 4096)
    R = 16
    for i in range(4):
        so, off = rowmajor_frag(i, "s36", "s37")
        e(f"buffer_load_dwordx4 v[{R+4*i}:{R+4*i+3}], v2, s[8:11], {so} offen offset:{off} nt")
    srd_off(A, 40, "s28", "s29", WS_FL, 16384)
    for i in range(4): e(f"v_mov_b32 v{40+i}, 0")
    e("s_lshl_b32 s44, s31, 10")
    e("buffer_store_dwordx4 v[40:43], v1, s[40:43], s44 offen")
    e("s_lshl_b32 s36, s35, 12"); e("s_lshr_b32 s37, s34, 2"); e("s_lshl_b32 s37, s37, 10"); e("s_add_u32 s36, s36, s37")
    e("s_and_b32 s37, s34, 3"); e("s_lshl_b32 s37, s37, 2"); e("s_add_u32 s36, s36, s37")
    srd_off(A, 16, "s28", "s29", WS_ST, 64 * 4096)
    e("s_waitcnt vmcnt(0)")
    for i in range(4):
        e(f"v_permlane16_swap_b32 v{R+4*i}, v{R+4*i+2}")
        e(f"v_permlane16_swap_b32 v{R+4*i+1}, v{R+4*i+3}")
    e("s_nop 1")
    for i in range(4):
        e(f"buffer_store_dwordx4 v[{R+4*i}:{R+4*i+3}], v1, s[12:15], 0 offen offset:{i*1024}")
    stats_emit(A, 16, [R + i for i in range(16)], 8)
    e("buffer_store_dword v8, v1, s[16:19], s36 offen")
    e(f"s_branch {name}_fin")
    A.label(f"{name}_cs")
    e("s_waitcnt lgkmcnt(0)")
    e("s_sub_u32 s44, s2, 256")
    colsum_part(A, name, 44, [(0, 6, 7, 6)], f"{name}_fin")
    A.label(f"{name}_fin")
    kernel_tail(A, name, 64)
    gen.STAMP = st
    return dict(name=name, grid=256 + NCS + NWM, block=256, lds=8192)

def k_mega(A, o):
    e = A.e
    A.begin_kernel(NAME)
    e("s_cmp_ge_u32 s2, 256")
    e(f"s_cbranch_scc1 {NAME}_end")
    e(f"s_load_dwordx2 s[28:29], s[0:1], {KA['ws']}")
    e("v_lshrrev_b32 v1, 6, v0")
    e(f"s_mov_b32 s{S_LAYER}, 0"); e(f"s_mov_b32 s{S_SIG}, {cDUMMY*128}"); e(f"s_mov_b32 s{S_PH}, 0")
    e(f"v_readfirstlane_b32 s{S_WV}, v1")
    e("s_waitcnt lgkmcnt(0)")
    srd_off(A, FL, "s28", "s29", WS_FL, 16384)
    e(f"s_cmp_lt_u32 s{S_WV}, 4"); e("s_cbranch_scc1 pq")
    pf = qkv_prefetch(A, 1, o.get("qkv")); pf[0](); pf[1]()
    class Lazy:
        def __init__(s, f): s.f = f
        def __getitem__(s, i):
            if i == 0: s.p = s.f()
            return s.p[i]
    p_qkv(A, "pq", "pa", [proj_prefetch(A, D, KA["wo"], 12, o.get("wo")), Lazy(lambda: ffn_prefetch(A, 1, o.get("ffn")))], o.get("qkv"))
    p_attn(A, "pa", "po")
    p_proj(A, "po", D, WS_O, KA["wo"], False, "pu", None, o.get("wo"))
    p_ffn(A, "pu", "pd", proj_prefetch(A, F, KA["wd"], 200, o.get("down")), o.get("ffn"))
    p_proj(A, "pd", F, WS_H, KA["wd"], True, "pq", qkv_prefetch(A, 3, o.get("qkv")), o.get("down"))
    A.label(f"{NAME}_end")
    e("s_endpgm")
    A.add_desc(NAME, 256, 102, 256)
    return dict(name=NAME, grid=256, block=512, lds=163840)

def build_mega(path, stamp_on=False, o=None):
    gen.STAMP = stamp_on
    uid[0] = 0
    A = Asm()
    prep = k_prep2(A, "prep_kernel")
    mega = k_mega(A, o or {})
    for k in (prep, mega): A.launch(k["name"], k["grid"], k["block"], k["lds"])
    open(path, "w").write(A.text(HEADER))

if __name__ == "__main__":
    if len(sys.argv) > 1:
        import json
        for name, o in json.loads(sys.argv[1]).items(): build_mega(f"m_{name}_stamp.s", True, o)
        sys.exit(0)
    build_mega("mega_stamp.s", True)
    build_mega("mega.s", False)
```

```python
import sys, math
from asmlib import Asm

S, D, F = 2048, 1024, 3584
MB = 1 << 20
WS_X, WS_PQ, WS_O, WS_H = 0, 4 * MB, 8 * MB, 12 * MB
WS_KV, WS_Z, WS_ST, WS_CS = 27 * MB, 29 * MB, 31 * MB, 31 * MB + 512 * 1024
CS_N = 10240
WS_DBG = 40 * MB
KA = dict(x=0, wqkv=8, wo=16, bx=24, wg=32, wu=40, wd=48, out=56, dbg=64, ws=72)
LOG2E = 0x3fb8aa3b
NLOG2E = 0xbfb8aa3b

def f2u(x):
    import struct
    return struct.unpack("<I", struct.pack("<f", x))[0]

class Stream:
    def __init__(self):
        self.ops = []
        self.pre = set()
    def i(self, s): self.ops.append(("i", s))
    def vm(self, s, tag): self.ops.append(("vm", s, tag))
    def ds(self, s, tag): self.ops.append(("ds", s, tag))
    def wait(self, vm=None, ds=None): self.ops.append(("w", vm, ds))

def resolve(pro, bodies):
    vq, dq = [], []
    def cnt(q, tags):
        if not tags: return None
        idx = -1
        for t in tags:
            if t in pro.pre: continue
            assert t in q, ("wait on never-issued tag", t)
            idx = max(idx, len(q) - 1 - q[::-1].index(t))
        if idx < 0: return None
        return len(q) - 1 - idx
    def run(st):
        res = []
        for op in st.ops:
            if op[0] == "vm": vq.append(op[2]); res.append(None)
            elif op[0] == "ds": dq.append(op[2]); res.append(None)
            elif op[0] == "w": res.append((cnt(vq, op[1]), cnt(dq, op[2])))
            else: res.append(None)
        return res
    def lines(st, res):
        out = []
        for op, r in zip(st.ops, res):
            if op[0] == "w":
                v, d = r
                parts = []
                if v is not None and v < 63: parts.append(f"vmcnt({v})")
                if d is not None and d < 15: parts.append(f"lgkmcnt({d})")
                if v is not None and v >= 63: parts.append("vmcnt(63)")
                if d is not None and d >= 15: parts.append("lgkmcnt(15)")
                if parts: out.append("s_waitcnt " + " ".join(parts))
            else:
                out.append(op[1])
        return out
    rp = run(pro)
    rs = [run(b) for b in bodies]
    for b in bodies[1:]:
        assert [o[1] for o in b.ops if o[0] != "w"] == [o[1] for o in bodies[0].ops if o[0] != "w"]
    merged = []
    for k in range(len(bodies[0].ops)):
        if bodies[0].ops[k][0] == "w":
            vs = [r[k][0] for r in rs if r[k][0] is not None]
            dsx = [r[k][1] for r in rs if r[k][1] is not None]
            merged.append((min(vs) if vs else None, min(dsx) if dsx else None))
        else:
            merged.append(None)
    return lines(pro, rp), lines(bodies[0], merged)

STAMP = False
def stamp(A, k):
    if STAMP:
        A.e(f"s_memtime s[{60+2*k}:{61+2*k}]")
def stamp_real(A, k):
    if STAMP:
        A.e(f"s_memrealtime s[{60+2*k}:{61+2*k}]")
def stamp_out(A, name, n):
    if not STAMP: return
    e = A.e
    e("s_waitcnt vmcnt(0) lgkmcnt(0)")
    stamp(A, n - 2)
    stamp_real(A, n - 1)
    e(f"s_load_dwordx2 s[56:57], s[0:1], {KA['ws']}")
    e(f"s_load_dword s79, s[0:1], {KA['dbg']}")
    e("s_getreg_b32 s59, hwreg(HW_REG_XCC_ID)")
    e("s_waitcnt lgkmcnt(0)")
    e("v_cmp_gt_u32 vcc, 1, v0")
    e("s_and_saveexec_b64 s[50:51], vcc")
    e(f"s_cbranch_execz {name}_end")
    srd_off(A, 52, "s56", "s57", WS_DBG, 32 * 65536)
    e("s_lshl_b32 s58, s2, 6")
    e("s_lshr_b32 s79, s79, 9"); e("s_and_b32 s79, s79, 31"); e("s_lshl_b32 s79, s79, 16"); e("s_add_u32 s58, s58, s79")
    e("v_mov_b32 v1, 0")
    for k in range(n):
        e(f"v_mov_b32 v2, s{60+2*k}")
        e(f"buffer_store_dword v2, v1, s[52:55], s58 offen offset:{4*k}")
    e(f"v_mov_b32 v2, s59")
    e(f"buffer_store_dword v2, v1, s[52:55], s58 offen offset:60")

def srd(A, r, lo, hi, size):
    A.e(f"s_mov_b32 s{r}, {lo}"); A.e(f"s_mov_b32 s{r+1}, {hi}")
    A.e(f"s_mov_b32 s{r+2}, {size}"); A.e(f"s_mov_b32 s{r+3}, 0x00020000")

def srd_off(A, r, lo, hi, off, size):
    A.e(f"s_add_u32 s{r}, {lo}, {off}"); A.e(f"s_addc_u32 s{r+1}, {hi}, 0")
    A.e(f"s_mov_b32 s{r+2}, {size}"); A.e(f"s_mov_b32 s{r+3}, 0x00020000")

class Gemm:
    def __init__(self, A, name, T, NB, RG, K, STAGES, XT, NWR, npieces, stage_bytes, piece_lds, frag_addr,
                 acc, wfrag0, xfrag0, vpiece0, vxoff, srd_w, srd_x, s_woff, s_xoff, s_ldsw, s_it, ldw, swap=None,
                 opt=None, BK=64, LA=None, WG=1):
        self.__dict__.update(locals())
        self.opt = opt or {}
        self.LA = LA or NWR
        self.kstep = 512 // T
        self.KS = BK // self.kstep
        self.SB = RG * (32 // T)
        self.NT = K // BK
        self.skew = self.opt.get("skew", 1)
        self.UN = STAGES * XT // math.gcd(STAGES, XT)
        while (self.skew and self.UN % (4 * self.skew)) or (self.UN * self.KS * NB) % NWR: self.UN *= 2
        assert self.NT % self.UN == 0, (self.NT, self.UN)
        assert self.LA <= NWR and self.LA <= self.KS * NB
        self.swap = swap or [False] * NB
        self.op = "v_mfma_f32_32x32x16_bf16" if T == 32 else "v_mfma_f32_16x16x32_bf16"
        self.XB = BK * 64
        self.LOOK = XT if self.opt.get("now") else max(XT, STAGES - 1)
        self.RING = min(8, self.UN)
        if self.skew: assert self.UN % self.RING == 0 and self.LOOK <= self.RING
        self.s_tq, self.s_sd, self.s_p, self.s_t1 = 84, 92, 96, 97
        assert self.skew in (0, 1, 2)
    def order_init(self, s_r):
        A = self.A
        if not self.skew:
            A.e(f"s_mov_b32 s{self.s_woff}, {-self.BK * self.ldw & 0xffffffff:#x}")
            A.e(f"s_mov_b32 s{self.s_xoff}, {-self.XB & 0xffffffff:#x}")
            return
        A.e(f"s_mov_b32 s{self.s_p}, 0")
        for i in range(4):
            A.e(f"s_cmp_eq_u32 s{s_r}, {i}")
            A.e(f"s_cselect_b32 s{self.s_sd+i}, {3 * self.skew}, {-self.skew}")
    def order_next(self, p):
        if not self.skew: return []
        t = self.s_tq + p % self.RING; t1 = self.s_t1; NT = self.NT
        l = [f"s_add_u32 s{t}, s{self.s_p}, s{self.s_sd + (p // self.skew) % 4}",
             f"s_add_u32 s{t1}, s{t}, {NT}",
             f"s_min_u32 s{t}, s{t}, s{t1}",
             f"s_sub_u32 s{t1}, s{t}, {NT}",
             f"s_min_u32 s{t}, s{t}, s{t1}"]
        l += [f"s_cmp_ge_u32 s{self.s_p}, {NT}\n    s_cselect_b32 s{t}, {NT * self.RG}, s{t}",
              f"s_add_u32 s{self.s_p}, s{self.s_p}, 1"]
        return l
    def set_woff(self, st, p):
        if self.skew: st.i(f"s_mul_i32 s{self.s_woff}, s{self.s_tq + p % self.RING}, {self.BK * self.ldw}")
        else: st.i(f"s_add_u32 s{self.s_woff}, s{self.s_woff}, {self.BK * self.ldw}")
    def set_xoff(self, st, p):
        if self.skew: st.i(f"s_mul_i32 s{self.s_xoff}, s{self.s_tq + p % self.RING}, {self.XB}")
        else:
            assert self.RG == 1
            st.i(f"s_add_u32 s{self.s_xoff}, s{self.s_xoff}, {self.XB}")
    def stage_off(self, stg):
        return ((stg + self.opt.get("rot", 0)) % self.STAGES) * self.stage_bytes
    def wreg(self, f):
        return self.wfrag0 + (f % self.NWR) * 4
    def xreg(self, q, sb):
        return self.xfrag0 + ((q % (self.XT * self.KS)) * self.SB + sb) * 4
    def dma_m0(self, st, tile, j):
        st.i(f"s_add_u32 m0, s{self.s_ldsw}, {self.stage_off(tile % self.STAGES) + self.piece_lds(j)}")
    def dma_ld(self, st, tile, j):
        st.vm(f"buffer_load_dwordx4 v{self.vpiece0 + j}, s[{self.srd_w}:{self.srd_w+3}], s{self.s_woff} offen lds", ("W", tile, j))
    def dma(self, st, tile, j):
        self.dma_m0(st, tile, j); st.i("s_nop 0"); self.dma_ld(st, tile, j)
    def xload(self, st, q, sb):
        r = self.xreg(q, sb)
        ks = q % self.KS
        if self.T == 32: rg, off = sb, (ks >> 1) * 2048 + (ks & 1) * 512
        else: rg, off = sb // 2, (ks * 2 + sb % 2) * 1024
        off = f" offset:{off}" if off else ""
        st.vm(f"buffer_load_dwordx4 v[{r}:{r+3}], v{self.vxoff + rg}, s[{self.srd_x}:{self.srd_x+3}], s{self.s_xoff} offen{off}", ("X", q, sb))
    def wread(self, st, f, rd):
        q, nb = divmod(f, self.NB)
        tile, ks = divmod(q, self.KS)
        row = (32 * (ks >> 1) + 8 * (ks & 1) + 16 * rd) if self.T == 32 else (32 * ks + 16 * rd)
        base, off = self.frag_addr(tile % self.STAGES, row, nb)
        assert 0 <= off < 65536, off
        r = self.wreg(f) + 2 * rd
        st.ds(f"ds_read_b64_tr_b16 v[{r}:{r+1}], v{base} offset:{off}", ("R", f, rd))
    def slots(self):
        tot = self.KS * self.NB * self.SB
        bpos = (self.KS * self.NB - self.LA) * self.SB
        pos = [(bpos + 2 + (j * tot) // self.npieces + self.opt.get("dma_shift", 0)) % tot for j in range(self.npieces)]
        assert len(set(pos)) == len(pos)
        return bpos, pos
    def pro_tile(self, st, t, w=True, x=True):
        bpos, pos = self.slots()
        if w and t < self.STAGES - 1:
            self.set_woff(st, t)
            for j in range(self.npieces):
                if t < self.STAGES - 2 or pos[j] > bpos:
                    self.dma(st, t, j)
        if x and t < self.XT:
            self.set_xoff(st, t)
            for ks in range(self.KS):
                for sb in range(self.SB):
                    self.xload(st, t * self.KS + ks, sb)
    def prologue_first(self, st):
        n0 = self.opt.get("first", 1)
        for t in range(n0):
            for l in self.order_next(t): st.i(l)
            if self.opt.get("xfirst"):
                self.pro_tile(st, t, w=False); self.pro_tile(st, t, x=False)
            else: self.pro_tile(st, t)
    def prologue_reads(self, st):
        st.wait(vm=[("W", 0, j) for j in range(self.npieces)])
        st.i("s_barrier")
        if STAMP: st.i("s_memtime s[66:67]\n    s_waitcnt lgkmcnt(0)")
        for f in range(self.LA):
            for rd in range(2):
                self.wread(st, f, rd)
    def prologue_rest(self, st):
        for t in range(self.opt.get("first", 1), self.LOOK):
            for l in self.order_next(t): st.i(l)
            self.pro_tile(st, t)
    def body(self, it):
        st = Stream()
        KS, NB, SB, LA = self.KS, self.NB, self.SB, self.LA
        bpos, pos = self.slots()
        o = self.opt
        nomfma, noread, noload, nox, now, nobar = (o.get(k) for k in ("nomfma", "noread", "noload", "nox", "now", "nobar"))
        spread = LA < self.NWR and SB >= 2
        for tt in range(self.UN):
            t = it * self.UN + tt
            pend = self.order_next(t + self.LOOK)
            lim = max(1, min((NB - 1) * SB, bpos if bpos else 1))
            per = max(1, -(-len(pend) // lim))
            xset = False
            for ks in range(KS):
                q = t * KS + ks
                for nb in range(NB):
                    f = q * NB + nb
                    for sb in range(SB):
                        m = (ks * NB + nb) * SB + sb
                        vmw = [("X", q, sb)] if (nb == 0 and not noload and not nox) else None
                        dsw = None
                        if sb == 0 and not noread and f % self.WG == 0:
                            dsw = [("R", f + i, rd) for i in range(self.WG) for rd in range(2)]
                        if vmw or dsw: st.wait(vm=vmw, ds=dsw)
                        w = self.wreg(f); x = self.xreg(q, sb)
                        a = self.acc(nb, sb)
                        wv, xv = f"v[{w}:{w+3}]", f"v[{x}:{x+3}]"
                        dj = [j for j in range(self.npieces) if pos[j] == m and not now and not noload]
                        tgt = t + self.STAGES - 1 if m > bpos else t + self.STAGES - 2
                        for j in dj: self.dma_m0(st, tgt, j)
                        if not nomfma:
                            if self.swap[nb]: st.i(f"{self.op} {a}, {xv}, {wv}, {a}")
                            else: st.i(f"{self.op} {a}, {wv}, {xv}, {a}")
                        elif dj: st.i("s_nop 0")
                        for j in dj: self.dma_ld(st, tgt, j)
                        for l in pend[:per]: st.i(l)
                        pend = pend[per:]
                        if not pend and not xset:
                            self.set_xoff(st, t + self.XT); xset = True
                        if m == bpos:
                            assert not pend
                            if not noload and not now: st.wait(vm=[("W", t + 1, j) for j in range(self.npieces)])
                            if not nobar: st.i("s_barrier")
                            if not now: self.set_woff(st, t + self.STAGES - 1)
                        if not noread:
                            if spread:
                                if sb == 0: self.wread(st, f + LA, 0)
                                if sb == SB // 2: self.wread(st, f + LA, 1)
                            elif sb == SB - 1:
                                self.wread(st, f + LA, 0); self.wread(st, f + LA, 1)
                        if not noload and nb == NB - 1 and not nox:
                            assert xset
                            self.xload(st, q + self.XT * KS, sb)
        return st
    def emit(self, pro, loop_end=None):
        A = self.A
        nit = self.NT // self.UN
        pl, bl = resolve(pro, [self.body(it) for it in range(nit)])
        for l in pl: A.e(l)
        if STAMP:
            A.e("s_waitcnt lgkmcnt(0)"); stamp(A, 4); A.e("s_waitcnt lgkmcnt(0)")
        if nit > 1:
            A.e(f"s_mov_b32 s{self.s_it}, {nit}")
            A.e(".p2align 6")
            A.label(f"{self.name}_loop")
        for l in bl: A.e(l)
        if nit > 1:
            A.e(f"s_sub_u32 s{self.s_it}, s{self.s_it}, 1")
            if loop_end: loop_end()
            A.e(f"s_cmp_lg_u32 s{self.s_it}, 0")
            A.e(f"s_cbranch_scc1 {self.name}_loop")

def lane_consts_fullline(A, T, ldw, vtmp, vpiece_base, vfrag0):
    e = A.e
    t0, t1, t2 = vtmp, vtmp + 1, vtmp + 2
    e(f"v_and_b32 v{t0}, 63, v0")
    e(f"v_lshrrev_b32 v{t1}, 3, v{t0}")
    e(f"v_mul_u32_u24 v{vpiece_base}, {ldw}, v{t1}")
    e(f"v_and_b32 v{t2}, 7, v{t0}")
    if T == 32:
        e(f"v_and_b32 v{t1}, 2, v{t1}")
        e(f"v_lshlrev_b32 v{t1}, 1, v{t1}")
    else:
        e(f"v_and_b32 v{t1}, 6, v{t1}")
    e(f"v_xor_b32 v{t2}, v{t2}, v{t1}")
    e(f"v_lshl_add_u32 v{vpiece_base}, v{t2}, 4, v{vpiece_base}")
    if vfrag0 is None: return
    e(f"v_and_b32 v{t1}, 3, v{t0}")
    e(f"v_lshlrev_b32 v{vfrag0}, 3, v{t1}")
    if T == 32:
        e(f"v_lshrrev_b32 v{t1}, 5, v{t0}")
        e(f"v_lshl_add_u32 v{vfrag0}, v{t1}, 9, v{vfrag0}")
        e(f"v_bfe_u32 v{t1}, v{t0}, 2, 2")
        e(f"v_lshl_add_u32 v{vfrag0}, v{t1}, 7, v{vfrag0}")
        e(f"v_bfe_u32 v{t1}, v{t0}, 3, 1")
        e(f"v_lshl_add_u32 v{vfrag0}, v{t1}, 6, v{vfrag0}")
        e(f"v_bfe_u32 v{t1}, v{t0}, 4, 1")
        e(f"v_lshl_add_u32 v{vfrag0}, v{t1}, 5, v{vfrag0}")
        e(f"v_xor_b32 v{vfrag0+1}, 64, v{vfrag0}")
    else:
        e(f"v_lshrrev_b32 v{t1}, 2, v{t0}")
        e(f"v_lshl_add_u32 v{vfrag0}, v{t1}, 7, v{vfrag0}")
        e(f"v_bfe_u32 v{t1}, v{t0}, 3, 2")
        e(f"v_lshl_add_u32 v{vfrag0}, v{t1}, 5, v{vfrag0}")
        for i in range(1, 4):
            e(f"v_xor_b32 v{vfrag0+i}, {32*i}, v{vfrag0}")

def fullline_frag_addr(T, VF, BK, nbase):
    per = 64 // T
    def fa(stg, row, nb):
        cg, lo = divmod(nb, per)
        ro, so = nbase(stg)
        return (VF + ro + lo, so + cg * BK * 128 + row * 128)
    return fa

def blk_acc(T, pre, base, RG):
    def acc(nb, sb):
        if T == 32:
            r = base + (nb * RG + sb) * 16
            return f"{pre}[{r}:{r+15}]"
        r = base + ((nb // 2) * RG + sb // 2) * 16 + (sb % 2) * 8 + (nb % 2) * 4
        return f"{pre}[{r}:{r+3}]"
    return acc

def stats_finish(o, vs, vt, vmean_neg, vrstd):
    e = o
    for st in (8, 4, 2, 1):
        for i in range(st):
            e(f"v_add_f32 v{vs+i}, v{vs+i}, v{vs+i+st}")
    e(f"v_mov_b32 v{vt}, v{vs}")
    e("s_nop 1")
    e(f"v_permlane32_swap_b32 v{vs}, v{vt}")
    e("s_nop 1")
    e(f"v_mul_f32 v{vmean_neg}, {f2u(-1.0/D):#x}, v{vs}")
    e(f"v_mul_f32 v{vt}, {f2u(1.0/D):#x}, v{vt}")
    e(f"v_fma_f32 v{vt}, -v{vmean_neg}, v{vmean_neg}, v{vt}")
    e(f"v_max_f32 v{vt}, 0, v{vt}")
    e(f"v_add_f32 v{vt}, {f2u(1e-5):#x}, v{vt}")
    e(f"v_rsq_f32 v{vrstd}, v{vt}")
    e("s_nop 0")

def split16(o, v, v2):
    o(f"v_mov_b32 v{v2}, v{v}")
    o("s_nop 1")
    o(f"v_permlane16_swap_b32 v{v}, v{v2}")
    o("s_nop 1")

def stats_emit(A, T, packed, vt):
    e = A.e
    one = vt + 4
    e(f"v_mov_b32 v{one}, 0x3f803f80")
    for i in range(4): e(f"v_mov_b32 v{vt+i}, 0")
    for i, r in enumerate(packed):
        s = vt + 2 * ((i // 4) % 2)
        e(f"v_dot2_f32_bf16 v{s}, v{r}, v{one}, v{s}")
        e(f"v_dot2_f32_bf16 v{s+1}, v{r}, v{r}, v{s+1}")
    e("s_nop 3")
    e(f"v_permlane32_swap_b32 v{vt}, v{vt+1}")
    e(f"v_permlane32_swap_b32 v{vt+2}, v{vt+3}")
    e("s_nop 1")
    e(f"v_add_f32 v{vt}, v{vt}, v{vt+1}")
    e(f"v_add_f32 v{vt+2}, v{vt+2}, v{vt+3}")
    if T == 16:
        e("s_nop 1")
        e(f"v_permlane16_swap_b32 v{vt}, v{vt+2}")
        e("s_nop 1")
    e(f"v_add_f32 v{vt}, v{vt}, v{vt+2}")

def kernel_head(A, name, nwg):
    A.begin_kernel(name)
    A.e(f"s_cmp_ge_u32 s2, {nwg}")
    A.e(f"s_cbranch_scc1 {name}_end")
    stamp_real(A, 0); stamp(A, 1)

def kernel_tail(A, name, vgpr, accum=None):
    stamp(A, 6)
    stamp_out(A, name, 9)
    A.label(f"{name}_end")
    A.e("s_endpgm")
    A.add_desc(name, vgpr, 100, accum if accum else (vgpr + 3) // 4 * 4)

def rowmajor_lane_off(A, v, t):
    e = A.e
    e(f"v_and_b32 v{v}, 15, v0"); e(f"v_lshlrev_b32 v{v}, 11, v{v}")
    e(f"v_bfe_u32 v{t}, v0, 5, 1"); e(f"v_lshl_add_u32 v{v}, v{t}, 4, v{v}")
    e(f"v_bfe_u32 v{t}, v0, 4, 1"); e(f"v_lshl_add_u32 v{v}, v{t}, 5, v{v}")

def rowmajor_frag(i, s_lo, s_hi):
    return (s_hi if i % 2 else s_lo), (i // 2) * 64

def k_proj(A, name, K, ws_a, ka_w, final, opt=None):
    e = A.e
    opt = opt or {}
    T = 16
    BK, STAGES, XT, NWR, LA = 64, opt.get("STAGES", 4), opt.get("XT", 2), opt.get("NWR", 8), opt.get("LA", 4)
    ldw = D * 2
    kernel_head(A, name, opt.get("nwg", 256))
    e(f"s_load_dwordx2 s[4:5], s[0:1], {ka_w}")
    e(f"s_load_dwordx2 s[6:7], s[0:1], {KA['ws']}")
    if final: e(f"s_load_dwordx2 s[28:29], s[0:1], {KA['out']}")
    VP, VF, VXO, VT = 1, 3, 7, 8
    ACC, RES, WF = 16, 48, 64
    XF = WF + 4 * NWR
    NV = XF + XT * 16
    e(f"v_lshrrev_b32 v{VT+3}, 6, v0")
    lane_consts_fullline(A, T, ldw, VT, VP, VF)
    e(f"v_readfirstlane_b32 s30, v{VT+3}")
    e(f"v_lshlrev_b32 v{VXO}, 4, v{VT}")
    e("s_and_b32 s31, s2, 7"); e("s_lshr_b32 s32, s2, 3")
    e("s_lshr_b32 s33, s31, 1"); e("s_lshl_b32 s33, s33, 2"); e("s_lshr_b32 s34, s32, 3"); e("s_add_u32 s33, s33, s34")
    e("s_and_b32 s34, s31, 1"); e("s_lshl_b32 s34, s34, 3"); e("s_and_b32 s35, s32, 7"); e("s_add_u32 s34, s34, s35")
    e("s_lshl_b32 s35, s33, 2"); e("s_add_u32 s35, s35, s30")
    e(f"s_mul_i32 s36, s30, {8*ldw}"); e("s_lshl_b32 s37, s34, 7"); e("s_add_u32 s36, s36, s37")
    e(f"v_add_u32 v{VP}, s36, v{VP}")
    e(f"v_add_u32 v{VP+1}, {4*8*ldw}, v{VP}")
    e("s_lshl_b32 s40, s30, 10")
    e(f"s_mul_i32 s36, s35, {K*64}"); e(f"s_add_u32 s36, s36, {ws_a}")
    e(f"s_lshl_b32 s37, s35, 16"); e("s_lshl_b32 s38, s34, 12"); e("s_add_u32 s37, s37, s38")
    G = Gemm(A, name, T=T, NB=4, RG=1, K=K, STAGES=STAGES, XT=XT, NWR=NWR, LA=LA, WG=opt.get("WG", 2), npieces=2, stage_bytes=BK * 128,
             piece_lds=lambda j: j * 4096,
             frag_addr=fullline_frag_addr(T, VF, BK, lambda stg: (0, stg * BK * 128)),
             acc=blk_acc(T, "v", ACC, 1), wfrag0=WF, xfrag0=XF, vpiece0=VP, vxoff=VXO,
             srd_w=8, srd_x=12, s_woff=41, s_xoff=42, s_ldsw=40, s_it=43, ldw=ldw, opt=opt)
    e("s_add_u32 s44, s33, s34"); e("s_and_b32 s44, s44, 3")
    G.order_init(44)
    e(f"s_mov_b32 s10, {K * ldw}"); e("s_mov_b32 s11, 0x00020000")
    e(f"s_mov_b32 s14, {K * 64}"); e("s_mov_b32 s15, 0x00020000")
    e("s_mov_b32 s22, 4096"); e("s_mov_b32 s23, 0x00020000")
    e("s_waitcnt lgkmcnt(0)")
    e("s_mov_b32 s8, s4"); e("s_mov_b32 s9, s5")
    e("s_add_u32 s12, s6, s36"); e("s_addc_u32 s13, s7, 0")
    e("s_add_u32 s20, s6, s37"); e("s_addc_u32 s21, s7, 0")
    stamp(A, 2)
    p = Stream()
    for i in range(4):
        p.vm(f"buffer_load_dwordx4 v[{RES+4*i}:{RES+4*i+3}], v{VXO}, s[20:23], 0 offen offset:{i*1024}", ("RES", i))
    G.prologue_first(p)
    p.wait(vm=[("RES", 3)])
    for i in range(16):
        p.i(f"v_lshlrev_b32 v{ACC+2*i}, 16, v{RES+i}")
        p.i(f"v_and_b32 v{ACC+2*i+1}, 0xffff0000, v{RES+i}")
    G.prologue_reads(p)
    G.prologue_rest(p)
    G.emit(p)
    stamp(A, 5)
    st = opt.get("st", "")
    if not final:
        e("s_lshl_b32 s36, s35, 12"); e("s_lshr_b32 s37, s34, 2"); e("s_lshl_b32 s37, s37, 10"); e("s_add_u32 s36, s36, s37")
        e("s_and_b32 s37, s34, 3"); e("s_lshl_b32 s37, s37, 2"); e("s_add_u32 s36, s36, s37")
        srd_off(A, 24, "s6", "s7", WS_ST, 64 * 4096)
        for i in range(16):
            e(f"v_cvt_pk_bf16_f32 v{RES+i}, v{ACC+2*i}, v{ACC+2*i+1}")
            if i % 4 == 3:
                e(f"buffer_store_dwordx4 v[{RES+i-3}:{RES+i}], v{VXO}, s[20:23], 0 offen offset:{(i//4)*1024}{st}")
        stats_emit(A, T, [RES + i for i in range(16)], VT)
        e(f"buffer_store_dword v{VT}, v{VXO}, s[24:27], s36 offen")
    else:
        srd(A, 24, "s28", "s29", S * D * 2)
        rowmajor_lane_off(A, VT, VT + 1)
        e("s_lshl_b32 s36, s35, 16"); e("s_lshl_b32 s37, s34, 7"); e("s_add_u32 s36, s36, s37")
        e(f"s_add_u32 s37, s36, {16*2048}")
        for i in range(16):
            e(f"v_cvt_pk_bf16_f32 v{RES+i}, v{ACC+2*i}, v{ACC+2*i+1}")
        e("s_nop 0")
        for i in range(4):
            e(f"v_permlane16_swap_b32 v{RES+4*i}, v{RES+4*i+2}")
            e(f"v_permlane16_swap_b32 v{RES+4*i+1}, v{RES+4*i+3}")
        e("s_nop 1")
        for i in range(4):
            so, off = rowmajor_frag(i, "s36", "s37")
            e(f"buffer_store_dwordx4 v[{RES+4*i}:{RES+4*i+3}], v{VT}, s[24:27], {so} offen offset:{off}{st}")
    kernel_tail(A, name, NV)
    return dict(name=name, grid=opt.get("nwg", 256), block=256, lds=STAGES * BK * 128)

def k_ffn(A, name, opt=None):
    e = A.e
    opt = dict(opt or {}); opt.setdefault("skew", 0)
    T, NW = 16, 8
    BK, STAGES, XT, NWR, LA = 64, opt.get("STAGES", 4), opt.get("XT", 1), opt.get("NWR", 8), opt.get("LA", 7)
    ldw = F * 2
    NP = 4
    GU = 16384
    SBY = 2 * GU
    kernel_head(A, name, opt.get("nwg", 256))
    e(f"s_load_dwordx4 s[4:7], s[0:1], {KA['wg']}")
    e(f"s_load_dwordx2 s[28:29], s[0:1], {KA['ws']}")
    VP, VF, VXO, VMN, VRS, VT = 1, 5, 7, 8, 10, 12
    WF = 20; XF = WF + 4 * NWR
    ACC = XF + XT * 16
    SC = ACC + 112; CSR = SC + 16
    NV = CSR + 14
    e(f"v_lshrrev_b32 v{VT+3}, 6, v0")
    e(f"v_and_b32 v{VT}, 63, v0")
    e(f"v_readfirstlane_b32 s30, v{VT+3}")
    e("s_and_b32 s31, s2, 7"); e("s_lshr_b32 s32, s2, 3")
    e("s_and_b32 s33, s31, 1"); e("s_lshl_b32 s33, s33, 2"); e("s_lshr_b32 s34, s32, 3"); e("s_add_u32 s33, s33, s34")
    e("s_lshr_b32 s34, s31, 1"); e("s_lshl_b32 s34, s34, 3"); e("s_and_b32 s35, s32, 7"); e("s_add_u32 s34, s34, s35")
    e("s_lshl_b32 s35, s33, 3"); e("s_add_u32 s35, s35, s30")
    e("s_lshr_b32 s37, s30, 2")
    e("s_lshl_b32 s40, s30, 12")
    e("s_and_b32 s38, s30, 3"); e("s_lshl_b32 s38, s38, 8")
    e(f"s_mul_i32 s39, s34, 224")
    e("s_and_b32 s45, s34, 1"); e("s_lshl_b32 s46, s45, 1")
    e("s_movk_i32 s47, 4682")
    for j in range(NP):
        u, r, c = VT + 1, VT + 2, VT + 3
        e(f"v_add_u32 v{u}, s38, v{VT}")
        if j: e(f"v_add_u32 v{u}, {64*j}, v{u}")
        e(f"v_mul_u32_u24 v{r}, s47, v{u}"); e(f"v_lshrrev_b32 v{r}, 16, v{r}")
        e(f"v_mul_u32_u24 v{c}, 14, v{r}"); e(f"v_sub_u32 v{c}, v{u}, v{c}")
        e(f"v_add_u32 v{c}, s46, v{c}")
        e(f"v_subrev_u32 v{u}, 14, v{c}"); e(f"v_min_u32 v{c}, v{c}, v{u}")
        e(f"v_mul_u32_u24 v{VP+j}, {ldw}, v{r}")
        e(f"v_lshl_add_u32 v{VP+j}, v{c}, 4, v{VP+j}")
        e(f"v_add_u32 v{VP+j}, s39, v{VP+j}")
        if j >= 2:
            e(f"v_lshrrev_b32 v{r}, 6, v{r}"); e(f"v_lshl_add_u32 v{VP+j}, v{r}, 28, v{VP+j}")
    e(f"v_lshlrev_b32 v{VXO}, 4, v{VT}")
    G = Gemm(A, name, T=T, NB=14, RG=1, K=D, STAGES=STAGES, XT=XT, NWR=NWR, LA=LA, WG=opt.get("WG", 2), npieces=NP, stage_bytes=SBY,
             piece_lds=lambda j: j * 1024,
             frag_addr=lambda stg, row, nb: (VF + stg // 2, (stg % 2) * SBY + (nb % 2) * GU + row * 224 + 32 * (nb // 2)),
             acc=blk_acc(T, "v", ACC, 1), wfrag0=WF, xfrag0=XF, vpiece0=VP, vxoff=VXO,
             srd_w=8, srd_x=12, s_woff=41, s_xoff=42, s_ldsw=40, s_it=43, ldw=ldw, opt=opt)
    e("s_add_u32 s44, s33, s34"); e("s_and_b32 s44, s44, 3")
    G.order_init(44)
    e("s_lshl_b32 s36, s35, 16")
    e(f"s_mov_b32 s10, {D*ldw}"); e("s_mov_b32 s11, 0x00020000")
    e(f"s_mov_b32 s14, {D*64}"); e("s_mov_b32 s15, 0x00020000")
    e("s_cmp_eq_u32 s37, 0")
    e("s_waitcnt lgkmcnt(0)")
    e("s_cselect_b32 s8, s4, s6"); e("s_cselect_b32 s9, s5, s7")
    e("s_add_u32 s12, s28, s36"); e("s_addc_u32 s13, s29, 0")
    stamp(A, 2)
    p = Stream()
    G.prologue_first(p)
    o = p.i
    o(f"v_and_b32 v{VT+1}, 3, v{VT}"); o(f"v_lshlrev_b32 v{VF}, 3, v{VT+1}")
    o(f"v_lshrrev_b32 v{VT+1}, 2, v{VT}"); o(f"v_mul_u32_u24 v{VT+1}, 224, v{VT+1}"); o(f"v_add_u32 v{VF}, v{VF}, v{VT+1}")
    o(f"v_add_u32 v{VF+1}, {2*SBY}, v{VF}")
    o(f"v_and_b32 v{VT+1}, 15, v{VT}"); o(f"v_bfe_u32 v{VT+2}, v{VT}, 4, 1"); o(f"v_mul_u32_u24 v{VT+2}, {F}, v{VT+2}")
    o(f"v_add_lshl_u32 v{VT+1}, v{VT+1}, v{VT+2}, 4")
    o(f"v_lshrrev_b32 v{VT+2}, 5, v{VT}"); o(f"v_lshl_add_u32 v{VT+1}, v{VT+2}, 3, v{VT+1}")
    o("s_lshl_b32 s38, s35, 12"); o(f"s_add_u32 s38, s38, {WS_ST}")
    o(f"s_mul_i32 s39, s34, {112*16}"); o(f"s_add_u32 s39, s39, {WS_CS + 3072*16}")
    o("s_add_u32 s20, s28, s38"); o("s_addc_u32 s21, s29, 0"); o("s_movk_i32 s22, 4096"); o("s_mov_b32 s23, 0x00020000")
    o("s_add_u32 s24, s28, s39"); o("s_addc_u32 s25, s29, 0"); o(f"s_mov_b32 s26, {(F+112)*16}"); o("s_mov_b32 s27, 0x00020000")
    o("s_lshl_b32 s48, s45, 8")
    o("s_mul_i32 s49, s45, 1536"); o("s_sub_u32 s49, 1536, s49")
    nit = G.NT // G.UN
    o(f"s_sub_u32 s51, {nit - 1}, s37")
    for i in range(112): o(f"v_mov_b32 v{ACC+i}, 0")
    G.prologue_reads(p)
    G.prologue_rest(p)
    for i in range(4):
        p.vm(f"buffer_load_dwordx4 v[{SC+4*i}:{SC+4*i+3}], v{VXO}, s[20:23], 0 offen offset:{i*1024}", ("ST", i))
    for j in range(7):
        so, off = ("s48", j * 256) if j < 6 else ("s49", 0)
        p.vm(f"buffer_load_dwordx2 v[{CSR+2*j}:{CSR+2*j+1}], v{VT+1}, s[24:27], {so} offen offset:{off}", ("CS", j))
    def fix():
        e(f"s_cmp_lg_u32 s43, s51")
        e(f"s_cbranch_scc1 {name}_nofix")
        stats_finish(e, SC, VT + 4, VMN, VRS)
        for j in range(7): e(f"v_add_f32 v{CSR+2*j}, v{CSR+2*j}, v{CSR+2*j+1}")
        for j in range(7): e(f"v_mov_b32 v{CSR+2*j+1}, v{CSR+2*j}")
        split16(e, VRS, VRS + 1)
        for j in range(7): e(f"v_permlane32_swap_b32 v{CSR+2*j}, v{CSR+2*j+1}")
        split16(e, VMN, VT + 4)
        for j in range(7): e(f"v_add_f32 v{CSR+2*j}, v{CSR+2*j}, v{CSR+2*j+1}")
        e(f"v_permlane32_swap_b32 v{VMN}, v{VT+4}"); e("s_nop 1")
        for j in range(7):
            r = ACC + j * 16
            e(f"v_mfma_f32_16x16x1_4b_f32 v[{r}:{r+15}], v{CSR+2*j}, v{VMN}, v[{r}:{r+15}]")
        A.label(f"{name}_nofix")
    G.emit(p, loop_end=fix)
    stamp(A, 5)
    C1, C2 = SC, SC + 4
    for k in range(2):
        e(f"v_mul_f32 v{C1+2*k}, {NLOG2E:#x}, v{VRS+k}")
        e(f"v_mul_f32 v{C2+2*k}, v{VRS+k}, v{VRS+k}")
    e(f"s_mul_i32 s36, s35, {F*64}"); e(f"s_add_u32 s36, s36, {WS_H}")
    srd_off(A, 20, "s28", "s29", "s36", F * 64)
    e("s_mul_i32 s38, s34, 7"); e("s_add_u32 s38, s38, s45"); e("s_lshl_b32 s38, s38, 10")
    e("s_mul_i32 s39, s45, 8184"); e("s_add_u32 s46, s38, 6144"); e("s_sub_u32 s39, s46, s39")
    e("s_add_u32 s46, s38, 4096")
    TB = SC + 8
    OB = CSR + (CSR % 2)
    st = opt.get("st", "")
    def silu(blocks, k, out):
        for b, r in enumerate(blocks):
            for i in (0, 2): e(f"v_pk_mul_f32 v[{TB+4*b+i}:{TB+4*b+i+1}], v[{r+i}:{r+i+1}], v[{C1+2*k}:{C1+2*k+1}] op_sel_hi:[1,0]")
        for b, r in enumerate(blocks):
            for i in (0, 2): e(f"v_pk_mul_f32 v[{r+i}:{r+i+1}], v[{r+i}:{r+i+1}], v[{r+4+i}:{r+5+i}]")
        for i in range(4 * len(blocks)): e(f"v_exp_f32 v{TB+i}, v{TB+i}")
        for b, r in enumerate(blocks):
            for i in (0, 2): e(f"v_pk_mul_f32 v[{r+i}:{r+i+1}], v[{r+i}:{r+i+1}], v[{C2+2*k}:{C2+2*k+1}] op_sel_hi:[1,0]")
        for i in range(0, 4 * len(blocks), 2): e(f"v_pk_add_f32 v[{TB+i}:{TB+i+1}], v[{TB+i}:{TB+i+1}], 1.0 op_sel_hi:[1,0]")
        for i in range(4 * len(blocks)): e(f"v_rcp_f32 v{TB+i}, v{TB+i}")
        e("s_nop 0")
        for b, r in enumerate(blocks):
            for i in (0, 2): e(f"v_pk_mul_f32 v[{r+i}:{r+i+1}], v[{r+i}:{r+i+1}], v[{TB+4*b+i}:{TB+4*b+i+1}]")
        for b, r in enumerate(blocks):
            for i in (0, 2): e(f"v_cvt_pk_bf16_f32 v{out+2*b+i//2}, v{r+i}, v{r+i+1}")
    cnt = 0
    for pj in range(4):
        for sb in range(2):
            ob = OB + 4 * (cnt % 3); cnt += 1
            silu([ACC + (2 * pj + jj) * 16 + 8 * sb for jj in range(2 if pj < 3 else 1)], sb, ob)
            if pj < 3:
                so, off = ("s38", pj * 2048 + sb * 1024) if pj < 2 else ("s46", sb * 1024)
                e(f"buffer_store_dwordx4 v[{ob}:{ob+3}], v{VXO}, s[20:23], {so} offen offset:{off}{st}")
            else:
                e(f"buffer_store_dwordx2 v[{ob}:{ob+1}], v{VXO}, s[20:23], s39 offen offset:{sb*1024}{st}")
    kernel_tail(A, name, NV)
    return dict(name=name, grid=opt.get("nwg", 256), block=NW * 64, lds=STAGES * SBY)

def k_qkv(A, name, opt=None):
    e = A.e
    opt = dict(opt or {})
    T = 32
    BK, STAGES, XT, NWR, LA = 64, opt.get("STAGES", 4), opt.get("XT", 2), opt.get("NWR", 6), opt.get("LA", 6)
    ldw = 3 * D * 2
    SBY = 3 * BK * 128
    NP = 6
    kernel_head(A, name, 256)
    e(f"s_load_dwordx2 s[4:5], s[0:1], {KA['wqkv']}")
    e(f"s_load_dwordx2 s[28:29], s[0:1], {KA['ws']}")
    VP, VF, VXO, VL16, VMN, VRS, VT = 1, 7, 11, 12, 13, 14, 16
    ACC = 32; WF = ACC + 96; XF = WF + 4 * NWR; SC = XF + max(XT * 16, 48)
    CSR = SC + 16; RR = CSR + 12
    NV = RR + 16
    e(f"v_lshrrev_b32 v{VT+3}, 6, v0")
    lane_consts_fullline(A, T, ldw, VT, VP, VF)
    e(f"v_readfirstlane_b32 s30, v{VT+3}")
    e(f"v_lshlrev_b32 v{VL16}, 4, v{VT}")
    e(f"v_and_b32 v{VT+1}, 15, v{VT}"); e(f"v_lshlrev_b32 v{VXO}, 4, v{VT+1}")
    e(f"v_lshrrev_b32 v{VT+2}, 5, v{VT}"); e(f"v_lshl_add_u32 v{VXO}, v{VT+2}, 8, v{VXO}")
    e(f"v_bfe_u32 v{VT+1}, v{VT}, 4, 1"); e(f"v_lshl_add_u32 v{VXO}, v{VT+1}, 10, v{VXO}")
    e(f"v_and_b32 v{VT+1}, 31, v{VT}"); e(f"v_lshlrev_b32 v{VT+1}, 4, v{VT+1}"); e(f"v_lshl_add_u32 v{VT+1}, v{VT+2}, 3, v{VT+1}")
    e("s_and_b32 s31, s2, 7"); e("s_lshr_b32 s32, s2, 3")
    e("s_and_b32 s33, s31, 1"); e("s_lshl_b32 s33, s33, 3"); e("s_lshr_b32 s34, s32, 2"); e("s_add_u32 s33, s33, s34")
    e("s_lshr_b32 s34, s31, 1"); e("s_lshl_b32 s34, s34, 2"); e("s_and_b32 s35, s32, 3"); e("s_add_u32 s34, s34, s35")
    e("s_lshl_b32 s35, s33, 2"); e("s_add_u32 s35, s35, s30")
    e(f"s_mul_i32 s36, s30, {8*ldw}"); e("s_lshl_b32 s37, s34, 7"); e("s_add_u32 s36, s36, s37")
    e(f"v_add_u32 v{VP}, s36, v{VP}")
    for j in range(1, NP):
        e(f"v_add_u32 v{VP+j}, {(j >> 1) * 2048 + (j & 1) * 32 * ldw}, v{VP}")
    e("s_lshl_b32 s40, s30, 10")
    G = Gemm(A, name, T=T, NB=6, RG=1, K=D, STAGES=STAGES, XT=XT, NWR=NWR, LA=LA, WG=opt.get("WG", 2), npieces=NP, stage_bytes=SBY,
             piece_lds=lambda j: (j >> 1) * BK * 128 + (j & 1) * 4096,
             frag_addr=fullline_frag_addr(T, VF, BK, lambda stg: (2 * (stg // 2), (stg % 2) * SBY)),
             acc=blk_acc(T, "v", ACC, 1), wfrag0=WF, xfrag0=XF, vpiece0=VP, vxoff=VXO,
             srd_w=8, srd_x=12, s_woff=41, s_xoff=42, s_ldsw=40, s_it=43, ldw=ldw,
             swap=[nb >= 2 for nb in range(6)], opt=opt)
    e("s_add_u32 s44, s33, s34"); e("s_and_b32 s44, s44, 3")
    G.order_init(44)
    e("s_lshl_b32 s36, s35, 16")
    e("s_lshl_b32 s38, s35, 12"); e(f"s_add_u32 s38, s38, {WS_ST}")
    e("s_lshl_b32 s39, s34, 10"); e(f"s_add_u32 s39, s39, {WS_CS}")
    e("s_movk_i32 s45, 16384"); e("s_mov_b32 s46, 32768")
    e(f"s_mov_b32 s10, {D*ldw}"); e("s_mov_b32 s11, 0x00020000")
    e(f"s_mov_b32 s14, {D*64}"); e("s_mov_b32 s15, 0x00020000")
    e("s_movk_i32 s22, 4096"); e("s_mov_b32 s23, 0x00020000")
    e(f"s_mov_b32 s26, {32768+1024}"); e("s_mov_b32 s27, 0x00020000")
    e("s_waitcnt lgkmcnt(0)")
    e("s_add_u32 s20, s28, s38"); e("s_addc_u32 s21, s29, 0")
    e("s_add_u32 s24, s28, s39"); e("s_addc_u32 s25, s29, 0")
    e("s_mov_b32 s8, s4"); e("s_mov_b32 s9, s5")
    e("s_add_u32 s12, s28, s36"); e("s_addc_u32 s13, s29, 0")
    stamp(A, 2)
    p = Stream()
    for i in range(4):
        p.vm(f"buffer_load_dwordx4 v[{SC+4*i}:{SC+4*i+3}], v{VL16}, s[20:23], 0 offen offset:{i*1024}", ("ST", i))
    for b in range(6):
        so = ("0", "s45", "s46")[b // 2]
        p.vm(f"buffer_load_dwordx2 v[{CSR+2*b}:{CSR+2*b+1}], v{VT+1}, s[24:27], {so} offen offset:{(b % 2) * 512}", ("CS", b))
    G.prologue_first(p)
    for i in range(2): p.i(f"v_add_u32 v{VF+2+i}, {2*SBY}, v{VF+i}")
    p.i(f"v_mov_b32 v{VT+5}, 0.5")
    p.wait(vm=[("ST", 3)])
    stats_finish(p.i, SC, VT + 4, VMN, VRS)
    p.wait(vm=[("CS", 5)])
    for b in range(6): p.i(f"v_add_f32 v{CSR+2*b}, v{CSR+2*b}, v{CSR+2*b+1}")
    p.i("s_nop 0")
    for b in range(6):
        r = ACC + 16 * b
        if b < 2: p.i(f"v_mfma_f32_32x32x2_f32 v[{r}:{r+15}], v{CSR+2*b}, v{VMN}, 0")
        else: p.i(f"v_mfma_f32_32x32x2_f32 v[{r}:{r+15}], v{VMN}, v{CSR+2*b}, 0")
    p.i(f"v_mfma_f32_32x32x2_f32 v[{RR}:{RR+15}], v{VRS}, v{VT+5}, 0")
    G.prologue_reads(p)
    G.prologue_rest(p)
    KL = SC; QL = VRS + 1
    p.i(f"v_mul_f32 v{QL}, {LOG2E:#x}, v{VRS}")
    for i in range(16): p.i(f"v_mul_f32 v{KL+i}, {LOG2E:#x}, v{RR+i}")
    G.emit(p)
    stamp(A, 5)
    e(f"s_mov_b32 s47, {f2u(1e-6):#x}")
    e(f"s_lshl_b32 s36, s35, 16"); e("s_lshl_b32 s37, s34, 12"); e("s_add_u32 s36, s36, s37"); e(f"s_add_u32 s36, s36, {WS_PQ}")
    e("s_add_u32 s20, s28, s36"); e("s_addc_u32 s21, s29, 0")
    e("s_lshl_b32 s37, s34, 4"); e("s_add_u32 s37, s37, s33")
    e("s_lshl_b32 s38, s37, 13"); e("s_lshl_b32 s36, s30, 11"); e("s_add_u32 s38, s38, s36"); e(f"s_add_u32 s38, s38, {WS_KV}")
    e("s_add_u32 s24, s28, s38"); e("s_addc_u32 s25, s29, 0"); e("s_movk_i32 s26, 2048")
    e("s_lshl_b32 s38, s37, 8"); e(f"s_add_u32 s38, s38, {WS_Z}")
    srd_off(A, 16, "s28", "s29", "s38", 256)
    e("s_waitcnt vmcnt(0) lgkmcnt(0)")
    e("s_barrier")
    TB = VT
    def phi(regs, rs, rl, outs):
        n = len(regs)
        for i in range(n): e(f"v_mul_f32 v{TB+i}, v{regs[i]}, v{rl[i]}")
        for i in range(n): e(f"v_exp_f32 v{TB+i}, v{TB+i} clamp")
        for i in range(n): e(f"v_max_f32 v{regs[i]}, 0, v{regs[i]}")
        for i in range(0, n, 2): e(f"v_pk_add_f32 v[{TB+i}:{TB+i+1}], v[{TB+i}:{TB+i+1}], s[46:47] op_sel:[0,1]")
        for i in range(n): e(f"v_fma_f32 v{regs[i]}, v{regs[i]}, v{rs[i]}, v{TB+i}")
        for i in range(0, n, 2): e(f"v_cvt_pk_bf16_f32 v{outs[i//2]}, v{regs[i]}, v{regs[i+1]}")
    PK = WF; VV = XF; ONE = XF + 16; OB = XF + 24
    for i in range(4): e(f"v_mov_b32 v{ONE+i}, 0x3f803f80")
    KVR = ACC + 32; ZR = ACC + 64
    for hh in range(2):
        r = ACC + (2 + hh) * 16
        phi([r + i for i in range(16)], [RR + i for i in range(16)], [KL + i for i in range(16)], [PK + hh * 8 + i for i in range(8)])
        r = ACC + (4 + hh) * 16
        for i in range(0, 16, 2):
            e(f"v_pk_mul_f32 v[{r+i}:{r+i+1}], v[{r+i}:{r+i+1}], v[{RR+i}:{RR+i+1}]")
        for i in range(0, 16, 2):
            e(f"v_cvt_pk_bf16_f32 v{VV+hh*8+i//2}, v{r+i}, v{r+i+1}")
        e("s_nop 1")
        for ks in range(2):
            a = PK + hh * 8 + 4 * ks; b = VV + hh * 8 + 4 * ks
            r = KVR + hh * 16
            e(f"v_mfma_f32_32x32x16_bf16 v[{r}:{r+15}], v[{a}:{a+3}], v[{b}:{b+3}], {'0' if ks == 0 else f'v[{r}:{r+15}]'}")
        for ks in range(2):
            a = PK + hh * 8 + 4 * ks
            r = ZR + hh * 16
            e(f"v_mfma_f32_32x32x16_bf16 v[{r}:{r+15}], v[{ONE}:{ONE+3}], v[{a}:{a+3}], {'0' if ks == 0 else f'v[{r}:{r+15}]'}")
    e(f"v_and_b32 v{VP}, 0x3ff, v{VXO}"); e(f"v_lshrrev_b32 v{VP+1}, 10, v{VXO}"); e(f"v_lshl_add_u32 v{VP}, v{VP+1}, 13, v{VP}")
    e(f"v_add_u32 v{VP}, s40, v{VP}")
    e(f"v_lshrrev_b32 v{VP+2}, 2, v{VL16}"); e("s_lshl_b32 s36, s30, 8"); e(f"v_add_u32 v{VP+3}, s36, v{VP+2}")
    e("s_lshl_b32 s36, s30, 13"); e(f"v_add_u32 v{VP+1}, s36, v{VL16}")
    def q_part(hh):
        r = ACC + hh * 16
        ob = OB + hh * 8
        outs = [ob + 0, ob + 1, ob + 4, ob + 5, ob + 2, ob + 3, ob + 6, ob + 7]
        phi([r + i for i in range(16)], [VRS] * 16, [QL] * 16, outs)
        for k in range(2):
            e(f"buffer_store_dwordx4 v[{ob+4*k}:{ob+4*k+3}], v{VXO}, s[20:23], 0 offen offset:{hh*2048 + k*512}")
    q_part(0)
    for hh in range(2):
        for rq in range(4):
            r = KVR + hh * 16 + 4 * rq
            e(f"ds_write_b128 v{VP}, v[{r}:{r+3}] offset:{hh*16384 + (rq >> 1)*4096 + (rq & 1)*512}")
    e(f"v_permlane32_swap_b32 v{ZR}, v{ZR+16}")
    e("s_nop 1")
    e(f"ds_write_b32 v{VP+3}, v{ZR} offset:32768")
    e("s_waitcnt lgkmcnt(0)")
    e("s_barrier")
    RB = KVR
    for k in range(8):
        e(f"ds_read_b128 v[{RB+4*k}:{RB+4*k+3}], v{VP+1} offset:{k*1024}")
    for k in range(4):
        e(f"ds_read_b32 v{ZR+k}, v{VP+2} offset:{32768 + k*256}")
    q_part(1)
    e("s_waitcnt lgkmcnt(0)")
    for k in range(2):
        r = RB + 16 * k
        for i in (0, 2):
            e(f"v_pk_add_f32 v[{r+i}:{r+i+1}], v[{r+i}:{r+i+1}], v[{r+4+i}:{r+5+i}]")
            e(f"v_pk_add_f32 v[{r+8+i}:{r+9+i}], v[{r+8+i}:{r+9+i}], v[{r+12+i}:{r+13+i}]")
        for i in (0, 2):
            e(f"v_pk_add_f32 v[{r+i}:{r+i+1}], v[{r+i}:{r+i+1}], v[{r+8+i}:{r+9+i}]")
        e(f"buffer_store_dwordx4 v[{r}:{r+3}], v{VL16}, s[24:27], 0 offen offset:{k*1024}")
    e(f"v_pk_add_f32 v[{ZR}:{ZR+1}], v[{ZR}:{ZR+1}], v[{ZR+2}:{ZR+3}]")
    e(f"v_add_f32 v{ZR}, v{ZR}, v{ZR+1}")
    e(f"buffer_store_dword v{ZR}, v{VP+2}, s[16:19], s36 offen")
    kernel_tail(A, name, NV)
    return dict(name=name, grid=256, block=256, lds=STAGES * SBY)

def colsum_part(A, name, s_item, mats, fin):
    e = A.e
    e(f"s_lshr_b32 s31, s{s_item}, 2"); e(f"s_and_b32 s34, s{s_item}, 3")
    first, lo, hi, ld = mats[-1]
    e(f"s_mov_b32 s8, s{lo}"); e(f"s_mov_b32 s9, s{hi}"); e(f"s_mov_b32 s33, {first}"); e(f"s_mov_b32 s32, {ld}")
    for k in range(len(mats) - 2, -1, -1):
        first, lo, hi, ld = mats[k]
        e(f"s_cmp_lt_u32 s31, {mats[k+1][0]}")
        e(f"s_cselect_b32 s8, s{lo}, s8"); e(f"s_cselect_b32 s9, s{hi}, s9"); e(f"s_cselect_b32 s33, {first}, s33"); e(f"s_cselect_b32 s32, {ld}, s32")
    e("s_lshl_b32 s32, s32, 10")
    e("s_lshl_b32 s10, s32, 10"); e("s_mov_b32 s11, 0x00020000")
    e("s_sub_u32 s33, s31, s33")
    e("v_lshrrev_b32 v2, 3, v5"); e("v_mul_lo_u32 v2, s32, v2"); e("v_and_b32 v3, 7, v5"); e("v_lshl_add_u32 v2, v3, 4, v2")
    e("s_lshl_b32 s36, s34, 2"); e("s_add_u32 s36, s36, s30"); e("s_lshl_b32 s36, s36, 6"); e("s_mul_i32 s36, s36, s32")
    e("s_lshl_b32 s37, s33, 7"); e("s_add_u32 s36, s36, s37")
    e("s_lshl_b32 s37, s32, 3")
    L = 32
    for i in range(8):
        e(f"buffer_load_dwordx4 v[{L+4*i}:{L+4*i+3}], v2, s[8:11], s36 offen")
        if i < 7: e("s_add_u32 s36, s36, s37")
    for i in range(8):
        e(f"s_waitcnt vmcnt({7-i})")
        t = (8 if i == 0 else 16 + 8 * (i % 2))
        for j in range(4):
            e(f"v_lshlrev_b32 v{t+2*j}, 16, v{L+4*i+j}"); e(f"v_and_b32 v{t+2*j+1}, 0xffff0000, v{L+4*i+j}")
        if i:
            for j in range(4):
                e(f"v_pk_add_f32 v[{8+2*j}:{9+2*j}], v[{8+2*j}:{9+2*j}], v[{t+2*j}:{t+2*j+1}]")
    e("v_lshlrev_b32 v2, 5, v0")
    e("ds_write_b128 v2, v[8:11]"); e("ds_write_b128 v2, v[12:15] offset:16")
    e("s_waitcnt lgkmcnt(0)")
    e("s_barrier")
    e("s_cmp_lg_u32 s30, 0")
    e(f"s_cbranch_scc1 {fin}")
    e("v_lshlrev_b32 v2, 2, v5")
    for i in range(32):
        e(f"ds_read_b32 v{L+i}, v2 offset:{i*256}")
    e("s_lshl_b32 s36, s31, 10"); e("s_lshl_b32 s37, s34, 2"); e("s_add_u32 s36, s36, s37")
    srd_off(A, 16, "s28", "s29", WS_CS, CS_N * 16)
    e("v_lshlrev_b32 v2, 4, v5")
    e("s_waitcnt lgkmcnt(0)")
    for st in (16, 8, 4, 2, 1):
        for i in range(st): e(f"v_add_f32 v{L+i}, v{L+i}, v{L+i+st}")
    e(f"buffer_store_dword v{L}, v2, s[16:19], s36 offen")

def warm_part(A, s_item, lo, hi, size):
    e = A.e
    srd(A, 8, f"s{lo}", f"s{hi}", size)
    e(f"s_lshl_b32 s36, s{s_item}, 15")
    e("v_lshlrev_b32 v2, 4, v0")
    for i in range(8):
        e(f"buffer_load_dwordx4 v[{32+4*i}:{35+4*i}], v2, s[8:11], s36 offen")
        if i < 7: e("s_add_u32 s36, s36, 4096")

def k_attn(A, name, extra):
    e = A.e
    nwg = 256 + (448 + 224 if extra else 0)
    kernel_head(A, name, nwg)
    e(f"s_load_dwordx2 s[28:29], s[0:1], {KA['ws']}")
    if extra:
        e(f"s_load_dwordx4 s[24:27], s[0:1], {KA['wg']}")
        e(f"s_load_dwordx2 s[22:23], s[0:1], {KA['wd']}")
    VXO, VT = 1, 2
    P = 8; Z = P + 64; PQ = Z + 8
    e("v_lshrrev_b32 v4, 6, v0"); e("v_and_b32 v5, 63, v0")
    e("v_readfirstlane_b32 s30, v4")
    if extra:
        e("s_cmp_ge_u32 s2, 256")
        e(f"s_cbranch_scc1 {name}_extra")
    e(f"v_lshlrev_b32 v{VXO}, 4, v5")
    e("s_and_b32 s31, s2, 7"); e("s_lshr_b32 s32, s2, 3")
    e("s_lshl_b32 s34, s31, 2"); e("s_and_b32 s35, s32, 3"); e("s_add_u32 s34, s34, s35")
    e("s_lshr_b32 s33, s32, 2")
    e("s_lshl_b32 s35, s33, 3"); e("s_lshl_b32 s36, s30, 1"); e("s_add_u32 s35, s35, s36")
    e("s_lshr_b32 s37, s34, 1"); e("s_and_b32 s40, s34, 1")
    e("s_lshl_b32 s36, s37, 17"); e("s_lshl_b32 s41, s40, 12"); e("s_add_u32 s36, s36, s41")
    e("s_lshl_b32 s41, s30, 10"); e("s_add_u32 s36, s36, s41"); e(f"s_add_u32 s36, s36, {WS_KV}")
    e("s_lshl_b32 s37, s37, 12"); e("s_lshl_b32 s41, s40, 7"); e("s_add_u32 s37, s37, s41"); e(f"s_add_u32 s37, s37, {WS_Z}")
    e("s_lshl_b32 s38, s35, 16"); e("s_lshl_b32 s39, s34, 11"); e("s_add_u32 s38, s38, s39")
    e(f"s_add_u32 s39, s38, {WS_O}"); e(f"s_add_u32 s38, s38, {WS_PQ}")
    e("v_and_b32 v6, 15, v5"); e("v_lshlrev_b32 v6, 8, v6"); e("v_lshrrev_b32 v7, 4, v5"); e("v_lshl_add_u32 v6, v7, 4, v6")
    e("s_mov_b32 s42, 65536")
    e("s_waitcnt lgkmcnt(0)")
    srd_off(A, 8, "s28", "s29", "s36", 16 * 8192)
    srd_off(A, 20, "s28", "s29", "s37", 4096)
    srd_off(A, 12, "s28", "s29", "s38", 65536 + 2048)
    srd_off(A, 16, "s28", "s29", "s39", 65536 + 2048)
    stamp(A, 2)
    for m in range(16):
        if m: e(f"s_mov_b32 s40, {m*8192}")
        e(f"buffer_load_dwordx4 v[{P+4*m}:{P+4*m+3}], v{VXO}, s[8:11], {'s40' if m else '0'} offen")
    for k in range(2):
        e(f"buffer_load_dwordx4 v[{Z+4*k}:{Z+4*k+3}], v6, s[20:23], 0 offen offset:{k*64}")
    for i in range(4):
        e(f"buffer_load_dwordx4 v[{PQ+4*i}:{PQ+4*i+3}], v{VXO}, s[12:15], {'s42' if i >= 2 else '0'} offen offset:{(i%2)*1024}")
    e("s_lshr_b32 s41, s30, 1"); e("s_lshl_b32 s41, s41, 10"); e("s_and_b32 s40, s30, 1"); e("s_lshl_b32 s40, s40, 3"); e("s_add_u32 s41, s41, s40")
    e(f"v_add_u32 v{VT}, s41, v{VXO}")
    for m in range(2, 16):
        if m % 2 == 0: e(f"s_waitcnt vmcnt({6 + 14 - m})")
        r0 = P + 4 * (m % 2); r = P + 4 * m
        for i in (0, 2):
            e(f"v_pk_add_f32 v[{r0+i}:{r0+i+1}], v[{r0+i}:{r0+i+1}], v[{r+i}:{r+i+1}]")
    for i in (0, 2):
        e(f"v_pk_add_f32 v[{P+i}:{P+i+1}], v[{P+i}:{P+i+1}], v[{P+4+i}:{P+5+i}]")
    e(f"v_cvt_pk_bf16_f32 v{P+4}, v{P}, v{P+1}"); e(f"v_cvt_pk_bf16_f32 v{P+5}, v{P+2}, v{P+3}")
    e(f"ds_write_b64 v{VT}, v[{P+4}:{P+5}]")
    stamp(A, 4)
    e("s_waitcnt vmcnt(4)")
    for sh in (8, 4, 2, 1):
        for i in range(8):
            e(f"v_add_f32_dpp v{Z+i}, v{Z+i}, v{Z+i} row_ror:{sh} row_mask:0xf bank_mask:0xf")
    ZF = P + 16
    for i in range(4): e(f"v_cvt_pk_bf16_f32 v{ZF+i}, v{Z+2*i}, v{Z+2*i+1}")
    e("s_waitcnt lgkmcnt(0)")
    e("s_barrier")
    FR = P + 8
    for f in range(2):
        e(f"ds_read_b128 v[{FR+4*f}:{FR+4*f+3}], v{VXO} offset:{f*1024}")
    NUM = P + 20; DEN = P + 52
    e("s_waitcnt vmcnt(0)")
    for i in range(4):
        e(f"v_mfma_f32_16x16x32_bf16 v[{DEN+4*i}:{DEN+4*i+3}], v[{ZF}:{ZF+3}], v[{PQ+4*i}:{PQ+4*i+3}], 0")
    e("s_waitcnt lgkmcnt(0)")
    for i in range(4):
        for et in range(2):
            r = NUM + i * 8 + et * 4
            e(f"v_mfma_f32_16x16x32_bf16 v[{r}:{r+3}], v[{FR+4*et}:{FR+4*et+3}], v[{PQ+4*i}:{PQ+4*i+3}], 0")
    stamp(A, 5)
    for i in range(4): e(f"v_add_f32 v{DEN+4*i}, {f2u(1e-6):#x}, v{DEN+4*i}")
    for i in range(4): e(f"v_rcp_f32 v{DEN+4*i}, v{DEN+4*i}")
    e("s_nop 0")
    for i in range(4):
        r = NUM + i * 8
        for j in range(0, 8, 2):
            e(f"v_pk_mul_f32 v[{r+j}:{r+j+1}], v[{r+j}:{r+j+1}], v[{DEN+4*i}:{DEN+4*i+1}] op_sel_hi:[1,0]")
        for j in range(0, 8, 2):
            e(f"v_cvt_pk_bf16_f32 v{PQ+4*i+j//2}, v{r+j}, v{r+j+1}")
        e(f"buffer_store_dwordx4 v[{PQ+4*i}:{PQ+4*i+3}], v{VXO}, s[16:19], {'s42' if i >= 2 else '0'} offen offset:{(i%2)*1024}")
    if extra:
        e(f"s_branch {name}_fin")
        A.label(f"{name}_extra")
        e("s_waitcnt lgkmcnt(0)")
        e(f"s_cmp_ge_u32 s2, {256+448}")
        e(f"s_cbranch_scc1 {name}_warm")
        e(f"s_sub_u32 s44, s2, {256 - 48*4}")
        colsum_part(A, name, 44, [(48, 24, 25, 7), (104, 26, 27, 7)], f"{name}_fin")
        e(f"s_branch {name}_fin")
        A.label(f"{name}_warm")
        e(f"s_sub_u32 s44, s2, {256+448}")
        warm_part(A, 44, 22, 23, F * D * 2)
        A.label(f"{name}_fin")
    kernel_tail(A, name, PQ + 16)
    return dict(name=name, grid=nwg, block=256, lds=8192 if extra else 2048)

def k_prep(A, name):
    e = A.e
    kernel_head(A, name, 512)
    e(f"s_load_dwordx4 s[4:7], s[0:1], {KA['x']}")
    e(f"s_load_dwordx2 s[22:23], s[0:1], {KA['wo']}")
    e(f"s_load_dwordx2 s[28:29], s[0:1], {KA['ws']}")
    e("v_lshrrev_b32 v4, 6, v0"); e("v_and_b32 v5, 63, v0")
    e("v_readfirstlane_b32 s30, v4")
    e("v_lshlrev_b32 v1, 4, v5")
    e("s_cmp_ge_u32 s2, 256")
    e(f"s_cbranch_scc1 {name}_cs")
    e("s_lshl_b32 s31, s2, 2"); e("s_add_u32 s31, s31, s30")
    e("s_lshr_b32 s35, s31, 4"); e("s_and_b32 s34, s31, 15")
    rowmajor_lane_off(A, 2, 3)
    e("s_lshl_b32 s36, s35, 16"); e("s_lshl_b32 s37, s34, 7"); e("s_add_u32 s36, s36, s37"); e(f"s_add_u32 s37, s36, {16*2048}")
    e("s_lshl_b32 s38, s35, 16"); e("s_lshl_b32 s39, s34, 12"); e("s_add_u32 s38, s38, s39")
    e("s_waitcnt lgkmcnt(0)")
    srd(A, 8, "s4", "s5", S * D * 2)
    srd_off(A, 12, "s28", "s29", "s38", 4096)
    R = 16
    for i in range(4):
        so, off = rowmajor_frag(i, "s36", "s37")
        e(f"buffer_load_dwordx4 v[{R+4*i}:{R+4*i+3}], v2, s[8:11], {so} offen offset:{off}")
    e("s_lshl_b32 s36, s35, 12"); e("s_lshr_b32 s37, s34, 2"); e("s_lshl_b32 s37, s37, 10"); e("s_add_u32 s36, s36, s37")
    e("s_and_b32 s37, s34, 3"); e("s_lshl_b32 s37, s37, 2"); e("s_add_u32 s36, s36, s37")
    srd_off(A, 16, "s28", "s29", WS_ST, 64 * 4096)
    e("s_waitcnt vmcnt(0)")
    for i in range(4):
        e(f"v_permlane16_swap_b32 v{R+4*i}, v{R+4*i+2}")
        e(f"v_permlane16_swap_b32 v{R+4*i+1}, v{R+4*i+3}")
    e("s_nop 1")
    for i in range(4):
        e(f"buffer_store_dwordx4 v[{R+4*i}:{R+4*i+3}], v1, s[12:15], 0 offen offset:{i*1024}")
    stats_emit(A, 16, [R + i for i in range(16)], 8)
    e("buffer_store_dword v8, v1, s[16:19], s36 offen")
    e(f"s_branch {name}_fin")
    A.label(f"{name}_cs")
    e("s_waitcnt lgkmcnt(0)")
    e(f"s_cmp_ge_u32 s2, {256+192}")
    e(f"s_cbranch_scc1 {name}_warm")
    e("s_sub_u32 s44, s2, 256")
    colsum_part(A, name, 44, [(0, 6, 7, 6)], f"{name}_fin")
    e(f"s_branch {name}_fin")
    A.label(f"{name}_warm")
    e(f"s_sub_u32 s44, s2, {256+192}")
    warm_part(A, 44, 22, 23, D * D * 2)
    A.label(f"{name}_fin")
    kernel_tail(A, name, 64)
    return dict(name=name, grid=512, block=256, lds=8192)

HEADER = """; interleave_layers: (linear attention block, SwiGLU FFN) x 2, pre-LN residual ; generated by work/gen.py
"""
def build_all(path, stamp_on=False, o=None):
    global STAMP
    STAMP = stamp_on
    o = o or {}
    A = Asm()
    prep = k_prep(A, "prep_kernel")
    qkv = k_qkv(A, "qkv_kernel", o.get("qkv"))
    att1 = k_attn(A, "attn1_kernel", True)
    att = k_attn(A, "attn_kernel", False)
    wo = k_proj(A, "wo_kernel", D, WS_O, KA["wo"], False, o.get("wo"))
    ffn = k_ffn(A, "ffn_kernel", o.get("ffn"))
    dn = k_proj(A, "down_kernel", F, WS_H, KA["wd"], False, o.get("down"))
    dnf = k_proj(A, "downf_kernel", F, WS_H, KA["wd"], True, o.get("down"))
    for k in (prep, qkv, att1, wo, ffn, dn, qkv, att, wo, ffn, dnf):
        A.launch(k["name"], k["grid"], k["block"], k["lds"])
    open(path, "w").write(A.text(HEADER))

if __name__ == "__main__":
    build_all("full_stamp.s", True)
    build_all("interleave_layers__linear_attn_block__swiglu_ffn__prompt.s", False)
```

```python
import sys, math
import gen
from gen import *

WS_FL = 30 * MB
WS_KV2 = 32 * MB
cQ, cA, cO, cU, cD = 0, 16, 32, 40, 48
LDS_P = 131072
LDS_R = 98304
LDS_Z = LDS_P + 24576
WS_CS2 = WS_CS + 65536
V_RES = 228
QSBY = 3 * 64 * 128
WS_XC = WS_PQ
S_DUMP = 77
SC1 = " sc1"
S_WV, S_LAYER, S_SIG, S_POFF, S_PTGT, S_PH = 3, 98, 99, 100, 101, 78
FL = 80
NAME = "mega_kernel"

def rs(A, k):
    if gen.STAMP: A.e(f"s_memrealtime s[{60+2*k}:{61+2*k}]")
def rs_s(st, k):
    if gen.STAMP: st.i(f"s_memrealtime s[{60+2*k}:{61+2*k}]\n    s_waitcnt lgkmcnt(0)")
uid = [0]
def stamps_flush(A):
    if not gen.STAMP: return
    e = A.e
    uid[0] += 1
    l = f"sf{uid[0]}"
    rs(A, 5); e("s_memtime s[74:75]")
    e(f"s_cmp_lg_u32 s{S_WV}, 0"); e(f"s_cbranch_scc1 {l}")
    srd_off(A, 52, "s28", "s29", WS_DBG, 32 * 65536)
    e("s_lshl_b32 s58, s2, 6"); e(f"s_lshl_b32 s59, s{S_PH}, 16"); e("s_add_u32 s58, s58, s59")
    e("s_waitcnt lgkmcnt(0)")
    e("s_mov_b64 s[56:57], exec"); e("s_mov_b64 exec, 1")
    e("v_mov_b32 v2, 0")
    for k in range(8):
        e(f"v_mov_b32 v3, s{60+2*k}")
        e(f"buffer_store_dword v3, v2, s[52:55], s58 offen offset:{4*k}")
    e("s_mov_b64 exec, s[56:57]")
    A.label(l)
    e(f"s_add_u32 s{S_PH}, s{S_PH}, 1")

def phase_begin(A):
    rs(A, 0)
    if gen.STAMP: A.e("s_memtime s[72:73]")

def set_poll(A, idx_sgpr, base, target, prev_layer=False):
    e = A.e
    e(f"s_lshl_b32 s{S_POFF}, s{S_LAYER}, 6"); e(f"s_add_u32 s{S_POFF}, s{S_POFF}, s{idx_sgpr}")
    if prev_layer:
        e(f"s_add_u32 s{S_POFF}, s{idx_sgpr}, {base}")
        e(f"s_mul_i32 s{S_PTGT}, s{S_LAYER}, {target}")
    else:
        e(f"s_add_u32 s{S_POFF}, s{S_POFF}, {base}")
        e(f"s_mov_b32 s{S_PTGT}, {target}")
    e(f"s_lshl_b32 s{S_POFF}, s{S_POFF}, 7")

def set_signal(A, idx_sgpr, base):
    e = A.e
    e(f"s_lshl_b32 s{S_SIG}, s{S_LAYER}, 6"); e(f"s_add_u32 s{S_SIG}, s{S_SIG}, s{idx_sgpr}")
    e(f"s_add_u32 s{S_SIG}, s{S_SIG}, {base}"); e(f"s_lshl_b32 s{S_SIG}, s{S_SIG}, 7")

def do_signal(o, va, vb, wait=True):
    if gen.STAMP: o("s_memrealtime s[60:61]")
    o("s_mov_b64 exec, 1")
    o(f"v_mov_b32 v{va}, 0"); o(f"v_mov_b32 v{vb}, 1")
    o(f"buffer_atomic_add v{vb}, v{va}, s[{FL}:{FL+3}], s{S_SIG} offen sc1")
    if wait:
        o("s_waitcnt vmcnt(0)")
        if gen.STAMP: o("s_memrealtime s[62:63]")
    o("s_mov_b64 exec, -1")

def do_poll(o, va, vb, tag):
    o("s_mov_b64 exec, 1")
    o(f"v_mov_b32 v{va}, 0")
    o("s_mov_b32 s50, 0x40000")
    o(f"{tag}_poll:")
    o(f"buffer_load_dword v{vb}, v{va}, s[{FL}:{FL+3}], s{S_POFF} offen sc1")
    o("s_sub_u32 s50, s50, 1")
    o(f"s_cbranch_scc1 {tag}_pdone")
    o("s_waitcnt vmcnt(0)")
    o(f"v_readfirstlane_b32 s51, v{vb}")
    o(f"s_cmp_lt_u32 s51, s{S_PTGT}")
    o(f"s_cbranch_scc1 {tag}_poll")
    o(f"{tag}_pdone:")
    if gen.STAMP:
        o("s_memrealtime s[64:65]")
        o(f"s_add_u32 s52, s28, {WS_DBG}"); o("s_addc_u32 s53, s29, 0"); o(f"s_mov_b32 s54, {32*65536}"); o("s_mov_b32 s55, 0x00020000")
        o("s_lshl_b32 s58, s2, 6"); o(f"s_lshl_b32 s59, s{S_PH}, 16"); o("s_add_u32 s58, s58, s59")
        o("s_waitcnt lgkmcnt(0)")
        for k, r in enumerate((60, 62, 64, 50)):
            o(f"v_mov_b32 v{vb}, s{r}")
            o(f"buffer_store_dword v{vb}, v{va}, s[52:55], s58 offen offset:{32+4*k}")
    o("s_mov_b64 exec, -1")

def bar_loop(A, tag, n, body=None):
    e = A.e
    if n <= 2 and not body:
        for _ in range(n): e("s_barrier")
        return
    e(f"s_mov_b32 s43, {n}")
    A.label(tag)
    e("s_barrier")
    if body: body()
    e("s_sub_u32 s43, s43, 1"); e("s_cmp_lg_u32 s43, 0"); e(f"s_cbranch_scc1 {tag}")

def warm(A, offs, adv):
    for o in offs: A.e(f"s_load_dword s{S_DUMP}, s[12:13], {o:#x}")
    A.e(f"s_add_u32 s12, s12, {adv}"); A.e("s_addc_u32 s13, s13, 0")

def idle_head(A, tag, skip_first=False, early=None):
    e = A.e
    A.label(f"{tag}_idle")
    e("s_waitcnt vmcnt(0)")
    e("s_barrier")
    e(f"s_cmp_lg_u32 s{S_WV}, 4"); e(f"s_cbranch_scc1 {tag}_i1")
    if skip_first:
        e(f"s_cmp_eq_u32 s{S_LAYER}, 0"); e(f"s_cbranch_scc1 {tag}_i1")
    do_signal(e, 1, 2, wait=False)
    A.label(f"{tag}_i1")
    if early: early()
    e(f"s_cmp_lg_u32 s{S_WV}, 4"); e(f"s_cbranch_scc1 {tag}_i2")
    if skip_first:
        e(f"s_cmp_eq_u32 s{S_LAYER}, 0"); e(f"s_cbranch_scc1 {tag}_i2")
    e("s_waitcnt vmcnt(0)")
    if gen.STAMP: e("s_memrealtime s[62:63]")
    do_poll(e, 1, 2, tag)
    A.label(f"{tag}_i2")
    e("s_barrier")

def idle_tail(A, nxt):
    if gen.STAMP: A.e(f"s_add_u32 s{S_PH}, s{S_PH}, 1")
    A.e(f"s_branch {nxt}")

def wd_warm_base(A):
    e = A.e
    e(f"s_load_dwordx2 s[12:13], s[0:1], {KA['wd']}")
    e(f"s_lshl_b32 s16, s2, 2"); e(f"s_add_u32 s16, s16, s{S_WV}"); e("s_sub_u32 s16, s16, 4"); e("s_mul_i32 s16, s16, 7168")
    e("s_waitcnt lgkmcnt(0)")
    e("s_add_u32 s12, s12, s16"); e("s_addc_u32 s13, s13, 0")

SET_A = dict(srd=8, lds=40, woff=41, p=39, stg=38, r=35, m=33, n=34, t0=31, t1=32)
SET_B = dict(srd=24, lds=36, woff=37, p=20, stg=21, r=22, m=16, n=17, t0=18, t1=19)
class Loader:
    def __init__(self, A, kind, rs_, v, first=0):
        self.A, self.kind, self.s, self.v, self.first = A, kind, rs_, v, first
        self.T = 32 if kind == "qkv" else 16
        self.ldw = {"qkv": 3 * D * 2}.get(kind, D * 2)
        self.NT = {"qkv": 16, "wo": 16, "down": 28}[kind]
        self.np = {"qkv": 6, "wo": 2, "down": 4}[kind]
        self.sb = {"qkv": QSBY, "wo": 8192, "down": 16384}[kind]
        self.base = {"qkv": 0, "wo": LDS_P, "down": LDS_R}[kind]
        self.rot = 2 if kind == "down" else 0
    def setup(self, coords=True):
        A, s, v, e = self.A, self.s, self.v, self.A.e
        k, ldw = self.kind, self.ldw
        e(f"s_load_dwordx2 s[4:5], s[0:1], {KA[{'qkv': 'wqkv', 'wo': 'wo', 'down': 'wd'}[k]]}")
        if coords: (qkv_coords if k == "qkv" else proj_coords)(A, s["m"], s["n"], s["t0"], s["t1"])
        lane_consts_fullline(A, self.T, ldw, v + 6, v, None)
        t0, t1 = s["t0"], s["t1"]
        e(f"s_and_b32 s{t1}, s{S_WV}, 3")
        e(f"s_lshl_b32 s{s['lds']}, s{t1}, 10")
        if self.base: e(f"s_add_u32 s{s['lds']}, s{s['lds']}, {self.base}")
        e(f"s_mul_i32 s{t0}, s{t1}, {8*ldw}"); e(f"s_lshl_b32 s{t1}, s{s['n']}, 7"); e(f"s_add_u32 s{t0}, s{t0}, s{t1}")
        e(f"v_add_u32 v{v}, s{t0}, v{v}")
        if k == "qkv":
            for j in range(1, 6): e(f"v_add_u32 v{v+j}, {(j >> 1) * 2048 + (j & 1) * 32 * ldw}, v{v}")
            e(f"s_add_u32 s{s['r']}, s{s['m']}, s{s['n']}")
        else:
            e(f"v_add_u32 v{v+1}, {32*ldw}, v{v}")
            if k == "down": e(f"v_xor_b32 v{v+2}, 0x80, v{v}"); e(f"v_xor_b32 v{v+3}, 0x80, v{v+1}")
            e(f"s_lshr_b32 s{s['r']}, s{s['n']}, 1"); e(f"s_add_u32 s{s['r']}, s{s['r']}, s{s['m']}")
        e(f"s_and_b32 s{s['r']}, s{s['r']}, 3")
        e(f"s_mov_b32 s{s['p']}, {self.first}")
        e(f"s_mov_b32 s{s['stg']}, {((self.first + self.rot) % 4) * self.sb}")
        if k == "down": e(f"s_and_b32 s{t0}, s{s['n']}, 1"); e(f"s_mul_i32 s{t0}, s{t0}, {F * D}")
        e("s_waitcnt lgkmcnt(0)")
        if k == "down": srd_off(A, s["srd"], "s4", "s5", f"s{t0}", F * D)
        else: srd(A, s["srd"], "s4", "s5", D * ldw)
    def issue(self, guard=False):
        A, s, e = self.A, self.s, self.A.e
        uid[0] += 1; l = f"ld{uid[0]}"
        w, t, NT = s["woff"], s["t0"], self.NT
        if guard: e(f"s_cmp_ge_u32 s{s['p']}, {NT}"); e(f"s_cbranch_scc1 {l}")
        e(f"s_and_b32 s{t}, s{s['p']}, 3"); e(f"s_cmp_eq_u32 s{t}, s{s['r']}"); e(f"s_cselect_b32 s{t}, 3, -1")
        e(f"s_add_u32 s{w}, s{s['p']}, s{t}")
        e(f"s_add_u32 s{t}, s{w}, {NT}"); e(f"s_min_u32 s{w}, s{w}, s{t}")
        e(f"s_sub_u32 s{t}, s{w}, {NT}"); e(f"s_min_u32 s{w}, s{w}, s{t}")
        e(f"s_mul_i32 s{w}, s{w}, {64 * self.ldw}")
        e(f"s_add_u32 s{t}, s{s['lds']}, s{s['stg']}")
        for j in range(self.np):
            e(f"s_add_u32 m0, s{t}, {j * 4096}")
            e("s_nop 0")
            e(f"buffer_load_dwordx4 v{self.v + j}, s[{s['srd']}:{s['srd']+3}], s{w} offen lds")
        e(f"s_add_u32 s{s['stg']}, s{s['stg']}, {self.sb}")
        e(f"s_cmp_eq_u32 s{s['stg']}, {4 * self.sb}"); e(f"s_cselect_b32 s{s['stg']}, 0, s{s['stg']}")
        if guard: A.label(l)
        e(f"s_add_u32 s{s['p']}, s{s['p']}, 1")
    def step(self):
        A, s, e = self.A, self.s, self.A.e
        uid[0] += 1; l = f"st{uid[0]}"
        e(f"s_waitcnt vmcnt({self.np})")
        e(f"s_cmp_le_u32 s{s['p']}, {self.NT}"); e(f"s_cbranch_scc1 {l}")
        e("s_waitcnt vmcnt(0)")
        A.label(l)
        e("s_barrier")
        self.issue(guard=True)
    def loop(self, tag, n, body=None):
        A, e = self.A, self.A.e
        e(f"s_mov_b32 s43, {n}")
        if isinstance(n, str): e("s_cmp_eq_u32 s43, 0"); e(f"s_cbranch_scc1 {tag}x")
        A.label(tag)
        self.step()
        if body: body()
        e("s_sub_u32 s43, s43, 1"); e("s_cmp_lg_u32 s43, 0"); e(f"s_cbranch_scc1 {tag}")
        A.label(f"{tag}x")

class MGemm(Gemm):
    npre = 3
    def xload(self, st, q, sb):
        super().xload(st, q, sb)
        op = st.ops[-1]; st.ops[-1] = (op[0], op[1] + SC1, op[2])
    def pro_w(self, st, t0, t1):
        for t in range(t0, t1): self.pro_tile(st, t, x=False)
    def pro_w_pre(self, st):
        tmp = Stream()
        self.pro_w(tmp, 0, self.npre)
        st.pre |= {op[2] for op in tmp.ops if op[0] == "vm"}
        if self.skew: self.set_woff(st, self.STAGES - 2)
        else: st.i(f"s_mov_b32 s{self.s_woff}, {(self.STAGES - 2) * self.BK * self.ldw}")
    def pro_w_emit(self):
        tmp = Stream()
        self.pro_w(tmp, 0, self.npre)
        for op in tmp.ops: self.A.e(op[1])
    def pro_x(self, st):
        for t in range(self.XT): self.pro_tile(st, t, w=False)
    def pro_order(self, o):
        for t in range(self.LOOK):
            for l in self.order_next(t): o(l)
    def sync2(self, st):
        st.i("s_barrier")
        rs_s(st, 2)
    def reads(self, st):
        for f in range(self.LA):
            for rd in range(2): self.wread(st, f, rd)
    def emit(self, pro, loop_end=None):
        A = self.A
        nit = self.NT // self.UN
        pl, bl = resolve(pro, [self.body(it) for it in range(nit)])
        for l in pl: A.e(l)
        if gen.STAMP: A.e("s_waitcnt lgkmcnt(0)"); rs(A, 3); A.e("s_waitcnt lgkmcnt(0)")
        A.e(f"s_mov_b32 s{self.s_it}, {nit}")
        A.e(".p2align 6")
        A.label(f"{self.name}_loop")
        for l in bl: A.e(l)
        A.e(f"s_sub_u32 s{self.s_it}, s{self.s_it}, 1")
        if loop_end: loop_end()
        A.e(f"s_cmp_lg_u32 s{self.s_it}, 0")
        A.e(f"s_cbranch_scc1 {self.name}_loop")
        rs(A, 4)

def sync1(A):
    A.e("s_waitcnt vmcnt(0)")
    A.e("s_barrier")
    rs(A, 1)

def proj_coords(A, sm, sn, t0, t1):
    e = A.e
    e(f"s_and_b32 s{t0}, s2, 7"); e(f"s_lshr_b32 s{t1}, s2, 3")
    e(f"s_lshr_b32 s{sm}, s{t0}, 1"); e(f"s_lshl_b32 s{sm}, s{sm}, 2"); e(f"s_lshr_b32 s{sn}, s{t1}, 3"); e(f"s_add_u32 s{sm}, s{sm}, s{sn}")
    e(f"s_and_b32 s{sn}, s{t0}, 1"); e(f"s_and_b32 s{t1}, s{t1}, 7"); e(f"s_lshl_b32 s{t1}, s{t1}, 1"); e(f"s_add_u32 s{sn}, s{sn}, s{t1}")

def p_proj(A, tag, K, down, nxt, opt=None):
    e = A.e
    opt = opt or {}
    T = 16
    ldw = D * 2
    split = down and opt.get("split", 1)
    A.label(tag)
    phase_begin(A)
    if down: e(f"s_load_dwordx2 s[6:7], s[0:1], {KA['out']}")
    proj_coords(A, 33, 34, 31, 32)
    e("s_lshr_b32 s45, s33, 1")
    if down: set_poll(A, 45, cU, 32)
    else: set_poll(A, 33, cA, 16)
    e(f"s_cmp_ge_u32 s{S_WV}, 4"); e(f"s_cbranch_scc1 {tag}_idle")
    VP, VF, VXO, VT = 1, 5, 9, 10
    ACC, RES, WF = 16, V_RES, 80
    XF = WF + 32
    e(f"v_and_b32 v{VXO}, 63, v0"); e(f"v_lshlrev_b32 v{VXO}, 4, v{VXO}")
    e(f"s_lshl_b32 s35, s33, 2"); e(f"s_add_u32 s35, s35, s{S_WV}")
    e(f"s_lshl_b32 s37, s35, 16"); e("s_lshl_b32 s38, s34, 12"); e("s_add_u32 s37, s37, s38")
    srd_off(A, 20, "s28", "s29", "s37", 4096)
    assert split or not down
    lane_consts_fullline(A, 16, ldw, VT, VP, VF)
    sb, rot = (16384, 2) if split else (8192, 0)
    opt = dict(opt); opt["now"] = 1
    G = MGemm(A, tag, T=16, NB=8 if split else 4, RG=1, K=K // 2 if split else K, STAGES=4, XT=opt.get("XT", 2), NWR=8,
              LA=opt.get("LA", 6 if split else 4), WG=2, npieces=1, stage_bytes=sb, piece_lds=None,
              frag_addr=fullline_frag_addr(16, VF, 64, lambda stg: (0, ((stg + rot) % 4) * sb)),
              acc=blk_acc(16, "v", ACC, 1), wfrag0=WF, xfrag0=XF, vpiece0=VP, vxoff=VXO,
              srd_w=8, srd_x=12, s_woff=41, s_xoff=42, s_ldsw=40, s_it=43, ldw=ldw, opt=opt)
    e("s_lshr_b32 s36, s34, 1"); e("s_add_u32 s36, s36, s33"); e("s_and_b32 s36, s36, 3")
    G.order_init(36)
    G.pro_order(e)
    for i in range(4): e(f"v_add_u32 v{VF+i}, {LDS_R if split else LDS_P}, v{VF+i}")
    e(f"s_mul_i32 s36, s35, {F*64}"); e(f"s_add_u32 s36, s36, {WS_H}")
    if split:
        e("s_and_b32 s37, s34, 1"); e(f"s_mul_i32 s37, s37, {K*32}"); e("s_add_u32 s36, s36, s37")
    srd_off(A, 12, "s28", "s29", "s36", G.K * 64)
    e("s_waitcnt lgkmcnt(0)")
    sync1(A)
    p = Stream()
    G.reads(p)
    for i in range(16):
        p.i(f"v_lshlrev_b32 v{ACC+2*i}, 16, v{RES+i}")
        p.i(f"v_and_b32 v{ACC+2*i+1}, 0xffff0000, v{RES+i}")
    if split:
        for i in range(0, 32, 2): p.i(f"v_pk_mov_b32 v[{ACC+32+i}:{ACC+33+i}], 0, 0")
    G.sync2(p)
    G.pro_x(p)
    G.emit(p)
    if split:
        e(f"s_lshl_b32 s36, s2, 2"); e(f"s_add_u32 s36, s36, s{S_WV}"); e("s_lshl_b32 s36, s36, 12"); e("s_xor_b32 s37, s36, 0x4000")
        srd_off(A, 16, "s28", "s29", WS_XC, 4 * MB)
        e("s_mov_b32 s50, 0x40000")
        for i in range(16):
            e(f"v_cvt_pk_bf16_f32 v{RES+i}, v{ACC+32+2*i}, v{ACC+33+2*i}")
            if i % 4 == 3:
                e(f"buffer_store_dwordx4 v[{RES+i-3}:{RES+i}], v{VXO}, s[16:19], s37 offen offset:{(i//4)*1024}{SC1}")
        X2 = ACC + 32
        e("s_waitcnt vmcnt(0)")
        e(f"s_branch {tag}_xp")
        if True:
            A.label(f"{tag}_xr")
            e("s_mov_b64 exec, 0xff")
            A.label(f"{tag}_xl")
            e(f"buffer_load_dwordx4 v[{X2}:{X2+3}], v{VXO}, s[16:19], s36 offen offset:3968{SC1}")
            e("s_sub_u32 s50, s50, 1"); e(f"s_cbranch_scc1 {tag}_xm")
            e("s_waitcnt vmcnt(0)")
            e(f"v_cmp_eq_u32 vcc, -1, v{X2+3}")
            e("s_nop 4")
            e(f"s_cbranch_vccnz {tag}_xl")
            A.label(f"{tag}_xm")
            e("s_mov_b64 exec, -1")
            e("s_max_i32 s50, s50, 0")
        A.label(f"{tag}_xp")
        for i in range(4):
            e(f"buffer_load_dwordx4 v[{X2+4*i}:{X2+4*i+3}], v{VXO}, s[16:19], s36 offen offset:{i*1024}{SC1}")
        e("s_sub_u32 s50, s50, 1"); e(f"s_cbranch_scc1 {tag}_xd")
        e("s_waitcnt vmcnt(0)")
        e(f"v_max3_u32 v{VT}, v{X2}, v{X2+1}, v{X2+2}")
        e(f"v_max3_u32 v{VT+1}, v{X2+3}, v{X2+4}, v{X2+5}")
        for i in range(6, 14, 4):
            e(f"v_max3_u32 v{VT}, v{VT}, v{X2+i}, v{X2+i+1}")
            e(f"v_max3_u32 v{VT+1}, v{VT+1}, v{X2+i+2}, v{X2+i+3}")
        e(f"v_max3_u32 v{VT}, v{VT}, v{X2+14}, v{X2+15}")
        e(f"v_max_u32 v{VT}, v{VT}, v{VT+1}")
        e(f"v_cmp_eq_u32 vcc, -1, v{VT}")
        e("s_nop 4")
        e(f"s_cbranch_vccnz {tag}_xr")
        A.label(f"{tag}_xd")
        e("s_waitcnt vmcnt(0)")
        T2 = X2 + 16
        for i in range(16):
            t = T2 + 2 * (i % 8)
            e(f"v_lshlrev_b32 v{t}, 16, v{X2+i}"); e(f"v_and_b32 v{t+1}, 0xffff0000, v{X2+i}")
            e(f"v_pk_add_f32 v[{ACC+2*i}:{ACC+2*i+1}], v[{ACC+2*i}:{ACC+2*i+1}], v[{t}:{t+1}]")
    if down:
        e(f"s_cmp_lg_u32 s{S_LAYER}, 0"); e(f"s_cbranch_scc1 {tag}_final")
    e("s_lshl_b32 s36, s35, 12"); e("s_lshl_b32 s37, s34, 8"); e("s_add_u32 s36, s36, s37")
    srd_off(A, 24, "s28", "s29", WS_ST, 64 * 4096)
    for i in range(16):
        e(f"v_cvt_pk_bf16_f32 v{RES+i}, v{ACC+2*i}, v{ACC+2*i+1}")
        if i % 4 == 3:
            e(f"buffer_store_dwordx4 v[{RES+i-3}:{RES+i}], v{VXO}, s[20:23], 0 offen offset:{(i//4)*1024}{SC1}")
    stats_emit(A, T, [RES + i for i in range(16)], VT)
    e(f"v_lshrrev_b32 v{VXO}, 2, v{VXO}")
    e(f"buffer_store_dword v{VT}, v{VXO}, s[24:27], s36 offen{SC1}")
    stamps_flush(A)
    A.label(f"{tag}_out")
    if down:
        set_signal(A, 33, cD)
        e(f"s_cmp_lg_u32 s{S_LAYER}, 0"); e(f"s_cbranch_scc1 {NAME}_end")
        e(f"s_mov_b32 s{S_LAYER}, 1")
    else:
        set_signal(A, 45, cO)
    e(f"s_branch {nxt}")
    if down:
        A.label(f"{tag}_final")
        srd(A, 24, "s6", "s7", S * D * 2)
        rowmajor_lane_off(A, VT, VT + 1)
        e("s_lshl_b32 s36, s35, 16"); e("s_lshl_b32 s37, s34, 7"); e("s_add_u32 s36, s36, s37")
        e(f"s_add_u32 s37, s36, {16*2048}")
        for i in range(16):
            e(f"v_cvt_pk_bf16_f32 v{RES+i}, v{ACC+2*i}, v{ACC+2*i+1}")
        e("s_nop 0")
        for i in range(4):
            e(f"v_permlane16_swap_b32 v{RES+4*i}, v{RES+4*i+2}")
            e(f"v_permlane16_swap_b32 v{RES+4*i+1}, v{RES+4*i+3}")
        e("s_nop 1")
        for i in range(4):
            so, off = rowmajor_frag(i, "s36", "s37")
            e(f"buffer_store_dwordx4 v[{RES+4*i}:{RES+4*i+3}], v{VT}, s[24:27], {so} offen offset:{off}")
        if gen.STAMP: e("s_waitcnt vmcnt(0)")
        stamps_flush(A)
        e(f"s_branch {NAME}_end")
    if down:
        LD = Loader(A, "down", SET_A, 130, first=2)
        idle_head(A, tag, early=lambda: LD.setup(coords=False))
        LD.issue()
        NX = Loader(A, "qkv", SET_B, 140)
        NX.setup()
        LD.loop(f"{tag}_i3", G.NT - 1)
        e(f"s_cmp_lg_u32 s{S_LAYER}, 0"); e(f"s_cbranch_scc1 {tag}_i5")
        for _ in range(3): NX.issue()
        A.label(f"{tag}_i5")
        e("s_barrier")
    else:
        LD = Loader(A, "wo", SET_A, 130, first=3)
        def early():
            LD.setup(coords=False)
            e(f"s_cmp_lg_u32 s{S_LAYER}, 0"); e(f"s_cbranch_scc1 {tag}_nw")
            warm(A, [64 * i for i in range(14)], 896)
            A.label(f"{tag}_nw")
        idle_head(A, tag, early=early)
        def wb():
            e(f"s_cmp_lg_u32 s{S_LAYER}, 0"); e(f"s_cbranch_scc1 {tag}_nw2")
            warm(A, [64 * i for i in range(5)], 320)
            A.label(f"{tag}_nw2")
        LD.loop(f"{tag}_i3", G.NT, body=wb)
    idle_tail(A, f"{tag}_out")

def ffn_coords(A, sm, sn, t0, t1):
    e = A.e
    e(f"s_and_b32 s{t0}, s2, 7"); e(f"s_lshr_b32 s{t1}, s2, 3")
    e(f"s_and_b32 s{sm}, s{t0}, 1"); e(f"s_lshl_b32 s{sm}, s{sm}, 2"); e(f"s_lshr_b32 s{sn}, s{t1}, 3"); e(f"s_add_u32 s{sm}, s{sm}, s{sn}")
    e(f"s_lshr_b32 s{sn}, s{t0}, 1"); e(f"s_lshl_b32 s{sn}, s{sn}, 3"); e(f"s_and_b32 s{t1}, s{t1}, 7"); e(f"s_add_u32 s{sn}, s{sn}, s{t1}")

FGU = 16384
def ffn_wsetup(A, tag, VP, VF, VT, sn, t0, opt, regs):
    e = A.e
    ldw = F * 2
    e(f"v_and_b32 v{VT}, 63, v0")
    e(f"s_and_b32 s{t0}, s{S_WV}, 3"); e(f"s_lshl_b32 s{t0}, s{t0}, 8")
    e(f"s_mul_i32 s{t0+1}, s{sn}, 224")
    e(f"s_and_b32 s{t0+2}, s{sn}, 1"); e(f"s_lshl_b32 s{t0+2}, s{t0+2}, 1")
    e(f"s_movk_i32 s{t0+3}, 4682")
    for j in range(4):
        u, r, c = VT + 1, VT + 2, VT + 3
        e(f"v_add_u32 v{u}, s{t0}, v{VT}")
        if j: e(f"v_add_u32 v{u}, {64*j}, v{u}")
        e(f"v_mul_u32_u24 v{r}, s{t0+3}, v{u}"); e(f"v_lshrrev_b32 v{r}, 16, v{r}")
        e(f"v_mul_u32_u24 v{c}, 14, v{r}"); e(f"v_sub_u32 v{c}, v{u}, v{c}")
        e(f"v_add_u32 v{c}, s{t0+2}, v{c}")
        e(f"v_subrev_u32 v{u}, 14, v{c}"); e(f"v_min_u32 v{c}, v{c}, v{u}")
        e(f"v_mul_u32_u24 v{VP+j}, {ldw}, v{r}")
        e(f"v_lshl_add_u32 v{VP+j}, v{c}, 4, v{VP+j}")
        e(f"v_add_u32 v{VP+j}, s{t0+1}, v{VP+j}")
        if j >= 2:
            e(f"v_lshrrev_b32 v{r}, 6, v{r}"); e(f"v_lshl_add_u32 v{VP+j}, v{r}, 28, v{VP+j}")
    ACC, WF, XF, VXO = regs
    SBY = 2 * FGU
    assert not opt["skew"]
    return MGemm(A, tag, T=16, NB=14, RG=1, K=D, STAGES=4, XT=opt.get("XT", 1), NWR=8, LA=7, WG=2, npieces=4, stage_bytes=SBY,
                 piece_lds=lambda j: j * 1024,
                 frag_addr=lambda stg, row, nb: (VF + stg // 2, (stg % 2) * SBY + (nb % 2) * FGU + row * 224 + 32 * (nb // 2)),
                 acc=blk_acc(16, "v", ACC, 1), wfrag0=WF, xfrag0=XF, vpiece0=VP, vxoff=VXO,
                 srd_w=8, srd_x=12, s_woff=41, s_xoff=42, s_ldsw=40, s_it=43, ldw=ldw, opt=opt)

def ffn_prefetch(A, vt, opt):
    opt = dict(opt or {}); opt.setdefault("skew", 0)
    h = {}
    def setup():
        A.e(f"s_load_dwordx4 s[4:7], s[0:1], {KA['wg']}")
        ffn_coords(A, 44, 45, 46, 47)
        h["G"] = ffn_wsetup(A, "x", vt, 0, vt + 4, 45, 48, opt, (0, 0, 0, 0))
        A.e("s_waitcnt lgkmcnt(0)")
    def issue(t):
        G = h["G"]
        if True:
            for m in range(2):
                srd(A, 8, f"s{4+2*m}", f"s{5+2*m}", D * F * 2)
                A.e(f"s_and_b32 s40, s{S_WV}, 3"); A.e("s_lshl_b32 s40, s40, 12")
                if m: A.e(f"s_add_u32 s40, s40, {FGU}")
                A.e(f"s_mov_b32 s41, {((t - 1) * 64 * F * 2) & 0xffffffff:#x}")
                tmp = Stream(); G.pro_w(tmp, t, t + 1)
                for op in tmp.ops: A.e(op[1])
    return setup, issue

def p_ffn(A, tag, nxt, opt=None):
    e = A.e
    opt = dict(opt or {}); opt.setdefault("skew", 0)
    XT = opt.get("XT", 1)
    ldw = F * 2
    SBY = 2 * FGU
    A.label(tag)
    phase_begin(A)
    e(f"s_load_dwordx4 s[4:7], s[0:1], {KA['wg']}")
    VP, VF, VXO, VMN, VRS, VT = 1, 5, 7, 8, 10, 12
    WF = 20; XF = WF + 32
    ACC = XF + XT * 16
    SC = ACC + 112; CSR = SC + 16
    assert CSR + 28 <= 254
    ffn_coords(A, 33, 34, 31, 32)
    set_poll(A, 33, cO, 32)
    e(f"s_lshl_b32 s35, s33, 3"); e(f"s_add_u32 s35, s35, s{S_WV}")
    e(f"s_lshr_b32 s37, s{S_WV}, 2")
    e(f"s_lshl_b32 s40, s{S_WV}, 12")
    e("s_and_b32 s45, s34, 1")
    e(f"v_and_b32 v{VT}, 63, v0")
    e(f"v_lshlrev_b32 v{VXO}, 4, v{VT}")
    e("s_lshl_b32 s36, s35, 16")
    srd_off(A, 12, "s28", "s29", "s36", D * 64)
    e(f"v_and_b32 v{VT+1}, 3, v{VT}"); e(f"v_lshlrev_b32 v{VF}, 3, v{VT+1}")
    e(f"v_lshrrev_b32 v{VT+1}, 2, v{VT}"); e(f"v_mul_u32_u24 v{VT+1}, 224, v{VT+1}"); e(f"v_add_u32 v{VF}, v{VF}, v{VT+1}")
    e(f"v_add_u32 v{VF+1}, {2*SBY}, v{VF}")
    e("s_lshl_b32 s38, s35, 12"); e(f"s_add_u32 s38, s38, {WS_ST}")
    e(f"s_mul_i32 s39, s34, {112*32}"); e(f"s_add_u32 s39, s39, {WS_CS2}")
    srd_off(A, 20, "s28", "s29", "s38", 4096)
    srd_off(A, 24, "s28", "s29", "s39", (F + 112) * 32)
    e(f"s_mov_b32 s10, {D*ldw}"); e("s_mov_b32 s11, 0x00020000")
    e("s_cmp_eq_u32 s37, 0")
    e("s_waitcnt lgkmcnt(0)")
    e("s_cselect_b32 s8, s4, s6"); e("s_cselect_b32 s9, s5, s7")
    sync1(A)
    e(f"s_cmp_lg_u32 s{S_WV}, 7"); e(f"s_cbranch_scc1 {tag}_nosig")
    do_signal(e, VT + 4, VT + 5, wait=False)
    A.label(f"{tag}_nosig")
    G = ffn_wsetup(A, tag, VP, VF, VT, 34, 46, opt, (ACC, WF, XF, VXO))
    G.order_init(None)
    e(f"v_and_b32 v{VT+1}, 15, v{VT}"); e(f"v_bfe_u32 v{VT+2}, v{VT}, 4, 1"); e(f"v_mul_u32_u24 v{VT+2}, {F}, v{VT+2}")
    e(f"v_add_lshl_u32 v{VT+1}, v{VT+1}, v{VT+2}, 5")
    e(f"v_lshrrev_b32 v{VT+2}, 5, v{VT}"); e(f"v_lshl_add_u32 v{VT+1}, v{VT+2}, 4, v{VT+1}")
    e("s_lshl_b32 s48, s45, 9")
    e("s_mul_i32 s49, s45, 3072"); e("s_sub_u32 s49, 3072, s49")
    nit = G.NT // G.UN
    e(f"s_sub_u32 s30, {nit - 1}, s37")
    p = Stream()
    G.pro_w_pre(p)
    G.reads(p)
    for i in range(0, 112, 2): p.i(f"v_pk_mov_b32 v[{ACC+i}:{ACC+i+1}], 0, 0")
    p.i(f"s_cmp_lg_u32 s{S_WV}, 7"); p.i(f"s_cbranch_scc1 {tag}_nopoll")
    p.i("s_waitcnt vmcnt(0)")
    if gen.STAMP: p.i("s_memrealtime s[62:63]")
    do_poll(p.i, VT + 4, VT + 5, tag)
    p.i(f"{tag}_nopoll:")
    G.sync2(p)
    G.pro_x(p)
    p.i(f"v_lshrrev_b32 v{VT+2}, 2, v{VXO}")
    for i in range(16):
        p.vm(f"buffer_load_dword v{SC+i}, v{VT+2}, s[20:23], 0 offen offset:{i*256}{SC1}", ("ST", i))
    for j in range(7):
        so, off = ("s48", j * 512) if j < 6 else ("s49", 0)
        p.vm(f"buffer_load_dwordx4 v[{CSR+4*j}:{CSR+4*j+3}], v{VT+1}, s[24:27], {so} offen offset:{off}{SC1}", ("CS", j))
    def fix():
        e(f"s_cmp_lg_u32 s43, s30")
        e(f"s_cbranch_scc1 {tag}_nofix")
        stats_finish(e, SC, VT + 4, VMN, VRS)
        for j in range(7): e(f"v_pk_add_f32 v[{CSR+4*j}:{CSR+4*j+1}], v[{CSR+4*j}:{CSR+4*j+1}], v[{CSR+4*j+2}:{CSR+4*j+3}]")
        for j in range(7): e(f"v_add_f32 v{CSR+4*j}, v{CSR+4*j}, v{CSR+4*j+1}")
        for j in range(7): e(f"v_mov_b32 v{CSR+4*j+1}, v{CSR+4*j}")
        split16(e, VRS, VRS + 1)
        for j in range(7): e(f"v_permlane32_swap_b32 v{CSR+4*j}, v{CSR+4*j+1}")
        split16(e, VMN, VT + 4)
        for j in range(7): e(f"v_add_f32 v{CSR+4*j}, v{CSR+4*j}, v{CSR+4*j+1}")
        e(f"v_permlane32_swap_b32 v{VMN}, v{VT+4}"); e("s_nop 1")
        for j in range(7):
            r = ACC + j * 16
            e(f"v_mfma_f32_16x16x1_4b_f32 v[{r}:{r+15}], v{CSR+4*j}, v{VMN}, v[{r}:{r+15}]")
        A.label(f"{tag}_nofix")
        e("s_cmp_lg_u32 s43, 1"); e(f"s_cbranch_scc1 {tag}_nopre")
        e(f"s_cmp_lt_u32 s{S_WV}, 4"); e(f"s_cbranch_scc1 {tag}_res")
        NX = Loader(A, "down", SET_B, 200)
        NX.setup(); NX.issue(); NX.issue()
        e(f"s_branch {tag}_nopre")
        A.label(f"{tag}_res")
        proj_coords(A, 16, 17, 18, 19)
        e(f"s_lshl_b32 s16, s16, 2"); e(f"s_add_u32 s16, s16, s{S_WV}"); e("s_lshl_b32 s16, s16, 16"); e("s_lshl_b32 s17, s17, 12"); e("s_add_u32 s16, s16, s17")
        srd_off(A, 24, "s28", "s29", "s16", 4096)
        for i in range(4):
            e(f"buffer_load_dwordx4 v[{V_RES+4*i}:{V_RES+3+4*i}], v{VXO}, s[24:27], 0 offen offset:{i*1024}{SC1}")
        A.label(f"{tag}_nopre")
    assert CSR + 28 <= V_RES and nit >= 4
    G.emit(p, loop_end=fix)
    C1, C2 = SC, SC + 4
    for k in range(2):
        e(f"v_mul_f32 v{C1+2*k}, {NLOG2E:#x}, v{VRS+k}")
        e(f"v_mul_f32 v{C2+2*k}, v{VRS+k}, v{VRS+k}")
    e(f"s_mul_i32 s36, s35, {F*64}"); e(f"s_add_u32 s36, s36, {WS_H}")
    srd_off(A, 20, "s28", "s29", "s36", F * 64)
    e("s_mul_i32 s38, s34, 7"); e("s_add_u32 s38, s38, s45"); e("s_lshl_b32 s38, s38, 10")
    e("s_mul_i32 s39, s45, 8184"); e("s_add_u32 s46, s38, 6144"); e("s_sub_u32 s39, s46, s39")
    e("s_add_u32 s46, s38, 4096")
    TB = SC + 8
    OB = CSR + (CSR % 2)
    def silu(blocks, k, out):
        for b, r in enumerate(blocks):
            for i in (0, 2): e(f"v_pk_mul_f32 v[{TB+4*b+i}:{TB+4*b+i+1}], v[{r+i}:{r+i+1}], v[{C1+2*k}:{C1+2*k+1}] op_sel_hi:[1,0]")
        for b, r in enumerate(blocks):
            for i in (0, 2): e(f"v_pk_mul_f32 v[{r+i}:{r+i+1}], v[{r+i}:{r+i+1}], v[{r+4+i}:{r+5+i}]")
        for i in range(4 * len(blocks)): e(f"v_exp_f32 v{TB+i}, v{TB+i}")
        for b, r in enumerate(blocks):
            for i in (0, 2): e(f"v_pk_mul_f32 v[{r+i}:{r+i+1}], v[{r+i}:{r+i+1}], v[{C2+2*k}:{C2+2*k+1}] op_sel_hi:[1,0]")
        for i in range(0, 4 * len(blocks), 2): e(f"v_pk_add_f32 v[{TB+i}:{TB+i+1}], v[{TB+i}:{TB+i+1}], 1.0 op_sel_hi:[1,0]")
        for i in range(4 * len(blocks)): e(f"v_rcp_f32 v{TB+i}, v{TB+i}")
        e("s_nop 0")
        for b, r in enumerate(blocks):
            for i in (0, 2): e(f"v_pk_mul_f32 v[{r+i}:{r+i+1}], v[{r+i}:{r+i+1}], v[{TB+4*b+i}:{TB+4*b+i+1}]")
        for b, r in enumerate(blocks):
            for i in (0, 2): e(f"v_cvt_pk_bf16_f32 v{out+2*b+i//2}, v{r+i}, v{r+i+1}")
    cnt = 0
    for pj in range(4):
        for sb in range(2):
            ob = OB + 4 * (cnt % 3); cnt += 1
            silu([ACC + (2 * pj + jj) * 16 + 8 * sb for jj in range(2 if pj < 3 else 1)], sb, ob)
            if pj < 3:
                so, off = ("s38", pj * 2048 + sb * 1024) if pj < 2 else ("s46", sb * 1024)
                e(f"buffer_store_dwordx4 v[{ob}:{ob+3}], v{VXO}, s[20:23], {so} offen offset:{off}{SC1}")
            else:
                e(f"buffer_store_dwordx2 v[{ob}:{ob+1}], v{VXO}, s[20:23], s39 offen offset:{sb*1024}{SC1}")
    stamps_flush(A)
    set_signal(A, 33, cU)
    e(f"s_branch {nxt}")

def qkv_coords(A, sm, sn, t0, t1):
    e = A.e
    e(f"s_and_b32 s{t0}, s2, 7"); e(f"s_lshr_b32 s{t1}, s2, 3")
    e(f"s_and_b32 s{sm}, s{t0}, 1"); e(f"s_lshl_b32 s{sm}, s{sm}, 3"); e(f"s_lshr_b32 s{sn}, s{t1}, 2"); e(f"s_add_u32 s{sm}, s{sm}, s{sn}")
    e(f"s_lshr_b32 s{sn}, s{t0}, 1"); e(f"s_lshl_b32 s{sn}, s{sn}, 2"); e(f"s_and_b32 s{t1}, s{t1}, 3"); e(f"s_add_u32 s{sn}, s{sn}, s{t1}")

def p_qkv(A, tag, nxt, fpre, opt=None):
    e = A.e
    opt = dict(opt or {})
    XT = opt.get("XT", 2)
    ldw = 3 * D * 2
    A.label(tag)
    phase_begin(A)
    qkv_coords(A, 33, 34, 31, 32)
    set_poll(A, 33, cD, 16, prev_layer=True)
    e(f"s_cmp_ge_u32 s{S_WV}, 4"); e(f"s_cbranch_scc1 {tag}_idle")
    VP, VF, VXO, VL16, VMN, VRS, VT = 1, 7, 11, 12, 13, 14, 16
    ACC = 32; WF = ACC + 96; XF = WF + 24; SC = XF + 32
    CSR = SC + 16; RR = CSR + 12
    assert RR + 16 <= V_RES and XT <= 2
    e(f"v_and_b32 v{VL16}, 63, v0"); e(f"v_lshlrev_b32 v{VL16}, 4, v{VL16}")
    e("s_lshl_b32 s39, s34, 10"); e(f"s_add_u32 s39, s39, {WS_CS}")
    e("s_movk_i32 s45, 16384"); e("s_mov_b32 s46, 32768")
    srd_off(A, 24, "s28", "s29", "s39", 32768 + 1024)
    for b in range(3):
        e(f"buffer_load_dwordx4 v[{CSR+4*b}:{CSR+4*b+3}], v{VL16}, s[24:27], {('0', 's45', 's46')[b]} offen")
    lane_consts_fullline(A, 32, ldw, VT, VP, VF)
    e(f"s_lshl_b32 s40, s{S_WV}, 10")
    opt["now"] = 1
    G = MGemm(A, tag, T=32, NB=6, RG=1, K=D, STAGES=4, XT=XT, NWR=6, LA=6, WG=2, npieces=1, stage_bytes=QSBY, piece_lds=None,
              frag_addr=fullline_frag_addr(32, VF, 64, lambda stg: (2 * (stg // 2), (stg % 2) * QSBY)),
              acc=blk_acc(32, "v", ACC, 1), wfrag0=WF, xfrag0=XF, vpiece0=VP, vxoff=VXO,
              srd_w=8, srd_x=12, s_woff=41, s_xoff=42, s_ldsw=40, s_it=43, ldw=ldw,
              swap=[nb >= 2 for nb in range(6)], opt=opt)
    e("s_add_u32 s36, s33, s34"); e("s_and_b32 s36, s36, 3")
    G.order_init(36)
    G.pro_order(e)
    e(f"v_and_b32 v{VT+1}, 15, v{VT}"); e(f"v_lshlrev_b32 v{VXO}, 4, v{VT+1}")
    e(f"v_lshrrev_b32 v{VT+2}, 5, v{VT}"); e(f"v_lshl_add_u32 v{VXO}, v{VT+2}, 8, v{VXO}")
    e(f"v_bfe_u32 v{VT+1}, v{VT}, 4, 1"); e(f"v_lshl_add_u32 v{VXO}, v{VT+1}, 10, v{VXO}")
    e(f"s_lshl_b32 s35, s33, 2"); e(f"s_add_u32 s35, s35, s{S_WV}")
    e("s_lshl_b32 s36, s35, 16")
    e("s_lshl_b32 s38, s35, 12"); e(f"s_add_u32 s38, s38, {WS_ST}")
    srd_off(A, 12, "s28", "s29", "s36", D * 64)
    srd_off(A, 20, "s28", "s29", "s38", 4096)
    for i in range(2): e(f"v_add_u32 v{VF+2+i}, {2*QSBY}, v{VF+i}")
    e(f"v_mov_b32 v{VT+5}, 0.5")
    e("s_waitcnt lgkmcnt(0)")
    sync1(A)
    p = Stream()
    G.reads(p)
    for b in range(3):
        p.i(f"v_pk_add_f32 v[{CSR+4*b}:{CSR+4*b+1}], v[{CSR+4*b}:{CSR+4*b+1}], v[{CSR+4*b+2}:{CSR+4*b+3}]")
    for b in range(3): p.i(f"v_add_f32 v{CSR+4*b}, v{CSR+4*b}, v{CSR+4*b+1}")
    for i in range(0, 96, 2): p.i(f"v_pk_mov_b32 v[{ACC+i}:{ACC+i+1}], 0, 0")
    G.sync2(p)
    G.pro_x(p)
    p.i(f"v_lshrrev_b32 v{VT+2}, 2, v{VL16}")
    for i in range(16):
        p.vm(f"buffer_load_dword v{SC+i}, v{VT+2}, s[20:23], 0 offen offset:{i*256}{SC1}", ("ST", i))
    nit = G.NT // G.UN
    def fix():
        e(f"s_cmp_lg_u32 s43, {nit - 1}")
        e(f"s_cbranch_scc1 {tag}_nofix")
        stats_finish(e, SC, VT + 4, VMN, VRS)
        for b in range(3):
            r = ACC + 32 * b
            if b == 0: e(f"v_mfma_f32_32x32x1_2b_f32 v[{r}:{r+31}], v{CSR+4*b}, v{VMN}, v[{r}:{r+31}]")
            else: e(f"v_mfma_f32_32x32x1_2b_f32 v[{r}:{r+31}], v{VMN}, v{CSR+4*b}, v[{r}:{r+31}]")
        e(f"v_mfma_f32_32x32x2_f32 v[{RR}:{RR+15}], v{VRS}, v{VT+5}, 0")
        A.label(f"{tag}_nofix")
    G.emit(p, loop_end=fix)
    KL = SC; QL = VRS + 1
    proj_coords(A, 45, 46, 47, 48)
    e(f"s_lshl_b32 s45, s45, 2"); e(f"s_add_u32 s45, s45, s{S_WV}"); e("s_lshl_b32 s45, s45, 16"); e("s_lshl_b32 s46, s46, 12"); e("s_add_u32 s45, s45, s46")
    srd_off(A, 12, "s28", "s29", "s45", 4096)
    e(f"v_mul_f32 v{QL}, {LOG2E:#x}, v{VRS}")
    for i in range(16): e(f"v_mul_f32 v{KL+i}, {LOG2E:#x}, v{RR+i}")
    e(f"s_mov_b32 s47, {f2u(1e-6):#x}")
    e(f"s_mul_i32 s36, s35, {F*64}"); e("s_lshl_b32 s37, s34, 12"); e("s_add_u32 s36, s36, s37"); e(f"s_add_u32 s36, s36, {WS_H}")
    e("s_add_u32 s20, s28, s36"); e("s_addc_u32 s21, s29, 0")
    e(f"s_mul_i32 s39, s{S_LAYER}, {WS_KV2 - WS_KV}")
    e(f"s_lshl_b32 s38, s34, 16"); e(f"s_lshl_b32 s36, s{S_WV}, 10"); e("s_add_u32 s38, s38, s36"); e(f"s_add_u32 s38, s38, {WS_KV}")
    e("s_add_u32 s38, s38, s39")
    e("s_add_u32 s24, s28, s38"); e("s_addc_u32 s25, s29, 0"); e("s_mov_b32 s26, 65536")
    e("s_lshl_b32 s37, s34, 4"); e("s_add_u32 s37, s37, s33")
    e("s_lshl_b32 s38, s37, 8"); e(f"s_add_u32 s38, s38, {WS_Z}"); e("s_add_u32 s38, s38, s39")
    srd_off(A, 16, "s28", "s29", "s38", 256)
    e("s_lshl_b32 s44, s33, 12")
    e("s_waitcnt vmcnt(0) lgkmcnt(0)")
    e("s_barrier")
    for i in range(4):
        e(f"buffer_load_dwordx4 v[{V_RES+4*i}:{V_RES+3+4*i}], v{VL16}, s[12:15], 0 offen offset:{i*1024}{SC1}")
    TB = VT
    def phi(regs, rsr, rl, outs):
        n = len(regs)
        for i in range(n): e(f"v_mul_f32 v{TB+i}, v{regs[i]}, v{rl[i]}")
        for i in range(n): e(f"v_exp_f32 v{TB+i}, v{TB+i} clamp")
        for i in range(n): e(f"v_max_f32 v{regs[i]}, 0, v{regs[i]}")
        for i in range(0, n, 2): e(f"v_pk_add_f32 v[{TB+i}:{TB+i+1}], v[{TB+i}:{TB+i+1}], s[46:47] op_sel:[0,1]")
        for i in range(n): e(f"v_fma_f32 v{regs[i]}, v{regs[i]}, v{rsr[i]}, v{TB+i}")
        for i in range(0, n, 2): e(f"v_cvt_pk_bf16_f32 v{outs[i//2]}, v{regs[i]}, v{regs[i+1]}")
    PK = WF; VV = XF; ONE = CSR; OB = XF + 16
    for i in range(4): e(f"v_mov_b32 v{ONE+i}, 0x3f803f80")
    e(f"v_and_b32 v{VP}, 0x3ff, v{VXO}"); e(f"v_lshrrev_b32 v{VP+1}, 10, v{VXO}"); e(f"v_lshl_add_u32 v{VP}, v{VP+1}, 13, v{VP}")
    e(f"s_add_u32 s40, s40, {LDS_R}"); e(f"v_add_u32 v{VP}, s40, v{VP}")
    e(f"v_lshrrev_b32 v{VP+2}, 2, v{VL16}"); e(f"v_add_u32 v{VP+4}, {LDS_Z}, v{VP+2}")
    e(f"s_lshl_b32 s36, s{S_WV}, 8"); e(f"v_add_u32 v{VP+3}, s36, v{VP+4}")
    e(f"s_lshl_b32 s36, s{S_WV}, 13"); e(f"s_add_u32 s37, s36, {LDS_R}"); e(f"v_add_u32 v{VP+1}, s37, v{VL16}")
    KVR = ACC + 32; ZR = ACC + 64
    def kv_write(hh):
        for rq in range(4):
            r = KVR + hh * 16 + 4 * rq
            e(f"ds_write_b128 v{VP}, v[{r}:{r+3}] offset:{hh*16384 + (rq >> 1)*4096 + (rq & 1)*512}")
    for hh in range(2):
        r = ACC + (2 + hh) * 16
        phi([r + i for i in range(16)], [RR + i for i in range(16)], [KL + i for i in range(16)], [PK + hh * 8 + i for i in range(8)])
        if hh == 1: kv_write(0)
        r = ACC + (4 + hh) * 16
        for i in range(0, 16, 2):
            e(f"v_pk_mul_f32 v[{r+i}:{r+i+1}], v[{r+i}:{r+i+1}], v[{RR+i}:{RR+i+1}]")
        for i in range(0, 16, 2):
            e(f"v_cvt_pk_bf16_f32 v{VV+hh*8+i//2}, v{r+i}, v{r+i+1}")
        e("s_nop 1")
        for ks in range(2):
            a = PK + hh * 8 + 4 * ks; b = VV + hh * 8 + 4 * ks
            r = KVR + hh * 16
            e(f"v_mfma_f32_32x32x16_bf16 v[{r}:{r+15}], v[{a}:{a+3}], v[{b}:{b+3}], {'0' if ks == 0 else f'v[{r}:{r+15}]'}")
        for ks in range(2):
            a = PK + hh * 8 + 4 * ks
            r = ZR + hh * 16
            e(f"v_mfma_f32_32x32x16_bf16 v[{r}:{r+15}], v[{ONE}:{ONE+3}], v[{a}:{a+3}], {'0' if ks == 0 else f'v[{r}:{r+15}]'}")
    e("s_nop 9")
    kv_write(1)
    e(f"v_permlane32_swap_b32 v{ZR}, v{ZR+16}")
    e("s_nop 1")
    e(f"ds_write_b32 v{VP+3}, v{ZR}")
    e("s_waitcnt lgkmcnt(0)")
    e("s_barrier")
    RB = KVR
    for k in range(8):
        e(f"ds_read_b128 v[{RB+4*k}:{RB+4*k+3}], v{VP+1} offset:{k*1024}")
    for k in range(4):
        e(f"ds_read_b32 v{ZR+k}, v{VP+4} offset:{k*256}")
    for k in range(2):
        e(f"s_waitcnt lgkmcnt({8 - 4*k})")
        r = RB + 16 * k
        for i in (0, 2):
            e(f"v_pk_add_f32 v[{r+i}:{r+i+1}], v[{r+i}:{r+i+1}], v[{r+4+i}:{r+5+i}]")
            e(f"v_pk_add_f32 v[{r+8+i}:{r+9+i}], v[{r+8+i}:{r+9+i}], v[{r+12+i}:{r+13+i}]")
        for i in (0, 2):
            e(f"v_pk_add_f32 v[{r+i}:{r+i+1}], v[{r+i}:{r+i+1}], v[{r+8+i}:{r+9+i}]")
        for i in (0, 2):
            e(f"v_cvt_pk_bf16_f32 v{PK+2*k+i//2}, v{r+i}, v{r+i+1}")
    e(f"buffer_store_dwordx4 v[{PK}:{PK+3}], v{VL16}, s[24:27], s44 offen{SC1}")
    e("s_waitcnt lgkmcnt(0)")
    e(f"v_pk_add_f32 v[{ZR}:{ZR+1}], v[{ZR}:{ZR+1}], v[{ZR+2}:{ZR+3}]")
    e(f"v_add_f32 v{ZR}, v{ZR}, v{ZR+1}")
    e(f"buffer_store_dword v{ZR}, v{VP+2}, s[16:19], s36 offen{SC1}")
    stamps_flush(A)
    phase_begin(A)
    OUTS = lambda ob: [ob + 0, ob + 1, ob + 4, ob + 5, ob + 2, ob + 3, ob + 6, ob + 7]
    phi([ACC + i for i in range(16)], [VRS] * 16, [QL] * 16, OUTS(OB))
    sync1(A)
    phi([ACC + 16 + i for i in range(16)], [VRS] * 16, [QL] * 16, OUTS(OB + 8))
    e(f"v_mov_b32 v{ONE}, 0x3f80"); e(f"v_mov_b32 v{ONE+1}, 0x3f800000")
    e(f"v_add_u32 v{VP}, s40, v{VL16}")
    e(f"v_add_u32 v{VP+1}, {LDS_R}, v{VXO}")
    e(f"v_lshrrev_b32 v{VP+2}, 9, v{VL16}"); e(f"v_lshlrev_b32 v{VP+2}, 4, v{VP+2}"); e(f"v_add_u32 v{VP+2}, {LDS_Z + 1024}, v{VP+2}")
    SUM = TB
    for i in range(0, 8, 2): e(f"v_pk_mov_b32 v[{SUM+i}:{SUM+i+1}], 0, 0")
    e("s_barrier")
    rs(A, 2)
    P = ACC
    for m in range(16):
        if m: e(f"s_movk_i32 s44, {m*4096}" if m < 8 else f"s_mov_b32 s44, {m*4096}")
        e(f"buffer_load_dwordx4 v[{P+4*m}:{P+4*m+3}], v{VL16}, s[24:27], {'s44' if m else '0'} offen{SC1}")
    for m in range(16):
        e(f"s_waitcnt vmcnt({15 - m})")
        for j in range(4):
            e(f"v_dot2_f32_bf16 v{SUM+2*j}, v{P+4*m+j}, v{ONE}, v{SUM+2*j}")
            e(f"v_dot2_f32_bf16 v{SUM+2*j+1}, v{P+4*m+j}, v{ONE+1}, v{SUM+2*j+1}")
    e("s_nop 2")
    for j in range(4): e(f"v_cvt_pk_bf16_f32 v{PK+j}, v{SUM+2*j}, v{SUM+2*j+1}")
    e(f"ds_write_b128 v{VP}, v[{PK}:{PK+3}]")
    e("s_waitcnt lgkmcnt(0)")
    rs(A, 3)
    e("s_barrier")
    FR = PK; ZF = VV
    for hh in range(2):
        for t in range(2):
            e(f"ds_read_b128 v[{ZF+(hh*2+t)*4}:{ZF+(hh*2+t)*4+3}], v{VP+2} offset:{hh*64 + t*32}")
            e(f"ds_read_b128 v[{FR+(hh*2+t)*4}:{FR+(hh*2+t)*4+3}], v{VP+1} offset:{hh*2048 + t*512}")
    NUM = ACC; DEN = ACC + 32
    for hh in range(2):
        e(f"s_waitcnt lgkmcnt({4 - 4*hh})")
        for (dst, fr) in ((DEN, ZF), (NUM, FR)):
            for t in range(2):
                r = dst + hh * 16; a = fr + (hh * 2 + t) * 4; b = OB + hh * 8 + 4 * t
                e(f"v_mfma_f32_32x32x16_bf16 v[{r}:{r+15}], v[{a}:{a+3}], v[{b}:{b+3}], {'0' if t == 0 else f'v[{r}:{r+15}]'}")
    rs(A, 4)
    e("s_nop 5")
    for hh in range(2):
        d = DEN + hh * 16; r = NUM + hh * 16; ob = TB + hh * 8
        if hh: e("s_nop 3")
        e(f"v_add_f32 v{d}, s47, v{d}")
        e(f"v_rcp_f32 v{d}, v{d}")
        e("s_nop 3")
        for j in range(0, 16, 2):
            e(f"v_pk_mul_f32 v[{r+j}:{r+j+1}], v[{r+j}:{r+j+1}], v[{d}:{d+1}] op_sel_hi:[1,0]")
        for j in range(0, 16, 2):
            e(f"v_cvt_pk_bf16_f32 v{OUTS(ob)[j//2]}, v{r+j}, v{r+j+1}")
        for k in range(2):
            e(f"buffer_store_dwordx4 v[{ob+4*k}:{ob+4*k+3}], v{VXO}, s[20:23], 0 offen offset:{hh*2048 + k*512}{SC1}")
    stamps_flush(A)
    A.label(f"{tag}_out")
    set_signal(A, 33, cA)
    e(f"s_branch {nxt}")
    NST = opt.get("stag", 13)
    LD = Loader(A, "qkv", SET_A, 130, first=3)
    NX = Loader(A, "wo", SET_B, 140)
    def early():
        LD.setup(coords=False)
        e(f"s_cmp_lg_u32 s{S_LAYER}, 0"); e(f"s_cbranch_scc1 {tag}_e1")
        e(f"s_load_dwordx4 s[4:7], s[0:1], {KA['wg']}")
        e(f"s_load_dwordx2 s[12:13], s[0:1], {KA['wo']}")
        e(f"s_lshl_b32 s20, s2, 2"); e(f"s_add_u32 s20, s20, s{S_WV}"); e("s_sub_u32 s20, s20, 4")
        e("s_lshr_b32 s48, s20, 3"); e("s_and_b32 s49, s20, 7")
        e("s_sub_u32 s30, s48, 56"); e("s_min_u32 s30, s30, s48"); e("s_lshl_b32 s30, s30, 7")
        e(f"s_mul_i32 s21, s49, {128*F*2}"); e("s_add_u32 s30, s30, s21")
        e("s_sub_u32 s21, s20, 896"); e("s_lshl_b32 s21, s21, 14")
        e("s_cmp_lt_u32 s48, 56")
        e("s_waitcnt lgkmcnt(0)")
        e("s_cselect_b32 s44, s4, s6"); e("s_cselect_b32 s45, s5, s7"); e("s_mov_b32 s47, 0x00020000")
        e(f"s_mov_b32 s46, {D*F*2}"); e(f"s_movk_i32 s22, {F*2}")
        e("s_cmp_ge_u32 s2, 224")
        e("s_cselect_b32 s44, s12, s44"); e("s_cselect_b32 s45, s13, s45"); e(f"s_cselect_b32 s46, {D*D*2}, s46")
        e("s_cselect_b32 s30, s21, s30"); e("s_cselect_b32 s22, 128, s22")
        e("s_lshl_b32 s14, s22, 3")
        e("v_and_b32 v20, 63, v0")
        e("v_lshrrev_b32 v21, 3, v20"); e("v_mul_lo_u32 v21, s22, v21"); e("v_and_b32 v22, 7, v20"); e("v_lshl_add_u32 v21, v22, 4, v21")
        e("s_lshr_b32 s20, s2, 3"); e("s_and_b32 s21, s2, 7"); e("s_lshl_b32 s21, s21, 1"); e("s_add_u32 s20, s20, s21")
        e(f"s_mul_i32 s21, s20, {65536 // NST + 1}"); e("s_lshr_b32 s21, s21, 16"); e(f"s_mul_i32 s21, s21, {NST}"); e("s_sub_u32 s15, s20, s21")
        A.label(f"{tag}_e1")
    idle_head(A, tag, skip_first=True, early=early)
    e(f"s_cmp_lg_u32 s{S_LAYER}, 0"); e(f"s_cbranch_scc1 {tag}_h1")
    LD.loop(f"{tag}_i3", "s15")
    L = 64
    for i in range(16):
        e(f"buffer_load_dwordx4 v[{L+4*i}:{L+4*i+3}], v21, s[44:47], s30 offen")
        if i < 15: e("s_add_u32 s30, s30, s14")
    LD.step(); LD.step()
    for i in range(16):
        if i == 8: LD.step()
        t = (32 if i == 0 else 40 + 8 * (i % 2))
        for j in range(4):
            e(f"v_lshlrev_b32 v{t+2*j}, 16, v{L+4*i+j}"); e(f"v_and_b32 v{t+2*j+1}, 0xffff0000, v{L+4*i+j}")
        if i:
            for j in range(4):
                e(f"v_pk_add_f32 v[{32+2*j}:{33+2*j}], v[{32+2*j}:{33+2*j}], v[{t+2*j}:{t+2*j+1}]")
    e("s_nop 1")
    for j in range(4): e(f"v_permlane32_swap_b32 v{32+j}, v{36+j}")
    e("s_nop 0")
    for j in (0, 2): e(f"v_pk_add_f32 v[{32+j}:{33+j}], v[{32+j}:{33+j}], v[{36+j}:{37+j}]")
    e("s_nop 1")
    for j in range(2): e(f"v_permlane16_swap_b32 v{32+j}, v{34+j}")
    e("s_nop 1")
    e("v_pk_add_f32 v[32:33], v[32:33], v[34:35]")
    e("s_nop 1")
    for j in range(2): e(f"v_add_f32_dpp v{32+j}, v{32+j}, v{32+j} row_ror:8 row_mask:0xf bank_mask:0xf")
    e("v_and_b32 v21, 8, v20"); e("v_cmp_ne_u32 vcc, 0, v21")
    e("v_lshlrev_b32 v22, 3, v22"); e("v_lshrrev_b32 v21, 3, v20"); e("v_add_lshl_u32 v22, v22, v21, 5")
    e("v_cndmask_b32 v32, v32, v33, vcc")
    srd_off(A, 44, "s28", "s29", WS_CS2, 2 * F * 32)
    e("s_lshl_b32 s48, s48, 11"); e("s_lshl_b32 s49, s49, 2"); e("s_add_u32 s48, s48, s49")
    e(f"buffer_store_dword v32, v22, s[44:47], s48 offen{SC1}")
    assert NST - 1 + 3 <= G.NT - 1
    e(f"s_sub_u32 s15, {G.NT - 4}, s15")
    e(f"s_branch {tag}_h2")
    A.label(f"{tag}_h1")
    e(f"s_mov_b32 s15, {G.NT - 1}")
    A.label(f"{tag}_h2")
    NX.setup()
    srd_off(A, 44, "s28", "s29", WS_XC, 4 * MB)
    e(f"s_lshl_b32 s48, s2, 2"); e(f"s_add_u32 s48, s48, s{S_WV}"); e("s_sub_u32 s48, s48, 4"); e("s_lshl_b32 s48, s48, 12")
    e("v_and_b32 v20, 63, v0"); e("v_lshlrev_b32 v20, 4, v20")
    for i in range(4): e(f"v_mov_b32 v{24+i}, -1")
    for i in range(4): e(f"buffer_store_dwordx4 v[24:27], v20, s[44:47], s48 offen offset:{i*1024}{SC1}")
    fpre[0]()
    LD.loop(f"{tag}_i4", "s15")
    for _ in range(3): NX.issue()
    fpre[1](0)
    e("s_barrier")
    fpre[1](1)
    e("s_barrier")
    fpre[1](2)
    e("s_barrier")
    if gen.STAMP: e(f"s_add_u32 s{S_PH}, s{S_PH}, 1")
    set_signal(A, 34, cQ)
    set_poll(A, 34, cQ, 16)
    def early2():
        wd_warm_base(A)
        e(f"s_cmp_lg_u32 s{S_LAYER}, 0"); e(f"s_cbranch_scc1 {tag}_nw")
        warm(A, [64 * i for i in range(14)], 896)
        A.label(f"{tag}_nw")
        e(f"s_mul_i32 s39, s{S_LAYER}, {WS_KV2 - WS_KV}"); e("s_lshl_b32 s38, s34, 12"); e("s_add_u32 s38, s38, s39"); e(f"s_add_u32 s38, s38, {WS_Z}")
        srd_off(A, 16, "s28", "s29", "s38", 4096)
        e("v_and_b32 v4, 63, v0"); e("v_lshlrev_b32 v5, 2, v4")
        e("v_and_b32 v6, 3, v4"); e("v_lshlrev_b32 v6, 1, v6")
        e("v_bfe_u32 v7, v4, 2, 2"); e("v_lshl_add_u32 v6, v7, 4, v6")
        e("v_bfe_u32 v7, v4, 4, 1"); e("v_lshl_add_u32 v6, v7, 3, v6")
        e("v_lshrrev_b32 v7, 5, v4"); e("v_lshl_add_u32 v6, v7, 6, v6")
        e(f"v_add_u32 v6, {LDS_Z + 1024}, v6")
    idle_head(A, tag + "b", early=early2)
    e(f"s_cmp_lg_u32 s{S_WV}, 5"); e(f"s_cbranch_scc1 {tag}_nz")
    for m in range(16):
        e(f"buffer_load_dword v{8+m}, v5, s[16:19], 0 offen offset:{m*256}{SC1}")
    e("s_waitcnt vmcnt(0)")
    for st in (8, 4, 2, 1):
        for i in range(st): e(f"v_add_f32 v{8+i}, v{8+i}, v{8+i+st}")
    e("v_cvt_pk_bf16_f32 v8, v8, v8")
    e("ds_write_b16 v6, v8")
    e("s_waitcnt lgkmcnt(0)")
    A.label(f"{tag}_nz")
    e("s_barrier")
    idle_tail(A, f"{tag}_out")

def k_prep2(A, name):
    e = A.e
    NCS, NWM = 192, 0
    st = gen.STAMP; gen.STAMP = False
    kernel_head(A, name, 256 + NCS + NWM)
    e(f"s_load_dwordx4 s[4:7], s[0:1], {KA['x']}")
    e(f"s_load_dwordx2 s[28:29], s[0:1], {KA['ws']}")
    e("v_lshrrev_b32 v4, 6, v0"); e("v_and_b32 v5, 63, v0")
    e("v_readfirstlane_b32 s30, v4")
    e("v_lshlrev_b32 v1, 4, v5")
    e("s_cmp_ge_u32 s2, 256")
    e(f"s_cbranch_scc1 {name}_cs")
    e("s_lshl_b32 s31, s2, 2"); e("s_add_u32 s31, s31, s30")
    e("s_lshr_b32 s35, s31, 4"); e("s_and_b32 s34, s31, 15")
    rowmajor_lane_off(A, 2, 3)
    e("s_lshl_b32 s36, s35, 16"); e("s_lshl_b32 s37, s34, 7"); e("s_add_u32 s36, s36, s37"); e(f"s_add_u32 s37, s36, {16*2048}")
    e("s_lshl_b32 s38, s35, 16"); e("s_lshl_b32 s39, s34, 12"); e("s_add_u32 s38, s38, s39")
    e("s_waitcnt lgkmcnt(0)")
    srd(A, 8, "s4", "s5", S * D * 2)
    srd_off(A, 12, "s28", "s29", "s38", 4096)
    R = 16
    for i in range(4):
        so, off = rowmajor_frag(i, "s36", "s37")
        e(f"buffer_load_dwordx4 v[{R+4*i}:{R+4*i+3}], v2, s[8:11], {so} offen offset:{off} nt")
    srd_off(A, 40, "s28", "s29", WS_FL, 16384)
    for i in range(4): e(f"v_mov_b32 v{40+i}, 0")
    e("s_lshl_b32 s44, s31, 10")
    e("buffer_store_dwordx4 v[40:43], v1, s[40:43], s44 offen")
    e("s_lshl_b32 s36, s35, 12"); e("s_lshl_b32 s37, s34, 8"); e("s_add_u32 s36, s36, s37")
    srd_off(A, 16, "s28", "s29", WS_ST, 64 * 4096)
    e("s_waitcnt vmcnt(0)")
    for i in range(4):
        e(f"v_permlane16_swap_b32 v{R+4*i}, v{R+4*i+2}")
        e(f"v_permlane16_swap_b32 v{R+4*i+1}, v{R+4*i+3}")
    e("s_nop 1")
    for i in range(4):
        e(f"buffer_store_dwordx4 v[{R+4*i}:{R+4*i+3}], v1, s[12:15], 0 offen offset:{i*1024}")
    stats_emit(A, 16, [R + i for i in range(16)], 8)
    e("v_lshrrev_b32 v1, 2, v1")
    e("buffer_store_dword v8, v1, s[16:19], s36 offen")
    e(f"s_branch {name}_fin")
    A.label(f"{name}_cs")
    e("s_waitcnt lgkmcnt(0)")
    e("s_sub_u32 s44, s2, 256")
    colsum_part(A, name, 44, [(0, 6, 7, 6)], f"{name}_fin")
    A.label(f"{name}_fin")
    kernel_tail(A, name, 64)
    gen.STAMP = st
    return dict(name=name, grid=256 + NCS + NWM, block=256, lds=8192)

def k_mega(A, o):
    e = A.e
    A.begin_kernel(NAME)
    e("s_cmp_ge_u32 s2, 256")
    e(f"s_cbranch_scc1 {NAME}_end")
    e(f"s_load_dwordx2 s[28:29], s[0:1], {KA['ws']}")
    e("v_lshrrev_b32 v1, 6, v0")
    e(f"s_mov_b32 s{S_LAYER}, 0"); e(f"s_mov_b32 s{S_SIG}, 0"); e(f"s_mov_b32 s{S_PH}, 0")
    e(f"v_readfirstlane_b32 s{S_WV}, v1")
    e("s_waitcnt lgkmcnt(0)")
    srd_off(A, FL, "s28", "s29", WS_FL, 16384)
    e(f"s_cmp_lt_u32 s{S_WV}, 4"); e("s_cbranch_scc1 pq")
    NX = Loader(A, "qkv", SET_B, 140)
    NX.setup()
    for _ in range(3): NX.issue()
    p_qkv(A, "pq", "po", ffn_prefetch(A, 1, o.get("ffn")), o.get("qkv"))
    p_proj(A, "po", D, False, "pu", o.get("wo"))
    p_ffn(A, "pu", "pd", o.get("ffn"))
    p_proj(A, "pd", F, True, "pq", o.get("down"))
    A.label(f"{NAME}_end")
    e("s_endpgm")
    A.add_desc(NAME, 256, 102, 256)
    return dict(name=NAME, grid=256, block=512, lds=163840)

def build_mega(path, stamp_on=False, o=None):
    gen.STAMP = stamp_on
    uid[0] = 0
    A = Asm()
    prep = k_prep2(A, "prep_kernel")
    mega = k_mega(A, o or {})
    for k in (prep, mega): A.launch(k["name"], k["grid"], k["block"], k["lds"])
    open(path, "w").write(A.text(HEADER))

if __name__ == "__main__":
    if len(sys.argv) > 1:
        import json
        for name, o in json.loads(sys.argv[1]).items(): build_mega(f"m_{name}_stamp.s", True, o)
        sys.exit(0)
    build_mega("mega_stamp.s", True)
    build_mega("mega.s", False)
```

```python
import sys, math
from asmlib import Asm

S, D, F = 2048, 1024, 3584
MB = 1 << 20
WS_X, WS_PQ, WS_O, WS_H = 0, 4 * MB, 8 * MB, 12 * MB
WS_KV, WS_Z, WS_ST, WS_CS = 27 * MB, 29 * MB, 31 * MB, 31 * MB + 512 * 1024
CS_N = 10240
WS_DBG = 40 * MB
KA = dict(x=0, wqkv=8, wo=16, bx=24, wg=32, wu=40, wd=48, out=56, dbg=64, ws=72)
LOG2E = 0x3fb8aa3b
NLOG2E = 0xbfb8aa3b

def f2u(x):
    import struct
    return struct.unpack("<I", struct.pack("<f", x))[0]

class Stream:
    def __init__(self):
        self.ops = []
        self.pre = set()
    def i(self, s): self.ops.append(("i", s))
    def vm(self, s, tag): self.ops.append(("vm", s, tag))
    def ds(self, s, tag): self.ops.append(("ds", s, tag))
    def wait(self, vm=None, ds=None): self.ops.append(("w", vm, ds))

def resolve(pro, bodies):
    vq, dq = [], []
    def cnt(q, tags):
        if not tags: return None
        idx = -1
        for t in tags:
            if t in pro.pre: continue
            assert t in q, ("wait on never-issued tag", t)
            idx = max(idx, len(q) - 1 - q[::-1].index(t))
        if idx < 0: return None
        return len(q) - 1 - idx
    def run(st):
        res = []
        for op in st.ops:
            if op[0] == "vm": vq.append(op[2]); res.append(None)
            elif op[0] == "ds": dq.append(op[2]); res.append(None)
            elif op[0] == "w": res.append((cnt(vq, op[1]), cnt(dq, op[2])))
            else: res.append(None)
        return res
    def lines(st, res):
        out = []
        for op, r in zip(st.ops, res):
            if op[0] == "w":
                v, d = r
                parts = []
                if v is not None and v < 63: parts.append(f"vmcnt({v})")
                if d is not None and d < 15: parts.append(f"lgkmcnt({d})")
                if v is not None and v >= 63: parts.append("vmcnt(63)")
                if d is not None and d >= 15: parts.append("lgkmcnt(15)")
                if parts: out.append("s_waitcnt " + " ".join(parts))
            else:
                out.append(op[1])
        return out
    rp = run(pro)
    rs = [run(b) for b in bodies]
    for b in bodies[1:]:
        assert [o[1] for o in b.ops if o[0] != "w"] == [o[1] for o in bodies[0].ops if o[0] != "w"]
    merged = []
    for k in range(len(bodies[0].ops)):
        if bodies[0].ops[k][0] == "w":
            vs = [r[k][0] for r in rs if r[k][0] is not None]
            dsx = [r[k][1] for r in rs if r[k][1] is not None]
            merged.append((min(vs) if vs else None, min(dsx) if dsx else None))
        else:
            merged.append(None)
    return lines(pro, rp), lines(bodies[0], merged)

STAMP = False
def stamp(A, k):
    if STAMP:
        A.e(f"s_memtime s[{60+2*k}:{61+2*k}]")
def stamp_real(A, k):
    if STAMP:
        A.e(f"s_memrealtime s[{60+2*k}:{61+2*k}]")
def stamp_out(A, name, n):
    if not STAMP: return
    e = A.e
    e("s_waitcnt vmcnt(0) lgkmcnt(0)")
    stamp(A, n - 2)
    stamp_real(A, n - 1)
    e(f"s_load_dwordx2 s[56:57], s[0:1], {KA['ws']}")
    e(f"s_load_dword s79, s[0:1], {KA['dbg']}")
    e("s_getreg_b32 s59, hwreg(HW_REG_XCC_ID)")
    e("s_waitcnt lgkmcnt(0)")
    e("v_cmp_gt_u32 vcc, 1, v0")
    e("s_and_saveexec_b64 s[50:51], vcc")
    e(f"s_cbranch_execz {name}_end")
    srd_off(A, 52, "s56", "s57", WS_DBG, 32 * 65536)
    e("s_lshl_b32 s58, s2, 6")
    e("s_lshr_b32 s79, s79, 9"); e("s_and_b32 s79, s79, 31"); e("s_lshl_b32 s79, s79, 16"); e("s_add_u32 s58, s58, s79")
    e("v_mov_b32 v1, 0")
    for k in range(n):
        e(f"v_mov_b32 v2, s{60+2*k}")
        e(f"buffer_store_dword v2, v1, s[52:55], s58 offen offset:{4*k}")
    e(f"v_mov_b32 v2, s59")
    e(f"buffer_store_dword v2, v1, s[52:55], s58 offen offset:60")

def srd(A, r, lo, hi, size):
    A.e(f"s_mov_b32 s{r}, {lo}"); A.e(f"s_mov_b32 s{r+1}, {hi}")
    A.e(f"s_mov_b32 s{r+2}, {size}"); A.e(f"s_mov_b32 s{r+3}, 0x00020000")

def srd_off(A, r, lo, hi, off, size):
    A.e(f"s_add_u32 s{r}, {lo}, {off}"); A.e(f"s_addc_u32 s{r+1}, {hi}, 0")
    A.e(f"s_mov_b32 s{r+2}, {size}"); A.e(f"s_mov_b32 s{r+3}, 0x00020000")

class Gemm:
    def __init__(self, A, name, T, NB, RG, K, STAGES, XT, NWR, npieces, stage_bytes, piece_lds, frag_addr,
                 acc, wfrag0, xfrag0, vpiece0, vxoff, srd_w, srd_x, s_woff, s_xoff, s_ldsw, s_it, ldw, swap=None,
                 opt=None, BK=64, LA=None, WG=1):
        self.__dict__.update(locals())
        self.opt = opt or {}
        self.LA = LA or NWR
        self.kstep = 512 // T
        self.KS = BK // self.kstep
        self.SB = RG * (32 // T)
        self.NT = K // BK
        self.skew = self.opt.get("skew", 1)
        self.UN = STAGES * XT // math.gcd(STAGES, XT)
        while (self.skew and self.UN % (4 * self.skew)) or (self.UN * self.KS * NB) % NWR: self.UN *= 2
        assert self.NT % self.UN == 0, (self.NT, self.UN)
        assert self.LA <= NWR and self.LA <= self.KS * NB
        self.swap = swap or [False] * NB
        self.op = "v_mfma_f32_32x32x16_bf16" if T == 32 else "v_mfma_f32_16x16x32_bf16"
        self.XB = BK * 64
        self.LOOK = XT if self.opt.get("now") else max(XT, STAGES - 1)
        self.RING = min(8, self.UN)
        if self.skew: assert self.UN % self.RING == 0 and self.LOOK <= self.RING
        self.s_tq, self.s_sd, self.s_p, self.s_t1 = 84, 92, 96, 97
        assert self.skew in (0, 1, 2)
    def order_init(self, s_r):
        A = self.A
        if not self.skew:
            A.e(f"s_mov_b32 s{self.s_woff}, {-self.BK * self.ldw & 0xffffffff:#x}")
            A.e(f"s_mov_b32 s{self.s_xoff}, {-self.XB & 0xffffffff:#x}")
            return
        A.e(f"s_mov_b32 s{self.s_p}, 0")
        for i in range(4):
            A.e(f"s_cmp_eq_u32 s{s_r}, {i}")
            A.e(f"s_cselect_b32 s{self.s_sd+i}, {3 * self.skew}, {-self.skew}")
    def order_next(self, p):
        if not self.skew: return []
        t = self.s_tq + p % self.RING; t1 = self.s_t1; NT = self.NT
        l = [f"s_add_u32 s{t}, s{self.s_p}, s{self.s_sd + (p // self.skew) % 4}",
             f"s_add_u32 s{t1}, s{t}, {NT}",
             f"s_min_u32 s{t}, s{t}, s{t1}",
             f"s_sub_u32 s{t1}, s{t}, {NT}",
             f"s_min_u32 s{t}, s{t}, s{t1}"]
        l += [f"s_cmp_ge_u32 s{self.s_p}, {NT}\n    s_cselect_b32 s{t}, {NT * self.RG}, s{t}",
              f"s_add_u32 s{self.s_p}, s{self.s_p}, 1"]
        return l
    def set_woff(self, st, p):
        if self.skew: st.i(f"s_mul_i32 s{self.s_woff}, s{self.s_tq + p % self.RING}, {self.BK * self.ldw}")
        else: st.i(f"s_add_u32 s{self.s_woff}, s{self.s_woff}, {self.BK * self.ldw}")
    def set_xoff(self, st, p):
        if self.skew: st.i(f"s_mul_i32 s{self.s_xoff}, s{self.s_tq + p % self.RING}, {self.XB}")
        else:
            assert self.RG == 1
            st.i(f"s_add_u32 s{self.s_xoff}, s{self.s_xoff}, {self.XB}")
    def stage_off(self, stg):
        return ((stg + self.opt.get("rot", 0)) % self.STAGES) * self.stage_bytes
    def wreg(self, f):
        return self.wfrag0 + (f % self.NWR) * 4
    def xreg(self, q, sb):
        return self.xfrag0 + ((q % (self.XT * self.KS)) * self.SB + sb) * 4
    def dma_m0(self, st, tile, j):
        st.i(f"s_add_u32 m0, s{self.s_ldsw}, {self.stage_off(tile % self.STAGES) + self.piece_lds(j)}")
    def dma_ld(self, st, tile, j):
        st.vm(f"buffer_load_dwordx4 v{self.vpiece0 + j}, s[{self.srd_w}:{self.srd_w+3}], s{self.s_woff} offen lds", ("W", tile, j))
    def dma(self, st, tile, j):
        self.dma_m0(st, tile, j); st.i("s_nop 0"); self.dma_ld(st, tile, j)
    def xload(self, st, q, sb):
        r = self.xreg(q, sb)
        ks = q % self.KS
        if self.T == 32: rg, off = sb, (ks >> 1) * 2048 + (ks & 1) * 512
        else: rg, off = sb // 2, (ks * 2 + sb % 2) * 1024
        off = f" offset:{off}" if off else ""
        st.vm(f"buffer_load_dwordx4 v[{r}:{r+3}], v{self.vxoff + rg}, s[{self.srd_x}:{self.srd_x+3}], s{self.s_xoff} offen{off}", ("X", q, sb))
    def wread(self, st, f, rd):
        q, nb = divmod(f, self.NB)
        tile, ks = divmod(q, self.KS)
        row = (32 * (ks >> 1) + 8 * (ks & 1) + 16 * rd) if self.T == 32 else (32 * ks + 16 * rd)
        base, off = self.frag_addr(tile % self.STAGES, row, nb)
        assert 0 <= off < 65536, off
        r = self.wreg(f) + 2 * rd
        st.ds(f"ds_read_b64_tr_b16 v[{r}:{r+1}], v{base} offset:{off}", ("R", f, rd))
    def slots(self):
        tot = self.KS * self.NB * self.SB
        bpos = (self.KS * self.NB - self.LA) * self.SB
        pos = [(bpos + 2 + (j * tot) // self.npieces + self.opt.get("dma_shift", 0)) % tot for j in range(self.npieces)]
        assert len(set(pos)) == len(pos)
        return bpos, pos
    def pro_tile(self, st, t, w=True, x=True):
        bpos, pos = self.slots()
        if w and t < self.STAGES - 1:
            self.set_woff(st, t)
            for j in range(self.npieces):
                if t < self.STAGES - 2 or pos[j] > bpos:
                    self.dma(st, t, j)
        if x and t < self.XT:
            self.set_xoff(st, t)
            for ks in range(self.KS):
                for sb in range(self.SB):
                    self.xload(st, t * self.KS + ks, sb)
    def prologue_first(self, st):
        n0 = self.opt.get("first", 1)
        for t in range(n0):
            for l in self.order_next(t): st.i(l)
            if self.opt.get("xfirst"):
                self.pro_tile(st, t, w=False); self.pro_tile(st, t, x=False)
            else: self.pro_tile(st, t)
    def prologue_reads(self, st):
        st.wait(vm=[("W", 0, j) for j in range(self.npieces)])
        st.i("s_barrier")
        if STAMP: st.i("s_memtime s[66:67]\n    s_waitcnt lgkmcnt(0)")
        for f in range(self.LA):
            for rd in range(2):
                self.wread(st, f, rd)
    def prologue_rest(self, st):
        for t in range(self.opt.get("first", 1), self.LOOK):
            for l in self.order_next(t): st.i(l)
            self.pro_tile(st, t)
    def body_cluster(self, it):
        st = Stream()
        KS, NB, SB, LA, CL = self.KS, self.NB, self.SB, self.LA, self.opt["CL"]
        prio = self.opt.get("prio", 1)
        now = self.opt.get("now")
        assert LA == self.NWR and NB % CL == 0 and LA % CL == 0
        bpos, pos = self.slots()
        for tt in range(self.UN):
            t = it * self.UN + tt
            pend = self.order_next(t + self.LOOK)
            for ks in range(KS):
                q = t * KS + ks
                for nb0 in range(0, NB, CL):
                    f0 = q * NB + nb0
                    m0 = (ks * NB + nb0) * SB; m1 = m0 + CL * SB
                    st.wait(vm=[("X", q, sb) for sb in range(SB)] if nb0 == 0 else None,
                            ds=[("R", f0 + i, rd) for i in range(CL) for rd in range(2)])
                    first = True
                    for nb in range(nb0, nb0 + CL):
                        for sb in range(SB):
                            w = self.wreg(q * NB + nb); x = self.xreg(q, sb); a = self.acc(nb, sb)
                            wv, xv = f"v[{w}:{w+3}]", f"v[{x}:{x+3}]"
                            if self.swap[nb]: st.i(f"{self.op} {a}, {xv}, {wv}, {a}")
                            else: st.i(f"{self.op} {a}, {wv}, {xv}, {a}")
                            if first and prio: st.i("s_setprio 1")
                            first = False
                    if prio: st.i("s_setprio 0")
                    if m0 == 0:
                        for l in pend: st.i(l)
                        self.set_xoff(st, t + self.XT)
                    dj = [j for j in range(self.npieces) if m0 <= pos[j] < m1 and not now]
                    early = [j for j in dj if pos[j] <= bpos]; late = [j for j in dj if pos[j] > bpos]
                    for j in early: self.dma(st, t + self.STAGES - 2, j)
                    if m0 <= bpos < m1:
                        assert m0 == bpos
                        if not now: st.wait(vm=[("W", t + 1, j) for j in range(self.npieces)])
                        st.i("s_barrier")
                        if not now: self.set_woff(st, t + self.STAGES - 1)
                    for j in late: self.dma_m0(st, t + self.STAGES - 1, j)
                    assert len(late) <= 1
                    for i in range(CL):
                        self.wread(st, f0 + i + LA, 0); self.wread(st, f0 + i + LA, 1)
                    for j in late: self.dma_ld(st, t + self.STAGES - 1, j)
                    if nb0 + CL == NB:
                        for sb in range(SB): self.xload(st, q + self.XT * KS, sb)
        return st
    def body(self, it):
        if self.opt.get("CL"): return self.body_cluster(it)
        st = Stream()
        KS, NB, SB, LA = self.KS, self.NB, self.SB, self.LA
        bpos, pos = self.slots()
        o = self.opt
        nomfma, noread, noload, nox, now, nobar = (o.get(k) for k in ("nomfma", "noread", "noload", "nox", "now", "nobar"))
        spread = LA < self.NWR and SB >= 2
        for tt in range(self.UN):
            t = it * self.UN + tt
            pend = self.order_next(t + self.LOOK)
            lim = max(1, min((NB - 1) * SB, bpos if bpos else 1))
            per = max(1, -(-len(pend) // lim))
            xset = False
            for ks in range(KS):
                q = t * KS + ks
                for nb in range(NB):
                    f = q * NB + nb
                    for sb in range(SB):
                        m = (ks * NB + nb) * SB + sb
                        vmw = [("X", q, sb)] if (nb == 0 and not noload and not nox) else None
                        dsw = None
                        if sb == 0 and not noread and f % self.WG == 0:
                            dsw = [("R", f + i, rd) for i in range(self.WG) for rd in range(2)]
                        if vmw or dsw: st.wait(vm=vmw, ds=dsw)
                        w = self.wreg(f); x = self.xreg(q, sb)
                        a = self.acc(nb, sb)
                        wv, xv = f"v[{w}:{w+3}]", f"v[{x}:{x+3}]"
                        dj = [j for j in range(self.npieces) if pos[j] == m and not now and not noload]
                        tgt = t + self.STAGES - 1 if m > bpos else t + self.STAGES - 2
                        for j in dj: self.dma_m0(st, tgt, j)
                        if not nomfma:
                            if self.swap[nb]: st.i(f"{self.op} {a}, {xv}, {wv}, {a}")
                            else: st.i(f"{self.op} {a}, {wv}, {xv}, {a}")
                        elif dj: st.i("s_nop 0")
                        for j in dj: self.dma_ld(st, tgt, j)
                        for l in pend[:per]: st.i(l)
                        pend = pend[per:]
                        if not pend and not xset:
                            self.set_xoff(st, t + self.XT); xset = True
                        if m == bpos:
                            assert not pend
                            if not noload and not now: st.wait(vm=[("W", t + 1, j) for j in range(self.npieces)])
                            if not nobar: st.i("s_barrier")
                            if not now: self.set_woff(st, t + self.STAGES - 1)
                        if not noread:
                            if spread:
                                if sb == 0: self.wread(st, f + LA, 0)
                                if sb == SB // 2: self.wread(st, f + LA, 1)
                            elif sb == SB - 1:
                                self.wread(st, f + LA, 0); self.wread(st, f + LA, 1)
                        if not noload and nb == NB - 1 and not nox:
                            assert xset
                            self.xload(st, q + self.XT * KS, sb)
        return st
    def emit(self, pro, loop_end=None):
        A = self.A
        nit = self.NT // self.UN
        pl, bl = resolve(pro, [self.body(it) for it in range(nit)])
        for l in pl: A.e(l)
        if STAMP:
            A.e("s_waitcnt lgkmcnt(0)"); stamp(A, 4); A.e("s_waitcnt lgkmcnt(0)")
        if nit > 1:
            A.e(f"s_mov_b32 s{self.s_it}, {nit}")
            A.e(".p2align 6")
            A.label(f"{self.name}_loop")
        for l in bl: A.e(l)
        if nit > 1:
            A.e(f"s_sub_u32 s{self.s_it}, s{self.s_it}, 1")
            if loop_end: loop_end()
            A.e(f"s_cmp_lg_u32 s{self.s_it}, 0")
            A.e(f"s_cbranch_scc1 {self.name}_loop")

def lane_consts_fullline(A, T, ldw, vtmp, vpiece_base, vfrag0):
    e = A.e
    t0, t1, t2 = vtmp, vtmp + 1, vtmp + 2
    e(f"v_and_b32 v{t0}, 63, v0")
    e(f"v_lshrrev_b32 v{t1}, 3, v{t0}")
    e(f"v_mul_u32_u24 v{vpiece_base}, {ldw}, v{t1}")
    e(f"v_and_b32 v{t2}, 7, v{t0}")
    if T == 32:
        e(f"v_and_b32 v{t1}, 2, v{t1}")
        e(f"v_lshlrev_b32 v{t1}, 1, v{t1}")
    else:
        e(f"v_and_b32 v{t1}, 6, v{t1}")
    e(f"v_xor_b32 v{t2}, v{t2}, v{t1}")
    e(f"v_lshl_add_u32 v{vpiece_base}, v{t2}, 4, v{vpiece_base}")
    if vfrag0 is None: return
    e(f"v_and_b32 v{t1}, 3, v{t0}")
    e(f"v_lshlrev_b32 v{vfrag0}, 3, v{t1}")
    if T == 32:
        e(f"v_lshrrev_b32 v{t1}, 5, v{t0}")
        e(f"v_lshl_add_u32 v{vfrag0}, v{t1}, 9, v{vfrag0}")
        e(f"v_bfe_u32 v{t1}, v{t0}, 2, 2")
        e(f"v_lshl_add_u32 v{vfrag0}, v{t1}, 7, v{vfrag0}")
        e(f"v_bfe_u32 v{t1}, v{t0}, 3, 1")
        e(f"v_lshl_add_u32 v{vfrag0}, v{t1}, 6, v{vfrag0}")
        e(f"v_bfe_u32 v{t1}, v{t0}, 4, 1")
        e(f"v_lshl_add_u32 v{vfrag0}, v{t1}, 5, v{vfrag0}")
        e(f"v_xor_b32 v{vfrag0+1}, 64, v{vfrag0}")
    else:
        e(f"v_lshrrev_b32 v{t1}, 2, v{t0}")
        e(f"v_lshl_add_u32 v{vfrag0}, v{t1}, 7, v{vfrag0}")
        e(f"v_bfe_u32 v{t1}, v{t0}, 3, 2")
        e(f"v_lshl_add_u32 v{vfrag0}, v{t1}, 5, v{vfrag0}")
        for i in range(1, 4):
            e(f"v_xor_b32 v{vfrag0+i}, {32*i}, v{vfrag0}")

def fullline_frag_addr(T, VF, BK, nbase):
    per = 64 // T
    def fa(stg, row, nb):
        cg, lo = divmod(nb, per)
        ro, so = nbase(stg)
        return (VF + ro + lo, so + cg * BK * 128 + row * 128)
    return fa

def blk_acc(T, pre, base, RG):
    def acc(nb, sb):
        if T == 32:
            r = base + (nb * RG + sb) * 16
            return f"{pre}[{r}:{r+15}]"
        r = base + ((nb // 2) * RG + sb // 2) * 16 + (sb % 2) * 8 + (nb % 2) * 4
        return f"{pre}[{r}:{r+3}]"
    return acc

def stats_finish(o, vs, vt, vmean_neg, vrstd):
    e = o
    for st in (8, 4, 2, 1):
        for i in range(st):
            e(f"v_add_f32 v{vs+i}, v{vs+i}, v{vs+i+st}")
    e(f"v_mov_b32 v{vt}, v{vs}")
    e("s_nop 1")
    e(f"v_permlane32_swap_b32 v{vs}, v{vt}")
    e("s_nop 1")
    e(f"v_mul_f32 v{vmean_neg}, {f2u(-1.0/D):#x}, v{vs}")
    e(f"v_mul_f32 v{vt}, {f2u(1.0/D):#x}, v{vt}")
    e(f"v_fma_f32 v{vt}, -v{vmean_neg}, v{vmean_neg}, v{vt}")
    e(f"v_max_f32 v{vt}, 0, v{vt}")
    e(f"v_add_f32 v{vt}, {f2u(1e-5):#x}, v{vt}")
    e(f"v_rsq_f32 v{vrstd}, v{vt}")
    e("s_nop 0")

def split16(o, v, v2):
    o(f"v_mov_b32 v{v2}, v{v}")
    o("s_nop 1")
    o(f"v_permlane16_swap_b32 v{v}, v{v2}")
    o("s_nop 1")

def stats_emit(A, T, packed, vt):
    e = A.e
    one = vt + 4
    e(f"v_mov_b32 v{one}, 0x3f803f80")
    for i in range(4): e(f"v_mov_b32 v{vt+i}, 0")
    for i, r in enumerate(packed):
        s = vt + 2 * ((i // 4) % 2)
        e(f"v_dot2_f32_bf16 v{s}, v{r}, v{one}, v{s}")
        e(f"v_dot2_f32_bf16 v{s+1}, v{r}, v{r}, v{s+1}")
    e("s_nop 3")
    e(f"v_permlane32_swap_b32 v{vt}, v{vt+1}")
    e(f"v_permlane32_swap_b32 v{vt+2}, v{vt+3}")
    e("s_nop 1")
    e(f"v_add_f32 v{vt}, v{vt}, v{vt+1}")
    e(f"v_add_f32 v{vt+2}, v{vt+2}, v{vt+3}")
    if T == 16:
        e("s_nop 1")
        e(f"v_permlane16_swap_b32 v{vt}, v{vt+2}")
        e("s_nop 1")
    e(f"v_add_f32 v{vt}, v{vt}, v{vt+2}")

def kernel_head(A, name, nwg):
    A.begin_kernel(name)
    A.e(f"s_cmp_ge_u32 s2, {nwg}")
    A.e(f"s_cbranch_scc1 {name}_end")
    stamp_real(A, 0); stamp(A, 1)

def kernel_tail(A, name, vgpr, accum=None):
    stamp(A, 6)
    stamp_out(A, name, 9)
    A.label(f"{name}_end")
    A.e("s_endpgm")
    A.add_desc(name, vgpr, 100, accum if accum else (vgpr + 3) // 4 * 4)

def rowmajor_lane_off(A, v, t):
    e = A.e
    e(f"v_and_b32 v{v}, 15, v0"); e(f"v_lshlrev_b32 v{v}, 11, v{v}")
    e(f"v_bfe_u32 v{t}, v0, 5, 1"); e(f"v_lshl_add_u32 v{v}, v{t}, 4, v{v}")
    e(f"v_bfe_u32 v{t}, v0, 4, 1"); e(f"v_lshl_add_u32 v{v}, v{t}, 5, v{v}")

def rowmajor_frag(i, s_lo, s_hi):
    return (s_hi if i % 2 else s_lo), (i // 2) * 64

def k_proj(A, name, K, ws_a, ka_w, final, opt=None):
    e = A.e
    opt = opt or {}
    T = 16
    BK, STAGES, XT, NWR, LA = 64, opt.get("STAGES", 4), opt.get("XT", 2), opt.get("NWR", 8), opt.get("LA", 4)
    ldw = D * 2
    kernel_head(A, name, opt.get("nwg", 256))
    e(f"s_load_dwordx2 s[4:5], s[0:1], {ka_w}")
    e(f"s_load_dwordx2 s[6:7], s[0:1], {KA['ws']}")
    if final: e(f"s_load_dwordx2 s[28:29], s[0:1], {KA['out']}")
    VP, VF, VXO, VT = 1, 3, 7, 8
    ACC, RES, WF = 16, 48, 64
    XF = WF + 4 * NWR
    NV = XF + XT * 16
    e(f"v_lshrrev_b32 v{VT+3}, 6, v0")
    lane_consts_fullline(A, T, ldw, VT, VP, VF)
    e(f"v_readfirstlane_b32 s30, v{VT+3}")
    e(f"v_lshlrev_b32 v{VXO}, 4, v{VT}")
    e("s_and_b32 s31, s2, 7"); e("s_lshr_b32 s32, s2, 3")
    e("s_lshr_b32 s33, s31, 1"); e("s_lshl_b32 s33, s33, 2"); e("s_lshr_b32 s34, s32, 3"); e("s_add_u32 s33, s33, s34")
    e("s_and_b32 s34, s31, 1"); e("s_lshl_b32 s34, s34, 3"); e("s_and_b32 s35, s32, 7"); e("s_add_u32 s34, s34, s35")
    e("s_lshl_b32 s35, s33, 2"); e("s_add_u32 s35, s35, s30")
    e(f"s_mul_i32 s36, s30, {8*ldw}"); e("s_lshl_b32 s37, s34, 7"); e("s_add_u32 s36, s36, s37")
    e(f"v_add_u32 v{VP}, s36, v{VP}")
    e(f"v_add_u32 v{VP+1}, {4*8*ldw}, v{VP}")
    e("s_lshl_b32 s40, s30, 10")
    e(f"s_mul_i32 s36, s35, {K*64}"); e(f"s_add_u32 s36, s36, {ws_a}")
    e(f"s_lshl_b32 s37, s35, 16"); e("s_lshl_b32 s38, s34, 12"); e("s_add_u32 s37, s37, s38")
    G = Gemm(A, name, T=T, NB=4, RG=1, K=K, STAGES=STAGES, XT=XT, NWR=NWR, LA=LA, WG=opt.get("WG", 2), npieces=2, stage_bytes=BK * 128,
             piece_lds=lambda j: j * 4096,
             frag_addr=fullline_frag_addr(T, VF, BK, lambda stg: (0, stg * BK * 128)),
             acc=blk_acc(T, "v", ACC, 1), wfrag0=WF, xfrag0=XF, vpiece0=VP, vxoff=VXO,
             srd_w=8, srd_x=12, s_woff=41, s_xoff=42, s_ldsw=40, s_it=43, ldw=ldw, opt=opt)
    e("s_add_u32 s44, s33, s34"); e("s_and_b32 s44, s44, 3")
    G.order_init(44)
    e(f"s_mov_b32 s10, {K * ldw}"); e("s_mov_b32 s11, 0x00020000")
    e(f"s_mov_b32 s14, {K * 64}"); e("s_mov_b32 s15, 0x00020000")
    e("s_mov_b32 s22, 4096"); e("s_mov_b32 s23, 0x00020000")
    e("s_waitcnt lgkmcnt(0)")
    e("s_mov_b32 s8, s4"); e("s_mov_b32 s9, s5")
    e("s_add_u32 s12, s6, s36"); e("s_addc_u32 s13, s7, 0")
    e("s_add_u32 s20, s6, s37"); e("s_addc_u32 s21, s7, 0")
    stamp(A, 2)
    p = Stream()
    for i in range(4):
        p.vm(f"buffer_load_dwordx4 v[{RES+4*i}:{RES+4*i+3}], v{VXO}, s[20:23], 0 offen offset:{i*1024}", ("RES", i))
    G.prologue_first(p)
    p.wait(vm=[("RES", 3)])
    for i in range(16):
        p.i(f"v_lshlrev_b32 v{ACC+2*i}, 16, v{RES+i}")
        p.i(f"v_and_b32 v{ACC+2*i+1}, 0xffff0000, v{RES+i}")
    G.prologue_reads(p)
    G.prologue_rest(p)
    G.emit(p)
    stamp(A, 5)
    st = opt.get("st", "")
    if not final:
        e("s_lshl_b32 s36, s35, 12"); e("s_lshr_b32 s37, s34, 2"); e("s_lshl_b32 s37, s37, 10"); e("s_add_u32 s36, s36, s37")
        e("s_and_b32 s37, s34, 3"); e("s_lshl_b32 s37, s37, 2"); e("s_add_u32 s36, s36, s37")
        srd_off(A, 24, "s6", "s7", WS_ST, 64 * 4096)
        for i in range(16):
            e(f"v_cvt_pk_bf16_f32 v{RES+i}, v{ACC+2*i}, v{ACC+2*i+1}")
            if i % 4 == 3:
                e(f"buffer_store_dwordx4 v[{RES+i-3}:{RES+i}], v{VXO}, s[20:23], 0 offen offset:{(i//4)*1024}{st}")
        stats_emit(A, T, [RES + i for i in range(16)], VT)
        e(f"buffer_store_dword v{VT}, v{VXO}, s[24:27], s36 offen")
    else:
        srd(A, 24, "s28", "s29", S * D * 2)
        rowmajor_lane_off(A, VT, VT + 1)
        e("s_lshl_b32 s36, s35, 16"); e("s_lshl_b32 s37, s34, 7"); e("s_add_u32 s36, s36, s37")
        e(f"s_add_u32 s37, s36, {16*2048}")
        for i in range(16):
            e(f"v_cvt_pk_bf16_f32 v{RES+i}, v{ACC+2*i}, v{ACC+2*i+1}")
        e("s_nop 0")
        for i in range(4):
            e(f"v_permlane16_swap_b32 v{RES+4*i}, v{RES+4*i+2}")
            e(f"v_permlane16_swap_b32 v{RES+4*i+1}, v{RES+4*i+3}")
        e("s_nop 1")
        for i in range(4):
            so, off = rowmajor_frag(i, "s36", "s37")
            e(f"buffer_store_dwordx4 v[{RES+4*i}:{RES+4*i+3}], v{VT}, s[24:27], {so} offen offset:{off}{st}")
    kernel_tail(A, name, NV)
    return dict(name=name, grid=opt.get("nwg", 256), block=256, lds=STAGES * BK * 128)

def k_ffn(A, name, opt=None):
    e = A.e
    opt = dict(opt or {}); opt.setdefault("skew", 0)
    T, NW = 16, 8
    BK, STAGES, XT, NWR, LA = 64, opt.get("STAGES", 4), opt.get("XT", 1), opt.get("NWR", 8), opt.get("LA", 7)
    ldw = F * 2
    NP = 4
    GU = 16384
    SBY = 2 * GU
    kernel_head(A, name, opt.get("nwg", 256))
    e(f"s_load_dwordx4 s[4:7], s[0:1], {KA['wg']}")
    e(f"s_load_dwordx2 s[28:29], s[0:1], {KA['ws']}")
    VP, VF, VXO, VMN, VRS, VT = 1, 5, 7, 8, 10, 12
    WF = 20; XF = WF + 4 * NWR
    ACC = XF + XT * 16
    SC = ACC + 112; CSR = SC + 16
    NV = CSR + 14
    e(f"v_lshrrev_b32 v{VT+3}, 6, v0")
    e(f"v_and_b32 v{VT}, 63, v0")
    e(f"v_readfirstlane_b32 s30, v{VT+3}")
    e("s_and_b32 s31, s2, 7"); e("s_lshr_b32 s32, s2, 3")
    e("s_and_b32 s33, s31, 1"); e("s_lshl_b32 s33, s33, 2"); e("s_lshr_b32 s34, s32, 3"); e("s_add_u32 s33, s33, s34")
    e("s_lshr_b32 s34, s31, 1"); e("s_lshl_b32 s34, s34, 3"); e("s_and_b32 s35, s32, 7"); e("s_add_u32 s34, s34, s35")
    e("s_lshl_b32 s35, s33, 3"); e("s_add_u32 s35, s35, s30")
    e("s_lshr_b32 s37, s30, 2")
    e("s_lshl_b32 s40, s30, 12")
    e("s_and_b32 s38, s30, 3"); e("s_lshl_b32 s38, s38, 8")
    e(f"s_mul_i32 s39, s34, 224")
    e("s_and_b32 s45, s34, 1"); e("s_lshl_b32 s46, s45, 1")
    e("s_movk_i32 s47, 4682")
    for j in range(NP):
        u, r, c = VT + 1, VT + 2, VT + 3
        e(f"v_add_u32 v{u}, s38, v{VT}")
        if j: e(f"v_add_u32 v{u}, {64*j}, v{u}")
        e(f"v_mul_u32_u24 v{r}, s47, v{u}"); e(f"v_lshrrev_b32 v{r}, 16, v{r}")
        e(f"v_mul_u32_u24 v{c}, 14, v{r}"); e(f"v_sub_u32 v{c}, v{u}, v{c}")
        e(f"v_add_u32 v{c}, s46, v{c}")
        e(f"v_subrev_u32 v{u}, 14, v{c}"); e(f"v_min_u32 v{c}, v{c}, v{u}")
        e(f"v_mul_u32_u24 v{VP+j}, {ldw}, v{r}")
        e(f"v_lshl_add_u32 v{VP+j}, v{c}, 4, v{VP+j}")
        e(f"v_add_u32 v{VP+j}, s39, v{VP+j}")
        if j >= 2:
            e(f"v_lshrrev_b32 v{r}, 6, v{r}"); e(f"v_lshl_add_u32 v{VP+j}, v{r}, 28, v{VP+j}")
    e(f"v_lshlrev_b32 v{VXO}, 4, v{VT}")
    G = Gemm(A, name, T=T, NB=14, RG=1, K=D, STAGES=STAGES, XT=XT, NWR=NWR, LA=LA, WG=opt.get("WG", 2), npieces=NP, stage_bytes=SBY,
             piece_lds=lambda j: j * 1024,
             frag_addr=lambda stg, row, nb: (VF + stg // 2, (stg % 2) * SBY + (nb % 2) * GU + row * 224 + 32 * (nb // 2)),
             acc=blk_acc(T, "v", ACC, 1), wfrag0=WF, xfrag0=XF, vpiece0=VP, vxoff=VXO,
             srd_w=8, srd_x=12, s_woff=41, s_xoff=42, s_ldsw=40, s_it=43, ldw=ldw, opt=opt)
    e("s_add_u32 s44, s33, s34"); e("s_and_b32 s44, s44, 3")
    G.order_init(44)
    e("s_lshl_b32 s36, s35, 16")
    e(f"s_mov_b32 s10, {D*ldw}"); e("s_mov_b32 s11, 0x00020000")
    e(f"s_mov_b32 s14, {D*64}"); e("s_mov_b32 s15, 0x00020000")
    e("s_cmp_eq_u32 s37, 0")
    e("s_waitcnt lgkmcnt(0)")
    e("s_cselect_b32 s8, s4, s6"); e("s_cselect_b32 s9, s5, s7")
    e("s_add_u32 s12, s28, s36"); e("s_addc_u32 s13, s29, 0")
    stamp(A, 2)
    p = Stream()
    G.prologue_first(p)
    o = p.i
    o(f"v_and_b32 v{VT+1}, 3, v{VT}"); o(f"v_lshlrev_b32 v{VF}, 3, v{VT+1}")
    o(f"v_lshrrev_b32 v{VT+1}, 2, v{VT}"); o(f"v_mul_u32_u24 v{VT+1}, 224, v{VT+1}"); o(f"v_add_u32 v{VF}, v{VF}, v{VT+1}")
    o(f"v_add_u32 v{VF+1}, {2*SBY}, v{VF}")
    o(f"v_and_b32 v{VT+1}, 15, v{VT}"); o(f"v_bfe_u32 v{VT+2}, v{VT}, 4, 1"); o(f"v_mul_u32_u24 v{VT+2}, {F}, v{VT+2}")
    o(f"v_add_lshl_u32 v{VT+1}, v{VT+1}, v{VT+2}, 4")
    o(f"v_lshrrev_b32 v{VT+2}, 5, v{VT}"); o(f"v_lshl_add_u32 v{VT+1}, v{VT+2}, 3, v{VT+1}")
    o("s_lshl_b32 s38, s35, 12"); o(f"s_add_u32 s38, s38, {WS_ST}")
    o(f"s_mul_i32 s39, s34, {112*16}"); o(f"s_add_u32 s39, s39, {WS_CS + 3072*16}")
    o("s_add_u32 s20, s28, s38"); o("s_addc_u32 s21, s29, 0"); o("s_movk_i32 s22, 4096"); o("s_mov_b32 s23, 0x00020000")
    o("s_add_u32 s24, s28, s39"); o("s_addc_u32 s25, s29, 0"); o(f"s_mov_b32 s26, {(F+112)*16}"); o("s_mov_b32 s27, 0x00020000")
    o("s_lshl_b32 s48, s45, 8")
    o("s_mul_i32 s49, s45, 1536"); o("s_sub_u32 s49, 1536, s49")
    nit = G.NT // G.UN
    o(f"s_sub_u32 s51, {nit - 1}, s37")
    for i in range(112): o(f"v_mov_b32 v{ACC+i}, 0")
    G.prologue_reads(p)
    G.prologue_rest(p)
    for i in range(4):
        p.vm(f"buffer_load_dwordx4 v[{SC+4*i}:{SC+4*i+3}], v{VXO}, s[20:23], 0 offen offset:{i*1024}", ("ST", i))
    for j in range(7):
        so, off = ("s48", j * 256) if j < 6 else ("s49", 0)
        p.vm(f"buffer_load_dwordx2 v[{CSR+2*j}:{CSR+2*j+1}], v{VT+1}, s[24:27], {so} offen offset:{off}", ("CS", j))
    def fix():
        e(f"s_cmp_lg_u32 s43, s51")
        e(f"s_cbranch_scc1 {name}_nofix")
        stats_finish(e, SC, VT + 4, VMN, VRS)
        for j in range(7): e(f"v_add_f32 v{CSR+2*j}, v{CSR+2*j}, v{CSR+2*j+1}")
        for j in range(7): e(f"v_mov_b32 v{CSR+2*j+1}, v{CSR+2*j}")
        split16(e, VRS, VRS + 1)
        for j in range(7): e(f"v_permlane32_swap_b32 v{CSR+2*j}, v{CSR+2*j+1}")
        split16(e, VMN, VT + 4)
        for j in range(7): e(f"v_add_f32 v{CSR+2*j}, v{CSR+2*j}, v{CSR+2*j+1}")
        e(f"v_permlane32_swap_b32 v{VMN}, v{VT+4}"); e("s_nop 1")
        for j in range(7):
            r = ACC + j * 16
            e(f"v_mfma_f32_16x16x1_4b_f32 v[{r}:{r+15}], v{CSR+2*j}, v{VMN}, v[{r}:{r+15}]")
        A.label(f"{name}_nofix")
    G.emit(p, loop_end=fix)
    stamp(A, 5)
    C1, C2 = SC, SC + 4
    for k in range(2):
        e(f"v_mul_f32 v{C1+2*k}, {NLOG2E:#x}, v{VRS+k}")
        e(f"v_mul_f32 v{C2+2*k}, v{VRS+k}, v{VRS+k}")
    e(f"s_mul_i32 s36, s35, {F*64}"); e(f"s_add_u32 s36, s36, {WS_H}")
    srd_off(A, 20, "s28", "s29", "s36", F * 64)
    e("s_mul_i32 s38, s34, 7"); e("s_add_u32 s38, s38, s45"); e("s_lshl_b32 s38, s38, 10")
    e("s_mul_i32 s39, s45, 8184"); e("s_add_u32 s46, s38, 6144"); e("s_sub_u32 s39, s46, s39")
    e("s_add_u32 s46, s38, 4096")
    TB = SC + 8
    OB = CSR + (CSR % 2)
    st = opt.get("st", "")
    def silu(blocks, k, out):
        for b, r in enumerate(blocks):
            for i in (0, 2): e(f"v_pk_mul_f32 v[{TB+4*b+i}:{TB+4*b+i+1}], v[{r+i}:{r+i+1}], v[{C1+2*k}:{C1+2*k+1}] op_sel_hi:[1,0]")
        for b, r in enumerate(blocks):
            for i in (0, 2): e(f"v_pk_mul_f32 v[{r+i}:{r+i+1}], v[{r+i}:{r+i+1}], v[{r+4+i}:{r+5+i}]")
        for i in range(4 * len(blocks)): e(f"v_exp_f32 v{TB+i}, v{TB+i}")
        for b, r in enumerate(blocks):
            for i in (0, 2): e(f"v_pk_mul_f32 v[{r+i}:{r+i+1}], v[{r+i}:{r+i+1}], v[{C2+2*k}:{C2+2*k+1}] op_sel_hi:[1,0]")
        for i in range(0, 4 * len(blocks), 2): e(f"v_pk_add_f32 v[{TB+i}:{TB+i+1}], v[{TB+i}:{TB+i+1}], 1.0 op_sel_hi:[1,0]")
        for i in range(4 * len(blocks)): e(f"v_rcp_f32 v{TB+i}, v{TB+i}")
        e("s_nop 0")
        for b, r in enumerate(blocks):
            for i in (0, 2): e(f"v_pk_mul_f32 v[{r+i}:{r+i+1}], v[{r+i}:{r+i+1}], v[{TB+4*b+i}:{TB+4*b+i+1}]")
        for b, r in enumerate(blocks):
            for i in (0, 2): e(f"v_cvt_pk_bf16_f32 v{out+2*b+i//2}, v{r+i}, v{r+i+1}")
    cnt = 0
    for pj in range(4):
        for sb in range(2):
            ob = OB + 4 * (cnt % 3); cnt += 1
            silu([ACC + (2 * pj + jj) * 16 + 8 * sb for jj in range(2 if pj < 3 else 1)], sb, ob)
            if pj < 3:
                so, off = ("s38", pj * 2048 + sb * 1024) if pj < 2 else ("s46", sb * 1024)
                e(f"buffer_store_dwordx4 v[{ob}:{ob+3}], v{VXO}, s[20:23], {so} offen offset:{off}{st}")
            else:
                e(f"buffer_store_dwordx2 v[{ob}:{ob+1}], v{VXO}, s[20:23], s39 offen offset:{sb*1024}{st}")
    kernel_tail(A, name, NV)
    return dict(name=name, grid=opt.get("nwg", 256), block=NW * 64, lds=STAGES * SBY)

def k_qkv(A, name, opt=None):
    e = A.e
    opt = dict(opt or {})
    T = 32
    BK, STAGES, XT, NWR, LA = 64, opt.get("STAGES", 4), opt.get("XT", 2), opt.get("NWR", 6), opt.get("LA", 6)
    ldw = 3 * D * 2
    SBY = 3 * BK * 128
    NP = 6
    kernel_head(A, name, 256)
    e(f"s_load_dwordx2 s[4:5], s[0:1], {KA['wqkv']}")
    e(f"s_load_dwordx2 s[28:29], s[0:1], {KA['ws']}")
    VP, VF, VXO, VL16, VMN, VRS, VT = 1, 7, 11, 12, 13, 14, 16
    ACC = 32; WF = ACC + 96; XF = WF + 4 * NWR; SC = XF + max(XT * 16, 48)
    CSR = SC + 16; RR = CSR + 12
    NV = RR + 16
    e(f"v_lshrrev_b32 v{VT+3}, 6, v0")
    lane_consts_fullline(A, T, ldw, VT, VP, VF)
    e(f"v_readfirstlane_b32 s30, v{VT+3}")
    e(f"v_lshlrev_b32 v{VL16}, 4, v{VT}")
    e(f"v_and_b32 v{VT+1}, 15, v{VT}"); e(f"v_lshlrev_b32 v{VXO}, 4, v{VT+1}")
    e(f"v_lshrrev_b32 v{VT+2}, 5, v{VT}"); e(f"v_lshl_add_u32 v{VXO}, v{VT+2}, 8, v{VXO}")
    e(f"v_bfe_u32 v{VT+1}, v{VT}, 4, 1"); e(f"v_lshl_add_u32 v{VXO}, v{VT+1}, 10, v{VXO}")
    e(f"v_and_b32 v{VT+1}, 31, v{VT}"); e(f"v_lshlrev_b32 v{VT+1}, 4, v{VT+1}"); e(f"v_lshl_add_u32 v{VT+1}, v{VT+2}, 3, v{VT+1}")
    e("s_and_b32 s31, s2, 7"); e("s_lshr_b32 s32, s2, 3")
    e("s_and_b32 s33, s31, 1"); e("s_lshl_b32 s33, s33, 3"); e("s_lshr_b32 s34, s32, 2"); e("s_add_u32 s33, s33, s34")
    e("s_lshr_b32 s34, s31, 1"); e("s_lshl_b32 s34, s34, 2"); e("s_and_b32 s35, s32, 3"); e("s_add_u32 s34, s34, s35")
    e("s_lshl_b32 s35, s33, 2"); e("s_add_u32 s35, s35, s30")
    e(f"s_mul_i32 s36, s30, {8*ldw}"); e("s_lshl_b32 s37, s34, 7"); e("s_add_u32 s36, s36, s37")
    e(f"v_add_u32 v{VP}, s36, v{VP}")
    for j in range(1, NP):
        e(f"v_add_u32 v{VP+j}, {(j >> 1) * 2048 + (j & 1) * 32 * ldw}, v{VP}")
    e("s_lshl_b32 s40, s30, 10")
    G = Gemm(A, name, T=T, NB=6, RG=1, K=D, STAGES=STAGES, XT=XT, NWR=NWR, LA=LA, WG=opt.get("WG", 2), npieces=NP, stage_bytes=SBY,
             piece_lds=lambda j: (j >> 1) * BK * 128 + (j & 1) * 4096,
             frag_addr=fullline_frag_addr(T, VF, BK, lambda stg: (2 * (stg // 2), (stg % 2) * SBY)),
             acc=blk_acc(T, "v", ACC, 1), wfrag0=WF, xfrag0=XF, vpiece0=VP, vxoff=VXO,
             srd_w=8, srd_x=12, s_woff=41, s_xoff=42, s_ldsw=40, s_it=43, ldw=ldw,
             swap=[nb >= 2 for nb in range(6)], opt=opt)
    e("s_add_u32 s44, s33, s34"); e("s_and_b32 s44, s44, 3")
    G.order_init(44)
    e("s_lshl_b32 s36, s35, 16")
    e("s_lshl_b32 s38, s35, 12"); e(f"s_add_u32 s38, s38, {WS_ST}")
    e("s_lshl_b32 s39, s34, 10"); e(f"s_add_u32 s39, s39, {WS_CS}")
    e("s_movk_i32 s45, 16384"); e("s_mov_b32 s46, 32768")
    e(f"s_mov_b32 s10, {D*ldw}"); e("s_mov_b32 s11, 0x00020000")
    e(f"s_mov_b32 s14, {D*64}"); e("s_mov_b32 s15, 0x00020000")
    e("s_movk_i32 s22, 4096"); e("s_mov_b32 s23, 0x00020000")
    e(f"s_mov_b32 s26, {32768+1024}"); e("s_mov_b32 s27, 0x00020000")
    e("s_waitcnt lgkmcnt(0)")
    e("s_add_u32 s20, s28, s38"); e("s_addc_u32 s21, s29, 0")
    e("s_add_u32 s24, s28, s39"); e("s_addc_u32 s25, s29, 0")
    e("s_mov_b32 s8, s4"); e("s_mov_b32 s9, s5")
    e("s_add_u32 s12, s28, s36"); e("s_addc_u32 s13, s29, 0")
    stamp(A, 2)
    p = Stream()
    for i in range(4):
        p.vm(f"buffer_load_dwordx4 v[{SC+4*i}:{SC+4*i+3}], v{VL16}, s[20:23], 0 offen offset:{i*1024}", ("ST", i))
    for b in range(6):
        so = ("0", "s45", "s46")[b // 2]
        p.vm(f"buffer_load_dwordx2 v[{CSR+2*b}:{CSR+2*b+1}], v{VT+1}, s[24:27], {so} offen offset:{(b % 2) * 512}", ("CS", b))
    G.prologue_first(p)
    for i in range(2): p.i(f"v_add_u32 v{VF+2+i}, {2*SBY}, v{VF+i}")
    p.i(f"v_mov_b32 v{VT+5}, 0.5")
    p.wait(vm=[("ST", 3)])
    stats_finish(p.i, SC, VT + 4, VMN, VRS)
    p.wait(vm=[("CS", 5)])
    for b in range(6): p.i(f"v_add_f32 v{CSR+2*b}, v{CSR+2*b}, v{CSR+2*b+1}")
    p.i("s_nop 0")
    for b in range(6):
        r = ACC + 16 * b
        if b < 2: p.i(f"v_mfma_f32_32x32x2_f32 v[{r}:{r+15}], v{CSR+2*b}, v{VMN}, 0")
        else: p.i(f"v_mfma_f32_32x32x2_f32 v[{r}:{r+15}], v{VMN}, v{CSR+2*b}, 0")
    p.i(f"v_mfma_f32_32x32x2_f32 v[{RR}:{RR+15}], v{VRS}, v{VT+5}, 0")
    G.prologue_reads(p)
    G.prologue_rest(p)
    KL = SC; QL = VRS + 1
    p.i(f"v_mul_f32 v{QL}, {LOG2E:#x}, v{VRS}")
    for i in range(16): p.i(f"v_mul_f32 v{KL+i}, {LOG2E:#x}, v{RR+i}")
    G.emit(p)
    stamp(A, 5)
    e(f"s_mov_b32 s47, {f2u(1e-6):#x}")
    e(f"s_lshl_b32 s36, s35, 16"); e("s_lshl_b32 s37, s34, 12"); e("s_add_u32 s36, s36, s37"); e(f"s_add_u32 s36, s36, {WS_PQ}")
    e("s_add_u32 s20, s28, s36"); e("s_addc_u32 s21, s29, 0")
    e("s_lshl_b32 s37, s34, 4"); e("s_add_u32 s37, s37, s33")
    e("s_lshl_b32 s38, s37, 13"); e("s_lshl_b32 s36, s30, 11"); e("s_add_u32 s38, s38, s36"); e(f"s_add_u32 s38, s38, {WS_KV}")
    e("s_add_u32 s24, s28, s38"); e("s_addc_u32 s25, s29, 0"); e("s_movk_i32 s26, 2048")
    e("s_lshl_b32 s38, s37, 8"); e(f"s_add_u32 s38, s38, {WS_Z}")
    srd_off(A, 16, "s28", "s29", "s38", 256)
    e("s_waitcnt vmcnt(0) lgkmcnt(0)")
    e("s_barrier")
    TB = VT
    def phi(regs, rs, rl, outs):
        n = len(regs)
        for i in range(n): e(f"v_mul_f32 v{TB+i}, v{regs[i]}, v{rl[i]}")
        for i in range(n): e(f"v_exp_f32 v{TB+i}, v{TB+i} clamp")
        for i in range(n): e(f"v_max_f32 v{regs[i]}, 0, v{regs[i]}")
        for i in range(0, n, 2): e(f"v_pk_add_f32 v[{TB+i}:{TB+i+1}], v[{TB+i}:{TB+i+1}], s[46:47] op_sel:[0,1]")
        for i in range(n): e(f"v_fma_f32 v{regs[i]}, v{regs[i]}, v{rs[i]}, v{TB+i}")
        for i in range(0, n, 2): e(f"v_cvt_pk_bf16_f32 v{outs[i//2]}, v{regs[i]}, v{regs[i+1]}")
    PK = WF; VV = XF; ONE = XF + 16; OB = XF + 24
    for i in range(4): e(f"v_mov_b32 v{ONE+i}, 0x3f803f80")
    KVR = ACC + 32; ZR = ACC + 64
    for hh in range(2):
        r = ACC + (2 + hh) * 16
        phi([r + i for i in range(16)], [RR + i for i in range(16)], [KL + i for i in range(16)], [PK + hh * 8 + i for i in range(8)])
        r = ACC + (4 + hh) * 16
        for i in range(0, 16, 2):
            e(f"v_pk_mul_f32 v[{r+i}:{r+i+1}], v[{r+i}:{r+i+1}], v[{RR+i}:{RR+i+1}]")
        for i in range(0, 16, 2):
            e(f"v_cvt_pk_bf16_f32 v{VV+hh*8+i//2}, v{r+i}, v{r+i+1}")
        e("s_nop 1")
        for ks in range(2):
            a = PK + hh * 8 + 4 * ks; b = VV + hh * 8 + 4 * ks
            r = KVR + hh * 16
            e(f"v_mfma_f32_32x32x16_bf16 v[{r}:{r+15}], v[{a}:{a+3}], v[{b}:{b+3}], {'0' if ks == 0 else f'v[{r}:{r+15}]'}")
        for ks in range(2):
            a = PK + hh * 8 + 4 * ks
            r = ZR + hh * 16
            e(f"v_mfma_f32_32x32x16_bf16 v[{r}:{r+15}], v[{ONE}:{ONE+3}], v[{a}:{a+3}], {'0' if ks == 0 else f'v[{r}:{r+15}]'}")
    e(f"v_and_b32 v{VP}, 0x3ff, v{VXO}"); e(f"v_lshrrev_b32 v{VP+1}, 10, v{VXO}"); e(f"v_lshl_add_u32 v{VP}, v{VP+1}, 13, v{VP}")
    e(f"v_add_u32 v{VP}, s40, v{VP}")
    e(f"v_lshrrev_b32 v{VP+2}, 2, v{VL16}"); e("s_lshl_b32 s36, s30, 8"); e(f"v_add_u32 v{VP+3}, s36, v{VP+2}")
    e("s_lshl_b32 s36, s30, 13"); e(f"v_add_u32 v{VP+1}, s36, v{VL16}")
    def q_part(hh):
        r = ACC + hh * 16
        ob = OB + hh * 8
        outs = [ob + 0, ob + 1, ob + 4, ob + 5, ob + 2, ob + 3, ob + 6, ob + 7]
        phi([r + i for i in range(16)], [VRS] * 16, [QL] * 16, outs)
        for k in range(2):
            e(f"buffer_store_dwordx4 v[{ob+4*k}:{ob+4*k+3}], v{VXO}, s[20:23], 0 offen offset:{hh*2048 + k*512}")
    q_part(0)
    for hh in range(2):
        for rq in range(4):
            r = KVR + hh * 16 + 4 * rq
            e(f"ds_write_b128 v{VP}, v[{r}:{r+3}] offset:{hh*16384 + (rq >> 1)*4096 + (rq & 1)*512}")
    e(f"v_permlane32_swap_b32 v{ZR}, v{ZR+16}")
    e("s_nop 1")
    e(f"ds_write_b32 v{VP+3}, v{ZR} offset:32768")
    e("s_waitcnt lgkmcnt(0)")
    e("s_barrier")
    RB = KVR
    for k in range(8):
        e(f"ds_read_b128 v[{RB+4*k}:{RB+4*k+3}], v{VP+1} offset:{k*1024}")
    for k in range(4):
        e(f"ds_read_b32 v{ZR+k}, v{VP+2} offset:{32768 + k*256}")
    q_part(1)
    e("s_waitcnt lgkmcnt(0)")
    for k in range(2):
        r = RB + 16 * k
        for i in (0, 2):
            e(f"v_pk_add_f32 v[{r+i}:{r+i+1}], v[{r+i}:{r+i+1}], v[{r+4+i}:{r+5+i}]")
            e(f"v_pk_add_f32 v[{r+8+i}:{r+9+i}], v[{r+8+i}:{r+9+i}], v[{r+12+i}:{r+13+i}]")
        for i in (0, 2):
            e(f"v_pk_add_f32 v[{r+i}:{r+i+1}], v[{r+i}:{r+i+1}], v[{r+8+i}:{r+9+i}]")
        e(f"buffer_store_dwordx4 v[{r}:{r+3}], v{VL16}, s[24:27], 0 offen offset:{k*1024}")
    e(f"v_pk_add_f32 v[{ZR}:{ZR+1}], v[{ZR}:{ZR+1}], v[{ZR+2}:{ZR+3}]")
    e(f"v_add_f32 v{ZR}, v{ZR}, v{ZR+1}")
    e(f"buffer_store_dword v{ZR}, v{VP+2}, s[16:19], s36 offen")
    kernel_tail(A, name, NV)
    return dict(name=name, grid=256, block=256, lds=STAGES * SBY)

def colsum_part(A, name, s_item, mats, fin):
    e = A.e
    e(f"s_lshr_b32 s31, s{s_item}, 2"); e(f"s_and_b32 s34, s{s_item}, 3")
    first, lo, hi, ld = mats[-1]
    e(f"s_mov_b32 s8, s{lo}"); e(f"s_mov_b32 s9, s{hi}"); e(f"s_mov_b32 s33, {first}"); e(f"s_mov_b32 s32, {ld}")
    for k in range(len(mats) - 2, -1, -1):
        first, lo, hi, ld = mats[k]
        e(f"s_cmp_lt_u32 s31, {mats[k+1][0]}")
        e(f"s_cselect_b32 s8, s{lo}, s8"); e(f"s_cselect_b32 s9, s{hi}, s9"); e(f"s_cselect_b32 s33, {first}, s33"); e(f"s_cselect_b32 s32, {ld}, s32")
    e("s_lshl_b32 s32, s32, 10")
    e("s_lshl_b32 s10, s32, 10"); e("s_mov_b32 s11, 0x00020000")
    e("s_sub_u32 s33, s31, s33")
    e("v_lshrrev_b32 v2, 3, v5"); e("v_mul_lo_u32 v2, s32, v2"); e("v_and_b32 v3, 7, v5"); e("v_lshl_add_u32 v2, v3, 4, v2")
    e("s_lshl_b32 s36, s34, 2"); e("s_add_u32 s36, s36, s30"); e("s_lshl_b32 s36, s36, 6"); e("s_mul_i32 s36, s36, s32")
    e("s_lshl_b32 s37, s33, 7"); e("s_add_u32 s36, s36, s37")
    e("s_lshl_b32 s37, s32, 3")
    L = 32
    for i in range(8):
        e(f"buffer_load_dwordx4 v[{L+4*i}:{L+4*i+3}], v2, s[8:11], s36 offen")
        if i < 7: e("s_add_u32 s36, s36, s37")
    for i in range(8):
        e(f"s_waitcnt vmcnt({7-i})")
        t = (8 if i == 0 else 16 + 8 * (i % 2))
        for j in range(4):
            e(f"v_lshlrev_b32 v{t+2*j}, 16, v{L+4*i+j}"); e(f"v_and_b32 v{t+2*j+1}, 0xffff0000, v{L+4*i+j}")
        if i:
            for j in range(4):
                e(f"v_pk_add_f32 v[{8+2*j}:{9+2*j}], v[{8+2*j}:{9+2*j}], v[{t+2*j}:{t+2*j+1}]")
    e("v_lshlrev_b32 v2, 5, v0")
    e("ds_write_b128 v2, v[8:11]"); e("ds_write_b128 v2, v[12:15] offset:16")
    e("s_waitcnt lgkmcnt(0)")
    e("s_barrier")
    e("s_cmp_lg_u32 s30, 0")
    e(f"s_cbranch_scc1 {fin}")
    e("v_lshlrev_b32 v2, 2, v5")
    for i in range(32):
        e(f"ds_read_b32 v{L+i}, v2 offset:{i*256}")
    e("s_lshl_b32 s36, s31, 10"); e("s_lshl_b32 s37, s34, 2"); e("s_add_u32 s36, s36, s37")
    srd_off(A, 16, "s28", "s29", WS_CS, CS_N * 16)
    e("v_lshlrev_b32 v2, 4, v5")
    e("s_waitcnt lgkmcnt(0)")
    for st in (16, 8, 4, 2, 1):
        for i in range(st): e(f"v_add_f32 v{L+i}, v{L+i}, v{L+i+st}")
    e(f"buffer_store_dword v{L}, v2, s[16:19], s36 offen")

def warm_part(A, s_item, lo, hi, size):
    e = A.e
    srd(A, 8, f"s{lo}", f"s{hi}", size)
    e(f"s_lshl_b32 s36, s{s_item}, 15")
    e("v_lshlrev_b32 v2, 4, v0")
    for i in range(8):
        e(f"buffer_load_dwordx4 v[{32+4*i}:{35+4*i}], v2, s[8:11], s36 offen")
        if i < 7: e("s_add_u32 s36, s36, 4096")

def k_attn(A, name, extra):
    e = A.e
    nwg = 256 + (448 + 224 if extra else 0)
    kernel_head(A, name, nwg)
    e(f"s_load_dwordx2 s[28:29], s[0:1], {KA['ws']}")
    if extra:
        e(f"s_load_dwordx4 s[24:27], s[0:1], {KA['wg']}")
        e(f"s_load_dwordx2 s[22:23], s[0:1], {KA['wd']}")
    VXO, VT = 1, 2
    P = 8; Z = P + 64; PQ = Z + 8
    e("v_lshrrev_b32 v4, 6, v0"); e("v_and_b32 v5, 63, v0")
    e("v_readfirstlane_b32 s30, v4")
    if extra:
        e("s_cmp_ge_u32 s2, 256")
        e(f"s_cbranch_scc1 {name}_extra")
    e(f"v_lshlrev_b32 v{VXO}, 4, v5")
    e("s_and_b32 s31, s2, 7"); e("s_lshr_b32 s32, s2, 3")
    e("s_lshl_b32 s34, s31, 2"); e("s_and_b32 s35, s32, 3"); e("s_add_u32 s34, s34, s35")
    e("s_lshr_b32 s33, s32, 2")
    e("s_lshl_b32 s35, s33, 3"); e("s_lshl_b32 s36, s30, 1"); e("s_add_u32 s35, s35, s36")
    e("s_lshr_b32 s37, s34, 1"); e("s_and_b32 s40, s34, 1")
    e("s_lshl_b32 s36, s37, 17"); e("s_lshl_b32 s41, s40, 12"); e("s_add_u32 s36, s36, s41")
    e("s_lshl_b32 s41, s30, 10"); e("s_add_u32 s36, s36, s41"); e(f"s_add_u32 s36, s36, {WS_KV}")
    e("s_lshl_b32 s37, s37, 12"); e("s_lshl_b32 s41, s40, 7"); e("s_add_u32 s37, s37, s41"); e(f"s_add_u32 s37, s37, {WS_Z}")
    e("s_lshl_b32 s38, s35, 16"); e("s_lshl_b32 s39, s34, 11"); e("s_add_u32 s38, s38, s39")
    e(f"s_add_u32 s39, s38, {WS_O}"); e(f"s_add_u32 s38, s38, {WS_PQ}")
    e("v_and_b32 v6, 15, v5"); e("v_lshlrev_b32 v6, 8, v6"); e("v_lshrrev_b32 v7, 4, v5"); e("v_lshl_add_u32 v6, v7, 4, v6")
    e("s_mov_b32 s42, 65536")
    e("s_waitcnt lgkmcnt(0)")
    srd_off(A, 8, "s28", "s29", "s36", 16 * 8192)
    srd_off(A, 20, "s28", "s29", "s37", 4096)
    srd_off(A, 12, "s28", "s29", "s38", 65536 + 2048)
    srd_off(A, 16, "s28", "s29", "s39", 65536 + 2048)
    stamp(A, 2)
    for m in range(16):
        if m: e(f"s_mov_b32 s40, {m*8192}")
        e(f"buffer_load_dwordx4 v[{P+4*m}:{P+4*m+3}], v{VXO}, s[8:11], {'s40' if m else '0'} offen")
    for k in range(2):
        e(f"buffer_load_dwordx4 v[{Z+4*k}:{Z+4*k+3}], v6, s[20:23], 0 offen offset:{k*64}")
    for i in range(4):
        e(f"buffer_load_dwordx4 v[{PQ+4*i}:{PQ+4*i+3}], v{VXO}, s[12:15], {'s42' if i >= 2 else '0'} offen offset:{(i%2)*1024}")
    e("s_lshr_b32 s41, s30, 1"); e("s_lshl_b32 s41, s41, 10"); e("s_and_b32 s40, s30, 1"); e("s_lshl_b32 s40, s40, 3"); e("s_add_u32 s41, s41, s40")
    e(f"v_add_u32 v{VT}, s41, v{VXO}")
    for m in range(2, 16):
        if m % 2 == 0: e(f"s_waitcnt vmcnt({6 + 14 - m})")
        r0 = P + 4 * (m % 2); r = P + 4 * m
        for i in (0, 2):
            e(f"v_pk_add_f32 v[{r0+i}:{r0+i+1}], v[{r0+i}:{r0+i+1}], v[{r+i}:{r+i+1}]")
    for i in (0, 2):
        e(f"v_pk_add_f32 v[{P+i}:{P+i+1}], v[{P+i}:{P+i+1}], v[{P+4+i}:{P+5+i}]")
    e(f"v_cvt_pk_bf16_f32 v{P+4}, v{P}, v{P+1}"); e(f"v_cvt_pk_bf16_f32 v{P+5}, v{P+2}, v{P+3}")
    e(f"ds_write_b64 v{VT}, v[{P+4}:{P+5}]")
    stamp(A, 4)
    e("s_waitcnt vmcnt(4)")
    for sh in (8, 4, 2, 1):
        for i in range(8):
            e(f"v_add_f32_dpp v{Z+i}, v{Z+i}, v{Z+i} row_ror:{sh} row_mask:0xf bank_mask:0xf")
    ZF = P + 16
    for i in range(4): e(f"v_cvt_pk_bf16_f32 v{ZF+i}, v{Z+2*i}, v{Z+2*i+1}")
    e("s_waitcnt lgkmcnt(0)")
    e("s_barrier")
    FR = P + 8
    for f in range(2):
        e(f"ds_read_b128 v[{FR+4*f}:{FR+4*f+3}], v{VXO} offset:{f*1024}")
    NUM = P + 20; DEN = P + 52
    e("s_waitcnt vmcnt(0)")
    for i in range(4):
        e(f"v_mfma_f32_16x16x32_bf16 v[{DEN+4*i}:{DEN+4*i+3}], v[{ZF}:{ZF+3}], v[{PQ+4*i}:{PQ+4*i+3}], 0")
    e("s_waitcnt lgkmcnt(0)")
    for i in range(4):
        for et in range(2):
            r = NUM + i * 8 + et * 4
            e(f"v_mfma_f32_16x16x32_bf16 v[{r}:{r+3}], v[{FR+4*et}:{FR+4*et+3}], v[{PQ+4*i}:{PQ+4*i+3}], 0")
    stamp(A, 5)
    for i in range(4): e(f"v_add_f32 v{DEN+4*i}, {f2u(1e-6):#x}, v{DEN+4*i}")
    for i in range(4): e(f"v_rcp_f32 v{DEN+4*i}, v{DEN+4*i}")
    e("s_nop 0")
    for i in range(4):
        r = NUM + i * 8
        for j in range(0, 8, 2):
            e(f"v_pk_mul_f32 v[{r+j}:{r+j+1}], v[{r+j}:{r+j+1}], v[{DEN+4*i}:{DEN+4*i+1}] op_sel_hi:[1,0]")
        for j in range(0, 8, 2):
            e(f"v_cvt_pk_bf16_f32 v{PQ+4*i+j//2}, v{r+j}, v{r+j+1}")
        e(f"buffer_store_dwordx4 v[{PQ+4*i}:{PQ+4*i+3}], v{VXO}, s[16:19], {'s42' if i >= 2 else '0'} offen offset:{(i%2)*1024}")
    if extra:
        e(f"s_branch {name}_fin")
        A.label(f"{name}_extra")
        e("s_waitcnt lgkmcnt(0)")
        e(f"s_cmp_ge_u32 s2, {256+448}")
        e(f"s_cbranch_scc1 {name}_warm")
        e(f"s_sub_u32 s44, s2, {256 - 48*4}")
        colsum_part(A, name, 44, [(48, 24, 25, 7), (104, 26, 27, 7)], f"{name}_fin")
        e(f"s_branch {name}_fin")
        A.label(f"{name}_warm")
        e(f"s_sub_u32 s44, s2, {256+448}")
        warm_part(A, 44, 22, 23, F * D * 2)
        A.label(f"{name}_fin")
    kernel_tail(A, name, PQ + 16)
    return dict(name=name, grid=nwg, block=256, lds=8192 if extra else 2048)

def k_prep(A, name):
    e = A.e
    kernel_head(A, name, 512)
    e(f"s_load_dwordx4 s[4:7], s[0:1], {KA['x']}")
    e(f"s_load_dwordx2 s[22:23], s[0:1], {KA['wo']}")
    e(f"s_load_dwordx2 s[28:29], s[0:1], {KA['ws']}")
    e("v_lshrrev_b32 v4, 6, v0"); e("v_and_b32 v5, 63, v0")
    e("v_readfirstlane_b32 s30, v4")
    e("v_lshlrev_b32 v1, 4, v5")
    e("s_cmp_ge_u32 s2, 256")
    e(f"s_cbranch_scc1 {name}_cs")
    e("s_lshl_b32 s31, s2, 2"); e("s_add_u32 s31, s31, s30")
    e("s_lshr_b32 s35, s31, 4"); e("s_and_b32 s34, s31, 15")
    rowmajor_lane_off(A, 2, 3)
    e("s_lshl_b32 s36, s35, 16"); e("s_lshl_b32 s37, s34, 7"); e("s_add_u32 s36, s36, s37"); e(f"s_add_u32 s37, s36, {16*2048}")
    e("s_lshl_b32 s38, s35, 16"); e("s_lshl_b32 s39, s34, 12"); e("s_add_u32 s38, s38, s39")
    e("s_waitcnt lgkmcnt(0)")
    srd(A, 8, "s4", "s5", S * D * 2)
    srd_off(A, 12, "s28", "s29", "s38", 4096)
    R = 16
    for i in range(4):
        so, off = rowmajor_frag(i, "s36", "s37")
        e(f"buffer_load_dwordx4 v[{R+4*i}:{R+4*i+3}], v2, s[8:11], {so} offen offset:{off}")
    e("s_lshl_b32 s36, s35, 12"); e("s_lshr_b32 s37, s34, 2"); e("s_lshl_b32 s37, s37, 10"); e("s_add_u32 s36, s36, s37")
    e("s_and_b32 s37, s34, 3"); e("s_lshl_b32 s37, s37, 2"); e("s_add_u32 s36, s36, s37")
    srd_off(A, 16, "s28", "s29", WS_ST, 64 * 4096)
    e("s_waitcnt vmcnt(0)")
    for i in range(4):
        e(f"v_permlane16_swap_b32 v{R+4*i}, v{R+4*i+2}")
        e(f"v_permlane16_swap_b32 v{R+4*i+1}, v{R+4*i+3}")
    e("s_nop 1")
    for i in range(4):
        e(f"buffer_store_dwordx4 v[{R+4*i}:{R+4*i+3}], v1, s[12:15], 0 offen offset:{i*1024}")
    stats_emit(A, 16, [R + i for i in range(16)], 8)
    e("buffer_store_dword v8, v1, s[16:19], s36 offen")
    e(f"s_branch {name}_fin")
    A.label(f"{name}_cs")
    e("s_waitcnt lgkmcnt(0)")
    e(f"s_cmp_ge_u32 s2, {256+192}")
    e(f"s_cbranch_scc1 {name}_warm")
    e("s_sub_u32 s44, s2, 256")
    colsum_part(A, name, 44, [(0, 6, 7, 6)], f"{name}_fin")
    e(f"s_branch {name}_fin")
    A.label(f"{name}_warm")
    e(f"s_sub_u32 s44, s2, {256+192}")
    warm_part(A, 44, 22, 23, D * D * 2)
    A.label(f"{name}_fin")
    kernel_tail(A, name, 64)
    return dict(name=name, grid=512, block=256, lds=8192)

HEADER = """; interleave_layers: (linear attention block, SwiGLU FFN) x 2, pre-LN residual ; generated by work/gen.py
"""
def build_all(path, stamp_on=False, o=None):
    global STAMP
    STAMP = stamp_on
    o = o or {}
    A = Asm()
    prep = k_prep(A, "prep_kernel")
    qkv = k_qkv(A, "qkv_kernel", o.get("qkv"))
    att1 = k_attn(A, "attn1_kernel", True)
    att = k_attn(A, "attn_kernel", False)
    wo = k_proj(A, "wo_kernel", D, WS_O, KA["wo"], False, o.get("wo"))
    ffn = k_ffn(A, "ffn_kernel", o.get("ffn"))
    dn = k_proj(A, "down_kernel", F, WS_H, KA["wd"], False, o.get("down"))
    dnf = k_proj(A, "downf_kernel", F, WS_H, KA["wd"], True, o.get("down"))
    for k in (prep, qkv, att1, wo, ffn, dn, qkv, att, wo, ffn, dnf):
        A.launch(k["name"], k["grid"], k["block"], k["lds"])
    open(path, "w").write(A.text(HEADER))

if __name__ == "__main__":
    build_all("full_stamp.s", True)
    build_all("interleave_layers__linear_attn_block__swiglu_ffn__prompt.s", False)
```

```python
import sys, math
import gen
from gen import *

WS_FL = 30 * MB
WS_KV2 = 32 * MB
cQ, cA, cO, cU, cD = 0, 16, 32, 40, 48
LDS_P = 131072
LDS_R = 98304
LDS_Z = LDS_P + 24576
WS_CS2 = WS_CS + 65536
V_RES = 228
WS_XB = WS_O
WS_STB = WS_ST + 262144
QSBY = 3 * 64 * 128
WS_XC = WS_PQ
S_DUMP = 77
SC1 = " sc1"
S_WV, S_LAYER, S_SIG, S_POFF, S_PTGT, S_PH = 3, 98, 99, 100, 101, 78
FL = 80
NAME = "mega_kernel"

def rs(A, k):
    if gen.STAMP:
        A.e(f"s_memrealtime s[{60+2*k}:{61+2*k}]")
        if k in (3, 4): A.e(f"s_memtime s[{66+2*k}:{67+2*k}]")
def rs_s(st, k):
    if gen.STAMP: st.i(f"s_memrealtime s[{60+2*k}:{61+2*k}]\n    s_waitcnt lgkmcnt(0)")
uid = [0]
def stamps_flush(A):
    if not gen.STAMP: return
    e = A.e
    uid[0] += 1
    l = f"sf{uid[0]}"
    rs(A, 5)
    e(f"s_cmp_lg_u32 s{S_WV}, 0"); e(f"s_cbranch_scc1 {l}")
    srd_off(A, 52, "s28", "s29", WS_DBG, 32 * 65536)
    e("s_lshl_b32 s58, s2, 6"); e(f"s_lshl_b32 s59, s{S_PH}, 16"); e("s_add_u32 s58, s58, s59")
    e("s_waitcnt lgkmcnt(0)")
    e("s_mov_b64 s[56:57], exec"); e("s_mov_b64 exec, 1")
    e("v_mov_b32 v2, 0")
    for k in range(8):
        e(f"v_mov_b32 v3, s{60+2*k}")
        e(f"buffer_store_dword v3, v2, s[52:55], s58 offen offset:{4*k}")
    for k in range(4):
        e(f"v_mov_b32 v3, s{4+k}")
        e(f"buffer_store_dword v3, v2, s[52:55], s58 offen offset:{48+4*k}")
    e("s_mov_b64 exec, s[56:57]")
    A.label(l)
    e(f"s_add_u32 s{S_PH}, s{S_PH}, 1")

def phase_begin(A):
    rs(A, 0)

def set_poll(A, idx_sgpr, base, target, prev_layer=False):
    e = A.e
    e(f"s_lshl_b32 s{S_POFF}, s{S_LAYER}, 6"); e(f"s_add_u32 s{S_POFF}, s{S_POFF}, s{idx_sgpr}")
    if prev_layer:
        e(f"s_add_u32 s{S_POFF}, s{idx_sgpr}, {base}")
        e(f"s_mul_i32 s{S_PTGT}, s{S_LAYER}, {target}")
    else:
        e(f"s_add_u32 s{S_POFF}, s{S_POFF}, {base}")
        e(f"s_mov_b32 s{S_PTGT}, {target}")
    e(f"s_lshl_b32 s{S_POFF}, s{S_POFF}, 7")

def set_signal(A, idx_sgpr, base):
    e = A.e
    e(f"s_lshl_b32 s{S_SIG}, s{S_LAYER}, 6"); e(f"s_add_u32 s{S_SIG}, s{S_SIG}, s{idx_sgpr}")
    e(f"s_add_u32 s{S_SIG}, s{S_SIG}, {base}"); e(f"s_lshl_b32 s{S_SIG}, s{S_SIG}, 7")

def do_signal(o, va, vb, wait=True):
    if gen.STAMP: o("s_memrealtime s[60:61]")
    o("s_mov_b64 exec, 1")
    o(f"v_mov_b32 v{va}, 0"); o(f"v_mov_b32 v{vb}, 1")
    o(f"buffer_atomic_add v{vb}, v{va}, s[{FL}:{FL+3}], s{S_SIG} offen sc1")
    if wait:
        o("s_waitcnt vmcnt(0)")
        if gen.STAMP: o("s_memrealtime s[62:63]")
    o("s_mov_b64 exec, -1")

def do_poll(o, va, vb, tag):
    o("s_mov_b64 exec, 1")
    o(f"v_mov_b32 v{va}, 0")
    o("s_mov_b32 s50, 0x40000")
    o(f"{tag}_poll:")
    o(f"buffer_load_dword v{vb}, v{va}, s[{FL}:{FL+3}], s{S_POFF} offen sc1")
    o("s_sub_u32 s50, s50, 1")
    o(f"s_cbranch_scc1 {tag}_pdone")
    o("s_waitcnt vmcnt(0)")
    o(f"v_readfirstlane_b32 s51, v{vb}")
    o(f"s_cmp_lt_u32 s51, s{S_PTGT}")
    o(f"s_cbranch_scc1 {tag}_poll")
    o(f"{tag}_pdone:")
    if gen.STAMP:
        o("s_memrealtime s[64:65]")
        o(f"s_add_u32 s52, s28, {WS_DBG}"); o("s_addc_u32 s53, s29, 0"); o(f"s_mov_b32 s54, {32*65536}"); o("s_mov_b32 s55, 0x00020000")
        o("s_lshl_b32 s58, s2, 6"); o(f"s_lshl_b32 s59, s{S_PH}, 16"); o("s_add_u32 s58, s58, s59")
        o("s_waitcnt lgkmcnt(0)")
        for k, r in enumerate((60, 62, 64, 50)):
            o(f"v_mov_b32 v{vb}, s{r}")
            o(f"buffer_store_dword v{vb}, v{va}, s[52:55], s58 offen offset:{32+4*k}")
    o("s_mov_b64 exec, -1")

def bar_loop(A, tag, n, body=None):
    e = A.e
    if n <= 2 and not body:
        for _ in range(n): e("s_barrier")
        return
    e(f"s_mov_b32 s43, {n}")
    A.label(tag)
    e("s_barrier")
    if body: body()
    e("s_sub_u32 s43, s43, 1"); e("s_cmp_lg_u32 s43, 0"); e(f"s_cbranch_scc1 {tag}")

def warm(A, offs, adv):
    for o in offs: A.e(f"s_load_dword s{S_DUMP}, s[12:13], {o:#x}")
    A.e(f"s_add_u32 s12, s12, {adv}"); A.e("s_addc_u32 s13, s13, 0")

def idle_head(A, tag, skip_first=False, early=None):
    e = A.e
    A.label(f"{tag}_idle")
    e("s_waitcnt vmcnt(0)")
    e("s_barrier")
    e(f"s_cmp_lg_u32 s{S_WV}, 4"); e(f"s_cbranch_scc1 {tag}_i1")
    if skip_first:
        e(f"s_cmp_eq_u32 s{S_LAYER}, 0"); e(f"s_cbranch_scc1 {tag}_i1")
    do_signal(e, 1, 2, wait=False)
    A.label(f"{tag}_i1")
    if early: early()
    e(f"s_cmp_lg_u32 s{S_WV}, 4"); e(f"s_cbranch_scc1 {tag}_i2")
    if skip_first:
        e(f"s_cmp_eq_u32 s{S_LAYER}, 0"); e(f"s_cbranch_scc1 {tag}_i2")
    e("s_waitcnt vmcnt(0)")
    if gen.STAMP: e("s_memrealtime s[62:63]")
    do_poll(e, 1, 2, tag)
    A.label(f"{tag}_i2")
    e("s_barrier")

def idle_tail(A, nxt):
    if gen.STAMP: A.e(f"s_add_u32 s{S_PH}, s{S_PH}, 1")
    A.e(f"s_branch {nxt}")

def wd_warm_base(A):
    e = A.e
    e(f"s_load_dwordx2 s[12:13], s[0:1], {KA['wd']}")
    e(f"s_lshl_b32 s16, s2, 2"); e(f"s_add_u32 s16, s16, s{S_WV}"); e("s_sub_u32 s16, s16, 4"); e("s_mul_i32 s16, s16, 7168")
    e("s_waitcnt lgkmcnt(0)")
    e("s_add_u32 s12, s12, s16"); e("s_addc_u32 s13, s13, 0")

SET_A = dict(srd=8, lds=40, woff=41, p=39, stg=38, r=35, m=33, n=34, t0=31, t1=32)
SET_B = dict(srd=24, lds=36, woff=37, p=20, stg=21, r=22, m=16, n=17, t0=18, t1=19)
class Loader:
    def __init__(self, A, kind, rs_, v, first=0):
        self.A, self.kind, self.s, self.v, self.first = A, kind, rs_, v, first
        self.T = 16
        self.ldw = {"qkv": 3 * D * 2}.get(kind, D * 2)
        self.NT = {"qkv": 16, "wo": 16, "down": 28}[kind]
        self.np = {"qkv": 6, "wo": 2, "down": 4}[kind]
        self.sb = {"qkv": QSBY, "wo": 8192, "down": 16384}[kind]
        self.base = {"qkv": 0, "wo": LDS_P, "down": LDS_R}[kind]
        self.rot = 2 if kind == "down" else 0
    def setup(self, coords=True):
        A, s, v, e = self.A, self.s, self.v, self.A.e
        k, ldw = self.kind, self.ldw
        e(f"s_load_dwordx2 s[4:5], s[0:1], {KA[{'qkv': 'wqkv', 'wo': 'wo', 'down': 'wd'}[k]]}")
        if coords: (qkv_coords if k == "qkv" else proj_coords)(A, s["m"], s["n"], s["t0"], s["t1"])
        lane_consts_fullline(A, self.T, ldw, v + 6, v, None)
        t0, t1 = s["t0"], s["t1"]
        e(f"s_and_b32 s{t1}, s{S_WV}, 3")
        e(f"s_lshl_b32 s{s['lds']}, s{t1}, 10")
        if self.base: e(f"s_add_u32 s{s['lds']}, s{s['lds']}, {self.base}")
        e(f"s_mul_i32 s{t0}, s{t1}, {8*ldw}"); e(f"s_lshl_b32 s{t1}, s{s['n']}, 7"); e(f"s_add_u32 s{t0}, s{t0}, s{t1}")
        e(f"v_add_u32 v{v}, s{t0}, v{v}")
        if k == "qkv":
            for j in range(1, 6): e(f"v_add_u32 v{v+j}, {(j >> 1) * 2048 + (j & 1) * 32 * ldw}, v{v}")
            e(f"s_add_u32 s{s['r']}, s{s['m']}, s{s['n']}")
        else:
            e(f"v_add_u32 v{v+1}, {32*ldw}, v{v}")
            if k == "down": e(f"v_xor_b32 v{v+2}, 0x80, v{v}"); e(f"v_xor_b32 v{v+3}, 0x80, v{v+1}")
            e(f"s_lshr_b32 s{s['r']}, s{s['n']}, 1"); e(f"s_add_u32 s{s['r']}, s{s['r']}, s{s['m']}")
        e(f"s_and_b32 s{s['r']}, s{s['r']}, 3")
        e(f"s_mov_b32 s{s['p']}, {self.first}")
        e(f"s_mov_b32 s{s['stg']}, {((self.first + self.rot) % 4) * self.sb}")
        if k == "down": e(f"s_and_b32 s{t0}, s{s['n']}, 1"); e(f"s_mul_i32 s{t0}, s{t0}, {F * D}")
        e("s_waitcnt lgkmcnt(0)")
        if k == "down": srd_off(A, s["srd"], "s4", "s5", f"s{t0}", F * D)
        else: srd(A, s["srd"], "s4", "s5", D * ldw)
    def issue(self, guard=False):
        A, s, e = self.A, self.s, self.A.e
        uid[0] += 1; l = f"ld{uid[0]}"
        w, t, NT = s["woff"], s["t0"], self.NT
        if guard: e(f"s_cmp_ge_u32 s{s['p']}, {NT}"); e(f"s_cbranch_scc1 {l}")
        e(f"s_and_b32 s{t}, s{s['p']}, 3"); e(f"s_cmp_eq_u32 s{t}, s{s['r']}"); e(f"s_cselect_b32 s{t}, 3, -1")
        e(f"s_add_u32 s{w}, s{s['p']}, s{t}")
        e(f"s_add_u32 s{t}, s{w}, {NT}"); e(f"s_min_u32 s{w}, s{w}, s{t}")
        e(f"s_sub_u32 s{t}, s{w}, {NT}"); e(f"s_min_u32 s{w}, s{w}, s{t}")
        e(f"s_mul_i32 s{w}, s{w}, {64 * self.ldw}")
        e(f"s_add_u32 s{t}, s{s['lds']}, s{s['stg']}")
        for j in range(self.np):
            e(f"s_add_u32 m0, s{t}, {j * 4096}")
            e("s_nop 0")
            e(f"buffer_load_dwordx4 v{self.v + j}, s[{s['srd']}:{s['srd']+3}], s{w} offen lds")
        e(f"s_add_u32 s{s['stg']}, s{s['stg']}, {self.sb}")
        e(f"s_cmp_eq_u32 s{s['stg']}, {4 * self.sb}"); e(f"s_cselect_b32 s{s['stg']}, 0, s{s['stg']}")
        if guard: A.label(l)
        e(f"s_add_u32 s{s['p']}, s{s['p']}, 1")
    def step(self):
        A, s, e = self.A, self.s, self.A.e
        uid[0] += 1; l = f"st{uid[0]}"
        e(f"s_waitcnt vmcnt({self.np})")
        e(f"s_cmp_le_u32 s{s['p']}, {self.NT}"); e(f"s_cbranch_scc1 {l}")
        e("s_waitcnt vmcnt(0)")
        A.label(l)
        e("s_barrier")
        self.issue(guard=True)
    def loop(self, tag, n, body=None):
        A, e = self.A, self.A.e
        e(f"s_mov_b32 s43, {n}")
        if isinstance(n, str): e("s_cmp_eq_u32 s43, 0"); e(f"s_cbranch_scc1 {tag}x")
        A.label(tag)
        self.step()
        if body: body()
        e("s_sub_u32 s43, s43, 1"); e("s_cmp_lg_u32 s43, 0"); e(f"s_cbranch_scc1 {tag}")
        A.label(f"{tag}x")

class MGemm(Gemm):
    npre = 3
    def xload(self, st, q, sb):
        super().xload(st, q, sb)
        op = st.ops[-1]; st.ops[-1] = (op[0], op[1] + self.opt.get("xfl", SC1), op[2])
    def pro_w(self, st, t0, t1):
        for t in range(t0, t1): self.pro_tile(st, t, x=False)
    def pro_w_pre(self, st):
        tmp = Stream()
        self.pro_w(tmp, 0, self.npre)
        st.pre |= {op[2] for op in tmp.ops if op[0] == "vm"}
        if self.skew: self.set_woff(st, self.STAGES - 2)
        else: st.i(f"s_mov_b32 s{self.s_woff}, {(self.npre - 1) * self.BK * self.ldw}")
    def pro_w_emit(self):
        tmp = Stream()
        self.pro_w(tmp, 0, self.npre)
        for op in tmp.ops: self.A.e(op[1])
    def pro_x(self, st):
        for t in range(self.XT): self.pro_tile(st, t, w=False)
    def pro_order(self, o):
        for t in range(self.LOOK):
            for l in self.order_next(t): o(l)
    def sync2(self, st):
        st.i("s_barrier")
        rs_s(st, 2)
    def reads(self, st):
        for f in range(self.LA):
            for rd in range(2): self.wread(st, f, rd)
    def emit(self, pro, loop_end=None):
        A = self.A
        nit = self.NT // self.UN
        pl, bl = resolve(pro, [self.body(it) for it in range(nit)])
        for l in pl: A.e(l)
        if gen.STAMP: A.e("s_waitcnt lgkmcnt(0)"); rs(A, 3); A.e("s_waitcnt lgkmcnt(0)")
        A.e(f"s_mov_b32 s{self.s_it}, {nit}")
        A.e(".p2align 6")
        A.label(f"{self.name}_loop")
        for l in bl: A.e(l)
        A.e(f"s_sub_u32 s{self.s_it}, s{self.s_it}, 1")
        if loop_end: loop_end()
        A.e(f"s_cmp_lg_u32 s{self.s_it}, 0")
        A.e(f"s_cbranch_scc1 {self.name}_loop")
        rs(A, 4)

def sync1(A):
    A.e("s_waitcnt vmcnt(0)")
    A.e("s_barrier")
    rs(A, 1)

def proj_coords(A, sm, sn, t0, t1):
    e = A.e
    e(f"s_and_b32 s{t0}, s2, 7"); e(f"s_lshr_b32 s{t1}, s2, 3")
    e(f"s_lshr_b32 s{sm}, s{t0}, 1"); e(f"s_lshl_b32 s{sm}, s{sm}, 2"); e(f"s_lshr_b32 s{sn}, s{t1}, 3"); e(f"s_add_u32 s{sm}, s{sm}, s{sn}")
    e(f"s_and_b32 s{sn}, s{t0}, 1"); e(f"s_and_b32 s{t1}, s{t1}, 7"); e(f"s_lshl_b32 s{t1}, s{t1}, 1"); e(f"s_add_u32 s{sn}, s{sn}, s{t1}")

def p_proj(A, tag, K, down, nxt, opt=None):
    e = A.e
    opt = opt or {}
    T = 16
    ldw = D * 2
    split = down and opt.get("split", 1)
    A.label(tag)
    phase_begin(A)
    if down: e(f"s_load_dwordx2 s[6:7], s[0:1], {KA['out']}")
    proj_coords(A, 33, 34, 31, 32)
    e("s_lshr_b32 s45, s33, 1")
    if down: set_poll(A, 45, cU, 32)
    else: set_poll(A, 33, cA, 16)
    e(f"s_cmp_ge_u32 s{S_WV}, 4"); e(f"s_cbranch_scc1 {tag}_idle")
    VP, VF, VXO, VT = 1, 5, 9, 10
    ACC, RES, WF = 16, V_RES, 80
    XF = WF + 32
    e(f"v_and_b32 v{VXO}, 63, v0"); e(f"v_lshlrev_b32 v{VXO}, 4, v{VXO}")
    e(f"s_lshl_b32 s35, s33, 2"); e(f"s_add_u32 s35, s35, s{S_WV}")
    e(f"s_lshl_b32 s37, s35, 16"); e("s_lshl_b32 s38, s34, 12"); e("s_add_u32 s37, s37, s38")
    if not down: e(f"s_add_u32 s37, s37, {WS_XB}")
    srd_off(A, 20, "s28", "s29", "s37", 4096)
    assert split or not down
    lane_consts_fullline(A, 16, ldw, VT, VP, VF)
    sb, rot = (16384, 2) if split else (8192, 0)
    opt = dict(opt); opt["now"] = 1
    G = MGemm(A, tag, T=16, NB=8 if split else 4, RG=1, K=K // 2 if split else K, STAGES=4, XT=opt.get("XT", 2), NWR=8,
              LA=opt.get("LA", 6 if split else 4), WG=2, npieces=1, stage_bytes=sb, piece_lds=None,
              frag_addr=fullline_frag_addr(16, VF, 64, lambda stg: (0, ((stg + rot) % 4) * sb)),
              acc=blk_acc(16, "v", ACC, 1), wfrag0=WF, xfrag0=XF, vpiece0=VP, vxoff=VXO,
              srd_w=8, srd_x=12, s_woff=41, s_xoff=42, s_ldsw=40, s_it=43, ldw=ldw, opt=opt)
    e("s_lshr_b32 s36, s34, 1"); e("s_add_u32 s36, s36, s33"); e("s_and_b32 s36, s36, 3")
    G.order_init(36)
    G.pro_order(e)
    for i in range(4): e(f"v_add_u32 v{VF+i}, {LDS_R if split else LDS_P}, v{VF+i}")
    e(f"s_mul_i32 s36, s35, {F*64}"); e(f"s_add_u32 s36, s36, {WS_H}")
    if split:
        e("s_and_b32 s37, s34, 1"); e(f"s_mul_i32 s37, s37, {K*32}"); e("s_add_u32 s36, s36, s37")
    srd_off(A, 12, "s28", "s29", "s36", G.K * 64)
    e("s_waitcnt lgkmcnt(0)")
    sync1(A)
    p = Stream()
    G.reads(p)
    for i in range(16):
        p.i(f"v_lshlrev_b32 v{ACC+2*i}, 16, v{RES+i}")
        p.i(f"v_and_b32 v{ACC+2*i+1}, 0xffff0000, v{RES+i}")
    if split:
        for i in range(0, 32, 2): p.i(f"v_pk_mov_b32 v[{ACC+32+i}:{ACC+33+i}], 0, 0")
    G.sync2(p)
    G.pro_x(p)
    G.emit(p)
    if split:
        e(f"s_lshl_b32 s36, s2, 2"); e(f"s_add_u32 s36, s36, s{S_WV}"); e("s_lshl_b32 s36, s36, 12"); e("s_xor_b32 s37, s36, 0x4000")
        srd_off(A, 16, "s28", "s29", WS_XC, 4 * MB)
        e("s_mov_b32 s50, 0x40000")
        for i in range(16):
            e(f"v_cvt_pk_bf16_f32 v{RES+i}, v{ACC+32+2*i}, v{ACC+33+2*i}")
            if i % 4 == 3:
                e(f"buffer_store_dwordx4 v[{RES+i-3}:{RES+i}], v{VXO}, s[16:19], s37 offen offset:{(i//4)*1024}{SC1}")
        X2 = ACC + 32
        e("s_waitcnt vmcnt(0)")
        e(f"s_branch {tag}_xp")
        if True:
            A.label(f"{tag}_xr")
            e("s_mov_b64 exec, 0xff")
            A.label(f"{tag}_xl")
            e(f"buffer_load_dwordx4 v[{X2}:{X2+3}], v{VXO}, s[16:19], s36 offen offset:3968{SC1}")
            e("s_sub_u32 s50, s50, 1"); e(f"s_cbranch_scc1 {tag}_xm")
            e("s_waitcnt vmcnt(0)")
            e(f"v_cmp_eq_u32 vcc, -1, v{X2+3}")
            e("s_nop 4")
            e(f"s_cbranch_vccnz {tag}_xl")
            A.label(f"{tag}_xm")
            e("s_mov_b64 exec, -1")
            e("s_max_i32 s50, s50, 0")
        A.label(f"{tag}_xp")
        for i in range(4):
            e(f"buffer_load_dwordx4 v[{X2+4*i}:{X2+4*i+3}], v{VXO}, s[16:19], s36 offen offset:{i*1024}{SC1}")
        e("s_sub_u32 s50, s50, 1"); e(f"s_cbranch_scc1 {tag}_xd")
        e("s_waitcnt vmcnt(0)")
        e(f"v_max3_u32 v{VT}, v{X2}, v{X2+1}, v{X2+2}")
        e(f"v_max3_u32 v{VT+1}, v{X2+3}, v{X2+4}, v{X2+5}")
        for i in range(6, 14, 4):
            e(f"v_max3_u32 v{VT}, v{VT}, v{X2+i}, v{X2+i+1}")
            e(f"v_max3_u32 v{VT+1}, v{VT+1}, v{X2+i+2}, v{X2+i+3}")
        e(f"v_max3_u32 v{VT}, v{VT}, v{X2+14}, v{X2+15}")
        e(f"v_max_u32 v{VT}, v{VT}, v{VT+1}")
        e(f"v_cmp_eq_u32 vcc, -1, v{VT}")
        e("s_nop 4")
        e(f"s_cbranch_vccnz {tag}_xr")
        A.label(f"{tag}_xd")
        e("s_waitcnt vmcnt(0)")
        T2 = X2 + 16
        for i in range(16):
            t = T2 + 2 * (i % 8)
            e(f"v_lshlrev_b32 v{t}, 16, v{X2+i}"); e(f"v_and_b32 v{t+1}, 0xffff0000, v{X2+i}")
            e(f"v_pk_add_f32 v[{ACC+2*i}:{ACC+2*i+1}], v[{ACC+2*i}:{ACC+2*i+1}], v[{t}:{t+1}]")
    if down:
        e(f"s_cmp_lg_u32 s{S_LAYER}, 0"); e(f"s_cbranch_scc1 {tag}_final")
    e("s_lshl_b32 s36, s35, 12"); e("s_lshl_b32 s37, s34, 8"); e("s_add_u32 s36, s36, s37")
    srd_off(A, 24, "s28", "s29", WS_ST if down else WS_STB, 64 * 4096)
    for i in range(16):
        e(f"v_cvt_pk_bf16_f32 v{RES+i}, v{ACC+2*i}, v{ACC+2*i+1}")
        if i % 4 == 3:
            e(f"buffer_store_dwordx4 v[{RES+i-3}:{RES+i}], v{VXO}, s[20:23], 0 offen offset:{(i//4)*1024}{SC1}")
    stats_emit(A, T, [RES + i for i in range(16)], VT)
    e(f"v_lshrrev_b32 v{VXO}, 2, v{VXO}")
    e(f"buffer_store_dword v{VT}, v{VXO}, s[24:27], s36 offen{SC1}")
    stamps_flush(A)
    A.label(f"{tag}_out")
    if down:
        set_signal(A, 33, cD)
        e(f"s_cmp_lg_u32 s{S_LAYER}, 0"); e(f"s_cbranch_scc1 {NAME}_end")
        e(f"s_mov_b32 s{S_LAYER}, 1")
    else:
        set_signal(A, 45, cO)
    e(f"s_branch {nxt}")
    if down:
        A.label(f"{tag}_final")
        srd(A, 24, "s6", "s7", S * D * 2)
        rowmajor_lane_off(A, VT, VT + 1)
        e("s_lshl_b32 s36, s35, 16"); e("s_lshl_b32 s37, s34, 7"); e("s_add_u32 s36, s36, s37")
        e(f"s_add_u32 s37, s36, {16*2048}")
        for i in range(16):
            e(f"v_cvt_pk_bf16_f32 v{RES+i}, v{ACC+2*i}, v{ACC+2*i+1}")
        e("s_nop 0")
        for i in range(4):
            e(f"v_permlane16_swap_b32 v{RES+4*i}, v{RES+4*i+2}")
            e(f"v_permlane16_swap_b32 v{RES+4*i+1}, v{RES+4*i+3}")
        e("s_nop 1")
        for i in range(4):
            so, off = rowmajor_frag(i, "s36", "s37")
            e(f"buffer_store_dwordx4 v[{RES+4*i}:{RES+4*i+3}], v{VT}, s[24:27], {so} offen offset:{off}")
        if gen.STAMP: e("s_waitcnt vmcnt(0)")
        stamps_flush(A)
        e(f"s_branch {NAME}_end")
    if down:
        LD = Loader(A, "down", SET_A, 130, first=2)
        idle_head(A, tag, early=lambda: LD.setup(coords=False))
        LD.issue()
        NX = Loader(A, "qkv", SET_B, 140)
        NX.setup()
        LD.loop(f"{tag}_i3", G.NT - 1)
        e(f"s_cmp_lg_u32 s{S_LAYER}, 0"); e(f"s_cbranch_scc1 {tag}_i5")
        for _ in range(3): NX.issue()
        A.label(f"{tag}_i5")
        e("s_barrier")
    else:
        LD = Loader(A, "wo", SET_A, 130, first=3)
        def early():
            LD.setup(coords=False)
            e(f"s_cmp_lg_u32 s{S_LAYER}, 0"); e(f"s_cbranch_scc1 {tag}_nw")
            warm(A, [64 * i for i in range(14)], 896)
            A.label(f"{tag}_nw")
        idle_head(A, tag, early=early)
        def wb():
            e(f"s_cmp_lg_u32 s{S_LAYER}, 0"); e(f"s_cbranch_scc1 {tag}_nw2")
            warm(A, [64 * i for i in range(5)], 320)
            A.label(f"{tag}_nw2")
        LD.loop(f"{tag}_i3", G.NT, body=wb)
    idle_tail(A, f"{tag}_out")

def ffn_coords(A, sm, sn, t0, t1):
    e = A.e
    e(f"s_and_b32 s{t0}, s2, 7"); e(f"s_lshr_b32 s{t1}, s2, 3")
    e(f"s_and_b32 s{sm}, s{t0}, 1"); e(f"s_lshl_b32 s{sm}, s{sm}, 2"); e(f"s_lshr_b32 s{sn}, s{t1}, 3"); e(f"s_add_u32 s{sm}, s{sm}, s{sn}")
    e(f"s_lshr_b32 s{sn}, s{t0}, 1"); e(f"s_lshl_b32 s{sn}, s{sn}, 3"); e(f"s_and_b32 s{t1}, s{t1}, 7"); e(f"s_add_u32 s{sn}, s{sn}, s{t1}")

FGU = 16384
def ffn_wsetup(A, tag, VP, VF, VT, sn, t0, opt, regs):
    e = A.e
    ldw = F * 2
    e(f"v_and_b32 v{VT}, 63, v0")
    e(f"s_and_b32 s{t0}, s{S_WV}, 3"); e(f"s_lshl_b32 s{t0}, s{t0}, 8")
    e(f"s_mul_i32 s{t0+1}, s{sn}, 224")
    e(f"s_and_b32 s{t0+2}, s{sn}, 1"); e(f"s_lshl_b32 s{t0+2}, s{t0+2}, 1")
    e(f"s_movk_i32 s{t0+3}, 4682")
    for j in range(4):
        u, r, c = VT + 1, VT + 2, VT + 3
        e(f"v_add_u32 v{u}, s{t0}, v{VT}")
        if j: e(f"v_add_u32 v{u}, {64*j}, v{u}")
        e(f"v_mul_u32_u24 v{r}, s{t0+3}, v{u}"); e(f"v_lshrrev_b32 v{r}, 16, v{r}")
        e(f"v_mul_u32_u24 v{c}, 14, v{r}"); e(f"v_sub_u32 v{c}, v{u}, v{c}")
        e(f"v_add_u32 v{c}, s{t0+2}, v{c}")
        e(f"v_subrev_u32 v{u}, 14, v{c}"); e(f"v_min_u32 v{c}, v{c}, v{u}")
        e(f"v_mul_u32_u24 v{VP+j}, {ldw}, v{r}")
        e(f"v_lshl_add_u32 v{VP+j}, v{c}, 4, v{VP+j}")
        e(f"v_add_u32 v{VP+j}, s{t0+1}, v{VP+j}")
        if j >= 2:
            e(f"v_lshrrev_b32 v{r}, 6, v{r}"); e(f"v_lshl_add_u32 v{VP+j}, v{r}, 28, v{VP+j}")
    ACC, WF, XF, VXO = regs
    SBY = 2 * FGU
    assert not opt["skew"]
    return MGemm(A, tag, T=16, NB=14, RG=1, K=D, STAGES=4, XT=opt.get("XT", 1), NWR=8, LA=opt.get("LA", 7), WG=2, npieces=4, stage_bytes=SBY,
                 piece_lds=lambda j: j * 1024,
                 frag_addr=lambda stg, row, nb: (VF + stg // 2, (stg % 2) * SBY + (nb % 2) * FGU + row * 224 + 32 * (nb // 2)),
                 acc=blk_acc(16, "v", ACC, 1), wfrag0=WF, xfrag0=XF, vpiece0=VP, vxoff=VXO,
                 srd_w=8, srd_x=12, s_woff=41, s_xoff=42, s_ldsw=40, s_it=43, ldw=ldw, opt=opt)

def ffn_prefetch(A, vt, opt):
    opt = dict(opt or {}); opt.setdefault("skew", 0)
    h = {}
    def setup():
        A.e(f"s_load_dwordx4 s[4:7], s[0:1], {KA['wg']}")
        ffn_coords(A, 44, 45, 46, 47)
        h["G"] = ffn_wsetup(A, "x", vt, 0, vt + 4, 45, 48, opt, (0, 0, 0, 0))
        A.e("s_waitcnt lgkmcnt(0)")
    def issue(t):
        G = h["G"]
        if True:
            for m in range(2):
                srd(A, 8, f"s{4+2*m}", f"s{5+2*m}", D * F * 2)
                A.e(f"s_and_b32 s40, s{S_WV}, 3"); A.e("s_lshl_b32 s40, s40, 12")
                if m: A.e(f"s_add_u32 s40, s40, {FGU}")
                A.e(f"s_mov_b32 s41, {((t - 1) * 64 * F * 2) & 0xffffffff:#x}")
                tmp = Stream(); G.pro_w(tmp, t, t + 1)
                for op in tmp.ops: A.e(op[1])
    return setup, issue

def p_ffn(A, tag, nxt, opt=None):
    e = A.e
    opt = dict(opt or {}); opt.setdefault("skew", 0)
    XT = opt.get("XT", 1)
    ldw = F * 2
    SBY = 2 * FGU
    A.label(tag)
    phase_begin(A)
    e(f"s_load_dwordx4 s[4:7], s[0:1], {KA['wg']}")
    VP, VF, VXO, VMN, VRS, VT = 1, 5, 7, 8, 10, 12
    WF = 20; XF = WF + 32
    ACC = XF + XT * 16
    SC = ACC + 112; CSR = SC + 16
    assert CSR + 28 <= 254
    ffn_coords(A, 33, 34, 31, 32)
    set_poll(A, 33, cO, 32)
    e(f"s_lshl_b32 s35, s33, 3"); e(f"s_add_u32 s35, s35, s{S_WV}")
    e(f"s_lshr_b32 s37, s{S_WV}, 2")
    e(f"s_lshl_b32 s40, s{S_WV}, 12")
    e("s_and_b32 s45, s34, 1")
    e(f"v_and_b32 v{VT}, 63, v0")
    e(f"v_lshlrev_b32 v{VXO}, 4, v{VT}")
    e("s_lshl_b32 s36, s35, 16"); e(f"s_add_u32 s36, s36, {WS_XB}")
    srd_off(A, 12, "s28", "s29", "s36", D * 64)
    e(f"v_and_b32 v{VT+1}, 3, v{VT}"); e(f"v_lshlrev_b32 v{VF}, 3, v{VT+1}")
    e(f"v_lshrrev_b32 v{VT+1}, 2, v{VT}"); e(f"v_mul_u32_u24 v{VT+1}, 224, v{VT+1}"); e(f"v_add_u32 v{VF}, v{VF}, v{VT+1}")
    e(f"v_add_u32 v{VF+1}, {2*SBY}, v{VF}")
    e("s_lshl_b32 s38, s35, 12"); e(f"s_add_u32 s38, s38, {WS_STB}")
    e(f"s_mul_i32 s39, s34, {112*32}"); e(f"s_add_u32 s39, s39, {WS_CS2}")
    srd_off(A, 20, "s28", "s29", "s38", 4096)
    srd_off(A, 24, "s28", "s29", "s39", (F + 112) * 32)
    e(f"s_mov_b32 s10, {D*ldw}"); e("s_mov_b32 s11, 0x00020000")
    e("s_cmp_eq_u32 s37, 0")
    e("s_waitcnt lgkmcnt(0)")
    e("s_cselect_b32 s8, s4, s6"); e("s_cselect_b32 s9, s5, s7")
    sync1(A)
    e(f"s_cmp_lg_u32 s{S_WV}, 7"); e(f"s_cbranch_scc1 {tag}_nosig")
    do_signal(e, VT + 4, VT + 5, wait=False)
    A.label(f"{tag}_nosig")
    G = ffn_wsetup(A, tag, VP, VF, VT, 34, 46, opt, (ACC, WF, XF, VXO))
    G.order_init(None)
    e(f"v_and_b32 v{VT+1}, 15, v{VT}"); e(f"v_bfe_u32 v{VT+2}, v{VT}, 4, 1"); e(f"v_mul_u32_u24 v{VT+2}, {F}, v{VT+2}")
    e(f"v_add_lshl_u32 v{VT+1}, v{VT+1}, v{VT+2}, 5")
    e(f"v_lshrrev_b32 v{VT+2}, 5, v{VT}"); e(f"v_lshl_add_u32 v{VT+1}, v{VT+2}, 4, v{VT+1}")
    e("s_lshl_b32 s48, s45, 9")
    e("s_mul_i32 s49, s45, 3072"); e("s_sub_u32 s49, 3072, s49")
    nit = G.NT // G.UN
    e(f"s_add_u32 s30, s37, 1")
    p = Stream()
    G.npre = 2
    G.pro_w_pre(p)
    G.reads(p)
    for i in range(0, 112, 2): p.i(f"v_pk_mov_b32 v[{ACC+i}:{ACC+i+1}], 0, 0")
    p.i(f"s_cmp_lg_u32 s{S_WV}, 7"); p.i(f"s_cbranch_scc1 {tag}_nopoll")
    p.i("s_waitcnt vmcnt(0)")
    if gen.STAMP: p.i("s_memrealtime s[62:63]")
    do_poll(p.i, VT + 4, VT + 5, tag)
    p.i(f"{tag}_nopoll:")
    G.sync2(p)
    G.pro_x(p)
    G.pro_w(p, 2, 3)
    def fix():
        e("s_add_u32 s31, s30, 1"); e("s_cmp_lg_u32 s43, s31"); e(f"s_cbranch_scc1 {tag}_nold")
        e(f"v_lshrrev_b32 v{VT+2}, 2, v{VXO}")
        for i in range(16):
            e(f"buffer_load_dword v{SC+i}, v{VT+2}, s[20:23], 0 offen offset:{i*256}{SC1}")
        for j in range(7):
            so, off = ("s48", j * 512) if j < 6 else ("s49", 0)
            e(f"buffer_load_dwordx4 v[{CSR+4*j}:{CSR+4*j+3}], v{VT+1}, s[24:27], {so} offen offset:{off}{SC1}")
        A.label(f"{tag}_nold")
        e(f"s_cmp_lg_u32 s43, s30")
        e(f"s_cbranch_scc1 {tag}_nofix")
        stats_finish(e, SC, VT + 4, VMN, VRS)
        for j in range(7): e(f"v_pk_add_f32 v[{CSR+4*j}:{CSR+4*j+1}], v[{CSR+4*j}:{CSR+4*j+1}], v[{CSR+4*j+2}:{CSR+4*j+3}]")
        for j in range(7): e(f"v_add_f32 v{CSR+4*j}, v{CSR+4*j}, v{CSR+4*j+1}")
        for j in range(7): e(f"v_mov_b32 v{CSR+4*j+1}, v{CSR+4*j}")
        split16(e, VRS, VRS + 1)
        for j in range(7): e(f"v_permlane32_swap_b32 v{CSR+4*j}, v{CSR+4*j+1}")
        split16(e, VMN, VT + 4)
        for j in range(7): e(f"v_add_f32 v{CSR+4*j}, v{CSR+4*j}, v{CSR+4*j+1}")
        e(f"v_permlane32_swap_b32 v{VMN}, v{VT+4}"); e("s_nop 1")
        for j in range(7):
            r = ACC + j * 16
            e(f"v_mfma_f32_16x16x1_4b_f32 v[{r}:{r+15}], v{CSR+4*j}, v{VMN}, v[{r}:{r+15}]")
        A.label(f"{tag}_nofix")
        e("s_cmp_lg_u32 s43, 1"); e(f"s_cbranch_scc1 {tag}_nopre")
        e(f"s_cmp_lt_u32 s{S_WV}, 4"); e(f"s_cbranch_scc1 {tag}_res")
        NX = Loader(A, "down", SET_B, 200)
        NX.setup(); NX.issue(); NX.issue()
        e(f"s_branch {tag}_nopre")
        A.label(f"{tag}_res")
        proj_coords(A, 16, 17, 18, 19)
        e(f"s_lshl_b32 s16, s16, 2"); e(f"s_add_u32 s16, s16, s{S_WV}"); e("s_lshl_b32 s16, s16, 16"); e("s_lshl_b32 s17, s17, 12"); e("s_add_u32 s16, s16, s17")
        e(f"s_add_u32 s16, s16, {WS_XB}")
        srd_off(A, 24, "s28", "s29", "s16", 4096)
        for i in range(4):
            e(f"buffer_load_dwordx4 v[{V_RES+4*i}:{V_RES+3+4*i}], v{VXO}, s[24:27], 0 offen offset:{i*1024}{SC1}")
        A.label(f"{tag}_nopre")
    assert CSR + 28 <= V_RES and nit >= 4
    G.emit(p, loop_end=fix)
    C1, C2 = SC, SC + 4
    for k in range(2):
        e(f"v_mul_f32 v{C1+2*k}, {NLOG2E:#x}, v{VRS+k}")
        e(f"v_mul_f32 v{C2+2*k}, v{VRS+k}, v{VRS+k}")
    e(f"s_mul_i32 s36, s35, {F*64}"); e(f"s_add_u32 s36, s36, {WS_H}")
    srd_off(A, 20, "s28", "s29", "s36", F * 64)
    e("s_mul_i32 s38, s34, 7"); e("s_add_u32 s38, s38, s45"); e("s_lshl_b32 s38, s38, 10")
    e("s_mul_i32 s39, s45, 8184"); e("s_add_u32 s46, s38, 6144"); e("s_sub_u32 s39, s46, s39")
    e("s_add_u32 s46, s38, 4096")
    TB = SC + 8
    OB = CSR + (CSR % 2)
    def silu(blocks, k, out):
        for b, r in enumerate(blocks):
            for i in (0, 2): e(f"v_pk_mul_f32 v[{TB+4*b+i}:{TB+4*b+i+1}], v[{r+i}:{r+i+1}], v[{C1+2*k}:{C1+2*k+1}] op_sel_hi:[1,0]")
        for b, r in enumerate(blocks):
            for i in (0, 2): e(f"v_pk_mul_f32 v[{r+i}:{r+i+1}], v[{r+i}:{r+i+1}], v[{r+4+i}:{r+5+i}]")
        for i in range(4 * len(blocks)): e(f"v_exp_f32 v{TB+i}, v{TB+i}")
        for b, r in enumerate(blocks):
            for i in (0, 2): e(f"v_pk_mul_f32 v[{r+i}:{r+i+1}], v[{r+i}:{r+i+1}], v[{C2+2*k}:{C2+2*k+1}] op_sel_hi:[1,0]")
        for i in range(0, 4 * len(blocks), 2): e(f"v_pk_add_f32 v[{TB+i}:{TB+i+1}], v[{TB+i}:{TB+i+1}], 1.0 op_sel_hi:[1,0]")
        for i in range(4 * len(blocks)): e(f"v_rcp_f32 v{TB+i}, v{TB+i}")
        e("s_nop 0")
        for b, r in enumerate(blocks):
            for i in (0, 2): e(f"v_pk_mul_f32 v[{r+i}:{r+i+1}], v[{r+i}:{r+i+1}], v[{TB+4*b+i}:{TB+4*b+i+1}]")
        for b, r in enumerate(blocks):
            for i in (0, 2): e(f"v_cvt_pk_bf16_f32 v{out+2*b+i//2}, v{r+i}, v{r+i+1}")
    cnt = 0
    for pj in range(4):
        for sb in range(2):
            ob = OB + 4 * (cnt % 3); cnt += 1
            silu([ACC + (2 * pj + jj) * 16 + 8 * sb for jj in range(2 if pj < 3 else 1)], sb, ob)
            if pj < 3:
                so, off = ("s38", pj * 2048 + sb * 1024) if pj < 2 else ("s46", sb * 1024)
                e(f"buffer_store_dwordx4 v[{ob}:{ob+3}], v{VXO}, s[20:23], {so} offen offset:{off}{SC1}")
            else:
                e(f"buffer_store_dwordx2 v[{ob}:{ob+1}], v{VXO}, s[20:23], s39 offen offset:{sb*1024}{SC1}")
    stamps_flush(A)
    set_signal(A, 33, cU)
    e(f"s_branch {nxt}")

def qkv_coords(A, sm, sn, t0, t1):
    e = A.e
    e(f"s_and_b32 s{t0}, s2, 7"); e(f"s_lshr_b32 s{t1}, s2, 3")
    e(f"s_and_b32 s{sm}, s{t0}, 1"); e(f"s_lshl_b32 s{sm}, s{sm}, 3"); e(f"s_lshr_b32 s{sn}, s{t1}, 2"); e(f"s_add_u32 s{sm}, s{sm}, s{sn}")
    e(f"s_lshr_b32 s{sn}, s{t0}, 1"); e(f"s_lshl_b32 s{sn}, s{sn}, 2"); e(f"s_and_b32 s{t1}, s{t1}, 3"); e(f"s_add_u32 s{sn}, s{sn}, s{t1}")

def p_qkv(A, tag, nxt, fpre, opt=None):
    e = A.e
    opt = dict(opt or {})
    XT = opt.get("XT", 2)
    ldw = 3 * D * 2
    A.label(tag)
    phase_begin(A)
    qkv_coords(A, 33, 34, 31, 32)
    set_poll(A, 33, cD, 16, prev_layer=True)
    e(f"s_cmp_ge_u32 s{S_WV}, 4"); e(f"s_cbranch_scc1 {tag}_idle")
    VF, VXO, VA, VT = 1, 9, 10, 16
    ACC = 32; WF = ACC + 96; XF = WF + 32; RR = XF + 32; KL = RR + 8
    CSR = KL + 8; QR = CSR + 12
    assert QR + 8 <= V_RES and XT <= 2
    LST = LDS_Z + 2048
    e(f"v_and_b32 v{VXO}, 63, v0"); e(f"v_lshlrev_b32 v{VXO}, 4, v{VXO}")
    e("s_lshl_b32 s39, s34, 10"); e(f"s_add_u32 s39, s39, {WS_CS}")
    e("s_movk_i32 s45, 16384"); e("s_mov_b32 s46, 32768")
    srd_off(A, 24, "s28", "s29", "s39", 32768 + 1024)
    for b in range(3):
        e(f"buffer_load_dwordx4 v[{CSR+4*b}:{CSR+4*b+3}], v{VXO}, s[24:27], {('0', 's45', 's46')[b]} offen")
    lane_consts_fullline(A, 16, ldw, VT, VT + 3, VF)
    for i in range(4): e(f"v_add_u32 v{VF+4+i}, {2*QSBY}, v{VF+i}")
    opt["now"] = 1
    def acc(nb, sb):
        blk, lo = divmod(nb, 2)
        r = ACC + blk * 16 + (sb * 8 + lo * 4 if blk < 2 else lo * 8 + sb * 4)
        return f"v[{r}:{r+3}]"
    G = MGemm(A, tag, T=16, NB=12, RG=1, K=D, STAGES=4, XT=XT, NWR=8, LA=opt.get("LA", 4), WG=opt.get("WG", 2), npieces=1, stage_bytes=QSBY, piece_lds=None,
              frag_addr=fullline_frag_addr(16, VF, 64, lambda stg: (4 * (stg // 2), (stg % 2) * QSBY)),
              acc=acc, wfrag0=WF, xfrag0=XF, vpiece0=0, vxoff=VXO,
              srd_w=8, srd_x=12, s_woff=41, s_xoff=42, s_ldsw=40, s_it=43, ldw=ldw,
              swap=[nb >= 4 for nb in range(12)], opt=opt)
    e("s_add_u32 s36, s33, s34"); e("s_and_b32 s36, s36, 3")
    G.order_init(36)
    G.pro_order(e)
    e(f"s_lshl_b32 s35, s33, 2"); e(f"s_add_u32 s35, s35, s{S_WV}")
    e("s_lshl_b32 s36, s35, 16")
    srd_off(A, 12, "s28", "s29", "s36", D * 64)
    sync1(A)
    p = Stream()
    G.reads(p)
    o = p.i
    for b in range(3):
        o(f"v_pk_add_f32 v[{CSR+4*b}:{CSR+4*b+1}], v[{CSR+4*b}:{CSR+4*b+1}], v[{CSR+4*b+2}:{CSR+4*b+3}]")
    for b in range(3): o(f"v_add_f32 v{CSR+4*b}, v{CSR+4*b}, v{CSR+4*b+1}")
    for b in range(3): o(f"v_mov_b32 v{CSR+4*b+1}, v{CSR+4*b}")
    o("s_nop 1")
    for b in (1, 2): o(f"v_permlane16_swap_b32 v{CSR+4*b}, v{CSR+4*b+1}")
    o("s_nop 1")
    for b in range(3): o(f"v_permlane32_swap_b32 v{CSR+4*b}, v{CSR+4*b+1}")
    for i in range(0, 96, 2): o(f"v_pk_mov_b32 v[{ACC+i}:{ACC+i+1}], 0, 0")
    o(f"s_lshl_b32 s38, s{S_WV}, 9"); o(f"s_add_u32 s38, s38, {LST}")
    o(f"v_and_b32 v{VA}, 31, v{VT}"); o(f"v_lshl_add_u32 v{VA}, v{VA}, 2, s38")
    o(f"v_and_b32 v{VA+2}, 15, v{VT}"); o(f"v_lshl_add_u32 v{VA+2}, v{VA+2}, 2, s38")
    o(f"v_lshrrev_b32 v{VA+1}, 5, v{VT}"); o(f"v_lshl_add_u32 v{VA+1}, v{VA+1}, 6, v{VA+2}")
    o(f"v_lshrrev_b32 v{VA+3}, 4, v{VT}"); o(f"v_lshl_add_u32 v{VA+3}, v{VA+3}, 4, s38")
    class O:
        e = staticmethod(o)
    proj_coords(O, 45, 46, 47, 44)
    o(f"s_lshl_b32 s45, s45, 2"); o(f"s_add_u32 s45, s45, s{S_WV}"); o("s_lshl_b32 s45, s45, 16"); o("s_lshl_b32 s46, s46, 12"); o("s_add_u32 s45, s45, s46")
    srd_off(O, 48, "s28", "s29", "s45", 4096)
    o(f"s_mov_b32 s47, {f2u(1e-6):#x}")
    o(f"s_mul_i32 s36, s35, {F*64}"); o("s_lshl_b32 s37, s34, 12"); o("s_add_u32 s36, s36, s37"); o(f"s_add_u32 s36, s36, {WS_H}")
    srd_off(O, 20, "s28", "s29", "s36", 4096)
    o(f"s_mul_i32 s39, s{S_LAYER}, {WS_KV2 - WS_KV}")
    o(f"s_lshl_b32 s38, s34, 16"); o(f"s_lshl_b32 s40, s{S_WV}, 10"); o("s_add_u32 s38, s38, s40"); o(f"s_add_u32 s38, s38, {WS_KV}")
    o("s_add_u32 s38, s38, s39")
    srd_off(O, 24, "s28", "s29", "s38", 65536)
    o("s_lshl_b32 s37, s34, 4"); o("s_add_u32 s37, s37, s33")
    o("s_lshl_b32 s38, s37, 8"); o(f"s_add_u32 s38, s38, {WS_Z}"); o("s_add_u32 s38, s38, s39")
    srd_off(O, 16, "s28", "s29", "s38", 256)
    o("s_lshl_b32 s44, s33, 12")
    o(f"s_add_u32 s40, s40, {LDS_R}")
    o(f"s_lshl_b32 s36, s{S_WV}, 13"); o(f"s_add_u32 s37, s36, {LDS_R}")
    o(f"s_lshl_b32 s38, s{S_WV}, 8"); o(f"s_add_u32 s38, s38, {LDS_Z}")
    G.sync2(p)
    G.pro_x(p)
    nit = G.NT // G.UN
    def fix():
        if gen.STAMP:
            e("s_memrealtime s[8:9]"); e("s_mov_b32 s4, s5"); e("s_mov_b32 s5, s6"); e("s_mov_b32 s6, s7"); e("s_waitcnt lgkmcnt(0)"); e("s_mov_b32 s7, s8")
        e(f"s_cmp_lg_u32 s43, {nit - 1}")
        e(f"s_cbranch_scc1 {tag}_nofix")
        e(f"ds_read_b32 v{VT}, v{VA}"); e(f"ds_read_b32 v{VT+1}, v{VA+1}")
        for sb in range(2):
            e(f"ds_read_b32 v{QR+2*sb}, v{VA+2} offset:{128 + 64*sb}"); e(f"ds_read_b32 v{QR+4+2*sb}, v{VA+2} offset:{256 + 64*sb}")
            e(f"ds_read_b128 v[{RR+4*sb}:{RR+4*sb+3}], v{VA+3} offset:{128 + 64*sb}"); e(f"ds_read_b128 v[{KL+4*sb}:{KL+4*sb+3}], v{VA+3} offset:{256 + 64*sb}")
        e("s_waitcnt lgkmcnt(8)")
        for b in range(6):
            r = ACC + 16 * b; c = CSR + 4 * (b // 2) + b % 2
            if b < 2: e(f"v_mfma_f32_16x16x1_4b_f32 v[{r}:{r+15}], v{c}, v{VT+1}, v[{r}:{r+15}]")
            else: e(f"v_mfma_f32_16x16x1_4b_f32 v[{r}:{r+15}], v{VT}, v{c}, v[{r}:{r+15}]")
        e(f"v_add_u32 v{VA}, s40, v{VXO}")
        e(f"v_add_u32 v{VA+1}, s37, v{VXO}")
        e(f"v_and_b32 v{VA+2}, 0xf0, v{VXO}"); e(f"v_lshrrev_b32 v{VA+2}, 2, v{VA+2}"); e(f"v_add_u32 v{VA+2}, s38, v{VA+2}")
        e(f"v_lshrrev_b32 v{VA+3}, 2, v{VXO}"); e(f"v_add_u32 v{VA+4}, {LDS_Z}, v{VA+3}")
        e(f"v_lshrrev_b32 v{VA+5}, 8, v{VXO}"); e(f"v_lshlrev_b32 v{VA+5}, 4, v{VA+5}"); e(f"v_add_u32 v{VA+5}, {LDS_Z + 1024}, v{VA+5}")
        for i in range(4): e(f"v_mov_b32 v{CSR+8+i}, 0x3f803f80")
        A.label(f"{tag}_nofix")
    G.emit(p, loop_end=fix)
    e("s_waitcnt lgkmcnt(0)")
    e("s_nop 3")
    TB = VT
    def phi(r, rsr, rl, out):
        for i in range(0, 16, 2): e(f"v_pk_mul_f32 v[{TB+i}:{TB+i+1}], v[{r+i}:{r+i+1}], {rl(i)[0]}{rl(i)[1]}")
        for i in range(16): e(f"v_exp_f32 v{TB+i}, v{TB+i} clamp")
        for i in range(0, 16, 2): e(f"v_pk_fma_f32 v[{r+i}:{r+i+1}], v[{r+i}:{r+i+1}], {rsr(i)[0]}, 1.0{rsr(i)[2]}")
        for i in range(16): e(f"v_max_f32 v{r+i}, v{r+i}, v{TB+i}")
        for i in range(0, 16, 2): e(f"v_pk_add_f32 v[{r+i}:{r+i+1}], v[{r+i}:{r+i+1}], s[46:47] op_sel:[0,1]")
        for i in range(0, 16, 2): e(f"v_cvt_pk_bf16_f32 v{out+i//2}, v{r+i}, v{r+i+1}")
    vec = lambda base: (lambda i: (f"v[{base+i%8}:{base+i%8+1}]", "", " op_sel_hi:[1,1,0]"))
    bc = lambda base: (lambda i: (f"v[{base+2*(i//8)}:{base+2*(i//8)+1}]", " op_sel_hi:[1,0]", " op_sel_hi:[1,0,0]"))
    PK = WF; VV = WF + 16; ONE = CSR + 8; OB = ACC + 80
    KVR = ACC + 32; ZR = ACC + 64
    def kv_write(hh):
        for qd in range(4):
            r = KVR + hh * 16 + 4 * qd
            e(f"ds_write_b128 v{VA}, v[{r}:{r+3}] offset:{(hh*4 + qd)*4096}")
        for dt in range(2):
            e(f"ds_write_b32 v{VA+2}, v{ZR + hh*16 + dt*4} offset:{hh*128 + dt*64}")
    for hh in range(2):
        r = ACC + (4 + hh) * 16
        for i in range(0, 16, 2):
            e(f"v_pk_mul_f32 v[{r+i}:{r+i+1}], v[{r+i}:{r+i+1}], v[{RR+i%8}:{RR+i%8+1}]")
        for i in range(0, 16, 2):
            e(f"v_cvt_pk_bf16_f32 v{VV+hh*8+i//2}, v{r+i}, v{r+i+1}")
        if hh == 1: kv_write(0)
        phi(ACC + (2 + hh) * 16, vec(RR), vec(KL), PK + hh * 8)
        e("s_nop 1")
        for et in range(2):
            for dt in range(2):
                r = KVR + hh * 16 + et * 8 + dt * 4; a = PK + hh * 8 + dt * 4; b = VV + hh * 8 + et * 4
                e(f"v_mfma_f32_16x16x32_bf16 v[{r}:{r+3}], v[{a}:{a+3}], v[{b}:{b+3}], 0")
        for dt in range(2):
            r = ZR + hh * 16 + dt * 4; a = PK + hh * 8 + dt * 4
            e(f"v_mfma_f32_16x16x32_bf16 v[{r}:{r+3}], v[{ONE}:{ONE+3}], v[{a}:{a+3}], 0")
    e("s_nop 3")
    kv_write(1)
    e("s_waitcnt lgkmcnt(0)")
    e("s_barrier")
    if gen.STAMP: e("s_memrealtime s[8:9]"); e("s_waitcnt lgkmcnt(0)"); e("s_mov_b32 s7, s8")
    RB = KVR
    for k in range(8):
        e(f"ds_read_b128 v[{RB+4*k}:{RB+4*k+3}], v{VA+1} offset:{k*1024}")
    for k in range(4):
        e(f"ds_read_b32 v{ZR+k}, v{VA+4} offset:{k*256}")
    for k in range(2):
        e(f"s_waitcnt lgkmcnt({8 - 4*k})")
        r = RB + 16 * k
        for i in (0, 2):
            e(f"v_pk_add_f32 v[{r+i}:{r+i+1}], v[{r+i}:{r+i+1}], v[{r+4+i}:{r+5+i}]")
            e(f"v_pk_add_f32 v[{r+8+i}:{r+9+i}], v[{r+8+i}:{r+9+i}], v[{r+12+i}:{r+13+i}]")
        for i in (0, 2):
            e(f"v_pk_add_f32 v[{r+i}:{r+i+1}], v[{r+i}:{r+i+1}], v[{r+8+i}:{r+9+i}]")
        for i in (0, 2):
            e(f"v_cvt_pk_bf16_f32 v{PK+2*k+i//2}, v{r+i}, v{r+i+1}")
    e(f"buffer_store_dwordx4 v[{PK}:{PK+3}], v{VXO}, s[24:27], s44 offen{SC1}")
    e("s_waitcnt lgkmcnt(0)")
    e(f"v_pk_add_f32 v[{ZR}:{ZR+1}], v[{ZR}:{ZR+1}], v[{ZR+2}:{ZR+3}]")
    e(f"v_add_f32 v{ZR}, v{ZR}, v{ZR+1}")
    e(f"buffer_store_dword v{ZR}, v{VA+3}, s[16:19], s36 offen{SC1}")
    stamps_flush(A)
    phase_begin(A)
    phi(ACC, bc(QR), bc(QR + 4), OB)
    sync1(A)
    phi(ACC + 16, bc(QR), bc(QR + 4), OB + 8)
    e(f"v_mov_b32 v{ONE}, 0x3f80"); e(f"v_mov_b32 v{ONE+1}, 0x3f800000")
    e(f"v_add_u32 v{VA+1}, {LDS_R}, v{VXO}")
    SUM = TB
    for i in range(0, 8, 2): e(f"v_pk_mov_b32 v[{SUM+i}:{SUM+i+1}], 0, 0")
    e("s_barrier")
    rs(A, 2)
    P = ACC
    for m in range(16):
        if m: e(f"s_movk_i32 s44, {m*4096}" if m < 8 else f"s_mov_b32 s44, {m*4096}")
        e(f"buffer_load_dwordx4 v[{P+4*m}:{P+4*m+3}], v{VXO}, s[24:27], {'s44' if m else '0'} offen{SC1}")
    for i in range(4):
        e(f"buffer_load_dwordx4 v[{V_RES+4*i}:{V_RES+3+4*i}], v{VXO}, s[48:51], 0 offen offset:{i*1024}{SC1}")
    for m in range(16):
        e(f"s_waitcnt vmcnt({19 - m})")
        for j in range(4):
            e(f"v_dot2_f32_bf16 v{SUM+2*j}, v{P+4*m+j}, v{ONE}, v{SUM+2*j}")
            e(f"v_dot2_f32_bf16 v{SUM+2*j+1}, v{P+4*m+j}, v{ONE+1}, v{SUM+2*j+1}")
    e("s_nop 2")
    for j in range(4): e(f"v_cvt_pk_bf16_f32 v{PK+j}, v{SUM+2*j}, v{SUM+2*j+1}")
    e(f"ds_write_b128 v{VA}, v[{PK}:{PK+3}]")
    e("s_waitcnt lgkmcnt(0)")
    rs(A, 3)
    e("s_barrier")
    FR = PK; ZF = VV
    for hh in range(2):
        e(f"ds_read_b128 v[{ZF+hh*4}:{ZF+hh*4+3}], v{VA+5} offset:{hh*64}")
        for et in range(2):
            e(f"ds_read_b128 v[{FR+(hh*2+et)*4}:{FR+(hh*2+et)*4+3}], v{VA+1} offset:{(hh*2+et)*1024}")
    NUM = ACC; DEN = ACC + 32
    for hh in range(2):
        e(f"s_waitcnt lgkmcnt({3 - 3*hh})")
        for sb in range(2):
            i = hh * 2 + sb; b = OB + 4 * i
            e(f"v_mfma_f32_16x16x32_bf16 v[{DEN+4*i}:{DEN+4*i+3}], v[{ZF+hh*4}:{ZF+hh*4+3}], v[{b}:{b+3}], 0")
        for sb in range(2):
            i = hh * 2 + sb; b = OB + 4 * i
            for et in range(2):
                r = NUM + i * 8 + et * 4; a = FR + (hh * 2 + et) * 4
                e(f"v_mfma_f32_16x16x32_bf16 v[{r}:{r+3}], v[{a}:{a+3}], v[{b}:{b+3}], 0")
    rs(A, 4)
    e("s_nop 1")
    for i in range(4): e(f"v_add_f32 v{DEN+4*i}, s47, v{DEN+4*i}")
    for i in range(4): e(f"v_rcp_f32 v{DEN+4*i}, v{DEN+4*i}")
    e("s_nop 0")
    for i in range(4):
        r = NUM + i * 8; ob = TB + 4 * i
        for j in range(0, 8, 2):
            e(f"v_pk_mul_f32 v[{r+j}:{r+j+1}], v[{r+j}:{r+j+1}], v[{DEN+4*i}:{DEN+4*i+1}] op_sel_hi:[1,0]")
        for j in range(0, 8, 2):
            e(f"v_cvt_pk_bf16_f32 v{ob+j//2}, v{r+j}, v{r+j+1}")
        e(f"buffer_store_dwordx4 v[{ob}:{ob+3}], v{VXO}, s[20:23], 0 offen offset:{i*1024}{SC1}")
    stamps_flush(A)
    A.label(f"{tag}_out")
    set_signal(A, 33, cA)
    e(f"s_branch {nxt}")
    NST = opt.get("stag", 10)
    LD = Loader(A, "qkv", SET_A, 130, first=3)
    NX = Loader(A, "wo", SET_B, 140)
    def early():
        LD.setup(coords=False)
        e(f"s_lshl_b32 s20, s33, 2"); e(f"s_add_u32 s20, s20, s{S_WV}"); e("s_sub_u32 s20, s20, 4"); e("s_lshl_b32 s20, s20, 12"); e(f"s_add_u32 s20, s20, {WS_ST}")
        srd_off(A, 16, "s28", "s29", "s20", 4096)
        e("v_and_b32 v3, 63, v0"); e("v_lshlrev_b32 v4, 2, v3")
        e(f"s_lshl_b32 s20, s{S_WV}, 9"); e(f"s_add_u32 s20, s20, {LST - 2048}")
        e("v_and_b32 v3, 31, v3"); e("v_lshlrev_b32 v3, 2, v3"); e("v_add_u32 v3, s20, v3")
        e(f"s_cmp_lg_u32 s{S_LAYER}, 0"); e(f"s_cbranch_scc1 {tag}_e1")
        e(f"s_load_dwordx4 s[4:7], s[0:1], {KA['wg']}")
        e(f"s_load_dwordx2 s[12:13], s[0:1], {KA['wo']}")
        e(f"s_lshl_b32 s20, s2, 2"); e(f"s_add_u32 s20, s20, s{S_WV}"); e("s_sub_u32 s20, s20, 4")
        e("s_lshr_b32 s48, s20, 3"); e("s_and_b32 s49, s20, 7")
        e("s_sub_u32 s30, s48, 56"); e("s_min_u32 s30, s30, s48"); e("s_lshl_b32 s30, s30, 7")
        e(f"s_mul_i32 s21, s49, {128*F*2}"); e("s_add_u32 s30, s30, s21")
        e("s_sub_u32 s21, s20, 896"); e("s_lshl_b32 s21, s21, 14")
        e("s_cmp_lt_u32 s48, 56")
        e("s_waitcnt lgkmcnt(0)")
        e("s_cselect_b32 s44, s4, s6"); e("s_cselect_b32 s45, s5, s7"); e("s_mov_b32 s47, 0x00020000")
        e(f"s_mov_b32 s46, {D*F*2}"); e(f"s_movk_i32 s22, {F*2}")
        e("s_cmp_ge_u32 s2, 224")
        e("s_cselect_b32 s44, s12, s44"); e("s_cselect_b32 s45, s13, s45"); e(f"s_cselect_b32 s46, {D*D*2}, s46")
        e("s_cselect_b32 s30, s21, s30"); e("s_cselect_b32 s22, 128, s22")
        e("s_lshl_b32 s14, s22, 3")
        e("v_and_b32 v20, 63, v0")
        e("v_lshrrev_b32 v21, 3, v20"); e("v_mul_lo_u32 v21, s22, v21"); e("v_and_b32 v22, 7, v20"); e("v_lshl_add_u32 v21, v22, 4, v21")
        e("s_lshr_b32 s20, s2, 3"); e("s_and_b32 s21, s2, 7"); e("s_lshl_b32 s21, s21, 1"); e("s_add_u32 s20, s20, s21")
        e(f"s_mul_i32 s21, s20, {65536 // NST + 1}"); e("s_lshr_b32 s21, s21, 16"); e(f"s_mul_i32 s21, s21, {NST}"); e("s_sub_u32 s15, s20, s21")
        A.label(f"{tag}_e1")
    idle_head(A, tag, skip_first=True, early=early)
    if opt.get("hprio"): e("s_setprio 2")
    LD.step()
    for i in range(16):
        e(f"buffer_load_dword v{32+i}, v4, s[16:19], 0 offen offset:{i*256}{SC1}")
    LD.step()
    e(f"s_waitcnt vmcnt({LD.np})")
    stats_finish(e, 32, 5, 6, 7)
    e(f"v_mul_f32 v5, {LOG2E:#x}, v7")
    e("ds_write_b32 v3, v6"); e("ds_write_b32 v3, v7 offset:128"); e("ds_write_b32 v3, v5 offset:256")
    e("s_waitcnt lgkmcnt(0)")
    e(f"s_cmp_lg_u32 s{S_LAYER}, 0"); e(f"s_cbranch_scc1 {tag}_h1")
    LD.loop(f"{tag}_i3", "s15")
    L = 64
    for i in range(16):
        e(f"buffer_load_dwordx4 v[{L+4*i}:{L+4*i+3}], v21, s[44:47], s30 offen")
        if i < 15: e("s_add_u32 s30, s30, s14")
    LD.step(); LD.step()
    for i in range(16):
        if i == 8: LD.step()
        t = (32 if i == 0 else 40 + 8 * (i % 2))
        for j in range(4):
            e(f"v_lshlrev_b32 v{t+2*j}, 16, v{L+4*i+j}"); e(f"v_and_b32 v{t+2*j+1}, 0xffff0000, v{L+4*i+j}")
        if i:
            for j in range(4):
                e(f"v_pk_add_f32 v[{32+2*j}:{33+2*j}], v[{32+2*j}:{33+2*j}], v[{t+2*j}:{t+2*j+1}]")
    e("s_nop 1")
    for j in range(4): e(f"v_permlane32_swap_b32 v{32+j}, v{36+j}")
    e("s_nop 0")
    for j in (0, 2): e(f"v_pk_add_f32 v[{32+j}:{33+j}], v[{32+j}:{33+j}], v[{36+j}:{37+j}]")
    e("s_nop 1")
    for j in range(2): e(f"v_permlane16_swap_b32 v{32+j}, v{34+j}")
    e("s_nop 1")
    e("v_pk_add_f32 v[32:33], v[32:33], v[34:35]")
    e("s_nop 1")
    for j in range(2): e(f"v_add_f32_dpp v{32+j}, v{32+j}, v{32+j} row_ror:8 row_mask:0xf bank_mask:0xf")
    e("v_and_b32 v21, 8, v20"); e("v_cmp_ne_u32 vcc, 0, v21")
    e("v_lshlrev_b32 v22, 3, v22"); e("v_lshrrev_b32 v21, 3, v20"); e("v_add_lshl_u32 v22, v22, v21, 5")
    e("v_cndmask_b32 v32, v32, v33, vcc")
    srd_off(A, 44, "s28", "s29", WS_CS2, 2 * F * 32)
    e("s_lshl_b32 s48, s48, 11"); e("s_lshl_b32 s49, s49, 2"); e("s_add_u32 s48, s48, s49")
    e(f"buffer_store_dword v32, v22, s[44:47], s48 offen{SC1}")
    assert NST - 1 + 5 <= G.NT - 2
    e(f"s_sub_u32 s15, {G.NT - 7}, s15")
    e(f"s_branch {tag}_h2")
    A.label(f"{tag}_h1")
    LD.step()
    e(f"s_mov_b32 s15, {G.NT - 5}")
    A.label(f"{tag}_h2")
    NX.setup()
    fpre[0]()
    LD.loop(f"{tag}_i4", "s15")
    for _ in range(3): NX.issue()
    e("s_waitcnt vmcnt(6)")
    e("s_barrier")
    fpre[1](0)
    e("s_barrier")
    fpre[1](1)
    srd_off(A, 44, "s28", "s29", WS_XC, 4 * MB)
    e(f"s_lshl_b32 s48, s2, 2"); e(f"s_add_u32 s48, s48, s{S_WV}"); e("s_sub_u32 s48, s48, 4"); e("s_lshl_b32 s48, s48, 12")
    e("v_and_b32 v20, 63, v0"); e("v_lshlrev_b32 v20, 4, v20")
    for i in range(4): e(f"v_mov_b32 v{24+i}, -1")
    e("s_barrier")
    for i in range(4): e(f"buffer_store_dwordx4 v[24:27], v20, s[44:47], s48 offen offset:{i*1024}{SC1}")
    if gen.STAMP: e(f"s_add_u32 s{S_PH}, s{S_PH}, 1")
    set_signal(A, 34, cQ)
    set_poll(A, 34, cQ, 16)
    def early2():
        wd_warm_base(A)
        e(f"s_cmp_lg_u32 s{S_LAYER}, 0"); e(f"s_cbranch_scc1 {tag}_nw")
        warm(A, [64 * i for i in range(14)], 896)
        A.label(f"{tag}_nw")
        e(f"s_mul_i32 s39, s{S_LAYER}, {WS_KV2 - WS_KV}"); e("s_lshl_b32 s38, s34, 12"); e("s_add_u32 s38, s38, s39"); e(f"s_add_u32 s38, s38, {WS_Z}")
        srd_off(A, 16, "s28", "s29", "s38", 4096)
        e("v_and_b32 v4, 63, v0"); e("v_lshlrev_b32 v5, 2, v4")
        e("v_and_b32 v6, 3, v4"); e("v_lshlrev_b32 v6, 1, v6")
        e("v_bfe_u32 v7, v4, 2, 2"); e("v_lshl_add_u32 v6, v7, 4, v6")
        e("v_bfe_u32 v7, v4, 4, 1"); e("v_lshl_add_u32 v6, v7, 3, v6")
        e("v_lshrrev_b32 v7, 5, v4"); e("v_lshl_add_u32 v6, v7, 6, v6")
        e(f"v_add_u32 v6, {LDS_Z + 1024}, v6")
    idle_head(A, tag + "b", early=early2)
    e(f"s_cmp_lg_u32 s{S_WV}, 5"); e(f"s_cbranch_scc1 {tag}_nz")
    for m in range(16):
        e(f"buffer_load_dword v{8+m}, v5, s[16:19], 0 offen offset:{m*256}{SC1}")
    e("s_waitcnt vmcnt(0)")
    for st in (8, 4, 2, 1):
        for i in range(st): e(f"v_add_f32 v{8+i}, v{8+i}, v{8+i+st}")
    e("v_cvt_pk_bf16_f32 v8, v8, v8")
    e("ds_write_b16 v6, v8")
    e("s_waitcnt lgkmcnt(0)")
    A.label(f"{tag}_nz")
    e("s_barrier")
    idle_tail(A, f"{tag}_out")

def k_prep2(A, name):
    e = A.e
    NCS, NWM = 192, 0
    st = gen.STAMP; gen.STAMP = False
    kernel_head(A, name, 256 + NCS + NWM)
    e(f"s_load_dwordx4 s[4:7], s[0:1], {KA['x']}")
    e(f"s_load_dwordx2 s[28:29], s[0:1], {KA['ws']}")
    e("v_lshrrev_b32 v4, 6, v0"); e("v_and_b32 v5, 63, v0")
    e("v_readfirstlane_b32 s30, v4")
    e("v_lshlrev_b32 v1, 4, v5")
    e("s_cmp_ge_u32 s2, 256")
    e(f"s_cbranch_scc1 {name}_cs")
    e("s_lshl_b32 s31, s2, 2"); e("s_add_u32 s31, s31, s30")
    e("s_lshr_b32 s35, s31, 4"); e("s_and_b32 s34, s31, 15")
    rowmajor_lane_off(A, 2, 3)
    e("s_lshl_b32 s36, s35, 16"); e("s_lshl_b32 s37, s34, 7"); e("s_add_u32 s36, s36, s37"); e(f"s_add_u32 s37, s36, {16*2048}")
    e("s_lshl_b32 s38, s35, 16"); e("s_lshl_b32 s39, s34, 12"); e("s_add_u32 s38, s38, s39")
    e("s_waitcnt lgkmcnt(0)")
    srd(A, 8, "s4", "s5", S * D * 2)
    srd_off(A, 12, "s28", "s29", "s38", 4096)
    R = 16
    for i in range(4):
        so, off = rowmajor_frag(i, "s36", "s37")
        e(f"buffer_load_dwordx4 v[{R+4*i}:{R+4*i+3}], v2, s[8:11], {so} offen offset:{off} nt")
    srd_off(A, 40, "s28", "s29", WS_FL, 16384)
    for i in range(4): e(f"v_mov_b32 v{40+i}, 0")
    e("s_lshl_b32 s44, s31, 10")
    e("buffer_store_dwordx4 v[40:43], v1, s[40:43], s44 offen")
    e("s_lshl_b32 s36, s35, 12"); e("s_lshl_b32 s37, s34, 8"); e("s_add_u32 s36, s36, s37")
    srd_off(A, 16, "s28", "s29", WS_ST, 64 * 4096)
    e("s_waitcnt vmcnt(0)")
    for i in range(4):
        e(f"v_permlane16_swap_b32 v{R+4*i}, v{R+4*i+2}")
        e(f"v_permlane16_swap_b32 v{R+4*i+1}, v{R+4*i+3}")
    e("s_nop 1")
    for i in range(4):
        e(f"buffer_store_dwordx4 v[{R+4*i}:{R+4*i+3}], v1, s[12:15], 0 offen offset:{i*1024}")
    stats_emit(A, 16, [R + i for i in range(16)], 8)
    e("v_lshrrev_b32 v1, 2, v1")
    e("buffer_store_dword v8, v1, s[16:19], s36 offen")
    e(f"s_branch {name}_fin")
    A.label(f"{name}_cs")
    e("s_waitcnt lgkmcnt(0)")
    e("s_sub_u32 s44, s2, 256")
    colsum_part(A, name, 44, [(0, 6, 7, 6)], f"{name}_fin")
    A.label(f"{name}_fin")
    kernel_tail(A, name, 64)
    gen.STAMP = st
    return dict(name=name, grid=256 + NCS + NWM, block=256, lds=8192)

def k_mega(A, o):
    e = A.e
    A.begin_kernel(NAME)
    e("s_cmp_ge_u32 s2, 256")
    e(f"s_cbranch_scc1 {NAME}_end")
    e(f"s_load_dwordx2 s[28:29], s[0:1], {KA['ws']}")
    e("v_lshrrev_b32 v1, 6, v0")
    e(f"s_mov_b32 s{S_LAYER}, 0"); e(f"s_mov_b32 s{S_SIG}, 0"); e(f"s_mov_b32 s{S_PH}, 0")
    e(f"v_readfirstlane_b32 s{S_WV}, v1")
    e("s_waitcnt lgkmcnt(0)")
    srd_off(A, FL, "s28", "s29", WS_FL, 16384)
    e(f"s_cmp_lt_u32 s{S_WV}, 4"); e("s_cbranch_scc1 pq")
    NX = Loader(A, "qkv", SET_B, 140)
    NX.setup()
    for _ in range(3): NX.issue()
    p_qkv(A, "pq", "po", ffn_prefetch(A, 1, o.get("ffn")), o.get("qkv"))
    p_proj(A, "po", D, False, "pu", o.get("wo"))
    p_ffn(A, "pu", "pd", o.get("ffn"))
    p_proj(A, "pd", F, True, "pq", o.get("down"))
    A.label(f"{NAME}_end")
    e("s_endpgm")
    A.add_desc(NAME, 256, 102, 256)
    return dict(name=NAME, grid=256, block=512, lds=163840)

def build_mega(path, stamp_on=False, o=None):
    gen.STAMP = stamp_on
    uid[0] = 0
    A = Asm()
    prep = k_prep2(A, "prep_kernel")
    mega = k_mega(A, o or {})
    for k in (prep, mega): A.launch(k["name"], k["grid"], k["block"], k["lds"])
    open(path, "w").write(A.text(HEADER))

if __name__ == "__main__":
    if len(sys.argv) > 1:
        import json
        for name, o in json.loads(sys.argv[1]).items(): build_mega(f"m_{name}_stamp.s", True, o)
        sys.exit(0)
    build_mega("mega_stamp.s", True)
    build_mega("mega.s", False)
```

```python
import sys, math
import gen
from gen import *

WS_FL = 30 * MB
WS_KV2 = 32 * MB
cQ, cA, cO, cU, cD = 0, 16, 32, 40, 48
LDS_P = 131072
LDS_R = 98304
LDS_Z = LDS_P + 24576
WS_CS2 = WS_CS + 65536
V_RES = 228
WS_XB = WS_O
WS_STB = WS_ST + 262144
QSBY = 3 * 64 * 128
WS_XC = WS_PQ
S_DUMP = 79
SC1 = " sc1"
S_WV, S_LAYER, S_SIG, S_POFF, S_PTGT, S_PH = 3, 98, 99, 100, 101, 78
FL = 80
NAME = "mega_kernel"

def rs(A, k):
    if gen.STAMP:
        A.e(f"s_memrealtime s[{60+2*k}:{61+2*k}]")
        if k in (3, 4): A.e(f"s_memtime s[{66+2*k}:{67+2*k}]")
def rs_s(st, k):
    if gen.STAMP: st.i(f"s_memrealtime s[{60+2*k}:{61+2*k}]\n    s_waitcnt lgkmcnt(0)")
uid = [0]
DBGOUT = False
def stamps_flush(A):
    if not gen.STAMP: return
    e = A.e
    uid[0] += 1
    l = f"sf{uid[0]}"
    rs(A, 5)
    e(f"s_cmp_lg_u32 s{S_WV}, 0"); e(f"s_cbranch_scc1 {l}")
    srd_off(A, 52, "s28", "s29", WS_DBG, 32 * 65536)
    e("s_lshl_b32 s58, s2, 6"); e(f"s_lshl_b32 s59, s{S_PH}, 16"); e("s_add_u32 s58, s58, s59")
    e("s_waitcnt lgkmcnt(0)")
    e("s_mov_b64 s[56:57], exec"); e("s_mov_b64 exec, 1")
    e("v_mov_b32 v2, 0")
    for k in range(8):
        e(f"v_mov_b32 v3, s{60+2*k}")
        e(f"buffer_store_dword v3, v2, s[52:55], s58 offen offset:{4*k}")
    for k in range(4):
        e(f"v_mov_b32 v3, s{4+k}")
        e(f"buffer_store_dword v3, v2, s[52:55], s58 offen offset:{48+4*k}")
    if DBGOUT:
        e("s_cmp_lg_u32 s2, 40"); e(f"s_cbranch_scc1 {l}d")
        e(f"s_load_dwordx2 s[52:53], s[0:1], {KA['dbg']}"); e("s_movk_i32 s54, 64"); e("s_mov_b32 s55, 0x00020000")
        e(f"s_mul_i32 s58, s{S_PH}, 43"); e("s_lshr_b32 s58, s58, 7"); e(f"s_add_u32 s58, s58, s{S_PH}"); e("s_add_u32 s58, s58, 5")
        e("s_and_b32 s58, s58, 15"); e("s_lshl_b32 s58, s58, 2")
        e("s_sub_u32 s59, s70, s76"); e("v_mov_b32 v3, s59")
        e("s_waitcnt lgkmcnt(0)")
        e("buffer_store_dword v3, v2, s[52:55], s58 offen sc1")
        e(f"s_cmp_lg_u32 s{S_PH}, 0"); e(f"s_cbranch_scc1 {l}d")
        e("s_sub_u32 s59, s66, s76"); e("v_mov_b32 v3, s59")
        e("buffer_store_dword v3, v2, s[52:55], 0 offen offset:12 sc1")
        A.label(l + "d")
    e("s_mov_b64 exec, s[56:57]")
    A.label(l)
    e(f"s_add_u32 s{S_PH}, s{S_PH}, 1")

def phase_begin(A, first=False):
    rs(A, 0)
    if gen.STAMP and first:
        A.e("s_waitcnt lgkmcnt(0)"); A.e(f"s_cmp_eq_u32 s{S_LAYER}, 0"); A.e("s_cselect_b32 s60, s76, s60")

def set_poll(A, idx_sgpr, base, target, prev_layer=False):
    e = A.e
    e(f"s_lshl_b32 s{S_POFF}, s{S_LAYER}, 6"); e(f"s_add_u32 s{S_POFF}, s{S_POFF}, s{idx_sgpr}")
    if prev_layer:
        e(f"s_add_u32 s{S_POFF}, s{idx_sgpr}, {base}")
        e(f"s_mul_i32 s{S_PTGT}, s{S_LAYER}, {target}")
    else:
        e(f"s_add_u32 s{S_POFF}, s{S_POFF}, {base}")
        e(f"s_mov_b32 s{S_PTGT}, {target}")
    e(f"s_lshl_b32 s{S_POFF}, s{S_POFF}, 7")

def set_signal(A, idx_sgpr, base):
    e = A.e
    e(f"s_lshl_b32 s{S_SIG}, s{S_LAYER}, 6"); e(f"s_add_u32 s{S_SIG}, s{S_SIG}, s{idx_sgpr}")
    e(f"s_add_u32 s{S_SIG}, s{S_SIG}, {base}"); e(f"s_lshl_b32 s{S_SIG}, s{S_SIG}, 7")

def do_signal(o, va, vb, wait=True, fl=FL, off=None):
    off = off or f"s{S_SIG}"
    if gen.STAMP: o("s_memrealtime s[60:61]")
    o("s_mov_b64 exec, 1")
    o(f"v_mov_b32 v{va}, 0"); o(f"v_mov_b32 v{vb}, 1")
    o(f"buffer_atomic_add v{vb}, v{va}, s[{fl}:{fl+3}], {off} offen sc1")
    if wait:
        o("s_waitcnt vmcnt(0)")
        if gen.STAMP: o("s_memrealtime s[62:63]")
    o("s_mov_b64 exec, -1")

def do_poll(o, va, vb, tag, fl=FL, diag=True):
    o("s_mov_b64 exec, 1")
    o(f"v_mov_b32 v{va}, 0")
    o("s_mov_b32 s50, 0x40000")
    o(f"{tag}_poll:")
    o(f"buffer_load_dword v{vb}, v{va}, s[{fl}:{fl+3}], s{S_POFF} offen sc1")
    o("s_sub_u32 s50, s50, 1")
    o(f"s_cbranch_scc1 {tag}_pdone")
    o("s_waitcnt vmcnt(0)")
    o(f"v_readfirstlane_b32 s51, v{vb}")
    o(f"s_cmp_lt_u32 s51, s{S_PTGT}")
    o(f"s_cbranch_scc1 {tag}_poll")
    o(f"{tag}_pdone:")
    if gen.STAMP and diag:
        o("s_memrealtime s[64:65]")
        o(f"s_add_u32 s52, s28, {WS_DBG}"); o("s_addc_u32 s53, s29, 0"); o(f"s_mov_b32 s54, {32*65536}"); o("s_mov_b32 s55, 0x00020000")
        o("s_lshl_b32 s58, s2, 6"); o(f"s_lshl_b32 s59, s{S_PH}, 16"); o("s_add_u32 s58, s58, s59")
        o("s_waitcnt lgkmcnt(0)")
        for k, r in enumerate((60, 62, 64, 50)):
            o(f"v_mov_b32 v{vb}, s{r}")
            o(f"buffer_store_dword v{vb}, v{va}, s[52:55], s58 offen offset:{32+4*k}")
    o("s_mov_b64 exec, -1")

def bar_loop(A, tag, n, body=None):
    e = A.e
    if n <= 2 and not body:
        for _ in range(n): e("s_barrier")
        return
    e(f"s_mov_b32 s43, {n}")
    A.label(tag)
    e("s_barrier")
    if body: body()
    e("s_sub_u32 s43, s43, 1"); e("s_cmp_lg_u32 s43, 0"); e(f"s_cbranch_scc1 {tag}")

def warm(A, offs, adv):
    for o in offs: A.e(f"s_load_dword s{S_DUMP}, s[12:13], {o:#x}")
    A.e(f"s_add_u32 s12, s12, {adv}"); A.e("s_addc_u32 s13, s13, 0")

DBG_X, DBG_G = 0, 8
def idle_head(A, tag, first=False, early=None):
    e = A.e
    A.label(f"{tag}_idle")
    fl = FL
    if first:
        fl = 24
        e(f"s_load_dwordx2 s[4:5], s[0:1], {KA['dbg']}")
        e(f"s_lshl_b32 s31, s33, 4")
        e(f"s_cmp_eq_u32 s{S_LAYER}, 0")
        e(f"s_cselect_b32 s{S_POFF}, s31, s{S_POFF}"); e(f"s_cselect_b32 s{S_PTGT}, 16, s{S_PTGT}")
        e(f"s_cselect_b32 s26, 256, s{FL+2}"); e("s_mov_b32 s27, 0x00020000")
        e("s_waitcnt lgkmcnt(0)")
        e(f"s_cselect_b32 s24, s4, s{FL}"); e(f"s_cselect_b32 s25, s5, s{FL+1}")
    e("s_waitcnt vmcnt(0)")
    e("s_barrier")
    e(f"s_cmp_lg_u32 s{S_WV}, 4"); e(f"s_cbranch_scc1 {tag}_i1")
    if first:
        e(f"s_cmp_eq_u32 s{S_LAYER}, 0"); e(f"s_cbranch_scc1 {tag}_i1")
    do_signal(e, 1, 2, wait=False)
    A.label(f"{tag}_i1")
    if early: early()
    e(f"s_cmp_lg_u32 s{S_WV}, 4"); e(f"s_cbranch_scc1 {tag}_i2")
    e("s_waitcnt vmcnt(0)")
    if gen.STAMP: e("s_memrealtime s[62:63]")
    do_poll(e, 1, 2, tag, fl=fl)
    A.label(f"{tag}_i2")
    e("s_barrier")

def idle_tail(A, nxt):
    if gen.STAMP: A.e(f"s_add_u32 s{S_PH}, s{S_PH}, 1")
    A.e(f"s_branch {nxt}")

def col_reduce(A, r, vlane, vt):
    e = A.e
    e("s_nop 1")
    for j in range(4): e(f"v_permlane32_swap_b32 v{r+j}, v{r+4+j}")
    e("s_nop 0")
    for j in (0, 2): e(f"v_pk_add_f32 v[{r+j}:{r+1+j}], v[{r+j}:{r+1+j}], v[{r+4+j}:{r+5+j}]")
    e(f"v_and_b32 v{vt}, 8, v{vlane}"); e(f"v_cmp_ne_u32 vcc, 0, v{vt}")
    for j in range(2): e(f"v_permlane16_swap_b32 v{r+j}, v{r+2+j}")
    e("s_nop 1")
    e(f"v_pk_add_f32 v[{r}:{r+1}], v[{r}:{r+1}], v[{r+2}:{r+3}]")
    e("s_nop 1")
    for j in range(2): e(f"v_add_f32_dpp v{r+j}, v{r+j}, v{r+j} row_ror:8 row_mask:0xf bank_mask:0xf")
    e(f"v_cndmask_b32 v{r}, v{r}, v{r+1}, vcc")

def wd_warm_base(A):
    e = A.e
    e(f"s_load_dwordx2 s[12:13], s[0:1], {KA['wd']}")
    e(f"s_lshl_b32 s16, s2, 2"); e(f"s_add_u32 s16, s16, s{S_WV}"); e("s_sub_u32 s16, s16, 4"); e("s_mul_i32 s16, s16, 7168")
    e("s_waitcnt lgkmcnt(0)")
    e("s_add_u32 s12, s12, s16"); e("s_addc_u32 s13, s13, 0")

SET_A = dict(srd=8, lds=40, woff=41, p=39, stg=38, r=35, m=33, n=34, t0=31, t1=32)
SET_B = dict(srd=24, lds=36, woff=37, p=20, stg=21, r=22, m=16, n=17, t0=18, t1=19)
class Loader:
    def __init__(self, A, kind, rs_, v, first=0):
        self.A, self.kind, self.s, self.v, self.first = A, kind, rs_, v, first
        self.T = 16
        self.ldw = {"qkv": 3 * D * 2}.get(kind, D * 2)
        self.NT = {"qkv": 16, "wo": 16, "down": 28}[kind]
        self.np = {"qkv": 6, "wo": 2, "down": 4}[kind]
        self.sb = {"qkv": QSBY, "wo": 8192, "down": 16384}[kind]
        self.base = {"qkv": 0, "wo": LDS_P, "down": LDS_R}[kind]
        self.rot = 2 if kind == "down" else 0
    def setup(self, coords=True):
        A, s, v, e = self.A, self.s, self.v, self.A.e
        k, ldw = self.kind, self.ldw
        e(f"s_load_dwordx2 s[4:5], s[0:1], {KA[{'qkv': 'wqkv', 'wo': 'wo', 'down': 'wd'}[k]]}")
        if coords: (qkv_coords if k == "qkv" else proj_coords)(A, s["m"], s["n"], s["t0"], s["t1"])
        lane_consts_fullline(A, self.T, ldw, v + 6, v, None)
        t0, t1 = s["t0"], s["t1"]
        e(f"s_and_b32 s{t1}, s{S_WV}, 3")
        e(f"s_lshl_b32 s{s['lds']}, s{t1}, 10")
        if self.base: e(f"s_add_u32 s{s['lds']}, s{s['lds']}, {self.base}")
        e(f"s_mul_i32 s{t0}, s{t1}, {8*ldw}"); e(f"s_lshl_b32 s{t1}, s{s['n']}, 7"); e(f"s_add_u32 s{t0}, s{t0}, s{t1}")
        e(f"v_add_u32 v{v}, s{t0}, v{v}")
        if k == "qkv":
            for j in range(1, 6): e(f"v_add_u32 v{v+j}, {(j >> 1) * 2048 + (j & 1) * 32 * ldw}, v{v}")
            e(f"s_add_u32 s{s['r']}, s{s['m']}, s{s['n']}")
        else:
            e(f"v_add_u32 v{v+1}, {32*ldw}, v{v}")
            if k == "down": e(f"v_xor_b32 v{v+2}, 0x80, v{v}"); e(f"v_xor_b32 v{v+3}, 0x80, v{v+1}")
            e(f"s_lshr_b32 s{s['r']}, s{s['n']}, 1"); e(f"s_add_u32 s{s['r']}, s{s['r']}, s{s['m']}")
        e(f"s_and_b32 s{s['r']}, s{s['r']}, 3")
        e(f"s_mov_b32 s{s['p']}, {self.first}")
        e(f"s_mov_b32 s{s['stg']}, {((self.first + self.rot) % 4) * self.sb}")
        if k == "down": e(f"s_and_b32 s{t0}, s{s['n']}, 1"); e(f"s_mul_i32 s{t0}, s{t0}, {F * D}")
        e("s_waitcnt lgkmcnt(0)")
        if k == "down": srd_off(A, s["srd"], "s4", "s5", f"s{t0}", F * D)
        else: srd(A, s["srd"], "s4", "s5", D * ldw)
    def issue(self, guard=False):
        A, s, e = self.A, self.s, self.A.e
        uid[0] += 1; l = f"ld{uid[0]}"
        w, t, NT = s["woff"], s["t0"], self.NT
        if guard: e(f"s_cmp_ge_u32 s{s['p']}, {NT}"); e(f"s_cbranch_scc1 {l}")
        e(f"s_and_b32 s{t}, s{s['p']}, 3"); e(f"s_cmp_eq_u32 s{t}, s{s['r']}"); e(f"s_cselect_b32 s{t}, 3, -1")
        e(f"s_add_u32 s{w}, s{s['p']}, s{t}")
        e(f"s_add_u32 s{t}, s{w}, {NT}"); e(f"s_min_u32 s{w}, s{w}, s{t}")
        e(f"s_sub_u32 s{t}, s{w}, {NT}"); e(f"s_min_u32 s{w}, s{w}, s{t}")
        e(f"s_mul_i32 s{w}, s{w}, {64 * self.ldw}")
        e(f"s_add_u32 s{t}, s{s['lds']}, s{s['stg']}")
        for j in range(self.np):
            e(f"s_add_u32 m0, s{t}, {j * 4096}")
            e("s_nop 0")
            e(f"buffer_load_dwordx4 v{self.v + j}, s[{s['srd']}:{s['srd']+3}], s{w} offen lds")
        e(f"s_add_u32 s{s['stg']}, s{s['stg']}, {self.sb}")
        e(f"s_cmp_eq_u32 s{s['stg']}, {4 * self.sb}"); e(f"s_cselect_b32 s{s['stg']}, 0, s{s['stg']}")
        if guard: A.label(l)
        e(f"s_add_u32 s{s['p']}, s{s['p']}, 1")
    def step(self):
        A, s, e = self.A, self.s, self.A.e
        uid[0] += 1; l = f"st{uid[0]}"
        e(f"s_waitcnt vmcnt({self.np})")
        e(f"s_cmp_le_u32 s{s['p']}, {self.NT}"); e(f"s_cbranch_scc1 {l}")
        e("s_waitcnt vmcnt(0)")
        A.label(l)
        e("s_barrier")
        self.issue(guard=True)
    def loop(self, tag, n, body=None):
        A, e = self.A, self.A.e
        e(f"s_mov_b32 s43, {n}")
        if isinstance(n, str): e("s_cmp_eq_u32 s43, 0"); e(f"s_cbranch_scc1 {tag}x")
        A.label(tag)
        self.step()
        if body: body()
        e("s_sub_u32 s43, s43, 1"); e("s_cmp_lg_u32 s43, 0"); e(f"s_cbranch_scc1 {tag}")
        A.label(f"{tag}x")

class MGemm(Gemm):
    npre = 3
    def xload(self, st, q, sb):
        super().xload(st, q, sb)
        op = st.ops[-1]; st.ops[-1] = (op[0], op[1] + self.opt.get("xfl", SC1), op[2])
    def pro_w(self, st, t0, t1):
        for t in range(t0, t1): self.pro_tile(st, t, x=False)
    def pro_w_pre(self, st):
        tmp = Stream()
        self.pro_w(tmp, 0, self.npre)
        st.pre |= {op[2] for op in tmp.ops if op[0] == "vm"}
        if self.skew: self.set_woff(st, self.STAGES - 2)
        else: st.i(f"s_mov_b32 s{self.s_woff}, {(self.npre - 1) * self.BK * self.ldw}")
    def pro_w_emit(self):
        tmp = Stream()
        self.pro_w(tmp, 0, self.npre)
        for op in tmp.ops: self.A.e(op[1])
    def pro_x(self, st):
        for t in range(self.XT): self.pro_tile(st, t, w=False)
    def pro_order(self, o):
        for t in range(self.LOOK):
            for l in self.order_next(t): o(l)
    def sync2(self, st):
        st.i("s_barrier")
        rs_s(st, 2)
    def reads(self, st):
        for f in range(self.LA):
            for rd in range(2): self.wread(st, f, rd)
    def emit(self, pro, loop_end=None):
        A = self.A
        nit = self.NT // self.UN
        pl, bl = resolve(pro, [self.body(it) for it in range(nit)])
        for l in pl: A.e(l)
        if gen.STAMP: A.e("s_waitcnt lgkmcnt(0)"); rs(A, 3); A.e("s_waitcnt lgkmcnt(0)")
        A.e(f"s_mov_b32 s{self.s_it}, {nit}")
        A.e(".p2align 6")
        A.label(f"{self.name}_loop")
        for l in bl: A.e(l)
        A.e(f"s_sub_u32 s{self.s_it}, s{self.s_it}, 1")
        if loop_end: loop_end()
        A.e(f"s_cmp_lg_u32 s{self.s_it}, 0")
        A.e(f"s_cbranch_scc1 {self.name}_loop")
        rs(A, 4)

def sync1(A):
    A.e("s_waitcnt vmcnt(0)")
    A.e("s_barrier")
    rs(A, 1)

def proj_coords(A, sm, sn, t0, t1):
    e = A.e
    e(f"s_and_b32 s{t0}, s2, 7"); e(f"s_lshr_b32 s{t1}, s2, 3")
    e(f"s_lshr_b32 s{sm}, s{t0}, 1"); e(f"s_lshl_b32 s{sm}, s{sm}, 2"); e(f"s_lshr_b32 s{sn}, s{t1}, 3"); e(f"s_add_u32 s{sm}, s{sm}, s{sn}")
    e(f"s_and_b32 s{sn}, s{t0}, 1"); e(f"s_and_b32 s{t1}, s{t1}, 7"); e(f"s_lshl_b32 s{t1}, s{t1}, 1"); e(f"s_add_u32 s{sn}, s{sn}, s{t1}")

def p_proj(A, tag, K, down, nxt, opt=None):
    e = A.e
    opt = opt or {}
    T = 16
    ldw = D * 2
    split = down and opt.get("split", 1)
    A.label(tag)
    phase_begin(A)
    if down: e(f"s_load_dwordx2 s[6:7], s[0:1], {KA['out']}")
    proj_coords(A, 33, 34, 31, 32)
    e("s_lshr_b32 s45, s33, 1")
    if down: set_poll(A, 45, cU, 32)
    else: set_poll(A, 33, cA, 16)
    e(f"s_cmp_ge_u32 s{S_WV}, 4"); e(f"s_cbranch_scc1 {tag}_idle")
    VP, VF, VXO, VT = 1, 5, 9, 10
    ACC, RES, WF = 16, V_RES, 80
    XF = WF + 32
    e(f"v_and_b32 v{VXO}, 63, v0"); e(f"v_lshlrev_b32 v{VXO}, 4, v{VXO}")
    e(f"s_lshl_b32 s35, s33, 2"); e(f"s_add_u32 s35, s35, s{S_WV}")
    e(f"s_lshl_b32 s37, s35, 16"); e("s_lshl_b32 s38, s34, 12"); e("s_add_u32 s37, s37, s38")
    if not down: e(f"s_add_u32 s37, s37, {WS_XB}")
    srd_off(A, 20, "s28", "s29", "s37", 4096)
    assert split or not down
    lane_consts_fullline(A, 16, ldw, VT, VP, VF)
    sb, rot = (16384, 2) if split else (8192, 0)
    opt = dict(opt); opt["now"] = 1
    G = MGemm(A, tag, T=16, NB=8 if split else 4, RG=1, K=K // 2 if split else K, STAGES=4, XT=opt.get("XT", 2), NWR=8,
              LA=opt.get("LA", 6 if split else 4), WG=2, npieces=1, stage_bytes=sb, piece_lds=None,
              frag_addr=fullline_frag_addr(16, VF, 64, lambda stg: (0, ((stg + rot) % 4) * sb)),
              acc=blk_acc(16, "v", ACC, 1), wfrag0=WF, xfrag0=XF, vpiece0=VP, vxoff=VXO,
              srd_w=8, srd_x=12, s_woff=41, s_xoff=42, s_ldsw=40, s_it=43, ldw=ldw, opt=opt)
    e("s_lshr_b32 s36, s34, 1"); e("s_add_u32 s36, s36, s33"); e("s_and_b32 s36, s36, 3")
    G.order_init(36)
    G.pro_order(e)
    for i in range(4): e(f"v_add_u32 v{VF+i}, {LDS_R if split else LDS_P}, v{VF+i}")
    e(f"s_mul_i32 s36, s35, {F*64}"); e(f"s_add_u32 s36, s36, {WS_H}")
    if split:
        e("s_and_b32 s37, s34, 1"); e(f"s_mul_i32 s37, s37, {K*32}"); e("s_add_u32 s36, s36, s37")
    srd_off(A, 12, "s28", "s29", "s36", G.K * 64)
    e("s_waitcnt lgkmcnt(0)")
    sync1(A)
    p = Stream()
    G.reads(p)
    for i in range(16):
        p.i(f"v_lshlrev_b32 v{ACC+2*i}, 16, v{RES+i}")
        p.i(f"v_and_b32 v{ACC+2*i+1}, 0xffff0000, v{RES+i}")
    if split:
        for i in range(0, 32, 2): p.i(f"v_pk_mov_b32 v[{ACC+32+i}:{ACC+33+i}], 0, 0")
    G.sync2(p)
    G.pro_x(p)
    G.emit(p)
    if split:
        e(f"s_lshl_b32 s36, s2, 2"); e(f"s_add_u32 s36, s36, s{S_WV}"); e("s_lshl_b32 s36, s36, 12"); e("s_xor_b32 s37, s36, 0x4000")
        srd_off(A, 16, "s28", "s29", WS_XC, 4 * MB)
        e("s_mov_b32 s50, 0x40000")
        for i in range(16):
            e(f"v_cvt_pk_bf16_f32 v{RES+i}, v{ACC+32+2*i}, v{ACC+33+2*i}")
            if i % 4 == 3:
                e(f"buffer_store_dwordx4 v[{RES+i-3}:{RES+i}], v{VXO}, s[16:19], s37 offen offset:{(i//4)*1024}{SC1}")
        X2 = ACC + 32
        e("s_waitcnt vmcnt(0)")
        e(f"s_branch {tag}_xp")
        if True:
            A.label(f"{tag}_xr")
            e("s_mov_b64 exec, 0xff")
            A.label(f"{tag}_xl")
            e(f"buffer_load_dwordx4 v[{X2}:{X2+3}], v{VXO}, s[16:19], s36 offen offset:3968{SC1}")
            e("s_sub_u32 s50, s50, 1"); e(f"s_cbranch_scc1 {tag}_xm")
            e("s_waitcnt vmcnt(0)")
            e(f"v_cmp_eq_u32 vcc, -1, v{X2+3}")
            e("s_nop 4")
            e(f"s_cbranch_vccnz {tag}_xl")
            A.label(f"{tag}_xm")
            e("s_mov_b64 exec, -1")
            e("s_max_i32 s50, s50, 0")
        A.label(f"{tag}_xp")
        for i in range(4):
            e(f"buffer_load_dwordx4 v[{X2+4*i}:{X2+4*i+3}], v{VXO}, s[16:19], s36 offen offset:{i*1024}{SC1}")
        e("s_sub_u32 s50, s50, 1"); e(f"s_cbranch_scc1 {tag}_xd")
        e("s_waitcnt vmcnt(0)")
        e(f"v_max3_u32 v{VT}, v{X2}, v{X2+1}, v{X2+2}")
        e(f"v_max3_u32 v{VT+1}, v{X2+3}, v{X2+4}, v{X2+5}")
        for i in range(6, 14, 4):
            e(f"v_max3_u32 v{VT}, v{VT}, v{X2+i}, v{X2+i+1}")
            e(f"v_max3_u32 v{VT+1}, v{VT+1}, v{X2+i+2}, v{X2+i+3}")
        e(f"v_max3_u32 v{VT}, v{VT}, v{X2+14}, v{X2+15}")
        e(f"v_max_u32 v{VT}, v{VT}, v{VT+1}")
        e(f"v_cmp_eq_u32 vcc, -1, v{VT}")
        e("s_nop 4")
        e(f"s_cbranch_vccnz {tag}_xr")
        A.label(f"{tag}_xd")
        e("s_waitcnt vmcnt(0)")
        T2 = X2 + 16
        for i in range(16):
            t = T2 + 2 * (i % 8)
            e(f"v_lshlrev_b32 v{t}, 16, v{X2+i}"); e(f"v_and_b32 v{t+1}, 0xffff0000, v{X2+i}")
            e(f"v_pk_add_f32 v[{ACC+2*i}:{ACC+2*i+1}], v[{ACC+2*i}:{ACC+2*i+1}], v[{t}:{t+1}]")
    if down:
        e(f"s_cmp_lg_u32 s{S_LAYER}, 0"); e(f"s_cbranch_scc1 {tag}_final")
    e("s_lshl_b32 s36, s35, 12"); e("s_lshl_b32 s37, s34, 8"); e("s_add_u32 s36, s36, s37")
    srd_off(A, 24, "s28", "s29", WS_ST if down else WS_STB, 64 * 4096)
    for i in range(16):
        e(f"v_cvt_pk_bf16_f32 v{RES+i}, v{ACC+2*i}, v{ACC+2*i+1}")
        if i % 4 == 3:
            e(f"buffer_store_dwordx4 v[{RES+i-3}:{RES+i}], v{VXO}, s[20:23], 0 offen offset:{(i//4)*1024}{SC1}")
    stats_emit(A, T, [RES + i for i in range(16)], VT)
    e(f"v_lshrrev_b32 v{VXO}, 2, v{VXO}")
    e(f"buffer_store_dword v{VT}, v{VXO}, s[24:27], s36 offen{SC1}")
    stamps_flush(A)
    A.label(f"{tag}_out")
    if down:
        set_signal(A, 33, cD)
        e(f"s_cmp_lg_u32 s{S_LAYER}, 0"); e(f"s_cbranch_scc1 {NAME}_end")
        e(f"s_mov_b32 s{S_LAYER}, 1")
    else:
        set_signal(A, 45, cO)
    e(f"s_branch {nxt}")
    if down:
        A.label(f"{tag}_final")
        srd(A, 24, "s6", "s7", S * D * 2)
        rowmajor_lane_off(A, VT, VT + 1)
        e("s_lshl_b32 s36, s35, 16"); e("s_lshl_b32 s37, s34, 7"); e("s_add_u32 s36, s36, s37")
        e(f"s_add_u32 s37, s36, {16*2048}")
        for i in range(16):
            e(f"v_cvt_pk_bf16_f32 v{RES+i}, v{ACC+2*i}, v{ACC+2*i+1}")
        e("s_nop 0")
        for i in range(4):
            e(f"v_permlane16_swap_b32 v{RES+4*i}, v{RES+4*i+2}")
            e(f"v_permlane16_swap_b32 v{RES+4*i+1}, v{RES+4*i+3}")
        e("s_nop 1")
        for i in range(4):
            so, off = rowmajor_frag(i, "s36", "s37")
            e(f"buffer_store_dwordx4 v[{RES+4*i}:{RES+4*i+3}], v{VT}, s[24:27], {so} offen offset:{off}")
        if gen.STAMP: e("s_waitcnt vmcnt(0)")
        stamps_flush(A)
        e(f"s_branch {NAME}_end")
    if down:
        LD = Loader(A, "down", SET_A, 130, first=2)
        idle_head(A, tag, early=lambda: LD.setup(coords=False))
        LD.issue()
        NX = Loader(A, "qkv", SET_B, 140)
        NX.setup()
        LD.loop(f"{tag}_i3", G.NT - 1)
        e(f"s_cmp_lg_u32 s{S_LAYER}, 0"); e(f"s_cbranch_scc1 {tag}_i5")
        for _ in range(3): NX.issue()
        A.label(f"{tag}_i5")
        e("s_barrier")
    else:
        LD = Loader(A, "wo", SET_A, 130, first=3)
        def early():
            LD.setup(coords=False)
            e(f"s_cmp_lg_u32 s{S_LAYER}, 0"); e(f"s_cbranch_scc1 {tag}_nw")
            warm(A, [64 * i for i in range(14)], 896)
            A.label(f"{tag}_nw")
        idle_head(A, tag, early=early)
        def wb():
            e(f"s_cmp_lg_u32 s{S_LAYER}, 0"); e(f"s_cbranch_scc1 {tag}_nw2")
            warm(A, [64 * i for i in range(5)], 320)
            A.label(f"{tag}_nw2")
        LD.loop(f"{tag}_i3", G.NT, body=wb)
    idle_tail(A, f"{tag}_out")

def ffn_coords(A, sm, sn, t0, t1):
    e = A.e
    e(f"s_and_b32 s{t0}, s2, 7"); e(f"s_lshr_b32 s{t1}, s2, 3")
    e(f"s_and_b32 s{sm}, s{t0}, 1"); e(f"s_lshl_b32 s{sm}, s{sm}, 2"); e(f"s_lshr_b32 s{sn}, s{t1}, 3"); e(f"s_add_u32 s{sm}, s{sm}, s{sn}")
    e(f"s_lshr_b32 s{sn}, s{t0}, 1"); e(f"s_lshl_b32 s{sn}, s{sn}, 3"); e(f"s_and_b32 s{t1}, s{t1}, 7"); e(f"s_add_u32 s{sn}, s{sn}, s{t1}")

FGU = 16384
def ffn_wsetup(A, tag, VP, VF, VT, sn, t0, opt, regs):
    e = A.e
    ldw = F * 2
    e(f"v_and_b32 v{VT}, 63, v0")
    e(f"s_and_b32 s{t0}, s{S_WV}, 3"); e(f"s_lshl_b32 s{t0}, s{t0}, 8")
    e(f"s_mul_i32 s{t0+1}, s{sn}, 224")
    e(f"s_and_b32 s{t0+2}, s{sn}, 1"); e(f"s_lshl_b32 s{t0+2}, s{t0+2}, 1")
    e(f"s_movk_i32 s{t0+3}, 4682")
    for j in range(4):
        u, r, c = VT + 1, VT + 2, VT + 3
        e(f"v_add_u32 v{u}, s{t0}, v{VT}")
        if j: e(f"v_add_u32 v{u}, {64*j}, v{u}")
        e(f"v_mul_u32_u24 v{r}, s{t0+3}, v{u}"); e(f"v_lshrrev_b32 v{r}, 16, v{r}")
        e(f"v_mul_u32_u24 v{c}, 14, v{r}"); e(f"v_sub_u32 v{c}, v{u}, v{c}")
        e(f"v_add_u32 v{c}, s{t0+2}, v{c}")
        e(f"v_subrev_u32 v{u}, 14, v{c}"); e(f"v_min_u32 v{c}, v{c}, v{u}")
        e(f"v_mul_u32_u24 v{VP+j}, {ldw}, v{r}")
        e(f"v_lshl_add_u32 v{VP+j}, v{c}, 4, v{VP+j}")
        e(f"v_add_u32 v{VP+j}, s{t0+1}, v{VP+j}")
        if j >= 2:
            e(f"v_lshrrev_b32 v{r}, 6, v{r}"); e(f"v_lshl_add_u32 v{VP+j}, v{r}, 28, v{VP+j}")
    ACC, WF, XF, VXO = regs
    SBY = 2 * FGU
    assert not opt["skew"]
    return MGemm(A, tag, T=16, NB=14, RG=1, K=D, STAGES=4, XT=opt.get("XT", 1), NWR=8, LA=opt.get("LA", 7), WG=2, npieces=4, stage_bytes=SBY,
                 piece_lds=lambda j: j * 1024,
                 frag_addr=lambda stg, row, nb: (VF + stg // 2, (stg % 2) * SBY + (nb % 2) * FGU + row * 224 + 32 * (nb // 2)),
                 acc=blk_acc(16, "v", ACC, 1), wfrag0=WF, xfrag0=XF, vpiece0=VP, vxoff=VXO,
                 srd_w=8, srd_x=12, s_woff=41, s_xoff=42, s_ldsw=40, s_it=43, ldw=ldw, opt=opt)

def ffn_prefetch(A, vt, opt):
    opt = dict(opt or {}); opt.setdefault("skew", 0)
    h = {}
    def setup():
        A.e(f"s_load_dwordx4 s[4:7], s[0:1], {KA['wg']}")
        ffn_coords(A, 44, 45, 46, 47)
        h["G"] = ffn_wsetup(A, "x", vt, 0, vt + 4, 45, 48, opt, (0, 0, 0, 0))
        A.e("s_waitcnt lgkmcnt(0)")
    def issue(t):
        G = h["G"]
        if True:
            for m in range(2):
                srd(A, 8, f"s{4+2*m}", f"s{5+2*m}", D * F * 2)
                A.e(f"s_and_b32 s40, s{S_WV}, 3"); A.e("s_lshl_b32 s40, s40, 12")
                if m: A.e(f"s_add_u32 s40, s40, {FGU}")
                A.e(f"s_mov_b32 s41, {((t - 1) * 64 * F * 2) & 0xffffffff:#x}")
                tmp = Stream(); G.pro_w(tmp, t, t + 1)
                for op in tmp.ops: A.e(op[1])
    return setup, issue

def p_ffn(A, tag, nxt, opt=None):
    e = A.e
    opt = dict(opt or {}); opt.setdefault("skew", 0)
    XT = opt.get("XT", 1)
    ldw = F * 2
    SBY = 2 * FGU
    A.label(tag)
    phase_begin(A)
    e(f"s_load_dwordx4 s[4:7], s[0:1], {KA['wg']}")
    VP, VF, VXO, VMN, VRS, VT = 1, 5, 7, 8, 10, 12
    WF = 20; XF = WF + 32
    ACC = XF + XT * 16
    SC = ACC + 112; CSR = SC + 16
    assert CSR + 28 <= 254
    ffn_coords(A, 33, 34, 31, 32)
    set_poll(A, 33, cO, 32)
    e(f"s_lshl_b32 s35, s33, 3"); e(f"s_add_u32 s35, s35, s{S_WV}")
    e(f"s_lshr_b32 s37, s{S_WV}, 2")
    e(f"s_lshl_b32 s40, s{S_WV}, 12")
    e("s_and_b32 s45, s34, 1")
    e(f"v_and_b32 v{VT}, 63, v0")
    e(f"v_lshlrev_b32 v{VXO}, 4, v{VT}")
    e("s_lshl_b32 s36, s35, 16"); e(f"s_add_u32 s36, s36, {WS_XB}")
    srd_off(A, 12, "s28", "s29", "s36", D * 64)
    e(f"v_and_b32 v{VT+1}, 3, v{VT}"); e(f"v_lshlrev_b32 v{VF}, 3, v{VT+1}")
    e(f"v_lshrrev_b32 v{VT+1}, 2, v{VT}"); e(f"v_mul_u32_u24 v{VT+1}, 224, v{VT+1}"); e(f"v_add_u32 v{VF}, v{VF}, v{VT+1}")
    e(f"v_add_u32 v{VF+1}, {2*SBY}, v{VF}")
    e("s_lshl_b32 s38, s35, 12"); e(f"s_add_u32 s38, s38, {WS_STB}")
    e(f"s_mul_i32 s39, s34, {112*32}"); e(f"s_add_u32 s39, s39, {WS_CS2}")
    srd_off(A, 20, "s28", "s29", "s38", 4096)
    srd_off(A, 24, "s28", "s29", "s39", (F + 112) * 32)
    e(f"s_mov_b32 s10, {D*ldw}"); e("s_mov_b32 s11, 0x00020000")
    e("s_cmp_eq_u32 s37, 0")
    e("s_waitcnt lgkmcnt(0)")
    e("s_cselect_b32 s8, s4, s6"); e("s_cselect_b32 s9, s5, s7")
    sync1(A)
    e(f"s_cmp_lg_u32 s{S_WV}, 7"); e(f"s_cbranch_scc1 {tag}_nosig")
    do_signal(e, VT + 4, VT + 5, wait=False)
    A.label(f"{tag}_nosig")
    G = ffn_wsetup(A, tag, VP, VF, VT, 34, 46, opt, (ACC, WF, XF, VXO))
    G.order_init(None)
    e(f"v_and_b32 v{VT+1}, 15, v{VT}"); e(f"v_bfe_u32 v{VT+2}, v{VT}, 4, 1"); e(f"v_mul_u32_u24 v{VT+2}, {F}, v{VT+2}")
    e(f"v_add_lshl_u32 v{VT+1}, v{VT+1}, v{VT+2}, 5")
    e(f"v_lshrrev_b32 v{VT+2}, 5, v{VT}"); e(f"v_lshl_add_u32 v{VT+1}, v{VT+2}, 4, v{VT+1}")
    e("s_lshl_b32 s48, s45, 9")
    e("s_mul_i32 s49, s45, 3072"); e("s_sub_u32 s49, 3072, s49")
    nit = G.NT // G.UN
    e(f"s_add_u32 s30, s37, 1")
    p = Stream()
    G.npre = 2
    G.pro_w_pre(p)
    G.reads(p)
    for i in range(0, 112, 2): p.i(f"v_pk_mov_b32 v[{ACC+i}:{ACC+i+1}], 0, 0")
    p.i(f"s_cmp_lg_u32 s{S_WV}, 7"); p.i(f"s_cbranch_scc1 {tag}_nopoll")
    p.i("s_waitcnt vmcnt(0)")
    if gen.STAMP: p.i("s_memrealtime s[62:63]")
    do_poll(p.i, VT + 4, VT + 5, tag)
    p.i(f"{tag}_nopoll:")
    G.sync2(p)
    G.pro_x(p)
    G.pro_w(p, 2, 3)
    def fix():
        e("s_add_u32 s31, s30, 1"); e("s_cmp_lg_u32 s43, s31"); e(f"s_cbranch_scc1 {tag}_nold")
        e(f"v_lshrrev_b32 v{VT+2}, 2, v{VXO}")
        for i in range(16):
            e(f"buffer_load_dword v{SC+i}, v{VT+2}, s[20:23], 0 offen offset:{i*256}{SC1}")
        for j in range(7):
            so, off = ("s48", j * 512) if j < 6 else ("s49", 0)
            e(f"buffer_load_dwordx4 v[{CSR+4*j}:{CSR+4*j+3}], v{VT+1}, s[24:27], {so} offen offset:{off}{SC1}")
        A.label(f"{tag}_nold")
        e(f"s_cmp_lg_u32 s43, s30")
        e(f"s_cbranch_scc1 {tag}_nofix")
        stats_finish(e, SC, VT + 4, VMN, VRS)
        for j in range(7): e(f"v_pk_add_f32 v[{CSR+4*j}:{CSR+4*j+1}], v[{CSR+4*j}:{CSR+4*j+1}], v[{CSR+4*j+2}:{CSR+4*j+3}]")
        for j in range(7): e(f"v_add_f32 v{CSR+4*j}, v{CSR+4*j}, v{CSR+4*j+1}")
        for j in range(7): e(f"v_mov_b32 v{CSR+4*j+1}, v{CSR+4*j}")
        split16(e, VRS, VRS + 1)
        for j in range(7): e(f"v_permlane32_swap_b32 v{CSR+4*j}, v{CSR+4*j+1}")
        split16(e, VMN, VT + 4)
        for j in range(7): e(f"v_add_f32 v{CSR+4*j}, v{CSR+4*j}, v{CSR+4*j+1}")
        e(f"v_permlane32_swap_b32 v{VMN}, v{VT+4}"); e("s_nop 1")
        for j in range(7):
            r = ACC + j * 16
            e(f"v_mfma_f32_16x16x1_4b_f32 v[{r}:{r+15}], v{CSR+4*j}, v{VMN}, v[{r}:{r+15}]")
        A.label(f"{tag}_nofix")
        e("s_cmp_lg_u32 s43, 1"); e(f"s_cbranch_scc1 {tag}_nopre")
        e(f"s_cmp_lt_u32 s{S_WV}, 4"); e(f"s_cbranch_scc1 {tag}_res")
        NX = Loader(A, "down", SET_B, 200)
        NX.setup(); NX.issue(); NX.issue()
        e(f"s_branch {tag}_nopre")
        A.label(f"{tag}_res")
        proj_coords(A, 16, 17, 18, 19)
        e(f"s_lshl_b32 s16, s16, 2"); e(f"s_add_u32 s16, s16, s{S_WV}"); e("s_lshl_b32 s16, s16, 16"); e("s_lshl_b32 s17, s17, 12"); e("s_add_u32 s16, s16, s17")
        e(f"s_add_u32 s16, s16, {WS_XB}")
        srd_off(A, 24, "s28", "s29", "s16", 4096)
        for i in range(4):
            e(f"buffer_load_dwordx4 v[{V_RES+4*i}:{V_RES+3+4*i}], v{VXO}, s[24:27], 0 offen offset:{i*1024}{SC1}")
        A.label(f"{tag}_nopre")
    assert CSR + 28 <= V_RES and nit >= 4
    G.emit(p, loop_end=fix)
    C1, C2 = SC, SC + 4
    for k in range(2):
        e(f"v_mul_f32 v{C1+2*k}, {NLOG2E:#x}, v{VRS+k}")
        e(f"v_mul_f32 v{C2+2*k}, v{VRS+k}, v{VRS+k}")
    e(f"s_mul_i32 s36, s35, {F*64}"); e(f"s_add_u32 s36, s36, {WS_H}")
    srd_off(A, 20, "s28", "s29", "s36", F * 64)
    e("s_mul_i32 s38, s34, 7"); e("s_add_u32 s38, s38, s45"); e("s_lshl_b32 s38, s38, 10")
    e("s_mul_i32 s39, s45, 8184"); e("s_add_u32 s46, s38, 6144"); e("s_sub_u32 s39, s46, s39")
    e("s_add_u32 s46, s38, 4096")
    TB = SC + 8
    OB = CSR + (CSR % 2)
    def silu(blocks, k, out):
        for b, r in enumerate(blocks):
            for i in (0, 2): e(f"v_pk_mul_f32 v[{TB+4*b+i}:{TB+4*b+i+1}], v[{r+i}:{r+i+1}], v[{C1+2*k}:{C1+2*k+1}] op_sel_hi:[1,0]")
        for b, r in enumerate(blocks):
            for i in (0, 2): e(f"v_pk_mul_f32 v[{r+i}:{r+i+1}], v[{r+i}:{r+i+1}], v[{r+4+i}:{r+5+i}]")
        for i in range(4 * len(blocks)): e(f"v_exp_f32 v{TB+i}, v{TB+i}")
        for b, r in enumerate(blocks):
            for i in (0, 2): e(f"v_pk_mul_f32 v[{r+i}:{r+i+1}], v[{r+i}:{r+i+1}], v[{C2+2*k}:{C2+2*k+1}] op_sel_hi:[1,0]")
        for i in range(0, 4 * len(blocks), 2): e(f"v_pk_add_f32 v[{TB+i}:{TB+i+1}], v[{TB+i}:{TB+i+1}], 1.0 op_sel_hi:[1,0]")
        for i in range(4 * len(blocks)): e(f"v_rcp_f32 v{TB+i}, v{TB+i}")
        e("s_nop 0")
        for b, r in enumerate(blocks):
            for i in (0, 2): e(f"v_pk_mul_f32 v[{r+i}:{r+i+1}], v[{r+i}:{r+i+1}], v[{TB+4*b+i}:{TB+4*b+i+1}]")
        for b, r in enumerate(blocks):
            for i in (0, 2): e(f"v_cvt_pk_bf16_f32 v{out+2*b+i//2}, v{r+i}, v{r+i+1}")
    cnt = 0
    for pj in range(4):
        for sb in range(2):
            ob = OB + 4 * (cnt % 3); cnt += 1
            silu([ACC + (2 * pj + jj) * 16 + 8 * sb for jj in range(2 if pj < 3 else 1)], sb, ob)
            if pj < 3:
                so, off = ("s38", pj * 2048 + sb * 1024) if pj < 2 else ("s46", sb * 1024)
                e(f"buffer_store_dwordx4 v[{ob}:{ob+3}], v{VXO}, s[20:23], {so} offen offset:{off}{SC1}")
            else:
                e(f"buffer_store_dwordx2 v[{ob}:{ob+1}], v{VXO}, s[20:23], s39 offen offset:{sb*1024}{SC1}")
    stamps_flush(A)
    set_signal(A, 33, cU)
    e(f"s_branch {nxt}")

def qkv_coords(A, sm, sn, t0, t1):
    e = A.e
    e(f"s_and_b32 s{t0}, s2, 7"); e(f"s_lshr_b32 s{t1}, s2, 3")
    e(f"s_and_b32 s{sm}, s{t0}, 1"); e(f"s_lshl_b32 s{sm}, s{sm}, 3"); e(f"s_lshr_b32 s{sn}, s{t1}, 2"); e(f"s_add_u32 s{sm}, s{sm}, s{sn}")
    e(f"s_lshr_b32 s{sn}, s{t0}, 1"); e(f"s_lshl_b32 s{sn}, s{sn}, 2"); e(f"s_and_b32 s{t1}, s{t1}, 3"); e(f"s_add_u32 s{sn}, s{sn}, s{t1}")

def p_qkv(A, tag, nxt, fpre, opt=None):
    e = A.e
    opt = dict(opt or {})
    XT = opt.get("XT", 2)
    ldw = 3 * D * 2
    A.label(tag)
    phase_begin(A, True)
    qkv_coords(A, 33, 34, 31, 32)
    set_poll(A, 33, cD, 16, prev_layer=True)
    e(f"s_cmp_ge_u32 s{S_WV}, 4"); e(f"s_cbranch_scc1 {tag}_idle")
    VF, VXO, VA, VT = 1, 9, 10, 16
    ACC = 32; WF = ACC + 96; XF = WF + 32; RR = XF + 32; KL = RR + 8
    CSR = KL + 8; QR = CSR + 12
    assert QR + 8 <= V_RES and XT <= 2
    LCS = LDS_Z + 4096
    LST = LDS_Z + 2048
    e(f"v_and_b32 v{VXO}, 63, v0"); e(f"v_lshlrev_b32 v{VXO}, 4, v{VXO}")
    lane_consts_fullline(A, 16, ldw, VT, VT + 3, VF)
    for i in range(4): e(f"v_add_u32 v{VF+4+i}, {2*QSBY}, v{VF+i}")
    opt["now"] = 1
    def acc(nb, sb):
        blk, lo = divmod(nb, 2)
        r = ACC + blk * 16 + (sb * 8 + lo * 4 if blk < 2 else lo * 8 + sb * 4)
        return f"v[{r}:{r+3}]"
    G = MGemm(A, tag, T=16, NB=12, RG=1, K=D, STAGES=4, XT=XT, NWR=8, LA=opt.get("LA", 4), WG=opt.get("WG", 2), npieces=1, stage_bytes=QSBY, piece_lds=None,
              frag_addr=fullline_frag_addr(16, VF, 64, lambda stg: (4 * (stg // 2), (stg % 2) * QSBY)),
              acc=acc, wfrag0=WF, xfrag0=XF, vpiece0=0, vxoff=VXO,
              srd_w=8, srd_x=12, s_woff=41, s_xoff=42, s_ldsw=40, s_it=43, ldw=ldw,
              swap=[nb >= 4 for nb in range(12)], opt=opt)
    e("s_add_u32 s36, s33, s34"); e("s_and_b32 s36, s36, 3")
    G.order_init(36)
    G.pro_order(e)
    e(f"s_lshl_b32 s35, s33, 2"); e(f"s_add_u32 s35, s35, s{S_WV}")
    e("s_lshl_b32 s36, s35, 16")
    srd_off(A, 12, "s28", "s29", "s36", D * 64)
    sync1(A)
    p = Stream()
    G.reads(p)
    o = p.i
    for i in range(0, 96, 2): o(f"v_pk_mov_b32 v[{ACC+i}:{ACC+i+1}], 0, 0")
    VC = VT + 8
    o(f"s_lshl_b32 s38, s{S_WV}, 9"); o(f"s_add_u32 s38, s38, {LST}"); o(f"s_sub_u32 s39, {LCS}, s38")
    o(f"v_and_b32 v{VC+2}, 31, v{VT}"); o(f"v_lshl_add_u32 v{VC+2}, v{VC+2}, 2, s38")
    o(f"v_and_b32 v{VC+4}, 15, v{VT}"); o(f"v_lshl_add_u32 v{VC+4}, v{VC+4}, 2, s38")
    o(f"v_lshrrev_b32 v{VC+3}, 5, v{VT}"); o(f"v_lshl_add_u32 v{VC+3}, v{VC+3}, 6, v{VC+4}")
    o(f"v_lshrrev_b32 v{VC+5}, 4, v{VT}"); o(f"v_lshl_add_u32 v{VC+5}, v{VC+5}, 4, s38")
    o(f"v_add_u32 v{VC}, s39, v{VC+2}"); o(f"v_add_u32 v{VC+1}, s39, v{VC+3}")
    class O:
        e = staticmethod(o)
    proj_coords(O, 45, 46, 47, 44)
    o(f"s_lshl_b32 s45, s45, 2"); o(f"s_add_u32 s45, s45, s{S_WV}"); o("s_lshl_b32 s45, s45, 16"); o("s_lshl_b32 s46, s46, 12"); o("s_add_u32 s45, s45, s46")
    srd_off(O, 48, "s28", "s29", "s45", 4096)
    o(f"s_mov_b32 s47, {f2u(1e-6):#x}")
    o(f"s_mul_i32 s36, s35, {F*64}"); o("s_lshl_b32 s37, s34, 12"); o("s_add_u32 s36, s36, s37"); o(f"s_add_u32 s36, s36, {WS_H}")
    srd_off(O, 20, "s28", "s29", "s36", 4096)
    o(f"s_mul_i32 s39, s{S_LAYER}, {WS_KV2 - WS_KV}")
    o(f"s_lshl_b32 s38, s34, 16"); o(f"s_lshl_b32 s40, s{S_WV}, 10"); o("s_add_u32 s38, s38, s40"); o(f"s_add_u32 s38, s38, {WS_KV}")
    o("s_add_u32 s38, s38, s39")
    srd_off(O, 24, "s28", "s29", "s38", 65536)
    o("s_lshl_b32 s37, s34, 4"); o("s_add_u32 s37, s37, s33")
    o("s_lshl_b32 s38, s37, 8"); o(f"s_add_u32 s38, s38, {WS_Z}"); o("s_add_u32 s38, s38, s39")
    srd_off(O, 16, "s28", "s29", "s38", 256)
    o("s_lshl_b32 s44, s33, 12")
    o(f"s_add_u32 s40, s40, {LDS_R}")
    o(f"s_lshl_b32 s36, s{S_WV}, 13"); o(f"s_add_u32 s37, s36, {LDS_R}")
    o(f"s_lshl_b32 s38, s{S_WV}, 8"); o(f"s_add_u32 s38, s38, {LDS_Z}")
    o(f"v_add_u32 v{VA}, s40, v{VXO}")
    o(f"v_add_u32 v{VA+1}, s37, v{VXO}")
    o(f"v_and_b32 v{VA+2}, 0xf0, v{VXO}"); o(f"v_lshrrev_b32 v{VA+2}, 2, v{VA+2}"); o(f"v_add_u32 v{VA+2}, s38, v{VA+2}")
    o(f"v_lshrrev_b32 v{VA+3}, 2, v{VXO}"); o(f"v_add_u32 v{VA+4}, {LDS_Z}, v{VA+3}")
    o(f"v_lshrrev_b32 v{VA+5}, 8, v{VXO}"); o(f"v_lshlrev_b32 v{VA+5}, 4, v{VA+5}"); o(f"v_add_u32 v{VA+5}, {LDS_Z + 1024}, v{VA+5}")
    for i in range(4): o(f"v_mov_b32 v{CSR+8+i}, 0x3f803f80")
    G.sync2(p)
    G.pro_x(p)
    def hook():
        if gen.STAMP:
            e("s_memrealtime s[8:9]"); e("s_mov_b32 s4, s5"); e("s_mov_b32 s5, s6"); e("s_mov_b32 s6, s7"); e("s_waitcnt lgkmcnt(0)"); e("s_mov_b32 s7, s8")
    G.emit(p, loop_end=hook)
    e(f"ds_read_b32 v{VT}, v{VC+2}"); e(f"ds_read_b32 v{VT+1}, v{VC+3}")
    order = (4, 2, 5, 3, 0, 1)
    for b in order: e(f"ds_read_b32 v{CSR+b}, v{VC + (0 if b < 2 else 1)} offset:{b*128}")
    for sb in range(2):
        e(f"ds_read_b128 v[{RR+4*sb}:{RR+4*sb+3}], v{VC+5} offset:{128 + 64*sb}"); e(f"ds_read_b128 v[{KL+4*sb}:{KL+4*sb+3}], v{VC+5} offset:{256 + 64*sb}")
    for sb in range(2):
        e(f"ds_read_b32 v{QR+2*sb}, v{VC+4} offset:{128 + 64*sb}"); e(f"ds_read_b32 v{QR+4+2*sb}, v{VC+4} offset:{256 + 64*sb}")
    e("s_waitcnt lgkmcnt(8)")
    for b in order:
        r = ACC + 16 * b
        if b < 2: e(f"v_mfma_f32_16x16x1_4b_f32 v[{r}:{r+15}], v{CSR+b}, v{VT+1}, v[{r}:{r+15}]")
        else: e(f"v_mfma_f32_16x16x1_4b_f32 v[{r}:{r+15}], v{VT}, v{CSR+b}, v[{r}:{r+15}]")
    e("s_waitcnt lgkmcnt(0)")
    e("s_nop 3")
    TB = VT
    def phi(r, rsr, rl, out):
        for i in range(0, 16, 2): e(f"v_pk_mul_f32 v[{TB+i}:{TB+i+1}], v[{r+i}:{r+i+1}], {rl(i)[0]}{rl(i)[1]}")
        for i in range(16): e(f"v_exp_f32 v{TB+i}, v{TB+i} clamp")
        for i in range(0, 16, 2): e(f"v_pk_fma_f32 v[{r+i}:{r+i+1}], v[{r+i}:{r+i+1}], {rsr(i)[0]}, 1.0{rsr(i)[2]}")
        for i in range(16): e(f"v_max_f32 v{r+i}, v{r+i}, v{TB+i}")
        for i in range(0, 16, 2): e(f"v_pk_add_f32 v[{r+i}:{r+i+1}], v[{r+i}:{r+i+1}], s[46:47] op_sel:[0,1]")
        for i in range(0, 16, 2): e(f"v_cvt_pk_bf16_f32 v{out+i//2}, v{r+i}, v{r+i+1}")
    vec = lambda base: (lambda i: (f"v[{base+i%8}:{base+i%8+1}]", "", " op_sel_hi:[1,1,0]"))
    bc = lambda base: (lambda i: (f"v[{base+2*(i//8)}:{base+2*(i//8)+1}]", " op_sel_hi:[1,0]", " op_sel_hi:[1,0,0]"))
    PK = WF; VV = WF + 16; ONE = CSR + 8; OB = ACC + 80
    KVR = ACC + 32; ZR = ACC + 64
    def kv_write(hh):
        for qd in range(4):
            r = KVR + hh * 16 + 4 * qd
            e(f"ds_write_b128 v{VA}, v[{r}:{r+3}] offset:{(hh*4 + qd)*4096}")
        for dt in range(2):
            e(f"ds_write_b32 v{VA+2}, v{ZR + hh*16 + dt*4} offset:{hh*128 + dt*64}")
    for hh in range(2):
        r = ACC + (4 + hh) * 16
        for i in range(0, 16, 2):
            e(f"v_pk_mul_f32 v[{r+i}:{r+i+1}], v[{r+i}:{r+i+1}], v[{RR+i%8}:{RR+i%8+1}]")
        for i in range(0, 16, 2):
            e(f"v_cvt_pk_bf16_f32 v{VV+hh*8+i//2}, v{r+i}, v{r+i+1}")
        if hh == 1: kv_write(0)
        phi(ACC + (2 + hh) * 16, vec(RR), vec(KL), PK + hh * 8)
        e("s_nop 1")
        for et in range(2):
            for dt in range(2):
                r = KVR + hh * 16 + et * 8 + dt * 4; a = PK + hh * 8 + dt * 4; b = VV + hh * 8 + et * 4
                e(f"v_mfma_f32_16x16x32_bf16 v[{r}:{r+3}], v[{a}:{a+3}], v[{b}:{b+3}], 0")
        for dt in range(2):
            r = ZR + hh * 16 + dt * 4; a = PK + hh * 8 + dt * 4
            e(f"v_mfma_f32_16x16x32_bf16 v[{r}:{r+3}], v[{ONE}:{ONE+3}], v[{a}:{a+3}], 0")
    e("s_nop 3")
    kv_write(1)
    e("s_waitcnt lgkmcnt(0)")
    e("s_barrier")
    if gen.STAMP: e("s_memrealtime s[8:9]"); e("s_waitcnt lgkmcnt(0)"); e("s_mov_b32 s7, s8")
    RB = KVR
    for k in range(8):
        e(f"ds_read_b128 v[{RB+4*k}:{RB+4*k+3}], v{VA+1} offset:{k*1024}")
    for k in range(4):
        e(f"ds_read_b32 v{ZR+k}, v{VA+4} offset:{k*256}")
    for k in range(2):
        e(f"s_waitcnt lgkmcnt({8 - 4*k})")
        r = RB + 16 * k
        for i in (0, 2):
            e(f"v_pk_add_f32 v[{r+i}:{r+i+1}], v[{r+i}:{r+i+1}], v[{r+4+i}:{r+5+i}]")
            e(f"v_pk_add_f32 v[{r+8+i}:{r+9+i}], v[{r+8+i}:{r+9+i}], v[{r+12+i}:{r+13+i}]")
        for i in (0, 2):
            e(f"v_pk_add_f32 v[{r+i}:{r+i+1}], v[{r+i}:{r+i+1}], v[{r+8+i}:{r+9+i}]")
        for i in (0, 2):
            e(f"v_cvt_pk_bf16_f32 v{PK+2*k+i//2}, v{r+i}, v{r+i+1}")
    e(f"buffer_store_dwordx4 v[{PK}:{PK+3}], v{VXO}, s[24:27], s44 offen{SC1}")
    e("s_waitcnt lgkmcnt(0)")
    e(f"v_pk_add_f32 v[{ZR}:{ZR+1}], v[{ZR}:{ZR+1}], v[{ZR+2}:{ZR+3}]")
    e(f"v_add_f32 v{ZR}, v{ZR}, v{ZR+1}")
    e(f"buffer_store_dword v{ZR}, v{VA+3}, s[16:19], s36 offen{SC1}")
    stamps_flush(A)
    phase_begin(A)
    phi(ACC, bc(QR), bc(QR + 4), OB)
    sync1(A)
    phi(ACC + 16, bc(QR), bc(QR + 4), OB + 8)
    e(f"v_mov_b32 v{ONE}, 0x3f80"); e(f"v_mov_b32 v{ONE+1}, 0x3f800000")
    e(f"v_add_u32 v{VA+1}, {LDS_R}, v{VXO}")
    SUM = TB
    for i in range(0, 8, 2): e(f"v_pk_mov_b32 v[{SUM+i}:{SUM+i+1}], 0, 0")
    e("s_barrier")
    rs(A, 2)
    P = ACC
    for m in range(16):
        if m: e(f"s_movk_i32 s44, {m*4096}" if m < 8 else f"s_mov_b32 s44, {m*4096}")
        e(f"buffer_load_dwordx4 v[{P+4*m}:{P+4*m+3}], v{VXO}, s[24:27], {'s44' if m else '0'} offen{SC1}")
    for i in range(4):
        e(f"buffer_load_dwordx4 v[{V_RES+4*i}:{V_RES+3+4*i}], v{VXO}, s[48:51], 0 offen offset:{i*1024}{SC1}")
    for m in range(16):
        e(f"s_waitcnt vmcnt({19 - m})")
        for j in range(4):
            e(f"v_dot2_f32_bf16 v{SUM+2*j}, v{P+4*m+j}, v{ONE}, v{SUM+2*j}")
            e(f"v_dot2_f32_bf16 v{SUM+2*j+1}, v{P+4*m+j}, v{ONE+1}, v{SUM+2*j+1}")
    e("s_nop 2")
    for j in range(4): e(f"v_cvt_pk_bf16_f32 v{PK+j}, v{SUM+2*j}, v{SUM+2*j+1}")
    e(f"ds_write_b128 v{VA}, v[{PK}:{PK+3}]")
    e("s_waitcnt lgkmcnt(0)")
    rs(A, 3)
    e("s_barrier")
    FR = PK; ZF = VV
    for hh in range(2):
        e(f"ds_read_b128 v[{ZF+hh*4}:{ZF+hh*4+3}], v{VA+5} offset:{hh*64}")
        for et in range(2):
            e(f"ds_read_b128 v[{FR+(hh*2+et)*4}:{FR+(hh*2+et)*4+3}], v{VA+1} offset:{(hh*2+et)*1024}")
    NUM = ACC; DEN = ACC + 32
    for hh in range(2):
        e(f"s_waitcnt lgkmcnt({3 - 3*hh})")
        for sb in range(2):
            i = hh * 2 + sb; b = OB + 4 * i
            e(f"v_mfma_f32_16x16x32_bf16 v[{DEN+4*i}:{DEN+4*i+3}], v[{ZF+hh*4}:{ZF+hh*4+3}], v[{b}:{b+3}], 0")
        for sb in range(2):
            i = hh * 2 + sb; b = OB + 4 * i
            for et in range(2):
                r = NUM + i * 8 + et * 4; a = FR + (hh * 2 + et) * 4
                e(f"v_mfma_f32_16x16x32_bf16 v[{r}:{r+3}], v[{a}:{a+3}], v[{b}:{b+3}], 0")
    rs(A, 4)
    e("s_nop 1")
    for i in range(4): e(f"v_add_f32 v{DEN+4*i}, s47, v{DEN+4*i}")
    for i in range(4): e(f"v_rcp_f32 v{DEN+4*i}, v{DEN+4*i}")
    e("s_nop 0")
    for i in range(4):
        r = NUM + i * 8; ob = TB + 4 * i
        for j in range(0, 8, 2):
            e(f"v_pk_mul_f32 v[{r+j}:{r+j+1}], v[{r+j}:{r+j+1}], v[{DEN+4*i}:{DEN+4*i+1}] op_sel_hi:[1,0]")
        for j in range(0, 8, 2):
            e(f"v_cvt_pk_bf16_f32 v{ob+j//2}, v{r+j}, v{r+j+1}")
        e(f"buffer_store_dwordx4 v[{ob}:{ob+3}], v{VXO}, s[20:23], 0 offen offset:{i*1024}{SC1}")
    stamps_flush(A)
    A.label(f"{tag}_out")
    set_signal(A, 33, cA)
    e(f"s_branch {nxt}")
    NST = opt.get("stag", 10)
    LD = Loader(A, "qkv", SET_A, 130, first=3)
    NX = Loader(A, "wo", SET_B, 140)
    def early():
        LD.setup(coords=False)
        e(f"s_lshl_b32 s20, s33, 2"); e(f"s_add_u32 s20, s20, s{S_WV}"); e("s_sub_u32 s20, s20, 4"); e("s_lshl_b32 s20, s20, 12"); e(f"s_add_u32 s20, s20, {WS_ST}")
        srd_off(A, 16, "s28", "s29", "s20", 4096)
        e("v_and_b32 v3, 63, v0"); e("v_lshlrev_b32 v4, 2, v3")
        e(f"s_lshl_b32 s20, s{S_WV}, 9"); e(f"s_add_u32 s20, s20, {LST - 2048}")
        e("v_and_b32 v3, 31, v3"); e("v_lshlrev_b32 v3, 2, v3"); e("v_add_u32 v3, s20, v3")
        e(f"s_cmp_lg_u32 s{S_LAYER}, 0"); e(f"s_cbranch_scc1 {tag}_e1")
        e(f"s_load_dwordx4 s[4:7], s[0:1], {KA['wg']}")
        e(f"s_load_dwordx2 s[12:13], s[0:1], {KA['wo']}")
        e(f"s_lshl_b32 s20, s2, 2"); e(f"s_add_u32 s20, s20, s{S_WV}"); e("s_sub_u32 s20, s20, 4")
        e("s_lshr_b32 s48, s20, 3"); e("s_and_b32 s49, s20, 7")
        e("s_sub_u32 s30, s48, 56"); e("s_min_u32 s30, s30, s48"); e("s_lshl_b32 s30, s30, 7")
        e(f"s_mul_i32 s21, s49, {128*F*2}"); e("s_add_u32 s30, s30, s21")
        e("s_sub_u32 s21, s20, 896"); e("s_lshl_b32 s21, s21, 14")
        e("s_cmp_lt_u32 s48, 56")
        e("s_waitcnt lgkmcnt(0)")
        e("s_cselect_b32 s44, s4, s6"); e("s_cselect_b32 s45, s5, s7"); e("s_mov_b32 s47, 0x00020000")
        e(f"s_mov_b32 s46, {D*F*2}"); e(f"s_movk_i32 s22, {F*2}")
        e("s_cmp_ge_u32 s2, 224")
        e("s_cselect_b32 s44, s12, s44"); e("s_cselect_b32 s45, s13, s45"); e(f"s_cselect_b32 s46, {D*D*2}, s46")
        e("s_cselect_b32 s30, s21, s30"); e("s_cselect_b32 s22, 128, s22")
        e("s_lshl_b32 s14, s22, 3")
        e("v_and_b32 v20, 63, v0")
        e("v_lshrrev_b32 v21, 3, v20"); e("v_mul_lo_u32 v21, s22, v21"); e("v_and_b32 v22, 7, v20"); e("v_lshl_add_u32 v21, v22, 4, v21")
        e("s_lshr_b32 s20, s2, 3"); e("s_and_b32 s21, s2, 7"); e("s_lshl_b32 s21, s21, 1"); e("s_add_u32 s20, s20, s21")
        e(f"s_mul_i32 s21, s20, {65536 // NST + 1}"); e("s_lshr_b32 s21, s21, 16"); e(f"s_mul_i32 s21, s21, {NST}"); e("s_sub_u32 s15, s20, s21")
        A.label(f"{tag}_e1")
    idle_head(A, tag, first=True, early=early)
    if opt.get("hprio"): e("s_setprio 2")
    LD.step()
    for i in range(16):
        e(f"buffer_load_dword v{32+i}, v4, s[16:19], 0 offen offset:{i*256}{SC1}")
    LD.step()
    e(f"s_waitcnt vmcnt({LD.np})")
    stats_finish(e, 32, 5, 6, 7)
    e(f"v_mul_f32 v5, {LOG2E:#x}, v7")
    e("ds_write_b32 v3, v6"); e("ds_write_b32 v3, v7 offset:128"); e("ds_write_b32 v3, v5 offset:256")
    e("s_waitcnt lgkmcnt(0)")
    e(f"s_cmp_lg_u32 s{S_LAYER}, 0"); e(f"s_cbranch_scc1 {tag}_h1")
    LD.loop(f"{tag}_i3", "s15")
    L = 64
    for i in range(16):
        e(f"buffer_load_dwordx4 v[{L+4*i}:{L+4*i+3}], v21, s[44:47], s30 offen")
        if i < 15: e("s_add_u32 s30, s30, s14")
    LD.step(); LD.step()
    for i in range(16):
        if i == 8: LD.step()
        t = (32 if i == 0 else 40 + 8 * (i % 2))
        for j in range(4):
            e(f"v_lshlrev_b32 v{t+2*j}, 16, v{L+4*i+j}"); e(f"v_and_b32 v{t+2*j+1}, 0xffff0000, v{L+4*i+j}")
        if i:
            for j in range(4):
                e(f"v_pk_add_f32 v[{32+2*j}:{33+2*j}], v[{32+2*j}:{33+2*j}], v[{t+2*j}:{t+2*j+1}]")
    col_reduce(A, 32, 20, 21)
    e("v_lshlrev_b32 v22, 3, v22"); e("v_lshrrev_b32 v21, 3, v20"); e("v_add_lshl_u32 v22, v22, v21, 5")
    srd_off(A, 44, "s28", "s29", WS_CS2, 2 * F * 32)
    e("s_lshl_b32 s48, s48, 11"); e("s_lshl_b32 s49, s49, 2"); e("s_add_u32 s48, s48, s49")
    e(f"buffer_store_dword v32, v22, s[44:47], s48 offen{SC1}")
    assert NST - 1 + 5 <= G.NT - 2
    e(f"s_sub_u32 s15, {G.NT - 7}, s15")
    e(f"s_branch {tag}_h2")
    A.label(f"{tag}_h1")
    LD.step()
    e(f"s_mov_b32 s15, {G.NT - 5}")
    A.label(f"{tag}_h2")
    e(f"s_cmp_lg_u32 s{S_WV}, 4"); e(f"s_cbranch_scc1 {tag}_h3")
    e(f"s_cmp_lg_u32 s{S_LAYER}, 0"); e(f"s_cbranch_scc1 {tag}_h4")
    e(f"s_movk_i32 s{S_POFF}, {DBG_G}"); e(f"s_movk_i32 s{S_PTGT}, 196")
    do_poll(e, 1, 2, tag + "g", fl=24, diag=False)
    A.label(f"{tag}_h4")
    e("s_lshl_b32 s20, s34, 10"); e(f"s_add_u32 s20, s20, {WS_CS}")
    srd_off(A, 44, "s28", "s29", "s20", 32768 + 1024)
    e("s_movk_i32 s21, 16384"); e("s_mov_b32 s22, 32768")
    e("v_lshlrev_b32 v5, 2, v4")
    for b in range(3):
        e(f"buffer_load_dwordx4 v[{32+4*b}:{35+4*b}], v5, s[44:47], {('0', 's21', 's22')[b]} offen{SC1}")
    e(f"v_add_u32 v5, {LCS}, v4")
    e("s_waitcnt vmcnt(0)")
    for b in range(3): e(f"v_pk_add_f32 v[{32+4*b}:{33+4*b}], v[{32+4*b}:{33+4*b}], v[{34+4*b}:{35+4*b}]")
    for b in range(3): e(f"v_add_f32 v{32+4*b}, v{32+4*b}, v{33+4*b}")
    for b in range(3): e(f"ds_write_b32 v5, v{32+4*b} offset:{b*256}")
    A.label(f"{tag}_h3")
    NX.setup()
    fpre[0]()
    LD.loop(f"{tag}_i4", "s15")
    for _ in range(3): NX.issue()
    e("s_waitcnt vmcnt(6)")
    e("s_barrier")
    fpre[1](0)
    e("s_barrier")
    fpre[1](1)
    srd_off(A, 44, "s28", "s29", WS_XC, 4 * MB)
    e(f"s_lshl_b32 s48, s2, 2"); e(f"s_add_u32 s48, s48, s{S_WV}"); e("s_sub_u32 s48, s48, 4"); e("s_lshl_b32 s48, s48, 12")
    e("v_and_b32 v20, 63, v0"); e("v_lshlrev_b32 v20, 4, v20")
    for i in range(4): e(f"v_mov_b32 v{24+i}, -1")
    e("s_barrier")
    for i in range(4): e(f"buffer_store_dwordx4 v[24:27], v20, s[44:47], s48 offen offset:{i*1024}{SC1}")
    if gen.STAMP: e(f"s_add_u32 s{S_PH}, s{S_PH}, 1")
    set_signal(A, 34, cQ)
    set_poll(A, 34, cQ, 16)
    def early2():
        wd_warm_base(A)
        e(f"s_cmp_lg_u32 s{S_LAYER}, 0"); e(f"s_cbranch_scc1 {tag}_nw")
        warm(A, [64 * i for i in range(14)], 896)
        A.label(f"{tag}_nw")
        e(f"s_mul_i32 s39, s{S_LAYER}, {WS_KV2 - WS_KV}"); e("s_lshl_b32 s38, s34, 12"); e("s_add_u32 s38, s38, s39"); e(f"s_add_u32 s38, s38, {WS_Z}")
        srd_off(A, 16, "s28", "s29", "s38", 4096)
        e("v_and_b32 v4, 63, v0"); e("v_lshlrev_b32 v5, 2, v4")
        e("v_and_b32 v6, 3, v4"); e("v_lshlrev_b32 v6, 1, v6")
        e("v_bfe_u32 v7, v4, 2, 2"); e("v_lshl_add_u32 v6, v7, 4, v6")
        e("v_bfe_u32 v7, v4, 4, 1"); e("v_lshl_add_u32 v6, v7, 3, v6")
        e("v_lshrrev_b32 v7, 5, v4"); e("v_lshl_add_u32 v6, v7, 6, v6")
        e(f"v_add_u32 v6, {LDS_Z + 1024}, v6")
    idle_head(A, tag + "b", early=early2)
    e(f"s_cmp_lg_u32 s{S_WV}, 5"); e(f"s_cbranch_scc1 {tag}_nz")
    for m in range(16):
        e(f"buffer_load_dword v{8+m}, v5, s[16:19], 0 offen offset:{m*256}{SC1}")
    e("s_waitcnt vmcnt(0)")
    for st in (8, 4, 2, 1):
        for i in range(st): e(f"v_add_f32 v{8+i}, v{8+i}, v{8+i+st}")
    e("v_cvt_pk_bf16_f32 v8, v8, v8")
    e("ds_write_b16 v6, v8")
    e("s_waitcnt lgkmcnt(0)")
    A.label(f"{tag}_nz")
    e("s_barrier")
    idle_tail(A, f"{tag}_out")

def p_start(A):
    e = A.e
    NX = Loader(A, "qkv", SET_B, 140)
    e("v_and_b32 v5, 63, v0"); e("v_lshlrev_b32 v1, 4, v5")
    e(f"s_cmp_ge_u32 s{S_WV}, 4"); e("s_cbranch_scc1 ps_cs")
    e(f"s_lshl_b32 s33, s2, 2"); e(f"s_add_u32 s33, s33, s{S_WV}")
    e("s_lshr_b32 s35, s33, 4"); e("s_and_b32 s34, s33, 15")
    rowmajor_lane_off(A, 2, 3)
    e("s_lshl_b32 s36, s35, 16"); e("s_lshl_b32 s37, s34, 7"); e("s_add_u32 s36, s36, s37"); e(f"s_add_u32 s37, s36, {16*2048}")
    e("s_lshl_b32 s38, s33, 12")
    e("s_waitcnt lgkmcnt(0)")
    srd(A, 8, "s4", "s5", S * D * 2)
    R = 16
    for i in (0, 2, 1, 3):
        so, off = rowmajor_frag(i, "s36", "s37")
        e(f"buffer_load_dwordx4 v[{R+4*i}:{R+4*i+3}], v2, s[8:11], {so} offen offset:{off} nt")
    srd_off(A, FL, "s28", "s29", WS_FL, 16384)
    srd_off(A, 12, "s28", "s29", "s38", 4096)
    srd(A, 24, "s30", "s31", 256)
    e("s_lshl_b32 s36, s33, 8")
    srd_off(A, 16, "s28", "s29", WS_ST, 64 * 4096)
    e("v_lshrrev_b32 v4, 2, v1")
    e("s_and_b32 s38, s2, 0xf0")
    e("s_waitcnt vmcnt(0)")
    for i in range(4):
        e(f"v_permlane16_swap_b32 v{R+4*i}, v{R+4*i+2}")
        e(f"v_permlane16_swap_b32 v{R+4*i+1}, v{R+4*i+3}")
    e("s_nop 1")
    for i in range(4):
        e(f"buffer_store_dwordx4 v[{R+4*i}:{R+4*i+3}], v1, s[12:15], 0 offen offset:{i*1024}{SC1}")
    stats_emit(A, 16, [R + i for i in range(16)], 8)
    e(f"buffer_store_dword v8, v4, s[16:19], s36 offen{SC1}")
    e("s_barrier")
    e("s_waitcnt vmcnt(0)")
    e("s_barrier")
    e(f"s_cmp_lg_u32 s{S_WV}, 0"); e("s_cbranch_scc1 ps_x1")
    do_signal(e, 1, 2, wait=False, fl=24, off="s38")
    A.label("ps_x1")
    e("s_barrier")
    e("s_branch pq")
    A.label("ps_cs")
    e("s_lshr_b32 s45, s2, 2"); e("s_and_b32 s46, s2, 3")
    e(f"v_lshrrev_b32 v2, 3, v5"); e(f"v_mul_u32_u24 v2, {3*D*2}, v2"); e("v_and_b32 v3, 7, v5"); e("v_lshl_add_u32 v2, v3, 4, v2")
    e(f"s_lshl_b32 s38, s46, 2"); e(f"s_add_u32 s38, s38, s{S_WV}"); e("s_sub_u32 s38, s38, 4"); e(f"s_mul_i32 s38, s38, {64*3*D*2}")
    e("s_lshl_b32 s39, s45, 7"); e("s_add_u32 s38, s38, s39")
    e("s_cmp_lt_u32 s2, 192"); e(f"s_cselect_b32 s10, {D*3*D*2}, 0"); e("s_mov_b32 s11, 0x00020000")
    e("s_waitcnt lgkmcnt(0)")
    e("s_mov_b32 s8, s6"); e("s_mov_b32 s9, s7")
    srd_off(A, FL, "s28", "s29", WS_FL, 16384)
    for i in range(4): e(f"v_mov_b32 v{40+i}, 0")
    e(f"s_lshl_b32 s47, s2, 2"); e(f"s_add_u32 s47, s47, s{S_WV}"); e(f"s_add_u32 s47, s47, {1024 - 192*4 - 4}"); e("s_and_b32 s47, s47, 1023")
    e("s_lshl_b32 s47, s47, 10")
    e(f"buffer_store_dwordx4 v[40:43], v1, s[{FL}:{FL+3}], s47 offen{SC1}")
    NX.setup()
    e("s_barrier")
    NX.issue()
    e("s_barrier")
    L = 64
    for i in range(8):
        e(f"buffer_load_dwordx4 v[{L+4*i}:{L+4*i+3}], v2, s[8:11], s38 offen")
        if i < 7: e(f"s_add_u32 s38, s38, {8*3*D*2}")
    NX.issue(); NX.issue()
    e("s_waitcnt vmcnt(12)")
    for i in range(8):
        t = (32 if i == 0 else 48 + 8 * (i % 2))
        for j in range(4):
            e(f"v_lshlrev_b32 v{t+2*j}, 16, v{L+4*i+j}"); e(f"v_and_b32 v{t+2*j+1}, 0xffff0000, v{L+4*i+j}")
        if i:
            for j in range(4):
                e(f"v_pk_add_f32 v[{32+2*j}:{33+2*j}], v[{32+2*j}:{33+2*j}], v[{t+2*j}:{t+2*j+1}]")
    col_reduce(A, 32, 5, 6)
    e("v_lshlrev_b32 v3, 3, v3"); e("v_lshrrev_b32 v6, 3, v5"); e("v_add_lshl_u32 v3, v3, v6, 2")
    e(f"s_lshl_b32 s38, s{S_WV}, 8"); e(f"s_add_u32 s38, s38, {LDS_P - 1024}"); e("v_add_u32 v3, s38, v3")
    e("ds_write_b32 v3, v32")
    e("s_waitcnt vmcnt(0) lgkmcnt(0)")
    e("s_barrier")
    e(f"s_cmp_lg_u32 s{S_WV}, 5"); e("s_cbranch_scc1 pq")
    e("s_cmp_ge_u32 s2, 196"); e("s_cbranch_scc1 pq")
    e(f"v_lshlrev_b32 v3, 2, v5"); e(f"v_add_u32 v3, {LDS_P}, v3")
    for i in range(4): e(f"ds_read_b32 v{32+i}, v3 offset:{i*256}")
    srd_off(A, 16, "s28", "s29", WS_CS, 3072 * 16)
    e("s_lshl_b32 s38, s45, 10"); e("s_lshl_b32 s39, s46, 2"); e("s_add_u32 s38, s38, s39")
    e("s_waitcnt lgkmcnt(0)")
    e("v_pk_add_f32 v[32:33], v[32:33], v[34:35]"); e("v_add_f32 v32, v32, v33")
    e(f"buffer_store_dword v32, v1, s[16:19], s38 offen{SC1}")
    srd(A, 24, "s30", "s31", 256)
    e("s_waitcnt vmcnt(0)")
    do_signal(e, 1, 2, wait=False, fl=24)

def k_mega(A, o):
    e = A.e
    A.begin_kernel(NAME)
    e("s_cmp_ge_u32 s2, 256")
    e(f"s_cbranch_scc1 {NAME}_end")
    if gen.STAMP: e("s_memrealtime s[76:77]")
    e(f"s_load_dwordx4 s[4:7], s[0:1], {KA['x']}")
    e(f"s_load_dwordx2 s[28:29], s[0:1], {KA['ws']}")
    e(f"s_load_dwordx2 s[30:31], s[0:1], {KA['dbg']}")
    e("v_lshrrev_b32 v1, 6, v0")
    e(f"s_mov_b32 s{S_LAYER}, 0"); e(f"s_movk_i32 s{S_SIG}, {DBG_G}"); e(f"s_mov_b32 s{S_PH}, 0")
    e(f"v_readfirstlane_b32 s{S_WV}, v1")
    p_start(A)
    p_qkv(A, "pq", "po", ffn_prefetch(A, 1, o.get("ffn")), o.get("qkv"))
    p_proj(A, "po", D, False, "pu", o.get("wo"))
    p_ffn(A, "pu", "pd", o.get("ffn"))
    p_proj(A, "pd", F, True, "pq", o.get("down"))
    A.label(f"{NAME}_end")
    e("s_endpgm")
    A.add_desc(NAME, 256, 102, 256)
    return dict(name=NAME, grid=256, block=512, lds=163840)

def build_mega(path, stamp_on=False, o=None, single=False):
    gen.STAMP = stamp_on
    uid[0] = 0
    A = Asm()
    mega = k_mega(A, o or {})
    A.launch(mega["name"], mega["grid"], mega["block"], mega["lds"])
    txt = A.text(HEADER)
    if single:
        txt = txt.replace(f"; @launch kernel={NAME} ", "; @launch ").replace(NAME, "interleave_layers__linear_attn_block__swiglu_ffn__prompt_kernel")
    open(path, "w").write(txt)

if __name__ == "__main__":
    if len(sys.argv) > 1:
        import json
        for name, o in json.loads(sys.argv[1]).items(): build_mega(f"m_{name}_stamp.s", True, o)
        sys.exit(0)
    build_mega("mega_stamp.s", True)
    build_mega("mega.s", False, single=True)
    DBGOUT = True
    build_mega("mega_dbg.s", True, single=True)
```

```python
import sys, math
import gen
from gen import *

WS_FL = 30 * MB
WS_KV2 = 32 * MB
cQ, cA, cO, cU, cD = 0, 16, 32, 40, 48
LDS_P = 131072
LDS_R = 98304
LDS_Z = LDS_P + 24576
WS_CS2 = WS_CS + 65536
V_RES = 228
V_KEEP = 250
V_CS = 160
WS_CSQ = WS_CS + 320 * 1024
WS_XB = WS_O
WS_STB = WS_ST + 262144
QSBY = 3 * 64 * 128
WS_XC = WS_PQ
S_DUMP = 79
SC1 = " sc1"
S_WV, S_LAYER, S_SIG, S_POFF, S_PTGT, S_PH = 3, 98, 99, 100, 101, 78
FL = 80
NAME = "mega_kernel"

def rs(A, k):
    if gen.STAMP:
        A.e(f"s_memrealtime s[{60+2*k}:{61+2*k}]")
        if k in (3, 4): A.e(f"s_memtime s[{66+2*k}:{67+2*k}]")
def rs_s(st, k):
    if gen.STAMP: st.i(f"s_memrealtime s[{60+2*k}:{61+2*k}]\n    s_waitcnt lgkmcnt(0)")
uid = [0]
DBGOUT = False
def stamps_flush(A):
    if not gen.STAMP: return
    e = A.e
    uid[0] += 1
    l = f"sf{uid[0]}"
    rs(A, 5)
    e(f"s_cmp_lg_u32 s{S_WV}, 0"); e(f"s_cbranch_scc1 {l}")
    srd_off(A, 52, "s28", "s29", WS_DBG, 32 * 65536)
    e("s_lshl_b32 s58, s2, 6"); e(f"s_lshl_b32 s59, s{S_PH}, 16"); e("s_add_u32 s58, s58, s59")
    e("s_waitcnt lgkmcnt(0)")
    e("s_mov_b64 s[56:57], exec"); e("s_mov_b64 exec, 1")
    e("v_mov_b32 v2, 0")
    for k in range(8):
        e(f"v_mov_b32 v3, s{60+2*k}")
        e(f"buffer_store_dword v3, v2, s[52:55], s58 offen offset:{4*k}")
    for k in range(4):
        e(f"v_mov_b32 v3, s{4+k}")
        e(f"buffer_store_dword v3, v2, s[52:55], s58 offen offset:{48+4*k}")
    if DBGOUT:
        e("s_cmp_lg_u32 s2, 40"); e(f"s_cbranch_scc1 {l}d")
        e(f"s_load_dwordx2 s[52:53], s[0:1], {KA['dbg']}"); e("s_movk_i32 s54, 64"); e("s_mov_b32 s55, 0x00020000")
        e(f"s_mul_i32 s58, s{S_PH}, 43"); e("s_lshr_b32 s58, s58, 7"); e(f"s_add_u32 s58, s58, s{S_PH}"); e("s_add_u32 s58, s58, 5")
        e("s_and_b32 s58, s58, 15"); e("s_lshl_b32 s58, s58, 2")
        e("s_sub_u32 s59, s70, s76"); e("v_mov_b32 v3, s59")
        e("s_waitcnt lgkmcnt(0)")
        e("buffer_store_dword v3, v2, s[52:55], s58 offen sc1")
        e(f"s_cmp_lg_u32 s{S_PH}, 0"); e(f"s_cbranch_scc1 {l}d")
        e("s_sub_u32 s59, s66, s76"); e("v_mov_b32 v3, s59")
        e("buffer_store_dword v3, v2, s[52:55], 0 offen offset:12 sc1")
        A.label(l + "d")
    e("s_mov_b64 exec, s[56:57]")
    A.label(l)
    e(f"s_add_u32 s{S_PH}, s{S_PH}, 1")

def phase_begin(A, first=False):
    rs(A, 0)
    if gen.STAMP and first:
        A.e("s_waitcnt lgkmcnt(0)"); A.e(f"s_cmp_eq_u32 s{S_LAYER}, 0"); A.e("s_cselect_b32 s60, s76, s60")

def set_poll(A, idx_sgpr, base, target, prev_layer=False):
    e = A.e
    e(f"s_lshl_b32 s{S_POFF}, s{S_LAYER}, 6"); e(f"s_add_u32 s{S_POFF}, s{S_POFF}, s{idx_sgpr}")
    if prev_layer:
        e(f"s_add_u32 s{S_POFF}, s{idx_sgpr}, {base}")
        e(f"s_mul_i32 s{S_PTGT}, s{S_LAYER}, {target}")
    else:
        e(f"s_add_u32 s{S_POFF}, s{S_POFF}, {base}")
        e(f"s_mov_b32 s{S_PTGT}, {target}")
    e(f"s_lshl_b32 s{S_POFF}, s{S_POFF}, 7")

def set_signal(A, idx_sgpr, base):
    e = A.e
    e(f"s_lshl_b32 s{S_SIG}, s{S_LAYER}, 6"); e(f"s_add_u32 s{S_SIG}, s{S_SIG}, s{idx_sgpr}")
    e(f"s_add_u32 s{S_SIG}, s{S_SIG}, {base}"); e(f"s_lshl_b32 s{S_SIG}, s{S_SIG}, 7")

def do_signal(o, va, vb, wait=True, fl=FL, off=None):
    off = off or f"s{S_SIG}"
    if gen.STAMP: o("s_memrealtime s[60:61]")
    o("s_mov_b64 exec, 1")
    o(f"v_mov_b32 v{va}, 0"); o(f"v_mov_b32 v{vb}, 1")
    o(f"buffer_atomic_add v{vb}, v{va}, s[{fl}:{fl+3}], {off} offen sc1")
    if wait:
        o("s_waitcnt vmcnt(0)")
        if gen.STAMP: o("s_memrealtime s[62:63]")
    o("s_mov_b64 exec, -1")

def do_poll(o, va, vb, tag, fl=FL, diag=True):
    o("s_mov_b64 exec, 1")
    o(f"v_mov_b32 v{va}, 0")
    o("s_mov_b32 s50, 0x40000")
    o(f"{tag}_poll:")
    o(f"buffer_load_dword v{vb}, v{va}, s[{fl}:{fl+3}], s{S_POFF} offen sc1")
    o("s_sub_u32 s50, s50, 1")
    o(f"s_cbranch_scc1 {tag}_pdone")
    o("s_waitcnt vmcnt(0)")
    o(f"v_readfirstlane_b32 s51, v{vb}")
    o(f"s_cmp_lt_u32 s51, s{S_PTGT}")
    o(f"s_cbranch_scc1 {tag}_poll")
    o(f"{tag}_pdone:")
    if gen.STAMP and diag:
        o("s_memrealtime s[64:65]")
        o(f"s_add_u32 s52, s28, {WS_DBG}"); o("s_addc_u32 s53, s29, 0"); o(f"s_mov_b32 s54, {32*65536}"); o("s_mov_b32 s55, 0x00020000")
        o("s_lshl_b32 s58, s2, 6"); o(f"s_lshl_b32 s59, s{S_PH}, 16"); o("s_add_u32 s58, s58, s59")
        o("s_waitcnt lgkmcnt(0)")
        for k, r in enumerate((60, 62, 64, 50)):
            o(f"v_mov_b32 v{vb}, s{r}")
            o(f"buffer_store_dword v{vb}, v{va}, s[52:55], s58 offen offset:{32+4*k}")
    o("s_mov_b64 exec, -1")

def bar_loop(A, tag, n, body=None):
    e = A.e
    if n <= 2 and not body:
        for _ in range(n): e("s_barrier")
        return
    e(f"s_mov_b32 s43, {n}")
    A.label(tag)
    e("s_barrier")
    if body: body()
    e("s_sub_u32 s43, s43, 1"); e("s_cmp_lg_u32 s43, 0"); e(f"s_cbranch_scc1 {tag}")

def warm(A, offs, adv):
    for o in offs: A.e(f"s_load_dword s{S_DUMP}, s[12:13], {o:#x}")
    A.e(f"s_add_u32 s12, s12, {adv}"); A.e("s_addc_u32 s13, s13, 0")

DBG_X, DBG_G = 0, 8
def idle_head(A, tag, first=False, early=None):
    e = A.e
    A.label(f"{tag}_idle")
    fl = FL
    if first:
        fl = 24
        e(f"s_load_dwordx2 s[4:5], s[0:1], {KA['dbg']}")
        e(f"s_lshl_b32 s31, s33, 4")
        e(f"s_cmp_eq_u32 s{S_LAYER}, 0")
        e(f"s_cselect_b32 s{S_POFF}, s31, s{S_POFF}"); e(f"s_cselect_b32 s{S_PTGT}, 16, s{S_PTGT}")
        e(f"s_cselect_b32 s26, 256, s{FL+2}"); e("s_mov_b32 s27, 0x00020000")
        e("s_waitcnt lgkmcnt(0)")
        e(f"s_cselect_b32 s24, s4, s{FL}"); e(f"s_cselect_b32 s25, s5, s{FL+1}")
    e("s_waitcnt vmcnt(0)")
    e("s_barrier")
    e(f"s_cmp_lg_u32 s{S_WV}, 4"); e(f"s_cbranch_scc1 {tag}_i1")
    if first:
        e(f"s_cmp_eq_u32 s{S_LAYER}, 0"); e(f"s_cbranch_scc1 {tag}_i1")
    do_signal(e, 1, 2, wait=False)
    A.label(f"{tag}_i1")
    if early: early()
    e(f"s_cmp_lg_u32 s{S_WV}, 4"); e(f"s_cbranch_scc1 {tag}_i2")
    e("s_waitcnt vmcnt(0)")
    if gen.STAMP: e("s_memrealtime s[62:63]")
    do_poll(e, 1, 2, tag, fl=fl)
    A.label(f"{tag}_i2")
    e("s_barrier")

def idle_tail(A, nxt):
    if gen.STAMP: A.e(f"s_add_u32 s{S_PH}, s{S_PH}, 1")
    A.e(f"s_branch {nxt}")

def col_reduce(A, r, vlane, vt):
    e = A.e
    e("s_nop 1")
    for j in range(4): e(f"v_permlane32_swap_b32 v{r+j}, v{r+4+j}")
    e("s_nop 0")
    for j in (0, 2): e(f"v_pk_add_f32 v[{r+j}:{r+1+j}], v[{r+j}:{r+1+j}], v[{r+4+j}:{r+5+j}]")
    e(f"v_and_b32 v{vt}, 8, v{vlane}"); e(f"v_cmp_ne_u32 vcc, 0, v{vt}")
    for j in range(2): e(f"v_permlane16_swap_b32 v{r+j}, v{r+2+j}")
    e("s_nop 1")
    e(f"v_pk_add_f32 v[{r}:{r+1}], v[{r}:{r+1}], v[{r+2}:{r+3}]")
    e("s_nop 1")
    for j in range(2): e(f"v_add_f32_dpp v{r+j}, v{r+j}, v{r+j} row_ror:8 row_mask:0xf bank_mask:0xf")
    e(f"v_cndmask_b32 v{r}, v{r}, v{r+1}, vcc")

def wd_warm_base(A):
    e = A.e
    e(f"s_load_dwordx2 s[12:13], s[0:1], {KA['wd']}")
    e(f"s_lshl_b32 s16, s2, 2"); e(f"s_add_u32 s16, s16, s{S_WV}"); e("s_sub_u32 s16, s16, 4"); e("s_mul_i32 s16, s16, 7168")
    e("s_waitcnt lgkmcnt(0)")
    e("s_add_u32 s12, s12, s16"); e("s_addc_u32 s13, s13, 0")

SET_A = dict(srd=8, lds=40, woff=41, p=39, stg=38, r=35, m=33, n=34, t0=31, t1=32)
SET_B = dict(srd=24, lds=36, woff=37, p=20, stg=21, r=22, m=16, n=17, t0=18, t1=19)
SET_C = dict(srd=88, lds=92, woff=93, p=94, stg=95, r=96, m=16, n=17, t0=18, t1=19)
class Loader:
    def __init__(self, A, kind, rs_, v, first=0):
        self.A, self.kind, self.s, self.v, self.first = A, kind, rs_, v, first
        self.T = 16
        self.ldw = {"qkv": 3 * D * 2}.get(kind, D * 2)
        self.NT = {"qkv": 16, "wo": 16, "down": 28}[kind]
        self.np = {"qkv": 6, "wo": 2, "down": 4}[kind]
        self.sb = {"qkv": QSBY, "wo": 8192, "down": 16384}[kind]
        self.base = {"qkv": 0, "wo": LDS_P, "down": LDS_R}[kind]
        self.rot = 2 if kind == "down" else 0
    def setup(self, coords=True):
        A, s, v, e = self.A, self.s, self.v, self.A.e
        k, ldw = self.kind, self.ldw
        e(f"s_load_dwordx2 s[4:5], s[0:1], {KA[{'qkv': 'wqkv', 'wo': 'wo', 'down': 'wd'}[k]]}")
        if coords: (qkv_coords if k == "qkv" else proj_coords)(A, s["m"], s["n"], s["t0"], s["t1"])
        lane_consts_fullline(A, self.T, ldw, v + 6, v, None)
        t0, t1 = s["t0"], s["t1"]
        e(f"s_and_b32 s{t1}, s{S_WV}, 3")
        e(f"s_lshl_b32 s{s['lds']}, s{t1}, 10")
        if self.base: e(f"s_add_u32 s{s['lds']}, s{s['lds']}, {self.base}")
        e(f"s_mul_i32 s{t0}, s{t1}, {8*ldw}"); e(f"s_lshl_b32 s{t1}, s{s['n']}, 7"); e(f"s_add_u32 s{t0}, s{t0}, s{t1}")
        e(f"v_add_u32 v{v}, s{t0}, v{v}")
        if k == "qkv":
            for j in range(1, 6): e(f"v_add_u32 v{v+j}, {(j >> 1) * 2048 + (j & 1) * 32 * ldw}, v{v}")
            e(f"s_add_u32 s{s['r']}, s{s['m']}, s{s['n']}")
        else:
            e(f"v_add_u32 v{v+1}, {32*ldw}, v{v}")
            if k == "down": e(f"v_xor_b32 v{v+2}, 0x80, v{v}"); e(f"v_xor_b32 v{v+3}, 0x80, v{v+1}")
            e(f"s_lshr_b32 s{s['r']}, s{s['n']}, 1"); e(f"s_add_u32 s{s['r']}, s{s['r']}, s{s['m']}")
        e(f"s_and_b32 s{s['r']}, s{s['r']}, 3")
        e(f"s_mov_b32 s{s['p']}, {self.first}")
        e(f"s_mov_b32 s{s['stg']}, {((self.first + self.rot) % 4) * self.sb}")
        if k == "down": e(f"s_and_b32 s{t0}, s{s['n']}, 1"); e(f"s_mul_i32 s{t0}, s{t0}, {F * D}")
        e("s_waitcnt lgkmcnt(0)")
        if k == "down": srd_off(A, s["srd"], "s4", "s5", f"s{t0}", F * D)
        else: srd(A, s["srd"], "s4", "s5", D * ldw)
    def issue(self, guard=False):
        A, s, e = self.A, self.s, self.A.e
        uid[0] += 1; l = f"ld{uid[0]}"
        w, t, NT = s["woff"], s["t0"], self.NT
        if guard: e(f"s_cmp_ge_u32 s{s['p']}, {NT}"); e(f"s_cbranch_scc1 {l}")
        e(f"s_and_b32 s{t}, s{s['p']}, 3"); e(f"s_cmp_eq_u32 s{t}, s{s['r']}"); e(f"s_cselect_b32 s{t}, 3, -1")
        e(f"s_add_u32 s{w}, s{s['p']}, s{t}")
        e(f"s_add_u32 s{t}, s{w}, {NT}"); e(f"s_min_u32 s{w}, s{w}, s{t}")
        e(f"s_sub_u32 s{t}, s{w}, {NT}"); e(f"s_min_u32 s{w}, s{w}, s{t}")
        e(f"s_mul_i32 s{w}, s{w}, {64 * self.ldw}")
        e(f"s_add_u32 s{t}, s{s['lds']}, s{s['stg']}")
        for j in range(self.np):
            e(f"s_add_u32 m0, s{t}, {j * 4096}")
            e("s_nop 0")
            e(f"buffer_load_dwordx4 v{self.v + j}, s[{s['srd']}:{s['srd']+3}], s{w} offen lds")
        e(f"s_add_u32 s{s['stg']}, s{s['stg']}, {self.sb}")
        e(f"s_cmp_eq_u32 s{s['stg']}, {4 * self.sb}"); e(f"s_cselect_b32 s{s['stg']}, 0, s{s['stg']}")
        if guard: A.label(l)
        e(f"s_add_u32 s{s['p']}, s{s['p']}, 1")
    def step(self):
        A, s, e = self.A, self.s, self.A.e
        uid[0] += 1; l = f"st{uid[0]}"
        e(f"s_waitcnt vmcnt({self.np})")
        e(f"s_cmp_le_u32 s{s['p']}, {self.NT}"); e(f"s_cbranch_scc1 {l}")
        e("s_waitcnt vmcnt(0)")
        A.label(l)
        e("s_barrier")
        self.issue(guard=True)
    def loop(self, tag, n, body=None):
        A, e = self.A, self.A.e
        e(f"s_mov_b32 s43, {n}")
        if isinstance(n, str): e("s_cmp_eq_u32 s43, 0"); e(f"s_cbranch_scc1 {tag}x")
        A.label(tag)
        self.step()
        if body: body()
        e("s_sub_u32 s43, s43, 1"); e("s_cmp_lg_u32 s43, 0"); e(f"s_cbranch_scc1 {tag}")
        A.label(f"{tag}x")

class MGemm(Gemm):
    npre = 3
    def xload(self, st, q, sb):
        super().xload(st, q, sb)
        op = st.ops[-1]; st.ops[-1] = (op[0], op[1] + self.opt.get("xfl", SC1), op[2])
    def pro_w(self, st, t0, t1):
        for t in range(t0, t1): self.pro_tile(st, t, x=False)
    def pro_w_pre(self, st):
        tmp = Stream()
        self.pro_w(tmp, 0, self.npre)
        st.pre |= {op[2] for op in tmp.ops if op[0] == "vm"}
        if self.skew: self.set_woff(st, self.STAGES - 2)
        else: st.i(f"s_mov_b32 s{self.s_woff}, {(self.npre - 1) * self.BK * self.ldw}")
    def pro_w_emit(self):
        tmp = Stream()
        self.pro_w(tmp, 0, self.npre)
        for op in tmp.ops: self.A.e(op[1])
    def pro_x(self, st):
        for t in range(self.XT): self.pro_tile(st, t, w=False)
    def pro_order(self, o):
        for t in range(self.LOOK):
            for l in self.order_next(t): o(l)
    def sync2(self, st):
        st.i("s_barrier")
        rs_s(st, 2)
    def reads(self, st):
        for f in range(self.LA):
            for rd in range(2): self.wread(st, f, rd)
    def emit(self, pro, loop_end=None):
        A = self.A
        nit = self.NT // self.UN
        pl, bl = resolve(pro, [self.body(it) for it in range(nit)])
        for l in pl: A.e(l)
        if gen.STAMP: A.e("s_waitcnt lgkmcnt(0)"); rs(A, 3); A.e("s_waitcnt lgkmcnt(0)")
        A.e(f"s_mov_b32 s{self.s_it}, {nit}")
        A.e(".p2align 6")
        A.label(f"{self.name}_loop")
        for l in bl: A.e(l)
        A.e(f"s_sub_u32 s{self.s_it}, s{self.s_it}, 1")
        if loop_end: loop_end()
        A.e(f"s_cmp_lg_u32 s{self.s_it}, 0")
        A.e(f"s_cbranch_scc1 {self.name}_loop")
        rs(A, 4)

def sync1(A):
    A.e("s_waitcnt vmcnt(0)")
    A.e("s_barrier")
    rs(A, 1)

def proj_coords(A, sm, sn, t0, t1):
    e = A.e
    e(f"s_and_b32 s{t0}, s2, 7"); e(f"s_lshr_b32 s{t1}, s2, 3")
    e(f"s_lshr_b32 s{sm}, s{t0}, 1"); e(f"s_lshl_b32 s{sm}, s{sm}, 2"); e(f"s_lshr_b32 s{sn}, s{t1}, 3"); e(f"s_add_u32 s{sm}, s{sm}, s{sn}")
    e(f"s_and_b32 s{sn}, s{t0}, 1"); e(f"s_and_b32 s{t1}, s{t1}, 7"); e(f"s_lshl_b32 s{t1}, s{t1}, 1"); e(f"s_add_u32 s{sn}, s{sn}, s{t1}")

def p_proj(A, tag, K, down, nxt, opt=None):
    e = A.e
    opt = opt or {}
    T = 16
    ldw = D * 2
    split = down and opt.get("split", 1)
    A.label(tag)
    phase_begin(A)
    if down: e(f"s_load_dwordx2 s[6:7], s[0:1], {KA['out']}")
    proj_coords(A, 33, 34, 31, 32)
    e("s_lshr_b32 s45, s33, 1")
    if down: set_poll(A, 45, cU, 32)
    else: set_poll(A, 33, cA, 16)
    e(f"s_cmp_ge_u32 s{S_WV}, 4"); e(f"s_cbranch_scc1 {tag}_idle")
    VP, VF, VXO, VT = 1, 5, 9, 10
    ACC, RES, WF = 16, V_RES, 80
    XF = WF + 32
    e(f"v_and_b32 v{VXO}, 63, v0"); e(f"v_lshlrev_b32 v{VXO}, 4, v{VXO}")
    e(f"s_lshl_b32 s35, s33, 2"); e(f"s_add_u32 s35, s35, s{S_WV}")
    e(f"s_lshl_b32 s37, s35, 16"); e("s_lshl_b32 s38, s34, 12"); e("s_add_u32 s37, s37, s38")
    if not down: e(f"s_add_u32 s37, s37, {WS_XB}")
    srd_off(A, 20, "s28", "s29", "s37", 4096)
    assert split or not down
    lane_consts_fullline(A, 16, ldw, VT, VP, VF)
    sb, rot = (16384, 2) if split else (8192, 0)
    opt = dict(opt); opt["now"] = 1
    G = MGemm(A, tag, T=16, NB=8 if split else 4, RG=1, K=K // 2 if split else K, STAGES=4, XT=opt.get("XT", 2), NWR=8,
              LA=opt.get("LA", 6 if split else 4), WG=2, npieces=1, stage_bytes=sb, piece_lds=None,
              frag_addr=fullline_frag_addr(16, VF, 64, lambda stg: (0, ((stg + rot) % 4) * sb)),
              acc=blk_acc(16, "v", ACC, 1), wfrag0=WF, xfrag0=XF, vpiece0=VP, vxoff=VXO,
              srd_w=8, srd_x=12, s_woff=41, s_xoff=42, s_ldsw=40, s_it=43, ldw=ldw, opt=opt)
    e("s_lshr_b32 s36, s34, 1"); e("s_add_u32 s36, s36, s33"); e("s_and_b32 s36, s36, 3")
    G.order_init(36)
    G.pro_order(e)
    for i in range(4): e(f"v_add_u32 v{VF+i}, {LDS_R if split else LDS_P}, v{VF+i}")
    e(f"s_mul_i32 s36, s35, {F*64}"); e(f"s_add_u32 s36, s36, {WS_H}")
    if split:
        e("s_and_b32 s37, s34, 1"); e(f"s_mul_i32 s37, s37, {K*32}"); e("s_add_u32 s36, s36, s37")
    srd_off(A, 12, "s28", "s29", "s36", G.K * 64)
    e("s_waitcnt lgkmcnt(0)")
    sync1(A)
    p = Stream()
    G.reads(p)
    for i in range(16):
        p.i(f"v_lshlrev_b32 v{ACC+2*i}, 16, v{RES+i}")
        p.i(f"v_and_b32 v{ACC+2*i+1}, 0xffff0000, v{RES+i}")
    if split:
        for i in range(0, 32, 2): p.i(f"v_pk_mov_b32 v[{ACC+32+i}:{ACC+33+i}], 0, 0")
    G.sync2(p)
    G.pro_x(p)
    G.emit(p)
    if split:
        e(f"s_lshl_b32 s36, s2, 2"); e(f"s_add_u32 s36, s36, s{S_WV}"); e("s_lshl_b32 s36, s36, 12"); e("s_xor_b32 s37, s36, 0x4000")
        srd_off(A, 16, "s28", "s29", WS_XC, 4 * MB)
        e("s_mov_b32 s50, 0x40000")
        for i in range(16):
            e(f"v_cvt_pk_bf16_f32 v{RES+i}, v{ACC+32+2*i}, v{ACC+33+2*i}")
            if i % 4 == 3:
                e(f"buffer_store_dwordx4 v[{RES+i-3}:{RES+i}], v{VXO}, s[16:19], s37 offen offset:{(i//4)*1024}{SC1}")
        X2 = ACC + 32
        e("s_waitcnt vmcnt(0)")
        e(f"s_branch {tag}_xp")
        if True:
            A.label(f"{tag}_xr")
            e("s_mov_b64 exec, 0xff")
            A.label(f"{tag}_xl")
            e(f"buffer_load_dwordx4 v[{X2}:{X2+3}], v{VXO}, s[16:19], s36 offen offset:3968{SC1}")
            e("s_sub_u32 s50, s50, 1"); e(f"s_cbranch_scc1 {tag}_xm")
            e("s_waitcnt vmcnt(0)")
            e(f"v_cmp_eq_u32 vcc, -1, v{X2+3}")
            e("s_nop 4")
            e(f"s_cbranch_vccnz {tag}_xl")
            A.label(f"{tag}_xm")
            e("s_mov_b64 exec, -1")
            e("s_max_i32 s50, s50, 0")
        A.label(f"{tag}_xp")
        for i in range(4):
            e(f"buffer_load_dwordx4 v[{X2+4*i}:{X2+4*i+3}], v{VXO}, s[16:19], s36 offen offset:{i*1024}{SC1}")
        e("s_sub_u32 s50, s50, 1"); e(f"s_cbranch_scc1 {tag}_xd")
        e("s_waitcnt vmcnt(0)")
        e(f"v_max3_u32 v{VT}, v{X2}, v{X2+1}, v{X2+2}")
        e(f"v_max3_u32 v{VT+1}, v{X2+3}, v{X2+4}, v{X2+5}")
        for i in range(6, 14, 4):
            e(f"v_max3_u32 v{VT}, v{VT}, v{X2+i}, v{X2+i+1}")
            e(f"v_max3_u32 v{VT+1}, v{VT+1}, v{X2+i+2}, v{X2+i+3}")
        e(f"v_max3_u32 v{VT}, v{VT}, v{X2+14}, v{X2+15}")
        e(f"v_max_u32 v{VT}, v{VT}, v{VT+1}")
        e(f"v_cmp_eq_u32 vcc, -1, v{VT}")
        e("s_nop 4")
        e(f"s_cbranch_vccnz {tag}_xr")
        A.label(f"{tag}_xd")
        e("s_waitcnt vmcnt(0)")
        T2 = X2 + 16
        for i in range(16):
            t = T2 + 2 * (i % 8)
            e(f"v_lshlrev_b32 v{t}, 16, v{X2+i}"); e(f"v_and_b32 v{t+1}, 0xffff0000, v{X2+i}")
            e(f"v_pk_add_f32 v[{ACC+2*i}:{ACC+2*i+1}], v[{ACC+2*i}:{ACC+2*i+1}], v[{t}:{t+1}]")
    if down:
        e(f"s_cmp_lg_u32 s{S_LAYER}, 0"); e(f"s_cbranch_scc1 {tag}_final")
    e("s_lshl_b32 s36, s35, 12"); e("s_lshl_b32 s37, s34, 8"); e("s_add_u32 s36, s36, s37")
    srd_off(A, 24, "s28", "s29", WS_ST if down else WS_STB, 64 * 4096)
    for i in range(16):
        e(f"v_cvt_pk_bf16_f32 v{RES+i}, v{ACC+2*i}, v{ACC+2*i+1}")
        if i % 4 == 3:
            e(f"buffer_store_dwordx4 v[{RES+i-3}:{RES+i}], v{VXO}, s[20:23], 0 offen offset:{(i//4)*1024}{SC1}")
    stats_emit(A, T, [RES + i for i in range(16)], VT)
    e(f"v_lshrrev_b32 v{VXO}, 2, v{VXO}")
    e(f"buffer_store_dword v{VT}, v{VXO}, s[24:27], s36 offen{SC1}")
    stamps_flush(A)
    A.label(f"{tag}_out")
    if down:
        set_signal(A, 33, cD)
        e(f"s_cmp_lg_u32 s{S_LAYER}, 0"); e(f"s_cbranch_scc1 {NAME}_end")
        e(f"s_mov_b32 s{S_LAYER}, 1")
    else:
        set_signal(A, 45, cO)
    e(f"s_branch {nxt}")
    if down:
        A.label(f"{tag}_final")
        srd(A, 24, "s6", "s7", S * D * 2)
        rowmajor_lane_off(A, VT, VT + 1)
        e("s_lshl_b32 s36, s35, 16"); e("s_lshl_b32 s37, s34, 7"); e("s_add_u32 s36, s36, s37")
        e(f"s_add_u32 s37, s36, {16*2048}")
        for i in range(16):
            e(f"v_cvt_pk_bf16_f32 v{RES+i}, v{ACC+2*i}, v{ACC+2*i+1}")
        e("s_nop 0")
        for i in range(4):
            e(f"v_permlane16_swap_b32 v{RES+4*i}, v{RES+4*i+2}")
            e(f"v_permlane16_swap_b32 v{RES+4*i+1}, v{RES+4*i+3}")
        e("s_nop 1")
        for i in range(4):
            so, off = rowmajor_frag(i, "s36", "s37")
            e(f"buffer_store_dwordx4 v[{RES+4*i}:{RES+4*i+3}], v{VT}, s[24:27], {so} offen offset:{off}")
        if gen.STAMP: e("s_waitcnt vmcnt(0)")
        stamps_flush(A)
        e(f"s_branch {NAME}_end")
    if down:
        LD = Loader(A, "down", SET_A, 130, first=2)
        idle_head(A, tag, early=lambda: LD.setup(coords=False))
        LD.issue()
        NX = Loader(A, "qkv", SET_B, 140)
        NX.setup()
        LD.loop(f"{tag}_i3", G.NT - 1)
        e(f"s_cmp_lg_u32 s{S_LAYER}, 0"); e(f"s_cbranch_scc1 {tag}_i5")
        for _ in range(3): NX.issue()
        A.label(f"{tag}_i5")
        e("s_barrier")
    else:
        LD = Loader(A, "wo", SET_A, 130, first=3)
        def early():
            LD.setup(coords=False)
            e(f"s_cmp_lg_u32 s{S_LAYER}, 0"); e(f"s_cbranch_scc1 {tag}_nw")
            warm(A, [64 * i for i in range(14)], 896)
            A.label(f"{tag}_nw")
        idle_head(A, tag, early=early)
        def wb():
            e(f"s_cmp_lg_u32 s{S_LAYER}, 0"); e(f"s_cbranch_scc1 {tag}_nw2")
            warm(A, [64 * i for i in range(5)], 320)
            A.label(f"{tag}_nw2")
        LD.loop(f"{tag}_i3", G.NT, body=wb)
    idle_tail(A, f"{tag}_out")

def ffn_coords(A, sm, sn, t0, t1):
    e = A.e
    e(f"s_and_b32 s{t0}, s2, 7"); e(f"s_lshr_b32 s{t1}, s2, 3")
    e(f"s_and_b32 s{sm}, s{t0}, 1"); e(f"s_lshl_b32 s{sm}, s{sm}, 2"); e(f"s_lshr_b32 s{sn}, s{t1}, 3"); e(f"s_add_u32 s{sm}, s{sm}, s{sn}")
    e(f"s_lshr_b32 s{sn}, s{t0}, 1"); e(f"s_lshl_b32 s{sn}, s{sn}, 3"); e(f"s_and_b32 s{t1}, s{t1}, 7"); e(f"s_add_u32 s{sn}, s{sn}, s{t1}")

FGU = 16384
def ffn_wsetup(A, tag, VP, VF, VT, sn, t0, opt, regs):
    e = A.e
    ldw = F * 2
    e(f"v_and_b32 v{VT}, 63, v0")
    e(f"s_and_b32 s{t0}, s{S_WV}, 3"); e(f"s_lshl_b32 s{t0}, s{t0}, 8")
    e(f"s_mul_i32 s{t0+1}, s{sn}, 224")
    e(f"s_and_b32 s{t0+2}, s{sn}, 1"); e(f"s_lshl_b32 s{t0+2}, s{t0+2}, 1")
    e(f"s_movk_i32 s{t0+3}, 4682")
    for j in range(4):
        u, r, c = VT + 1, VT + 2, VT + 3
        e(f"v_add_u32 v{u}, s{t0}, v{VT}")
        if j: e(f"v_add_u32 v{u}, {64*j}, v{u}")
        e(f"v_mul_u32_u24 v{r}, s{t0+3}, v{u}"); e(f"v_lshrrev_b32 v{r}, 16, v{r}")
        e(f"v_mul_u32_u24 v{c}, 14, v{r}"); e(f"v_sub_u32 v{c}, v{u}, v{c}")
        e(f"v_add_u32 v{c}, s{t0+2}, v{c}")
        e(f"v_subrev_u32 v{u}, 14, v{c}"); e(f"v_min_u32 v{c}, v{c}, v{u}")
        e(f"v_mul_u32_u24 v{VP+j}, {ldw}, v{r}")
        e(f"v_lshl_add_u32 v{VP+j}, v{c}, 4, v{VP+j}")
        e(f"v_add_u32 v{VP+j}, s{t0+1}, v{VP+j}")
        if j >= 2:
            e(f"v_lshrrev_b32 v{r}, 6, v{r}"); e(f"v_lshl_add_u32 v{VP+j}, v{r}, 28, v{VP+j}")
    ACC, WF, XF, VXO = regs
    SBY = 2 * FGU
    assert not opt["skew"]
    return MGemm(A, tag, T=16, NB=14, RG=1, K=D, STAGES=4, XT=opt.get("XT", 1), NWR=8, LA=opt.get("LA", 7), WG=2, npieces=4, stage_bytes=SBY,
                 piece_lds=lambda j: j * 1024,
                 frag_addr=lambda stg, row, nb: (VF + stg // 2, (stg % 2) * SBY + (nb % 2) * FGU + row * 224 + 32 * (nb // 2)),
                 acc=blk_acc(16, "v", ACC, 1), wfrag0=WF, xfrag0=XF, vpiece0=VP, vxoff=VXO,
                 srd_w=8, srd_x=12, s_woff=41, s_xoff=42, s_ldsw=40, s_it=43, ldw=ldw, opt=opt)

def ffn_prefetch(A, vt, opt):
    opt = dict(opt or {}); opt.setdefault("skew", 0)
    h = {}
    def setup():
        A.e(f"s_load_dwordx4 s[84:87], s[0:1], {KA['wg']}")
        ffn_coords(A, 16, 17, 18, 19)
        h["G"] = ffn_wsetup(A, "x", vt, 0, vt + 4, 17, 20, opt, (0, 0, 0, 0))
        A.e("s_waitcnt lgkmcnt(0)")
    def issue(t):
        G = h["G"]
        if True:
            for m in range(2):
                srd(A, 8, f"s{84+2*m}", f"s{85+2*m}", D * F * 2)
                A.e(f"s_and_b32 s40, s{S_WV}, 3"); A.e("s_lshl_b32 s40, s40, 12")
                if m: A.e(f"s_add_u32 s40, s40, {FGU}")
                A.e(f"s_mov_b32 s41, {((t - 1) * 64 * F * 2) & 0xffffffff:#x}")
                tmp = Stream(); G.pro_w(tmp, t, t + 1)
                for op in tmp.ops: A.e(op[1])
    return setup, issue

def p_ffn(A, tag, nxt, opt=None):
    e = A.e
    opt = dict(opt or {}); opt.setdefault("skew", 0)
    XT = opt.get("XT", 1)
    ldw = F * 2
    SBY = 2 * FGU
    A.label(tag)
    phase_begin(A)
    e(f"s_load_dwordx4 s[4:7], s[0:1], {KA['wg']}")
    VP, VF, VXO, VMN, VRS, VT = 1, 5, 7, 8, 10, 12
    WF = 20; XF = WF + 32
    ACC = XF + XT * 16
    SC = ACC + 112; CSR = SC + 16
    assert CSR + 28 <= 254
    ffn_coords(A, 33, 34, 31, 32)
    set_poll(A, 33, cO, 32)
    e(f"s_lshl_b32 s35, s33, 3"); e(f"s_add_u32 s35, s35, s{S_WV}")
    e(f"s_lshr_b32 s37, s{S_WV}, 2")
    e(f"s_lshl_b32 s40, s{S_WV}, 12")
    e("s_and_b32 s45, s34, 1")
    e(f"v_and_b32 v{VT}, 63, v0")
    e(f"v_lshlrev_b32 v{VXO}, 4, v{VT}")
    e("s_lshl_b32 s36, s35, 16"); e(f"s_add_u32 s36, s36, {WS_XB}")
    srd_off(A, 12, "s28", "s29", "s36", D * 64)
    e(f"v_and_b32 v{VT+1}, 3, v{VT}"); e(f"v_lshlrev_b32 v{VF}, 3, v{VT+1}")
    e(f"v_lshrrev_b32 v{VT+1}, 2, v{VT}"); e(f"v_mul_u32_u24 v{VT+1}, 224, v{VT+1}"); e(f"v_add_u32 v{VF}, v{VF}, v{VT+1}")
    e(f"v_add_u32 v{VF+1}, {2*SBY}, v{VF}")
    e("s_lshl_b32 s38, s35, 12"); e(f"s_add_u32 s38, s38, {WS_STB}")
    e(f"s_mul_i32 s39, s34, {112*32}"); e(f"s_add_u32 s39, s39, {WS_CS2}")
    srd_off(A, 20, "s28", "s29", "s38", 4096)
    srd_off(A, 24, "s28", "s29", "s39", (F + 112) * 32)
    e(f"s_mov_b32 s10, {D*ldw}"); e("s_mov_b32 s11, 0x00020000")
    e("s_cmp_eq_u32 s37, 0")
    e("s_waitcnt lgkmcnt(0)")
    e("s_cselect_b32 s8, s4, s6"); e("s_cselect_b32 s9, s5, s7")
    sync1(A)
    e(f"s_cmp_lg_u32 s{S_WV}, 7"); e(f"s_cbranch_scc1 {tag}_nosig")
    do_signal(e, VT + 4, VT + 5, wait=False)
    A.label(f"{tag}_nosig")
    G = ffn_wsetup(A, tag, VP, VF, VT, 34, 46, opt, (ACC, WF, XF, VXO))
    G.order_init(None)
    e(f"v_and_b32 v{VT+1}, 15, v{VT}"); e(f"v_bfe_u32 v{VT+2}, v{VT}, 4, 1"); e(f"v_mul_u32_u24 v{VT+2}, {F}, v{VT+2}")
    e(f"v_add_lshl_u32 v{VT+1}, v{VT+1}, v{VT+2}, 5")
    e(f"v_lshrrev_b32 v{VT+2}, 5, v{VT}"); e(f"v_lshl_add_u32 v{VT+1}, v{VT+2}, 4, v{VT+1}")
    e("s_lshl_b32 s48, s45, 9")
    e("s_mul_i32 s49, s45, 3072"); e("s_sub_u32 s49, 3072, s49")
    nit = G.NT // G.UN
    e(f"s_add_u32 s30, s37, 1")
    p = Stream()
    G.npre = 2
    G.pro_w_pre(p)
    G.reads(p)
    for i in range(0, 112, 2): p.i(f"v_pk_mov_b32 v[{ACC+i}:{ACC+i+1}], 0, 0")
    p.i(f"s_cmp_lg_u32 s{S_WV}, 7"); p.i(f"s_cbranch_scc1 {tag}_nopoll")
    p.i("s_waitcnt vmcnt(0)")
    if gen.STAMP: p.i("s_memrealtime s[62:63]")
    do_poll(p.i, VT + 4, VT + 5, tag)
    p.i(f"{tag}_nopoll:")
    G.sync2(p)
    G.pro_x(p)
    G.pro_w(p, 2, 3)
    def fix():
        e("s_add_u32 s31, s30, 1"); e("s_cmp_lg_u32 s43, s31"); e(f"s_cbranch_scc1 {tag}_nold")
        e(f"v_lshrrev_b32 v{VT+2}, 2, v{VXO}")
        for i in range(16):
            e(f"buffer_load_dword v{SC+i}, v{VT+2}, s[20:23], 0 offen offset:{i*256}{SC1}")
        for j in range(7):
            so, off = ("s48", j * 512) if j < 6 else ("s49", 0)
            e(f"buffer_load_dwordx4 v[{CSR+4*j}:{CSR+4*j+3}], v{VT+1}, s[24:27], {so} offen offset:{off}{SC1}")
        A.label(f"{tag}_nold")
        e(f"s_cmp_lg_u32 s43, s30")
        e(f"s_cbranch_scc1 {tag}_nofix")
        stats_finish(e, SC, VT + 4, VMN, VRS)
        for j in range(7): e(f"v_pk_add_f32 v[{CSR+4*j}:{CSR+4*j+1}], v[{CSR+4*j}:{CSR+4*j+1}], v[{CSR+4*j+2}:{CSR+4*j+3}]")
        for j in range(7): e(f"v_add_f32 v{CSR+4*j}, v{CSR+4*j}, v{CSR+4*j+1}")
        for j in range(7): e(f"v_mov_b32 v{CSR+4*j+1}, v{CSR+4*j}")
        split16(e, VRS, VRS + 1)
        for j in range(7): e(f"v_permlane32_swap_b32 v{CSR+4*j}, v{CSR+4*j+1}")
        split16(e, VMN, VT + 4)
        for j in range(7): e(f"v_add_f32 v{CSR+4*j}, v{CSR+4*j}, v{CSR+4*j+1}")
        e(f"v_permlane32_swap_b32 v{VMN}, v{VT+4}"); e("s_nop 1")
        for j in range(7):
            r = ACC + j * 16
            e(f"v_mfma_f32_16x16x1_4b_f32 v[{r}:{r+15}], v{CSR+4*j}, v{VMN}, v[{r}:{r+15}]")
        A.label(f"{tag}_nofix")
        e("s_cmp_lg_u32 s43, 1"); e(f"s_cbranch_scc1 {tag}_nopre")
        e(f"s_cmp_lt_u32 s{S_WV}, 4"); e(f"s_cbranch_scc1 {tag}_res")
        NX = Loader(A, "down", SET_B, 200)
        NX.setup(); NX.issue(); NX.issue()
        e(f"s_branch {tag}_nopre")
        A.label(f"{tag}_res")
        proj_coords(A, 16, 17, 18, 19)
        e(f"s_lshl_b32 s16, s16, 2"); e(f"s_add_u32 s16, s16, s{S_WV}"); e("s_lshl_b32 s16, s16, 16"); e("s_lshl_b32 s17, s17, 12"); e("s_add_u32 s16, s16, s17")
        e(f"s_add_u32 s16, s16, {WS_XB}")
        srd_off(A, 24, "s28", "s29", "s16", 4096)
        for i in range(4):
            e(f"buffer_load_dwordx4 v[{V_RES+4*i}:{V_RES+3+4*i}], v{VXO}, s[24:27], 0 offen offset:{i*1024}{SC1}")
        A.label(f"{tag}_nopre")
    assert CSR + 28 <= V_RES and nit >= 4
    G.emit(p, loop_end=fix)
    C1, C2 = SC, SC + 4
    for k in range(2):
        e(f"v_mul_f32 v{C1+2*k}, {NLOG2E:#x}, v{VRS+k}")
        e(f"v_mul_f32 v{C2+2*k}, v{VRS+k}, v{VRS+k}")
    e(f"s_mul_i32 s36, s35, {F*64}"); e(f"s_add_u32 s36, s36, {WS_H}")
    srd_off(A, 20, "s28", "s29", "s36", F * 64)
    e("s_mul_i32 s38, s34, 7"); e("s_add_u32 s38, s38, s45"); e("s_lshl_b32 s38, s38, 10")
    e("s_mul_i32 s39, s45, 8184"); e("s_add_u32 s46, s38, 6144"); e("s_sub_u32 s39, s46, s39")
    e("s_add_u32 s46, s38, 4096")
    TB = SC + 8
    OB = CSR + (CSR % 2)
    def silu(blocks, k, out):
        for b, r in enumerate(blocks):
            for i in (0, 2): e(f"v_pk_mul_f32 v[{TB+4*b+i}:{TB+4*b+i+1}], v[{r+i}:{r+i+1}], v[{C1+2*k}:{C1+2*k+1}] op_sel_hi:[1,0]")
        for b, r in enumerate(blocks):
            for i in (0, 2): e(f"v_pk_mul_f32 v[{r+i}:{r+i+1}], v[{r+i}:{r+i+1}], v[{r+4+i}:{r+5+i}]")
        for i in range(4 * len(blocks)): e(f"v_exp_f32 v{TB+i}, v{TB+i}")
        for b, r in enumerate(blocks):
            for i in (0, 2): e(f"v_pk_mul_f32 v[{r+i}:{r+i+1}], v[{r+i}:{r+i+1}], v[{C2+2*k}:{C2+2*k+1}] op_sel_hi:[1,0]")
        for i in range(0, 4 * len(blocks), 2): e(f"v_pk_add_f32 v[{TB+i}:{TB+i+1}], v[{TB+i}:{TB+i+1}], 1.0 op_sel_hi:[1,0]")
        for i in range(4 * len(blocks)): e(f"v_rcp_f32 v{TB+i}, v{TB+i}")
        e("s_nop 0")
        for b, r in enumerate(blocks):
            for i in (0, 2): e(f"v_pk_mul_f32 v[{r+i}:{r+i+1}], v[{r+i}:{r+i+1}], v[{TB+4*b+i}:{TB+4*b+i+1}]")
        for b, r in enumerate(blocks):
            for i in (0, 2): e(f"v_cvt_pk_bf16_f32 v{out+2*b+i//2}, v{r+i}, v{r+i+1}")
    cnt = 0
    for pj in range(4):
        for sb in range(2):
            ob = OB + 4 * (cnt % 3); cnt += 1
            silu([ACC + (2 * pj + jj) * 16 + 8 * sb for jj in range(2 if pj < 3 else 1)], sb, ob)
            if pj < 3:
                so, off = ("s38", pj * 2048 + sb * 1024) if pj < 2 else ("s46", sb * 1024)
                e(f"buffer_store_dwordx4 v[{ob}:{ob+3}], v{VXO}, s[20:23], {so} offen offset:{off}{SC1}")
            else:
                e(f"buffer_store_dwordx2 v[{ob}:{ob+1}], v{VXO}, s[20:23], s39 offen offset:{sb*1024}{SC1}")
    stamps_flush(A)
    set_signal(A, 33, cU)
    e(f"s_branch {nxt}")

def qkv_coords(A, sm, sn, t0, t1):
    e = A.e
    e(f"s_and_b32 s{t0}, s2, 7"); e(f"s_lshr_b32 s{t1}, s2, 3")
    e(f"s_and_b32 s{sm}, s{t0}, 1"); e(f"s_lshl_b32 s{sm}, s{sm}, 3"); e(f"s_lshr_b32 s{sn}, s{t1}, 2"); e(f"s_add_u32 s{sm}, s{sm}, s{sn}")
    e(f"s_lshr_b32 s{sn}, s{t0}, 1"); e(f"s_lshl_b32 s{sn}, s{sn}, 2"); e(f"s_and_b32 s{t1}, s{t1}, 3"); e(f"s_add_u32 s{sn}, s{sn}, s{t1}")

def p_qkv(A, tag, nxt, fpre, opt=None):
    e = A.e
    opt = dict(opt or {})
    XT = opt.get("XT", 2)
    ldw = 3 * D * 2
    A.label(tag)
    phase_begin(A, True)
    qkv_coords(A, 33, 34, 31, 32)
    set_poll(A, 33, cD, 16, prev_layer=True)
    e(f"s_cmp_ge_u32 s{S_WV}, 4"); e(f"s_cbranch_scc1 {tag}_idle")
    VF, VXO, VA, VT = 1, 9, 10, 16
    ACC = 32; WF = ACC + 96; XF = WF + 32; RR = XF + 32; KL = RR + 8
    CSR = KL + 8; QR = CSR + 12
    assert QR + 8 <= V_RES and XT <= 2
    LCS = LDS_Z + 4096
    LST = LDS_Z + 2048
    e(f"v_and_b32 v{VXO}, 63, v0"); e(f"v_lshlrev_b32 v{VXO}, 4, v{VXO}")
    lane_consts_fullline(A, 16, ldw, VT, VT + 3, VF)
    for i in range(4): e(f"v_add_u32 v{VF+4+i}, {2*QSBY}, v{VF+i}")
    opt["now"] = 1
    def acc(nb, sb):
        blk, lo = divmod(nb, 2)
        r = ACC + blk * 16 + (sb * 8 + lo * 4 if blk < 2 else lo * 8 + sb * 4)
        return f"v[{r}:{r+3}]"
    G = MGemm(A, tag, T=16, NB=12, RG=1, K=D, STAGES=4, XT=XT, NWR=8, LA=opt.get("LA", 4), WG=opt.get("WG", 2), npieces=1, stage_bytes=QSBY, piece_lds=None,
              frag_addr=fullline_frag_addr(16, VF, 64, lambda stg: (4 * (stg // 2), (stg % 2) * QSBY)),
              acc=acc, wfrag0=WF, xfrag0=XF, vpiece0=0, vxoff=VXO,
              srd_w=8, srd_x=12, s_woff=41, s_xoff=42, s_ldsw=40, s_it=43, ldw=ldw,
              swap=[nb >= 4 for nb in range(12)], opt=opt)
    e("s_add_u32 s36, s33, s34"); e("s_and_b32 s36, s36, 3")
    G.order_init(36)
    G.pro_order(e)
    e(f"s_lshl_b32 s35, s33, 2"); e(f"s_add_u32 s35, s35, s{S_WV}")
    e("s_lshl_b32 s36, s35, 16")
    srd_off(A, 12, "s28", "s29", "s36", D * 64)
    sync1(A)
    p = Stream()
    G.reads(p)
    o = p.i
    for i in range(0, 96, 2): o(f"v_pk_mov_b32 v[{ACC+i}:{ACC+i+1}], 0, 0")
    VC = VT + 8
    o(f"s_lshl_b32 s38, s{S_WV}, 9"); o(f"s_add_u32 s38, s38, {LST}"); o(f"s_sub_u32 s39, {LCS}, s38")
    o(f"v_and_b32 v{VC+2}, 31, v{VT}"); o(f"v_lshl_add_u32 v{VC+2}, v{VC+2}, 2, s38")
    o(f"v_and_b32 v{VC+4}, 15, v{VT}"); o(f"v_lshl_add_u32 v{VC+4}, v{VC+4}, 2, s38")
    o(f"v_lshrrev_b32 v{VC+3}, 5, v{VT}"); o(f"v_lshl_add_u32 v{VC+3}, v{VC+3}, 6, v{VC+4}")
    o(f"v_lshrrev_b32 v{VC+5}, 4, v{VT}"); o(f"v_lshl_add_u32 v{VC+5}, v{VC+5}, 4, s38")
    o(f"v_add_u32 v{VC}, s39, v{VC+2}"); o(f"v_add_u32 v{VC+1}, s39, v{VC+3}")
    class O:
        e = staticmethod(o)
    proj_coords(O, 45, 46, 47, 44)
    o(f"s_lshl_b32 s45, s45, 2"); o(f"s_add_u32 s45, s45, s{S_WV}"); o("s_lshl_b32 s45, s45, 16"); o("s_lshl_b32 s46, s46, 12"); o("s_add_u32 s45, s45, s46")
    srd_off(O, 48, "s28", "s29", "s45", 4096)
    o(f"s_mov_b32 s47, {f2u(1e-6):#x}")
    o(f"s_mul_i32 s36, s35, {F*64}"); o("s_lshl_b32 s37, s34, 12"); o("s_add_u32 s36, s36, s37"); o(f"s_add_u32 s36, s36, {WS_H}")
    srd_off(O, 20, "s28", "s29", "s36", 4096)
    o(f"s_mul_i32 s39, s{S_LAYER}, {WS_KV2 - WS_KV}")
    o(f"s_lshl_b32 s38, s34, 16"); o(f"s_lshl_b32 s40, s{S_WV}, 10"); o("s_add_u32 s38, s38, s40"); o(f"s_add_u32 s38, s38, {WS_KV}")
    o("s_add_u32 s38, s38, s39")
    srd_off(O, 24, "s28", "s29", "s38", 65536)
    o("s_lshl_b32 s37, s34, 4"); o("s_add_u32 s37, s37, s33")
    o("s_lshl_b32 s38, s37, 8"); o(f"s_add_u32 s38, s38, {WS_Z}"); o("s_add_u32 s38, s38, s39")
    srd_off(O, 16, "s28", "s29", "s38", 256)
    o("s_lshl_b32 s44, s33, 12")
    o(f"s_add_u32 s40, s40, {LDS_R}")
    o(f"s_lshl_b32 s36, s{S_WV}, 13"); o(f"s_add_u32 s37, s36, {LDS_R}")
    o(f"s_lshl_b32 s38, s{S_WV}, 8"); o(f"s_add_u32 s38, s38, {LDS_Z}")
    o(f"v_add_u32 v{VA}, s40, v{VXO}")
    o(f"v_add_u32 v{VA+1}, s37, v{VXO}")
    o(f"v_and_b32 v{VA+2}, 0xf0, v{VXO}"); o(f"v_lshrrev_b32 v{VA+2}, 2, v{VA+2}"); o(f"v_add_u32 v{VA+2}, s38, v{VA+2}")
    o(f"v_lshrrev_b32 v{VA+3}, 2, v{VXO}"); o(f"v_add_u32 v{VA+4}, {LDS_Z}, v{VA+3}")
    o(f"v_lshrrev_b32 v{VA+5}, 8, v{VXO}"); o(f"v_lshlrev_b32 v{VA+5}, 4, v{VA+5}"); o(f"v_add_u32 v{VA+5}, {LDS_Z + 1024}, v{VA+5}")
    for i in range(4): o(f"v_mov_b32 v{CSR+8+i}, 0x3f803f80")
    G.sync2(p)
    G.pro_x(p)
    def hook():
        if gen.STAMP:
            e("s_memrealtime s[8:9]"); e("s_mov_b32 s4, s5"); e("s_mov_b32 s5, s6"); e("s_mov_b32 s6, s7"); e("s_waitcnt lgkmcnt(0)"); e("s_mov_b32 s7, s8")
    G.emit(p, loop_end=hook)
    e(f"ds_read_b32 v{VT}, v{VC+2}"); e(f"ds_read_b32 v{VT+1}, v{VC+3}")
    order = (4, 2, 5, 3, 0, 1)
    for b in order: e(f"ds_read_b32 v{CSR+b}, v{VC + (0 if b < 2 else 1)} offset:{b*128}")
    for sb in range(2):
        e(f"ds_read_b128 v[{RR+4*sb}:{RR+4*sb+3}], v{VC+5} offset:{128 + 64*sb}"); e(f"ds_read_b128 v[{KL+4*sb}:{KL+4*sb+3}], v{VC+5} offset:{256 + 64*sb}")
    for sb in range(2):
        e(f"ds_read_b32 v{QR+2*sb}, v{VC+4} offset:{128 + 64*sb}"); e(f"ds_read_b32 v{QR+4+2*sb}, v{VC+4} offset:{256 + 64*sb}")
    e("s_waitcnt lgkmcnt(8)")
    for b in order:
        r = ACC + 16 * b
        if b < 2: e(f"v_mfma_f32_16x16x1_4b_f32 v[{r}:{r+15}], v{CSR+b}, v{VT+1}, v[{r}:{r+15}]")
        else: e(f"v_mfma_f32_16x16x1_4b_f32 v[{r}:{r+15}], v{VT}, v{CSR+b}, v[{r}:{r+15}]")
    e("s_waitcnt lgkmcnt(0)")
    e("s_nop 3")
    TB = VT
    def phi(r, rsr, rl, out):
        for i in range(0, 16, 2): e(f"v_pk_mul_f32 v[{TB+i}:{TB+i+1}], v[{r+i}:{r+i+1}], {rl(i)[0]}{rl(i)[1]}")
        for i in range(16): e(f"v_exp_f32 v{TB+i}, v{TB+i} clamp")
        for i in range(0, 16, 2): e(f"v_pk_fma_f32 v[{r+i}:{r+i+1}], v[{r+i}:{r+i+1}], {rsr(i)[0]}, 1.0{rsr(i)[2]}")
        for i in range(16): e(f"v_max_f32 v{r+i}, v{r+i}, v{TB+i}")
        for i in range(0, 16, 2): e(f"v_pk_add_f32 v[{r+i}:{r+i+1}], v[{r+i}:{r+i+1}], s[46:47] op_sel:[0,1]")
        for i in range(0, 16, 2): e(f"v_cvt_pk_bf16_f32 v{out+i//2}, v{r+i}, v{r+i+1}")
    vec = lambda base: (lambda i: (f"v[{base+i%8}:{base+i%8+1}]", "", " op_sel_hi:[1,1,0]"))
    bc = lambda base: (lambda i: (f"v[{base+2*(i//8)}:{base+2*(i//8)+1}]", " op_sel_hi:[1,0]", " op_sel_hi:[1,0,0]"))
    PK = WF; VV = WF + 16; ONE = CSR + 8; OB = ACC + 80
    KVR = ACC + 32; ZR = ACC + 64
    def kv_write(hh):
        for qd in range(4):
            r = KVR + hh * 16 + 4 * qd
            e(f"ds_write_b128 v{VA}, v[{r}:{r+3}] offset:{(hh*4 + qd)*4096}")
        for dt in range(2):
            e(f"ds_write_b32 v{VA+2}, v{ZR + hh*16 + dt*4} offset:{hh*128 + dt*64}")
    for hh in range(2):
        r = ACC + (4 + hh) * 16
        for i in range(0, 16, 2):
            e(f"v_pk_mul_f32 v[{r+i}:{r+i+1}], v[{r+i}:{r+i+1}], v[{RR+i%8}:{RR+i%8+1}]")
        for i in range(0, 16, 2):
            e(f"v_cvt_pk_bf16_f32 v{VV+hh*8+i//2}, v{r+i}, v{r+i+1}")
        if hh == 1: kv_write(0)
        phi(ACC + (2 + hh) * 16, vec(RR), vec(KL), PK + hh * 8)
        e("s_nop 1")
        for et in range(2):
            for dt in range(2):
                r = KVR + hh * 16 + et * 8 + dt * 4; a = PK + hh * 8 + dt * 4; b = VV + hh * 8 + et * 4
                e(f"v_mfma_f32_16x16x32_bf16 v[{r}:{r+3}], v[{a}:{a+3}], v[{b}:{b+3}], 0")
        for dt in range(2):
            r = ZR + hh * 16 + dt * 4; a = PK + hh * 8 + dt * 4
            e(f"v_mfma_f32_16x16x32_bf16 v[{r}:{r+3}], v[{ONE}:{ONE+3}], v[{a}:{a+3}], 0")
    e("s_nop 3")
    kv_write(1)
    e("s_waitcnt lgkmcnt(0)")
    e("s_barrier")
    if gen.STAMP: e("s_memrealtime s[8:9]"); e("s_waitcnt lgkmcnt(0)"); e("s_mov_b32 s7, s8")
    RB = KVR
    for k in range(8):
        e(f"ds_read_b128 v[{RB+4*k}:{RB+4*k+3}], v{VA+1} offset:{k*1024}")
    for k in range(4):
        e(f"ds_read_b32 v{ZR+k}, v{VA+4} offset:{k*256}")
    for k in range(2):
        e(f"s_waitcnt lgkmcnt({8 - 4*k})")
        r = RB + 16 * k
        for i in (0, 2):
            e(f"v_pk_add_f32 v[{r+i}:{r+i+1}], v[{r+i}:{r+i+1}], v[{r+4+i}:{r+5+i}]")
            e(f"v_pk_add_f32 v[{r+8+i}:{r+9+i}], v[{r+8+i}:{r+9+i}], v[{r+12+i}:{r+13+i}]")
        for i in (0, 2):
            e(f"v_pk_add_f32 v[{r+i}:{r+i+1}], v[{r+i}:{r+i+1}], v[{r+8+i}:{r+9+i}]")
        for i in (0, 2):
            e(f"v_cvt_pk_bf16_f32 v{PK+2*k+i//2}, v{r+i}, v{r+i+1}")
    e(f"buffer_store_dwordx4 v[{PK}:{PK+3}], v{VXO}, s[24:27], s44 offen{SC1}")
    e("s_waitcnt lgkmcnt(0)")
    e(f"v_pk_add_f32 v[{ZR}:{ZR+1}], v[{ZR}:{ZR+1}], v[{ZR+2}:{ZR+3}]")
    e(f"v_add_f32 v{ZR}, v{ZR}, v{ZR+1}")
    e(f"buffer_store_dword v{ZR}, v{VA+3}, s[16:19], s36 offen{SC1}")
    stamps_flush(A)
    phase_begin(A)
    phi(ACC, bc(QR), bc(QR + 4), OB)
    sync1(A)
    phi(ACC + 16, bc(QR), bc(QR + 4), OB + 8)
    e(f"v_mov_b32 v{ONE}, 0x3f80"); e(f"v_mov_b32 v{ONE+1}, 0x3f800000")
    e(f"v_add_u32 v{VA+1}, {LDS_R}, v{VXO}")
    SUM = TB
    for i in range(0, 8, 2): e(f"v_pk_mov_b32 v[{SUM+i}:{SUM+i+1}], 0, 0")
    e("s_barrier")
    rs(A, 2)
    P = ACC
    for m in range(16):
        if m: e(f"s_movk_i32 s44, {m*4096}" if m < 8 else f"s_mov_b32 s44, {m*4096}")
        e(f"buffer_load_dwordx4 v[{P+4*m}:{P+4*m+3}], v{VXO}, s[24:27], {'s44' if m else '0'} offen{SC1}")
    for i in range(4):
        e(f"buffer_load_dwordx4 v[{V_RES+4*i}:{V_RES+3+4*i}], v{VXO}, s[48:51], 0 offen offset:{i*1024}{SC1}")
    for m in range(16):
        e(f"s_waitcnt vmcnt({19 - m})")
        for j in range(4):
            e(f"v_dot2_f32_bf16 v{SUM+2*j}, v{P+4*m+j}, v{ONE}, v{SUM+2*j}")
            e(f"v_dot2_f32_bf16 v{SUM+2*j+1}, v{P+4*m+j}, v{ONE+1}, v{SUM+2*j+1}")
    e("s_nop 2")
    for j in range(4): e(f"v_cvt_pk_bf16_f32 v{PK+j}, v{SUM+2*j}, v{SUM+2*j+1}")
    e(f"ds_write_b128 v{VA}, v[{PK}:{PK+3}]")
    e("s_waitcnt lgkmcnt(0)")
    rs(A, 3)
    e("s_barrier")
    FR = PK; ZF = VV
    for hh in range(2):
        e(f"ds_read_b128 v[{ZF+hh*4}:{ZF+hh*4+3}], v{VA+5} offset:{hh*64}")
        for et in range(2):
            e(f"ds_read_b128 v[{FR+(hh*2+et)*4}:{FR+(hh*2+et)*4+3}], v{VA+1} offset:{(hh*2+et)*1024}")
    NUM = ACC; DEN = ACC + 32
    for hh in range(2):
        e(f"s_waitcnt lgkmcnt({3 - 3*hh})")
        for sb in range(2):
            i = hh * 2 + sb; b = OB + 4 * i
            e(f"v_mfma_f32_16x16x32_bf16 v[{DEN+4*i}:{DEN+4*i+3}], v[{ZF+hh*4}:{ZF+hh*4+3}], v[{b}:{b+3}], 0")
        for sb in range(2):
            i = hh * 2 + sb; b = OB + 4 * i
            for et in range(2):
                r = NUM + i * 8 + et * 4; a = FR + (hh * 2 + et) * 4
                e(f"v_mfma_f32_16x16x32_bf16 v[{r}:{r+3}], v[{a}:{a+3}], v[{b}:{b+3}], 0")
    rs(A, 4)
    e("s_nop 1")
    for i in range(4): e(f"v_add_f32 v{DEN+4*i}, s47, v{DEN+4*i}")
    for i in range(4): e(f"v_rcp_f32 v{DEN+4*i}, v{DEN+4*i}")
    e("s_nop 0")
    for i in range(4):
        r = NUM + i * 8; ob = TB + 4 * i
        for j in range(0, 8, 2):
            e(f"v_pk_mul_f32 v[{r+j}:{r+j+1}], v[{r+j}:{r+j+1}], v[{DEN+4*i}:{DEN+4*i+1}] op_sel_hi:[1,0]")
        for j in range(0, 8, 2):
            e(f"v_cvt_pk_bf16_f32 v{ob+j//2}, v{r+j}, v{r+j+1}")
        e(f"buffer_store_dwordx4 v[{ob}:{ob+3}], v{VXO}, s[20:23], 0 offen offset:{i*1024}{SC1}")
    stamps_flush(A)
    A.label(f"{tag}_out")
    set_signal(A, 33, cA)
    e(f"s_branch {nxt}")
    NST = opt.get("stag", 10)
    LD = Loader(A, "qkv", SET_A, 130, first=3)
    NX = Loader(A, "wo", SET_C, 140)
    def unpack_sum(L, i0, i1):
        for i in range(i0, i1):
            t = (32 if i == 0 else 40 + 8 * (i % 2))
            for j in range(4):
                e(f"v_lshlrev_b32 v{t+2*j}, 16, v{L+4*i+j}"); e(f"v_and_b32 v{t+2*j+1}, 0xffff0000, v{L+4*i+j}")
            if i:
                for j in range(4):
                    e(f"v_pk_add_f32 v[{32+2*j}:{33+2*j}], v[{32+2*j}:{33+2*j}], v[{t+2*j}:{t+2*j+1}]")
    def early():
        LD.setup(coords=False)
        e("s_mov_b32 s15, 0"); e("s_mov_b32 s13, 0")
        srd(A, 44, "s28", "s29", 0)
        e("v_and_b32 v3, 63, v0"); e("v_lshlrev_b32 v4, 2, v3")
        e(f"s_lshl_b32 s20, s{S_WV}, 9"); e(f"s_add_u32 s20, s20, {LST - 2048}")
        e("v_and_b32 v3, 31, v3"); e("v_lshlrev_b32 v3, 2, v3"); e("v_add_u32 v3, s20, v3")
        e(f"s_cmp_lg_u32 s{S_LAYER}, 0"); e(f"s_cbranch_scc1 {tag}_e1")
        e(f"s_load_dwordx4 s[4:7], s[0:1], {KA['wg']}")
        e(f"s_load_dwordx2 s[12:13], s[0:1], {KA['wo']}")
        e(f"s_lshl_b32 s20, s2, 2"); e(f"s_add_u32 s20, s20, s{S_WV}"); e("s_sub_u32 s20, s20, 4")
        e("s_lshr_b32 s48, s20, 3"); e("s_and_b32 s49, s20, 7")
        e("s_sub_u32 s30, s48, 56"); e("s_min_u32 s30, s30, s48"); e("s_lshl_b32 s30, s30, 7")
        e(f"s_mul_i32 s21, s49, {128*F*2}"); e("s_add_u32 s30, s30, s21")
        e("s_sub_u32 s21, s20, 896"); e("s_lshl_b32 s21, s21, 14")
        e("s_cmp_lt_u32 s48, 56")
        e("s_waitcnt lgkmcnt(0)")
        e("s_cselect_b32 s44, s4, s6"); e("s_cselect_b32 s45, s5, s7"); e("s_mov_b32 s47, 0x00020000")
        e(f"s_mov_b32 s46, {D*F*2}"); e(f"s_movk_i32 s22, {F*2}")
        e("s_cmp_ge_u32 s2, 224")
        e("s_cselect_b32 s44, s12, s44"); e("s_cselect_b32 s45, s13, s45"); e(f"s_cselect_b32 s46, {D*D*2}, s46")
        e("s_cselect_b32 s30, s21, s30"); e("s_cselect_b32 s22, 128, s22")
        e("s_lshl_b32 s14, s22, 3")
        e("v_and_b32 v20, 63, v0")
        e("v_lshrrev_b32 v21, 3, v20"); e("v_mul_lo_u32 v21, s22, v21"); e("v_and_b32 v22, 7, v20"); e("v_lshl_add_u32 v21, v22, 4, v21")
        e("s_lshr_b32 s20, s2, 3"); e("s_and_b32 s21, s2, 7"); e("s_lshl_b32 s21, s21, 1"); e("s_add_u32 s20, s20, s21")
        e(f"s_mul_i32 s21, s20, {65536 // NST + 1}"); e("s_lshr_b32 s21, s21, 16"); e(f"s_mul_i32 s21, s21, {NST}"); e("s_sub_u32 s15, s20, s21")
        e("s_add_u32 s15, s15, 4")
        e("s_lshl_b32 s48, s48, 11"); e("s_lshl_b32 s49, s49, 2"); e("s_add_u32 s48, s48, s49")
        unpack_sum(V_CS, 0, 8)
        col_reduce(A, 32, 20, 5)
        e("v_lshlrev_b32 v22, 3, v22"); e("v_lshrrev_b32 v6, 3, v20"); e("v_add_lshl_u32 v22, v22, v6, 5")
        e("s_max_u32 s13, s15, 5")
        A.label(f"{tag}_e1")
    idle_head(A, tag, first=True, early=early)
    L = 64
    def cond():
        uid[0] += 1; l = f"cu{uid[0]}"
        e(f"s_cmp_lg_u32 s{SET_A['p']}, s13"); e(f"s_cbranch_scc1 {l}g")
        e(f"s_cmp_lg_u32 s{S_WV}, 5"); e(f"s_cbranch_scc1 {l}g")
        e("s_cmp_ge_u32 s2, 196"); e(f"s_cbranch_scc1 {l}g")
        do_signal(e, 1, 2, wait=False, fl=24)
        A.label(l + "g")
        e(f"s_cmp_lg_u32 s{SET_A['p']}, s15"); e(f"s_cbranch_scc1 {l}")
        for i in range(16):
            e(f"buffer_load_dwordx4 v[{L+4*i}:{L+4*i+3}], v21, s[44:47], s30 offen")
            if i < 15: e("s_add_u32 s30, s30, s14")
        A.label(l)
    assert NST <= 10
    e(f"s_cmp_lg_u32 s{S_LAYER}, 0"); e(f"s_cbranch_scc1 {tag}_h0")
    e("v_lshrrev_b32 v5, 3, v22")
    srd_off(A, 16, "s28", "s29", WS_CSQ, 3072 * 64)
    e(f"s_lshl_b32 s20, s2, 2"); e(f"s_add_u32 s20, s20, s{S_WV}"); e("s_sub_u32 s20, s20, 4"); e("s_lshl_b32 s20, s20, 8")
    e(f"buffer_store_dword v32, v5, s[16:19], s20 offen{SC1}")
    A.label(f"{tag}_h0")
    LD.step(); cond()
    NX.setup()
    e("s_waitcnt vmcnt(0)")
    LD.step(); cond()
    fpre[0]()
    LD.step(); cond()
    e(f"s_lshl_b32 s20, s33, 2"); e(f"s_add_u32 s20, s20, s{S_WV}"); e("s_sub_u32 s20, s20, 4"); e("s_lshl_b32 s20, s20, 12"); e(f"s_add_u32 s20, s20, {WS_ST}")
    srd_off(A, 20, "s28", "s29", "s20", 4096)
    for i in range(16):
        e(f"buffer_load_dword v{32+i}, v4, s[20:23], 0 offen offset:{i*256}{SC1}")
    LD.loop(f"{tag}_i3", 8, body=cond)
    stats_finish(e, 32, 5, 6, 7)
    e(f"v_mul_f32 v5, {LOG2E:#x}, v7")
    e("ds_write_b32 v3, v6"); e("ds_write_b32 v3, v7 offset:128"); e("ds_write_b32 v3, v5 offset:256")
    e("s_waitcnt lgkmcnt(0)")
    LD.step()
    e(f"s_cmp_lg_u32 s{S_LAYER}, 0"); e(f"s_cbranch_scc1 {tag}_h1")
    unpack_sum(L, 0, 8)
    A.label(f"{tag}_h1")
    LD.step()
    e(f"s_cmp_lg_u32 s{S_LAYER}, 0"); e(f"s_cbranch_scc1 {tag}_h2")
    unpack_sum(L, 8, 16)
    col_reduce(A, 32, 20, 21)
    srd_off(A, 44, "s28", "s29", WS_CS2, 2 * F * 32)
    e(f"buffer_store_dword v32, v22, s[44:47], s48 offen{SC1}")
    A.label(f"{tag}_h2")
    LD.step()
    e(f"s_cmp_lg_u32 s{S_WV}, 4"); e(f"s_cbranch_scc1 {tag}_h3")
    e(f"s_cmp_lg_u32 s{S_LAYER}, 0"); e(f"s_cbranch_scc1 {tag}_h3")
    e(f"s_movk_i32 s{S_POFF}, {DBG_G}"); e(f"s_movk_i32 s{S_PTGT}, 196")
    do_poll(e, 30, 31, tag + "g", fl=24, diag=False)
    e("s_lshl_b32 s20, s34, 12"); e(f"s_add_u32 s20, s20, {WS_CSQ}")
    srd_off(A, 44, "s28", "s29", "s20", 131072 + 4096)
    e("s_mov_b32 s21, 65536"); e("s_mov_b32 s22, 131072")
    e("v_lshlrev_b32 v29, 2, v4")
    for b in range(3):
        for k in range(4):
            e(f"buffer_load_dwordx4 v[{32+16*b+4*k}:{35+16*b+4*k}], v29, s[44:47], {('0', 's21', 's22')[b]} offen offset:{k*1024}{SC1}")
    A.label(f"{tag}_h3")
    for _ in range(3): NX.issue()
    e("s_waitcnt vmcnt(6)")
    e("s_barrier")
    fpre[1](0)
    e(f"s_cmp_lg_u32 s{S_WV}, 4"); e(f"s_cbranch_scc1 {tag}_h5")
    e(f"s_cmp_lg_u32 s{S_LAYER}, 0"); e(f"s_cbranch_scc1 {tag}_h6")
    for st in (8, 4):
        for b in range(3):
            for i in range(0, st, 2): e(f"v_pk_add_f32 v[{32+16*b+i}:{33+16*b+i}], v[{32+16*b+i}:{33+16*b+i}], v[{32+16*b+i+st}:{33+16*b+i+st}]")
    e("s_nop 0")
    for b in range(3):
        for i in range(2): e(f"v_permlane32_swap_b32 v{32+16*b+i}, v{34+16*b+i}")
    e("s_nop 0")
    for b in range(3): e(f"v_pk_add_f32 v[{32+16*b}:{33+16*b}], v[{32+16*b}:{33+16*b}], v[{34+16*b}:{35+16*b}]")
    e("s_nop 1")
    for b in range(3): e(f"v_permlane16_swap_b32 v{32+16*b}, v{33+16*b}")
    e("s_nop 1")
    for b in range(3): e(f"v_add_f32 v{V_KEEP+b}, v{32+16*b}, v{33+16*b}")
    A.label(f"{tag}_h6")
    e("v_and_b32 v29, 60, v4"); e("v_lshlrev_b32 v29, 2, v29"); e("v_lshrrev_b32 v30, 6, v4"); e("v_lshl_add_u32 v29, v30, 2, v29")
    e(f"v_add_u32 v29, {LCS}, v29")
    for b in range(3): e(f"ds_write_b32 v29, v{V_KEEP+b} offset:{b*256}")
    e("s_waitcnt lgkmcnt(0)")
    A.label(f"{tag}_h5")
    e("s_barrier")
    fpre[1](1)
    srd_off(A, 44, "s28", "s29", WS_XC, 4 * MB)
    e(f"s_lshl_b32 s48, s2, 2"); e(f"s_add_u32 s48, s48, s{S_WV}"); e("s_sub_u32 s48, s48, 4"); e("s_lshl_b32 s48, s48, 12")
    e("v_and_b32 v20, 63, v0"); e("v_lshlrev_b32 v20, 4, v20")
    for i in range(4): e(f"v_mov_b32 v{24+i}, -1")
    e("s_barrier")
    for i in range(4): e(f"buffer_store_dwordx4 v[24:27], v20, s[44:47], s48 offen offset:{i*1024}{SC1}")
    if gen.STAMP: e(f"s_add_u32 s{S_PH}, s{S_PH}, 1")
    set_signal(A, 34, cQ)
    set_poll(A, 34, cQ, 16)
    def early2():
        wd_warm_base(A)
        e(f"s_cmp_lg_u32 s{S_LAYER}, 0"); e(f"s_cbranch_scc1 {tag}_nw")
        warm(A, [64 * i for i in range(14)], 896)
        A.label(f"{tag}_nw")
        e(f"s_mul_i32 s39, s{S_LAYER}, {WS_KV2 - WS_KV}"); e("s_lshl_b32 s38, s34, 12"); e("s_add_u32 s38, s38, s39"); e(f"s_add_u32 s38, s38, {WS_Z}")
        srd_off(A, 16, "s28", "s29", "s38", 4096)
        e("v_and_b32 v4, 63, v0"); e("v_lshlrev_b32 v5, 2, v4")
        e("v_and_b32 v6, 3, v4"); e("v_lshlrev_b32 v6, 1, v6")
        e("v_bfe_u32 v7, v4, 2, 2"); e("v_lshl_add_u32 v6, v7, 4, v6")
        e("v_bfe_u32 v7, v4, 4, 1"); e("v_lshl_add_u32 v6, v7, 3, v6")
        e("v_lshrrev_b32 v7, 5, v4"); e("v_lshl_add_u32 v6, v7, 6, v6")
        e(f"v_add_u32 v6, {LDS_Z + 1024}, v6")
    idle_head(A, tag + "b", early=early2)
    e(f"s_cmp_lg_u32 s{S_WV}, 5"); e(f"s_cbranch_scc1 {tag}_nz")
    for m in range(16):
        e(f"buffer_load_dword v{8+m}, v5, s[16:19], 0 offen offset:{m*256}{SC1}")
    e("s_waitcnt vmcnt(0)")
    for st in (8, 4, 2, 1):
        for i in range(st): e(f"v_add_f32 v{8+i}, v{8+i}, v{8+i+st}")
    e("v_cvt_pk_bf16_f32 v8, v8, v8")
    e("ds_write_b16 v6, v8")
    e("s_waitcnt lgkmcnt(0)")
    A.label(f"{tag}_nz")
    e("s_barrier")
    idle_tail(A, f"{tag}_out")

def p_start(A):
    e = A.e
    NX = Loader(A, "qkv", SET_B, 140)
    e("v_and_b32 v5, 63, v0"); e("v_lshlrev_b32 v1, 4, v5")
    e(f"s_cmp_ge_u32 s{S_WV}, 4"); e("s_cbranch_scc1 ps_cs")
    e(f"s_lshl_b32 s33, s2, 2"); e(f"s_add_u32 s33, s33, s{S_WV}")
    e("s_lshr_b32 s35, s33, 4"); e("s_and_b32 s34, s33, 15")
    rowmajor_lane_off(A, 2, 3)
    e("s_lshl_b32 s36, s35, 16"); e("s_lshl_b32 s37, s34, 7"); e("s_add_u32 s36, s36, s37"); e(f"s_add_u32 s37, s36, {16*2048}")
    e("s_lshl_b32 s38, s33, 12")
    e("s_waitcnt lgkmcnt(0)")
    srd(A, 8, "s4", "s5", S * D * 2)
    R = 16
    for i in (0, 2, 1, 3):
        so, off = rowmajor_frag(i, "s36", "s37")
        e(f"buffer_load_dwordx4 v[{R+4*i}:{R+4*i+3}], v2, s[8:11], {so} offen offset:{off} nt")
    srd_off(A, FL, "s28", "s29", WS_FL, 16384)
    srd_off(A, 12, "s28", "s29", "s38", 4096)
    srd(A, 24, "s30", "s31", 256)
    e("s_lshl_b32 s36, s33, 8")
    srd_off(A, 16, "s28", "s29", WS_ST, 64 * 4096)
    e("v_lshrrev_b32 v4, 2, v1")
    e("s_and_b32 s38, s2, 0xf0")
    e("s_waitcnt vmcnt(0)")
    for i in range(4):
        e(f"v_permlane16_swap_b32 v{R+4*i}, v{R+4*i+2}")
        e(f"v_permlane16_swap_b32 v{R+4*i+1}, v{R+4*i+3}")
    e("s_nop 1")
    for i in range(4):
        e(f"buffer_store_dwordx4 v[{R+4*i}:{R+4*i+3}], v1, s[12:15], 0 offen offset:{i*1024}{SC1}")
    stats_emit(A, 16, [R + i for i in range(16)], 8)
    e(f"buffer_store_dword v8, v4, s[16:19], s36 offen{SC1}")
    e("s_barrier")
    e("s_waitcnt vmcnt(0)")
    e("s_barrier")
    e(f"s_cmp_lg_u32 s{S_WV}, 0"); e("s_cbranch_scc1 ps_x1")
    do_signal(e, 1, 2, wait=False, fl=24, off="s38")
    A.label("ps_x1")
    e("s_branch pq")
    A.label("ps_cs")
    e("s_lshr_b32 s45, s2, 2"); e("s_and_b32 s46, s2, 3")
    e(f"v_lshrrev_b32 v2, 3, v5"); e(f"v_mul_u32_u24 v2, {3*D*2}, v2"); e("v_and_b32 v3, 7, v5"); e("v_lshl_add_u32 v2, v3, 4, v2")
    e(f"s_lshl_b32 s38, s46, 2"); e(f"s_add_u32 s38, s38, s{S_WV}"); e("s_sub_u32 s38, s38, 4"); e(f"s_mul_i32 s38, s38, {64*3*D*2}")
    e("s_lshl_b32 s39, s45, 7"); e("s_add_u32 s38, s38, s39")
    e("s_cmp_lt_u32 s2, 192"); e(f"s_cselect_b32 s10, {D*3*D*2}, 0"); e("s_mov_b32 s11, 0x00020000")
    e("s_waitcnt lgkmcnt(0)")
    e("s_mov_b32 s8, s6"); e("s_mov_b32 s9, s7")
    srd_off(A, FL, "s28", "s29", WS_FL, 16384)
    for i in range(4): e(f"v_mov_b32 v{40+i}, 0")
    e(f"s_lshl_b32 s47, s2, 2"); e(f"s_add_u32 s47, s47, s{S_WV}"); e(f"s_add_u32 s47, s47, {1024 - 192*4 - 4}"); e("s_and_b32 s47, s47, 1023")
    e("s_lshl_b32 s47, s47, 10")
    e(f"buffer_store_dwordx4 v[40:43], v1, s[{FL}:{FL+3}], s47 offen{SC1}")
    NX.setup()
    NX.issue()
    e("s_barrier")
    for i in range(8):
        e(f"buffer_load_dwordx4 v[{V_CS+4*i}:{V_CS+4*i+3}], v2, s[8:11], s38 offen")
        if i < 7: e(f"s_add_u32 s38, s38, {8*3*D*2}")
    e("s_barrier")
    NX.issue(); NX.issue()

def k_mega(A, o):
    e = A.e
    A.begin_kernel(NAME)
    e("s_cmp_ge_u32 s2, 256")
    e(f"s_cbranch_scc1 {NAME}_end")
    if gen.STAMP: e("s_memrealtime s[76:77]")
    e(f"s_load_dwordx4 s[4:7], s[0:1], {KA['x']}")
    e(f"s_load_dwordx2 s[28:29], s[0:1], {KA['ws']}")
    e(f"s_load_dwordx2 s[30:31], s[0:1], {KA['dbg']}")
    e("v_lshrrev_b32 v1, 6, v0")
    e(f"s_mov_b32 s{S_LAYER}, 0"); e(f"s_movk_i32 s{S_SIG}, {DBG_G}"); e(f"s_mov_b32 s{S_PH}, 0")
    e(f"v_readfirstlane_b32 s{S_WV}, v1")
    p_start(A)
    p_qkv(A, "pq", "po", ffn_prefetch(A, 150, o.get("ffn")), o.get("qkv"))
    p_proj(A, "po", D, False, "pu", o.get("wo"))
    p_ffn(A, "pu", "pd", o.get("ffn"))
    p_proj(A, "pd", F, True, "pq", o.get("down"))
    A.label(f"{NAME}_end")
    e("s_endpgm")
    A.add_desc(NAME, 256, 102, 256)
    return dict(name=NAME, grid=256, block=512, lds=163840)

def build_mega(path, stamp_on=False, o=None, single=False):
    gen.STAMP = stamp_on
    uid[0] = 0
    A = Asm()
    mega = k_mega(A, o or {})
    A.launch(mega["name"], mega["grid"], mega["block"], mega["lds"])
    txt = A.text(HEADER)
    if single:
        txt = txt.replace(f"; @launch kernel={NAME} ", "; @launch ").replace(NAME, "interleave_layers__linear_attn_block__swiglu_ffn__prompt_kernel")
    open(path, "w").write(txt)

if __name__ == "__main__":
    if len(sys.argv) > 1:
        import json
        for name, o in json.loads(sys.argv[1]).items(): build_mega(f"m_{name}_stamp.s", True, o)
        sys.exit(0)
    build_mega("mega_stamp.s", True)
    build_mega("mega.s", False, single=True)
    DBGOUT = True
    build_mega("mega_dbg.s", True, single=True)
```

```python
import sys, math
from asmlib import Asm

S, D, F = 2048, 1024, 3584
MB = 1 << 20
WS_X, WS_PQ, WS_O, WS_H = 0, 4 * MB, 8 * MB, 12 * MB
WS_KV, WS_Z, WS_ST, WS_CS = 27 * MB, 29 * MB, 31 * MB, 31 * MB + 512 * 1024
CS_N = 10240
WS_DBG = 40 * MB
KA = dict(x=0, wqkv=8, wo=16, bx=24, wg=32, wu=40, wd=48, out=56, dbg=64, ws=72)
LOG2E = 0x3fb8aa3b
NLOG2E = 0xbfb8aa3b

def f2u(x):
    import struct
    return struct.unpack("<I", struct.pack("<f", x))[0]

class Stream:
    def __init__(self):
        self.ops = []
        self.pre = set()
    def i(self, s): self.ops.append(("i", s))
    def vm(self, s, tag): self.ops.append(("vm", s, tag))
    def ds(self, s, tag): self.ops.append(("ds", s, tag))
    def wait(self, vm=None, ds=None): self.ops.append(("w", vm, ds))

def resolve(pro, bodies, tail=None):
    vq, dq = [], []
    def cnt(q, tags):
        if not tags: return None
        idx = -1
        for t in tags:
            if t in pro.pre: continue
            assert t in q, ("wait on never-issued tag", t)
            idx = max(idx, len(q) - 1 - q[::-1].index(t))
        if idx < 0: return None
        return len(q) - 1 - idx
    def run(st):
        res = []
        for op in st.ops:
            if op[0] == "vm": vq.append(op[2]); res.append(None)
            elif op[0] == "ds": dq.append(op[2]); res.append(None)
            elif op[0] == "w": res.append((cnt(vq, op[1]), cnt(dq, op[2])))
            else: res.append(None)
        return res
    def lines(st, res):
        out = []
        for op, r in zip(st.ops, res):
            if op[0] == "w":
                v, d = r
                parts = []
                if v is not None and v < 63: parts.append(f"vmcnt({v})")
                if d is not None and d < 15: parts.append(f"lgkmcnt({d})")
                if v is not None and v >= 63: parts.append("vmcnt(63)")
                if d is not None and d >= 15: parts.append("lgkmcnt(15)")
                if parts: out.append("s_waitcnt " + " ".join(parts))
            else:
                out.append(op[1])
        return out
    rp = run(pro)
    rs = [run(b) for b in bodies]
    for b in bodies[1:]:
        assert [o[1] for o in b.ops if o[0] != "w"] == [o[1] for o in bodies[0].ops if o[0] != "w"]
    merged = []
    for k in range(len(bodies[0].ops)):
        if bodies[0].ops[k][0] == "w":
            vs = [r[k][0] for r in rs if r[k][0] is not None]
            dsx = [r[k][1] for r in rs if r[k][1] is not None]
            merged.append((min(vs) if vs else None, min(dsx) if dsx else None))
        else:
            merged.append(None)
    if tail is not None:
        return lines(pro, rp), lines(bodies[0], merged), lines(tail, run(tail))
    return lines(pro, rp), lines(bodies[0], merged)

STAMP = False
def stamp(A, k):
    if STAMP:
        A.e(f"s_memtime s[{60+2*k}:{61+2*k}]")
def stamp_real(A, k):
    if STAMP:
        A.e(f"s_memrealtime s[{60+2*k}:{61+2*k}]")
def stamp_out(A, name, n):
    if not STAMP: return
    e = A.e
    e("s_waitcnt vmcnt(0) lgkmcnt(0)")
    stamp(A, n - 2)
    stamp_real(A, n - 1)
    e(f"s_load_dwordx2 s[56:57], s[0:1], {KA['ws']}")
    e(f"s_load_dword s79, s[0:1], {KA['dbg']}")
    e("s_getreg_b32 s59, hwreg(HW_REG_XCC_ID)")
    e("s_waitcnt lgkmcnt(0)")
    e("v_cmp_gt_u32 vcc, 1, v0")
    e("s_and_saveexec_b64 s[50:51], vcc")
    e(f"s_cbranch_execz {name}_end")
    srd_off(A, 52, "s56", "s57", WS_DBG, 32 * 65536)
    e("s_lshl_b32 s58, s2, 6")
    e("s_lshr_b32 s79, s79, 9"); e("s_and_b32 s79, s79, 31"); e("s_lshl_b32 s79, s79, 16"); e("s_add_u32 s58, s58, s79")
    e("v_mov_b32 v1, 0")
    for k in range(n):
        e(f"v_mov_b32 v2, s{60+2*k}")
        e(f"buffer_store_dword v2, v1, s[52:55], s58 offen offset:{4*k}")
    e(f"v_mov_b32 v2, s59")
    e(f"buffer_store_dword v2, v1, s[52:55], s58 offen offset:60")

def srd(A, r, lo, hi, size):
    A.e(f"s_mov_b32 s{r}, {lo}"); A.e(f"s_mov_b32 s{r+1}, {hi}")
    A.e(f"s_mov_b32 s{r+2}, {size}"); A.e(f"s_mov_b32 s{r+3}, 0x00020000")

def srd_off(A, r, lo, hi, off, size):
    A.e(f"s_add_u32 s{r}, {lo}, {off}"); A.e(f"s_addc_u32 s{r+1}, {hi}, 0")
    A.e(f"s_mov_b32 s{r+2}, {size}"); A.e(f"s_mov_b32 s{r+3}, 0x00020000")

class Gemm:
    def __init__(self, A, name, T, NB, RG, K, STAGES, XT, NWR, npieces, stage_bytes, piece_lds, frag_addr,
                 acc, wfrag0, xfrag0, vpiece0, vxoff, srd_w, srd_x, s_woff, s_xoff, s_ldsw, s_it, ldw, swap=None,
                 opt=None, BK=64, LA=None, WG=1):
        self.__dict__.update(locals())
        self.opt = opt or {}
        self.LA = LA or NWR
        self.kstep = 512 // T
        self.KS = BK // self.kstep
        self.SB = RG * (32 // T)
        self.NT = K // BK
        self.skew = self.opt.get("skew", 1)
        self.UN = STAGES * XT // math.gcd(STAGES, XT)
        while (self.skew and self.UN % (4 * self.skew)) or (self.UN * self.KS * NB) % NWR: self.UN *= 2
        assert self.NT % self.UN == 0, (self.NT, self.UN)
        assert self.LA <= NWR and self.LA <= self.KS * NB
        self.swap = swap or [False] * NB
        self.op = "v_mfma_f32_32x32x16_bf16" if T == 32 else "v_mfma_f32_16x16x32_bf16"
        self.XB = BK * 64
        self.LOOK = XT if self.opt.get("now") else max(XT, STAGES - 1)
        self.RING = min(8, self.UN)
        if self.skew: assert self.UN % self.RING == 0 and self.LOOK <= self.RING
        self.s_tq, self.s_sd, self.s_p, self.s_t1 = 84, 92, 96, 97
        assert self.skew in (0, 1, 2)
    def order_init(self, s_r):
        A = self.A
        if not self.skew:
            A.e(f"s_mov_b32 s{self.s_woff}, {-self.BK * self.ldw & 0xffffffff:#x}")
            A.e(f"s_mov_b32 s{self.s_xoff}, {-self.XB & 0xffffffff:#x}")
            return
        A.e(f"s_mov_b32 s{self.s_p}, 0")
        for i in range(4):
            A.e(f"s_cmp_eq_u32 s{s_r}, {i}")
            A.e(f"s_cselect_b32 s{self.s_sd+i}, {3 * self.skew}, {-self.skew}")
    def order_next(self, p):
        if not self.skew: return []
        t = self.s_tq + p % self.RING; t1 = self.s_t1; NT = self.NT
        l = [f"s_add_u32 s{t}, s{self.s_p}, s{self.s_sd + (p // self.skew) % 4}",
             f"s_add_u32 s{t1}, s{t}, {NT}",
             f"s_min_u32 s{t}, s{t}, s{t1}",
             f"s_sub_u32 s{t1}, s{t}, {NT}",
             f"s_min_u32 s{t}, s{t}, s{t1}"]
        l += [f"s_cmp_ge_u32 s{self.s_p}, {NT}\n    s_cselect_b32 s{t}, {NT * self.RG}, s{t}",
              f"s_add_u32 s{self.s_p}, s{self.s_p}, 1"]
        return l
    def set_woff(self, st, p):
        if self.skew: st.i(f"s_mul_i32 s{self.s_woff}, s{self.s_tq + p % self.RING}, {self.BK * self.ldw}")
        else: st.i(f"s_add_u32 s{self.s_woff}, s{self.s_woff}, {self.BK * self.ldw}")
    def set_xoff(self, st, p):
        if self.skew: st.i(f"s_mul_i32 s{self.s_xoff}, s{self.s_tq + p % self.RING}, {self.XB}")
        else:
            assert self.RG == 1
            st.i(f"s_add_u32 s{self.s_xoff}, s{self.s_xoff}, {self.XB}")
    def stage_off(self, stg):
        return ((stg + self.opt.get("rot", 0)) % self.STAGES) * self.stage_bytes
    def wreg(self, f):
        return self.wfrag0 + (f % self.NWR) * 4
    def xreg(self, q, sb):
        return self.xfrag0 + ((q % (self.XT * self.KS)) * self.SB + sb) * 4
    def dma_m0(self, st, tile, j):
        st.i(f"s_add_u32 m0, s{self.s_ldsw}, {self.stage_off(tile % self.STAGES) + self.piece_lds(j)}")
    def dma_ld(self, st, tile, j):
        st.vm(f"buffer_load_dwordx4 v{self.vpiece0 + j}, s[{self.srd_w}:{self.srd_w+3}], s{self.s_woff} offen lds", ("W", tile, j))
    def dma(self, st, tile, j):
        self.dma_m0(st, tile, j); st.i("s_nop 0"); self.dma_ld(st, tile, j)
    def xload(self, st, q, sb):
        r = self.xreg(q, sb)
        ks = q % self.KS
        if self.T == 32: rg, off = sb, (ks >> 1) * 2048 + (ks & 1) * 512
        else: rg, off = sb // 2, (ks * 2 + sb % 2) * 1024
        off = f" offset:{off}" if off else ""
        st.vm(f"buffer_load_dwordx4 v[{r}:{r+3}], v{self.vxoff + rg}, s[{self.srd_x}:{self.srd_x+3}], s{self.s_xoff} offen{off}", ("X", q, sb))
    def wread(self, st, f, rd):
        q, nb = divmod(f, self.NB)
        tile, ks = divmod(q, self.KS)
        if f in getattr(self, "fmap", {}):
            if self.fmap[f] is None: return
            tile, ks, nb = self.fmap[f]
        if self.opt.get("kin"):
            tile, r_ = divmod(f, self.KS * self.NB)
            nb, ks = divmod(r_, self.KS)
        row = (32 * (ks >> 1) + 8 * (ks & 1) + 16 * rd) if self.T == 32 else (32 * ks + 16 * rd)
        base, off = self.frag_addr(tile % self.STAGES, row, nb)
        assert 0 <= off < 65536, off
        r = self.wreg(f) + 2 * rd
        st.ds(f"ds_read_b64_tr_b16 v[{r}:{r+1}], v{base} offset:{off}", ("R", f, rd))
    def slots(self):
        tot = self.KS * self.NB * self.SB
        bpos = (self.KS * self.NB - self.LA) * self.SB
        pos = [(bpos + 2 + (j * tot) // self.npieces + self.opt.get("dma_shift", 0)) % tot for j in range(self.npieces)]
        assert len(set(pos)) == len(pos)
        return bpos, pos
    def pro_tile(self, st, t, w=True, x=True):
        bpos, pos = self.slots()
        if w and t < self.STAGES - 1:
            self.set_woff(st, t)
            for j in range(self.npieces):
                if t < self.STAGES - 2 or pos[j] > bpos:
                    self.dma(st, t, j)
        if x and t < self.XT:
            self.set_xoff(st, t)
            for ks in range(self.KS):
                for sb in range(self.SB):
                    self.xload(st, t * self.KS + ks, sb)
    def prologue_first(self, st):
        n0 = self.opt.get("first", 1)
        for t in range(n0):
            for l in self.order_next(t): st.i(l)
            if self.opt.get("xfirst"):
                self.pro_tile(st, t, w=False); self.pro_tile(st, t, x=False)
            else: self.pro_tile(st, t)
    def prologue_reads(self, st):
        st.wait(vm=[("W", 0, j) for j in range(self.npieces)])
        st.i("s_barrier")
        if STAMP: st.i("s_memtime s[66:67]\n    s_waitcnt lgkmcnt(0)")
        for f in range(self.LA):
            for rd in range(2):
                self.wread(st, f, rd)
    def prologue_rest(self, st):
        for t in range(self.opt.get("first", 1), self.LOOK):
            for l in self.order_next(t): st.i(l)
            self.pro_tile(st, t)
    def body_cluster(self, it):
        st = Stream()
        KS, NB, SB, LA, CL = self.KS, self.NB, self.SB, self.LA, self.opt["CL"]
        prio = self.opt.get("prio", 1)
        now = self.opt.get("now")
        assert LA == self.NWR and NB % CL == 0 and LA % CL == 0
        bpos, pos = self.slots()
        for tt in range(self.UN):
            t = it * self.UN + tt
            pend = self.order_next(t + self.LOOK)
            for ks in range(KS):
                q = t * KS + ks
                for nb0 in range(0, NB, CL):
                    f0 = q * NB + nb0
                    m0 = (ks * NB + nb0) * SB; m1 = m0 + CL * SB
                    st.wait(vm=[("X", q, sb) for sb in range(SB)] if nb0 == 0 else None,
                            ds=[("R", f0 + i, rd) for i in range(CL) for rd in range(2)])
                    first = True
                    for nb in range(nb0, nb0 + CL):
                        for sb in range(SB):
                            w = self.wreg(q * NB + nb); x = self.xreg(q, sb); a = self.acc(nb, sb)
                            wv, xv = f"v[{w}:{w+3}]", f"v[{x}:{x+3}]"
                            if self.swap[nb]: st.i(f"{self.op} {a}, {xv}, {wv}, {a}")
                            else: st.i(f"{self.op} {a}, {wv}, {xv}, {a}")
                            if first and prio: st.i("s_setprio 1")
                            first = False
                    if prio: st.i("s_setprio 0")
                    if m0 == 0:
                        for l in pend: st.i(l)
                        self.set_xoff(st, t + self.XT)
                    dj = [j for j in range(self.npieces) if m0 <= pos[j] < m1 and not now]
                    early = [j for j in dj if pos[j] <= bpos]; late = [j for j in dj if pos[j] > bpos]
                    for j in early: self.dma(st, t + self.STAGES - 2, j)
                    if m0 <= bpos < m1:
                        assert m0 == bpos
                        if not now: st.wait(vm=[("W", t + 1, j) for j in range(self.npieces)])
                        st.i("s_barrier")
                        if not now: self.set_woff(st, t + self.STAGES - 1)
                    for j in late: self.dma_m0(st, t + self.STAGES - 1, j)
                    assert len(late) <= 1
                    for i in range(CL):
                        self.wread(st, f0 + i + LA, 0); self.wread(st, f0 + i + LA, 1)
                    for j in late: self.dma_ld(st, t + self.STAGES - 1, j)
                    if nb0 + CL == NB:
                        for sb in range(SB): self.xload(st, q + self.XT * KS, sb)
        return st
    def body_kin(self, it):
        st = Stream()
        KS, NB, SB, LA = self.KS, self.NB, self.SB, self.LA
        now = self.opt.get("now")
        assert LA % KS == 0 and LA + KS <= self.NWR and self.XT >= 2 and SB * KS == 2 * KS
        bpos, pos = self.slots()
        for tt in range(self.UN):
            t = it * self.UN + tt
            pend = self.order_next(t + self.LOOK)
            xset = False
            for nb in range(NB):
                f0 = (t * NB + nb) * KS
                rds = [(f0 + LA + i, rd) for i in range(KS) for rd in range(2)]
                for sb in range(SB):
                    for ks in range(KS):
                        q = t * KS + ks
                        m = (nb * SB + sb) * KS + ks
                        vmw = [("X", q, sb)] if nb == 0 else None
                        dsw = [("R", f0 + i, rd) for i in range(KS) for rd in range(2)] if (sb == 0 and ks == 0) else None
                        if vmw or dsw: st.wait(vm=vmw, ds=dsw)
                        w = self.wreg(f0 + ks); x = self.xreg(q, sb); a = self.acc(nb, sb)
                        wv, xv = f"v[{w}:{w+3}]", f"v[{x}:{x+3}]"
                        dj = [j for j in range(self.npieces) if pos[j] == m and not now]
                        tgt = t + self.STAGES - 1 if m > bpos else t + self.STAGES - 2
                        for j in dj: self.dma_m0(st, tgt, j)
                        if self.swap[nb]: st.i(f"{self.op} {a}, {xv}, {wv}, {a}")
                        else: st.i(f"{self.op} {a}, {wv}, {xv}, {a}")
                        for j in dj: self.dma_ld(st, tgt, j)
                        for l in pend[:1]: st.i(l)
                        pend = pend[1:]
                        if not pend and not xset:
                            self.set_xoff(st, t + self.XT); xset = True
                        if m == bpos:
                            assert not pend or now
                            if not now: st.wait(vm=[("W", t + 1, j) for j in range(self.npieces)])
                            st.i("s_barrier")
                            if not now: self.set_woff(st, t + self.STAGES - 1)
                        self.wread(st, *rds.pop(0))
                        if nb == NB - 1:
                            assert xset
                            self.xload(st, q + self.XT * KS, sb)
        return st
    def body(self, it):
        if self.opt.get("CL"): return self.body_cluster(it)
        if self.opt.get("kin"): return self.body_kin(it)
        st = Stream()
        KS, NB, SB, LA = self.KS, self.NB, self.SB, self.LA
        bpos, pos = self.slots()
        o = self.opt
        nomfma, noread, noload, nox, now, nobar = (o.get(k) for k in ("nomfma", "noread", "noload", "nox", "now", "nobar"))
        spread = LA < self.NWR and SB >= 2
        for tt in range(self.UN):
            t = it * self.UN + tt
            pend = self.order_next(t + self.LOOK)
            lim = max(1, min((NB - 1) * SB, bpos if bpos else 1))
            per = max(1, -(-len(pend) // lim))
            xset = False
            for ks in range(KS):
                q = t * KS + ks
                for nb in range(NB):
                    f = q * NB + nb
                    for sb in range(SB):
                        m = (ks * NB + nb) * SB + sb
                        vmw = [("X", q, sb)] if (nb == 0 and not noload and not nox) else None
                        dsw = None
                        if sb == 0 and not noread and f % self.WG == 0:
                            dsw = [("R", f + i, rd) for i in range(self.WG) for rd in range(2)]
                        if vmw or dsw: st.wait(vm=vmw, ds=dsw)
                        w = self.wreg(f); x = self.xreg(q, sb)
                        a = self.acc(nb, sb)
                        wv, xv = f"v[{w}:{w+3}]", f"v[{x}:{x+3}]"
                        dj = [j for j in range(self.npieces) if pos[j] == m and not now and not noload]
                        tgt = t + self.STAGES - 1 if m > bpos else t + self.STAGES - 2
                        for j in dj: self.dma_m0(st, tgt, j)
                        if not nomfma:
                            if self.swap[nb]: st.i(f"{self.op} {a}, {xv}, {wv}, {a}")
                            else: st.i(f"{self.op} {a}, {wv}, {xv}, {a}")
                        elif dj: st.i("s_nop 0")
                        for j in dj: self.dma_ld(st, tgt, j)
                        for l in pend[:per]: st.i(l)
                        pend = pend[per:]
                        if not pend and not xset:
                            self.set_xoff(st, t + self.XT); xset = True
                        if m == 2 and getattr(self, "tile_hook", None): self.tile_hook(st)
                        if m == bpos:
                            assert not pend
                            if not noload and not now: st.wait(vm=[("W", t + 1, j) for j in range(self.npieces)])
                            if not nobar: st.i("s_barrier")
                            if not now: self.set_woff(st, t + self.STAGES - 1)
                        if not noread:
                            if spread:
                                if sb == 0: self.wread(st, f + LA, 0)
                                if sb == SB // 2: self.wread(st, f + LA, 1)
                            elif sb == SB - 1:
                                self.wread(st, f + LA, 0); self.wread(st, f + LA, 1)
                        if not noload and nb == NB - 1 and not nox:
                            assert xset
                            self.xload(st, q + self.XT * KS, sb)
        return st
    def emit(self, pro, loop_end=None):
        A = self.A
        nit = self.NT // self.UN
        pl, bl = resolve(pro, [self.body(it) for it in range(nit)])
        for l in pl: A.e(l)
        if STAMP:
            A.e("s_waitcnt lgkmcnt(0)"); stamp(A, 4); A.e("s_waitcnt lgkmcnt(0)")
        if nit > 1:
            A.e(f"s_mov_b32 s{self.s_it}, {nit}")
            A.e(".p2align 6")
            A.label(f"{self.name}_loop")
        for l in bl: A.e(l)
        if nit > 1:
            A.e(f"s_sub_u32 s{self.s_it}, s{self.s_it}, 1")
            if loop_end: loop_end()
            A.e(f"s_cmp_lg_u32 s{self.s_it}, 0")
            A.e(f"s_cbranch_scc1 {self.name}_loop")

def lane_consts_fullline(A, T, ldw, vtmp, vpiece_base, vfrag0):
    e = A.e
    t0, t1, t2 = vtmp, vtmp + 1, vtmp + 2
    e(f"v_and_b32 v{t0}, 63, v0")
    e(f"v_lshrrev_b32 v{t1}, 3, v{t0}")
    e(f"v_mul_u32_u24 v{vpiece_base}, {ldw}, v{t1}")
    e(f"v_and_b32 v{t2}, 7, v{t0}")
    if T == 32:
        e(f"v_and_b32 v{t1}, 2, v{t1}")
        e(f"v_lshlrev_b32 v{t1}, 1, v{t1}")
    else:
        e(f"v_and_b32 v{t1}, 6, v{t1}")
    e(f"v_xor_b32 v{t2}, v{t2}, v{t1}")
    e(f"v_lshl_add_u32 v{vpiece_base}, v{t2}, 4, v{vpiece_base}")
    if vfrag0 is None: return
    e(f"v_and_b32 v{t1}, 3, v{t0}")
    e(f"v_lshlrev_b32 v{vfrag0}, 3, v{t1}")
    if T == 32:
        e(f"v_lshrrev_b32 v{t1}, 5, v{t0}")
        e(f"v_lshl_add_u32 v{vfrag0}, v{t1}, 9, v{vfrag0}")
        e(f"v_bfe_u32 v{t1}, v{t0}, 2, 2")
        e(f"v_lshl_add_u32 v{vfrag0}, v{t1}, 7, v{vfrag0}")
        e(f"v_bfe_u32 v{t1}, v{t0}, 3, 1")
        e(f"v_lshl_add_u32 v{vfrag0}, v{t1}, 6, v{vfrag0}")
        e(f"v_bfe_u32 v{t1}, v{t0}, 4, 1")
        e(f"v_lshl_add_u32 v{vfrag0}, v{t1}, 5, v{vfrag0}")
        e(f"v_xor_b32 v{vfrag0+1}, 64, v{vfrag0}")
    else:
        e(f"v_lshrrev_b32 v{t1}, 2, v{t0}")
        e(f"v_lshl_add_u32 v{vfrag0}, v{t1}, 7, v{vfrag0}")
        e(f"v_bfe_u32 v{t1}, v{t0}, 3, 2")
        e(f"v_lshl_add_u32 v{vfrag0}, v{t1}, 5, v{vfrag0}")
        for i in range(1, 4):
            e(f"v_xor_b32 v{vfrag0+i}, {32*i}, v{vfrag0}")

def fullline_frag_addr(T, VF, BK, nbase):
    per = 64 // T
    def fa(stg, row, nb):
        cg, lo = divmod(nb, per)
        ro, so = nbase(stg)
        return (VF + ro + lo, so + cg * BK * 128 + row * 128)
    return fa

def blk_acc(T, pre, base, RG):
    def acc(nb, sb):
        if T == 32:
            r = base + (nb * RG + sb) * 16
            return f"{pre}[{r}:{r+15}]"
        r = base + ((nb // 2) * RG + sb // 2) * 16 + (sb % 2) * 8 + (nb % 2) * 4
        return f"{pre}[{r}:{r+3}]"
    return acc

def stats_finish(o, vs, vt, vmean_neg, vrstd):
    e = o
    for st in (8, 4, 2, 1):
        for i in range(st):
            e(f"v_add_f32 v{vs+i}, v{vs+i}, v{vs+i+st}")
    e(f"v_mov_b32 v{vt}, v{vs}")
    e("s_nop 1")
    e(f"v_permlane32_swap_b32 v{vs}, v{vt}")
    e("s_nop 1")
    e(f"v_mul_f32 v{vmean_neg}, {f2u(-1.0/D):#x}, v{vs}")
    e(f"v_mul_f32 v{vt}, {f2u(1.0/D):#x}, v{vt}")
    e(f"v_fma_f32 v{vt}, -v{vmean_neg}, v{vmean_neg}, v{vt}")
    e(f"v_max_f32 v{vt}, 0, v{vt}")
    e(f"v_add_f32 v{vt}, {f2u(1e-5):#x}, v{vt}")
    e(f"v_rsq_f32 v{vrstd}, v{vt}")
    e("s_nop 0")

def split16(o, v, v2):
    o(f"v_mov_b32 v{v2}, v{v}")
    o("s_nop 1")
    o(f"v_permlane16_swap_b32 v{v}, v{v2}")
    o("s_nop 1")

def stats_emit(A, T, packed, vt):
    e = A.e
    one = vt + 4
    e(f"v_mov_b32 v{one}, 0x3f803f80")
    for i in range(4): e(f"v_mov_b32 v{vt+i}, 0")
    for i, r in enumerate(packed):
        s = vt + 2 * ((i // 4) % 2)
        e(f"v_dot2_f32_bf16 v{s}, v{r}, v{one}, v{s}")
        e(f"v_dot2_f32_bf16 v{s+1}, v{r}, v{r}, v{s+1}")
    e("s_nop 3")
    e(f"v_permlane32_swap_b32 v{vt}, v{vt+1}")
    e(f"v_permlane32_swap_b32 v{vt+2}, v{vt+3}")
    e("s_nop 1")
    e(f"v_add_f32 v{vt}, v{vt}, v{vt+1}")
    e(f"v_add_f32 v{vt+2}, v{vt+2}, v{vt+3}")
    if T == 16:
        e("s_nop 1")
        e(f"v_permlane16_swap_b32 v{vt}, v{vt+2}")
        e("s_nop 1")
    e(f"v_add_f32 v{vt}, v{vt}, v{vt+2}")

def kernel_head(A, name, nwg):
    A.begin_kernel(name)
    A.e(f"s_cmp_ge_u32 s2, {nwg}")
    A.e(f"s_cbranch_scc1 {name}_end")
    stamp_real(A, 0); stamp(A, 1)

def kernel_tail(A, name, vgpr, accum=None):
    stamp(A, 6)
    stamp_out(A, name, 9)
    A.label(f"{name}_end")
    A.e("s_endpgm")
    A.add_desc(name, vgpr, 100, accum if accum else (vgpr + 3) // 4 * 4)

def rowmajor_lane_off(A, v, t):
    e = A.e
    e(f"v_and_b32 v{v}, 15, v0"); e(f"v_lshlrev_b32 v{v}, 11, v{v}")
    e(f"v_bfe_u32 v{t}, v0, 5, 1"); e(f"v_lshl_add_u32 v{v}, v{t}, 4, v{v}")
    e(f"v_bfe_u32 v{t}, v0, 4, 1"); e(f"v_lshl_add_u32 v{v}, v{t}, 5, v{v}")

def rowmajor_frag(i, s_lo, s_hi):
    return (s_hi if i % 2 else s_lo), (i // 2) * 64

def k_proj(A, name, K, ws_a, ka_w, final, opt=None):
    e = A.e
    opt = opt or {}
    T = 16
    BK, STAGES, XT, NWR, LA = 64, opt.get("STAGES", 4), opt.get("XT", 2), opt.get("NWR", 8), opt.get("LA", 4)
    ldw = D * 2
    kernel_head(A, name, opt.get("nwg", 256))
    e(f"s_load_dwordx2 s[4:5], s[0:1], {ka_w}")
    e(f"s_load_dwordx2 s[6:7], s[0:1], {KA['ws']}")
    if final: e(f"s_load_dwordx2 s[28:29], s[0:1], {KA['out']}")
    VP, VF, VXO, VT = 1, 3, 7, 8
    ACC, RES, WF = 16, 48, 64
    XF = WF + 4 * NWR
    NV = XF + XT * 16
    e(f"v_lshrrev_b32 v{VT+3}, 6, v0")
    lane_consts_fullline(A, T, ldw, VT, VP, VF)
    e(f"v_readfirstlane_b32 s30, v{VT+3}")
    e(f"v_lshlrev_b32 v{VXO}, 4, v{VT}")
    e("s_and_b32 s31, s2, 7"); e("s_lshr_b32 s32, s2, 3")
    e("s_lshr_b32 s33, s31, 1"); e("s_lshl_b32 s33, s33, 2"); e("s_lshr_b32 s34, s32, 3"); e("s_add_u32 s33, s33, s34")
    e("s_and_b32 s34, s31, 1"); e("s_lshl_b32 s34, s34, 3"); e("s_and_b32 s35, s32, 7"); e("s_add_u32 s34, s34, s35")
    e("s_lshl_b32 s35, s33, 2"); e("s_add_u32 s35, s35, s30")
    e(f"s_mul_i32 s36, s30, {8*ldw}"); e("s_lshl_b32 s37, s34, 7"); e("s_add_u32 s36, s36, s37")
    e(f"v_add_u32 v{VP}, s36, v{VP}")
    e(f"v_add_u32 v{VP+1}, {4*8*ldw}, v{VP}")
    e("s_lshl_b32 s40, s30, 10")
    e(f"s_mul_i32 s36, s35, {K*64}"); e(f"s_add_u32 s36, s36, {ws_a}")
    e(f"s_lshl_b32 s37, s35, 16"); e("s_lshl_b32 s38, s34, 12"); e("s_add_u32 s37, s37, s38")
    G = Gemm(A, name, T=T, NB=4, RG=1, K=K, STAGES=STAGES, XT=XT, NWR=NWR, LA=LA, WG=opt.get("WG", 2), npieces=2, stage_bytes=BK * 128,
             piece_lds=lambda j: j * 4096,
             frag_addr=fullline_frag_addr(T, VF, BK, lambda stg: (0, stg * BK * 128)),
             acc=blk_acc(T, "v", ACC, 1), wfrag0=WF, xfrag0=XF, vpiece0=VP, vxoff=VXO,
             srd_w=8, srd_x=12, s_woff=41, s_xoff=42, s_ldsw=40, s_it=43, ldw=ldw, opt=opt)
    e("s_add_u32 s44, s33, s34"); e("s_and_b32 s44, s44, 3")
    G.order_init(44)
    e(f"s_mov_b32 s10, {K * ldw}"); e("s_mov_b32 s11, 0x00020000")
    e(f"s_mov_b32 s14, {K * 64}"); e("s_mov_b32 s15, 0x00020000")
    e("s_mov_b32 s22, 4096"); e("s_mov_b32 s23, 0x00020000")
    e("s_waitcnt lgkmcnt(0)")
    e("s_mov_b32 s8, s4"); e("s_mov_b32 s9, s5")
    e("s_add_u32 s12, s6, s36"); e("s_addc_u32 s13, s7, 0")
    e("s_add_u32 s20, s6, s37"); e("s_addc_u32 s21, s7, 0")
    stamp(A, 2)
    p = Stream()
    for i in range(4):
        p.vm(f"buffer_load_dwordx4 v[{RES+4*i}:{RES+4*i+3}], v{VXO}, s[20:23], 0 offen offset:{i*1024}", ("RES", i))
    G.prologue_first(p)
    p.wait(vm=[("RES", 3)])
    for i in range(16):
        p.i(f"v_lshlrev_b32 v{ACC+2*i}, 16, v{RES+i}")
        p.i(f"v_and_b32 v{ACC+2*i+1}, 0xffff0000, v{RES+i}")
    G.prologue_reads(p)
    G.prologue_rest(p)
    G.emit(p)
    stamp(A, 5)
    st = opt.get("st", "")
    if not final:
        e("s_lshl_b32 s36, s35, 12"); e("s_lshr_b32 s37, s34, 2"); e("s_lshl_b32 s37, s37, 10"); e("s_add_u32 s36, s36, s37")
        e("s_and_b32 s37, s34, 3"); e("s_lshl_b32 s37, s37, 2"); e("s_add_u32 s36, s36, s37")
        srd_off(A, 24, "s6", "s7", WS_ST, 64 * 4096)
        for i in range(16):
            e(f"v_cvt_pk_bf16_f32 v{RES+i}, v{ACC+2*i}, v{ACC+2*i+1}")
            if i % 4 == 3:
                e(f"buffer_store_dwordx4 v[{RES+i-3}:{RES+i}], v{VXO}, s[20:23], 0 offen offset:{(i//4)*1024}{st}")
        stats_emit(A, T, [RES + i for i in range(16)], VT)
        e(f"buffer_store_dword v{VT}, v{VXO}, s[24:27], s36 offen")
    else:
        srd(A, 24, "s28", "s29", S * D * 2)
        rowmajor_lane_off(A, VT, VT + 1)
        e("s_lshl_b32 s36, s35, 16"); e("s_lshl_b32 s37, s34, 7"); e("s_add_u32 s36, s36, s37")
        e(f"s_add_u32 s37, s36, {16*2048}")
        for i in range(16):
            e(f"v_cvt_pk_bf16_f32 v{RES+i}, v{ACC+2*i}, v{ACC+2*i+1}")
        e("s_nop 0")
        for i in range(4):
            e(f"v_permlane16_swap_b32 v{RES+4*i}, v{RES+4*i+2}")
            e(f"v_permlane16_swap_b32 v{RES+4*i+1}, v{RES+4*i+3}")
        e("s_nop 1")
        for i in range(4):
            so, off = rowmajor_frag(i, "s36", "s37")
            e(f"buffer_store_dwordx4 v[{RES+4*i}:{RES+4*i+3}], v{VT}, s[24:27], {so} offen offset:{off}{st}")
    kernel_tail(A, name, NV)
    return dict(name=name, grid=opt.get("nwg", 256), block=256, lds=STAGES * BK * 128)

def k_ffn(A, name, opt=None):
    e = A.e
    opt = dict(opt or {}); opt.setdefault("skew", 0)
    T, NW = 16, 8
    BK, STAGES, XT, NWR, LA = 64, opt.get("STAGES", 4), opt.get("XT", 1), opt.get("NWR", 8), opt.get("LA", 7)
    ldw = F * 2
    NP = 4
    GU = 16384
    SBY = 2 * GU
    kernel_head(A, name, opt.get("nwg", 256))
    e(f"s_load_dwordx4 s[4:7], s[0:1], {KA['wg']}")
    e(f"s_load_dwordx2 s[28:29], s[0:1], {KA['ws']}")
    VP, VF, VXO, VMN, VRS, VT = 1, 5, 7, 8, 10, 12
    WF = 20; XF = WF + 4 * NWR
    ACC = XF + XT * 16
    SC = ACC + 112; CSR = SC + 16
    NV = CSR + 14
    e(f"v_lshrrev_b32 v{VT+3}, 6, v0")
    e(f"v_and_b32 v{VT}, 63, v0")
    e(f"v_readfirstlane_b32 s30, v{VT+3}")
    e("s_and_b32 s31, s2, 7"); e("s_lshr_b32 s32, s2, 3")
    e("s_and_b32 s33, s31, 1"); e("s_lshl_b32 s33, s33, 2"); e("s_lshr_b32 s34, s32, 3"); e("s_add_u32 s33, s33, s34")
    e("s_lshr_b32 s34, s31, 1"); e("s_lshl_b32 s34, s34, 3"); e("s_and_b32 s35, s32, 7"); e("s_add_u32 s34, s34, s35")
    e("s_lshl_b32 s35, s33, 3"); e("s_add_u32 s35, s35, s30")
    e("s_lshr_b32 s37, s30, 2")
    e("s_lshl_b32 s40, s30, 12")
    e("s_and_b32 s38, s30, 3"); e("s_lshl_b32 s38, s38, 8")
    e(f"s_mul_i32 s39, s34, 224")
    e("s_and_b32 s45, s34, 1"); e("s_lshl_b32 s46, s45, 1")
    e("s_movk_i32 s47, 4682")
    for j in range(NP):
        u, r, c = VT + 1, VT + 2, VT + 3
        e(f"v_add_u32 v{u}, s38, v{VT}")
        if j: e(f"v_add_u32 v{u}, {64*j}, v{u}")
        e(f"v_mul_u32_u24 v{r}, s47, v{u}"); e(f"v_lshrrev_b32 v{r}, 16, v{r}")
        e(f"v_mul_u32_u24 v{c}, 14, v{r}"); e(f"v_sub_u32 v{c}, v{u}, v{c}")
        e(f"v_add_u32 v{c}, s46, v{c}")
        e(f"v_subrev_u32 v{u}, 14, v{c}"); e(f"v_min_u32 v{c}, v{c}, v{u}")
        e(f"v_mul_u32_u24 v{VP+j}, {ldw}, v{r}")
        e(f"v_lshl_add_u32 v{VP+j}, v{c}, 4, v{VP+j}")
        e(f"v_add_u32 v{VP+j}, s39, v{VP+j}")
        if j >= 2:
            e(f"v_lshrrev_b32 v{r}, 6, v{r}"); e(f"v_lshl_add_u32 v{VP+j}, v{r}, 28, v{VP+j}")
    e(f"v_lshlrev_b32 v{VXO}, 4, v{VT}")
    G = Gemm(A, name, T=T, NB=14, RG=1, K=D, STAGES=STAGES, XT=XT, NWR=NWR, LA=LA, WG=opt.get("WG", 2), npieces=NP, stage_bytes=SBY,
             piece_lds=lambda j: j * 1024,
             frag_addr=lambda stg, row, nb: (VF + stg // 2, (stg % 2) * SBY + (nb % 2) * GU + row * 224 + 32 * (nb // 2)),
             acc=blk_acc(T, "v", ACC, 1), wfrag0=WF, xfrag0=XF, vpiece0=VP, vxoff=VXO,
             srd_w=8, srd_x=12, s_woff=41, s_xoff=42, s_ldsw=40, s_it=43, ldw=ldw, opt=opt)
    e("s_add_u32 s44, s33, s34"); e("s_and_b32 s44, s44, 3")
    G.order_init(44)
    e("s_lshl_b32 s36, s35, 16")
    e(f"s_mov_b32 s10, {D*ldw}"); e("s_mov_b32 s11, 0x00020000")
    e(f"s_mov_b32 s14, {D*64}"); e("s_mov_b32 s15, 0x00020000")
    e("s_cmp_eq_u32 s37, 0")
    e("s_waitcnt lgkmcnt(0)")
    e("s_cselect_b32 s8, s4, s6"); e("s_cselect_b32 s9, s5, s7")
    e("s_add_u32 s12, s28, s36"); e("s_addc_u32 s13, s29, 0")
    stamp(A, 2)
    p = Stream()
    G.prologue_first(p)
    o = p.i
    o(f"v_and_b32 v{VT+1}, 3, v{VT}"); o(f"v_lshlrev_b32 v{VF}, 3, v{VT+1}")
    o(f"v_lshrrev_b32 v{VT+1}, 2, v{VT}"); o(f"v_mul_u32_u24 v{VT+1}, 224, v{VT+1}"); o(f"v_add_u32 v{VF}, v{VF}, v{VT+1}")
    o(f"v_add_u32 v{VF+1}, {2*SBY}, v{VF}")
    o(f"v_and_b32 v{VT+1}, 15, v{VT}"); o(f"v_bfe_u32 v{VT+2}, v{VT}, 4, 1"); o(f"v_mul_u32_u24 v{VT+2}, {F}, v{VT+2}")
    o(f"v_add_lshl_u32 v{VT+1}, v{VT+1}, v{VT+2}, 4")
    o(f"v_lshrrev_b32 v{VT+2}, 5, v{VT}"); o(f"v_lshl_add_u32 v{VT+1}, v{VT+2}, 3, v{VT+1}")
    o("s_lshl_b32 s38, s35, 12"); o(f"s_add_u32 s38, s38, {WS_ST}")
    o(f"s_mul_i32 s39, s34, {112*16}"); o(f"s_add_u32 s39, s39, {WS_CS + 3072*16}")
    o("s_add_u32 s20, s28, s38"); o("s_addc_u32 s21, s29, 0"); o("s_movk_i32 s22, 4096"); o("s_mov_b32 s23, 0x00020000")
    o("s_add_u32 s24, s28, s39"); o("s_addc_u32 s25, s29, 0"); o(f"s_mov_b32 s26, {(F+112)*16}"); o("s_mov_b32 s27, 0x00020000")
    o("s_lshl_b32 s48, s45, 8")
    o("s_mul_i32 s49, s45, 1536"); o("s_sub_u32 s49, 1536, s49")
    nit = G.NT // G.UN
    o(f"s_sub_u32 s51, {nit - 1}, s37")
    for i in range(112): o(f"v_mov_b32 v{ACC+i}, 0")
    G.prologue_reads(p)
    G.prologue_rest(p)
    for i in range(4):
        p.vm(f"buffer_load_dwordx4 v[{SC+4*i}:{SC+4*i+3}], v{VXO}, s[20:23], 0 offen offset:{i*1024}", ("ST", i))
    for j in range(7):
        so, off = ("s48", j * 256) if j < 6 else ("s49", 0)
        p.vm(f"buffer_load_dwordx2 v[{CSR+2*j}:{CSR+2*j+1}], v{VT+1}, s[24:27], {so} offen offset:{off}", ("CS", j))
    def fix():
        e(f"s_cmp_lg_u32 s43, s51")
        e(f"s_cbranch_scc1 {name}_nofix")
        stats_finish(e, SC, VT + 4, VMN, VRS)
        for j in range(7): e(f"v_add_f32 v{CSR+2*j}, v{CSR+2*j}, v{CSR+2*j+1}")
        for j in range(7): e(f"v_mov_b32 v{CSR+2*j+1}, v{CSR+2*j}")
        split16(e, VRS, VRS + 1)
        for j in range(7): e(f"v_permlane32_swap_b32 v{CSR+2*j}, v{CSR+2*j+1}")
        split16(e, VMN, VT + 4)
        for j in range(7): e(f"v_add_f32 v{CSR+2*j}, v{CSR+2*j}, v{CSR+2*j+1}")
        e(f"v_permlane32_swap_b32 v{VMN}, v{VT+4}"); e("s_nop 1")
        for j in range(7):
            r = ACC + j * 16
            e(f"v_mfma_f32_16x16x1_4b_f32 v[{r}:{r+15}], v{CSR+2*j}, v{VMN}, v[{r}:{r+15}]")
        A.label(f"{name}_nofix")
    G.emit(p, loop_end=fix)
    stamp(A, 5)
    C1, C2 = SC, SC + 4
    for k in range(2):
        e(f"v_mul_f32 v{C1+2*k}, {NLOG2E:#x}, v{VRS+k}")
        e(f"v_mul_f32 v{C2+2*k}, v{VRS+k}, v{VRS+k}")
    e(f"s_mul_i32 s36, s35, {F*64}"); e(f"s_add_u32 s36, s36, {WS_H}")
    srd_off(A, 20, "s28", "s29", "s36", F * 64)
    e("s_mul_i32 s38, s34, 7"); e("s_add_u32 s38, s38, s45"); e("s_lshl_b32 s38, s38, 10")
    e("s_mul_i32 s39, s45, 8184"); e("s_add_u32 s46, s38, 6144"); e("s_sub_u32 s39, s46, s39")
    e("s_add_u32 s46, s38, 4096")
    TB = SC + 8
    OB = CSR + (CSR % 2)
    st = opt.get("st", "")
    def silu(blocks, k, out):
        for b, r in enumerate(blocks):
            for i in (0, 2): e(f"v_pk_mul_f32 v[{TB+4*b+i}:{TB+4*b+i+1}], v[{r+i}:{r+i+1}], v[{C1+2*k}:{C1+2*k+1}] op_sel_hi:[1,0]")
        for b, r in enumerate(blocks):
            for i in (0, 2): e(f"v_pk_mul_f32 v[{r+i}:{r+i+1}], v[{r+i}:{r+i+1}], v[{r+4+i}:{r+5+i}]")
        for i in range(4 * len(blocks)): e(f"v_exp_f32 v{TB+i}, v{TB+i}")
        for b, r in enumerate(blocks):
            for i in (0, 2): e(f"v_pk_mul_f32 v[{r+i}:{r+i+1}], v[{r+i}:{r+i+1}], v[{C2+2*k}:{C2+2*k+1}] op_sel_hi:[1,0]")
        for i in range(0, 4 * len(blocks), 2): e(f"v_pk_add_f32 v[{TB+i}:{TB+i+1}], v[{TB+i}:{TB+i+1}], 1.0 op_sel_hi:[1,0]")
        for i in range(4 * len(blocks)): e(f"v_rcp_f32 v{TB+i}, v{TB+i}")
        e("s_nop 0")
        for b, r in enumerate(blocks):
            for i in (0, 2): e(f"v_pk_mul_f32 v[{r+i}:{r+i+1}], v[{r+i}:{r+i+1}], v[{TB+4*b+i}:{TB+4*b+i+1}]")
        for b, r in enumerate(blocks):
            for i in (0, 2): e(f"v_cvt_pk_bf16_f32 v{out+2*b+i//2}, v{r+i}, v{r+i+1}")
    cnt = 0
    for pj in range(4):
        for sb in range(2):
            ob = OB + 4 * (cnt % 3); cnt += 1
            silu([ACC + (2 * pj + jj) * 16 + 8 * sb for jj in range(2 if pj < 3 else 1)], sb, ob)
            if pj < 3:
                so, off = ("s38", pj * 2048 + sb * 1024) if pj < 2 else ("s46", sb * 1024)
                e(f"buffer_store_dwordx4 v[{ob}:{ob+3}], v{VXO}, s[20:23], {so} offen offset:{off}{st}")
            else:
                e(f"buffer_store_dwordx2 v[{ob}:{ob+1}], v{VXO}, s[20:23], s39 offen offset:{sb*1024}{st}")
    kernel_tail(A, name, NV)
    return dict(name=name, grid=opt.get("nwg", 256), block=NW * 64, lds=STAGES * SBY)

def k_qkv(A, name, opt=None):
    e = A.e
    opt = dict(opt or {})
    T = 32
    BK, STAGES, XT, NWR, LA = 64, opt.get("STAGES", 4), opt.get("XT", 2), opt.get("NWR", 6), opt.get("LA", 6)
    ldw = 3 * D * 2
    SBY = 3 * BK * 128
    NP = 6
    kernel_head(A, name, 256)
    e(f"s_load_dwordx2 s[4:5], s[0:1], {KA['wqkv']}")
    e(f"s_load_dwordx2 s[28:29], s[0:1], {KA['ws']}")
    VP, VF, VXO, VL16, VMN, VRS, VT = 1, 7, 11, 12, 13, 14, 16
    ACC = 32; WF = ACC + 96; XF = WF + 4 * NWR; SC = XF + max(XT * 16, 48)
    CSR = SC + 16; RR = CSR + 12
    NV = RR + 16
    e(f"v_lshrrev_b32 v{VT+3}, 6, v0")
    lane_consts_fullline(A, T, ldw, VT, VP, VF)
    e(f"v_readfirstlane_b32 s30, v{VT+3}")
    e(f"v_lshlrev_b32 v{VL16}, 4, v{VT}")
    e(f"v_and_b32 v{VT+1}, 15, v{VT}"); e(f"v_lshlrev_b32 v{VXO}, 4, v{VT+1}")
    e(f"v_lshrrev_b32 v{VT+2}, 5, v{VT}"); e(f"v_lshl_add_u32 v{VXO}, v{VT+2}, 8, v{VXO}")
    e(f"v_bfe_u32 v{VT+1}, v{VT}, 4, 1"); e(f"v_lshl_add_u32 v{VXO}, v{VT+1}, 10, v{VXO}")
    e(f"v_and_b32 v{VT+1}, 31, v{VT}"); e(f"v_lshlrev_b32 v{VT+1}, 4, v{VT+1}"); e(f"v_lshl_add_u32 v{VT+1}, v{VT+2}, 3, v{VT+1}")
    e("s_and_b32 s31, s2, 7"); e("s_lshr_b32 s32, s2, 3")
    e("s_and_b32 s33, s31, 1"); e("s_lshl_b32 s33, s33, 3"); e("s_lshr_b32 s34, s32, 2"); e("s_add_u32 s33, s33, s34")
    e("s_lshr_b32 s34, s31, 1"); e("s_lshl_b32 s34, s34, 2"); e("s_and_b32 s35, s32, 3"); e("s_add_u32 s34, s34, s35")
    e("s_lshl_b32 s35, s33, 2"); e("s_add_u32 s35, s35, s30")
    e(f"s_mul_i32 s36, s30, {8*ldw}"); e("s_lshl_b32 s37, s34, 7"); e("s_add_u32 s36, s36, s37")
    e(f"v_add_u32 v{VP}, s36, v{VP}")
    for j in range(1, NP):
        e(f"v_add_u32 v{VP+j}, {(j >> 1) * 2048 + (j & 1) * 32 * ldw}, v{VP}")
    e("s_lshl_b32 s40, s30, 10")
    G = Gemm(A, name, T=T, NB=6, RG=1, K=D, STAGES=STAGES, XT=XT, NWR=NWR, LA=LA, WG=opt.get("WG", 2), npieces=NP, stage_bytes=SBY,
             piece_lds=lambda j: (j >> 1) * BK * 128 + (j & 1) * 4096,
             frag_addr=fullline_frag_addr(T, VF, BK, lambda stg: (2 * (stg // 2), (stg % 2) * SBY)),
             acc=blk_acc(T, "v", ACC, 1), wfrag0=WF, xfrag0=XF, vpiece0=VP, vxoff=VXO,
             srd_w=8, srd_x=12, s_woff=41, s_xoff=42, s_ldsw=40, s_it=43, ldw=ldw,
             swap=[nb >= 2 for nb in range(6)], opt=opt)
    e("s_add_u32 s44, s33, s34"); e("s_and_b32 s44, s44, 3")
    G.order_init(44)
    e("s_lshl_b32 s36, s35, 16")
    e("s_lshl_b32 s38, s35, 12"); e(f"s_add_u32 s38, s38, {WS_ST}")
    e("s_lshl_b32 s39, s34, 10"); e(f"s_add_u32 s39, s39, {WS_CS}")
    e("s_movk_i32 s45, 16384"); e("s_mov_b32 s46, 32768")
    e(f"s_mov_b32 s10, {D*ldw}"); e("s_mov_b32 s11, 0x00020000")
    e(f"s_mov_b32 s14, {D*64}"); e("s_mov_b32 s15, 0x00020000")
    e("s_movk_i32 s22, 4096"); e("s_mov_b32 s23, 0x00020000")
    e(f"s_mov_b32 s26, {32768+1024}"); e("s_mov_b32 s27, 0x00020000")
    e("s_waitcnt lgkmcnt(0)")
    e("s_add_u32 s20, s28, s38"); e("s_addc_u32 s21, s29, 0")
    e("s_add_u32 s24, s28, s39"); e("s_addc_u32 s25, s29, 0")
    e("s_mov_b32 s8, s4"); e("s_mov_b32 s9, s5")
    e("s_add_u32 s12, s28, s36"); e("s_addc_u32 s13, s29, 0")
    stamp(A, 2)
    p = Stream()
    for i in range(4):
        p.vm(f"buffer_load_dwordx4 v[{SC+4*i}:{SC+4*i+3}], v{VL16}, s[20:23], 0 offen offset:{i*1024}", ("ST", i))
    for b in range(6):
        so = ("0", "s45", "s46")[b // 2]
        p.vm(f"buffer_load_dwordx2 v[{CSR+2*b}:{CSR+2*b+1}], v{VT+1}, s[24:27], {so} offen offset:{(b % 2) * 512}", ("CS", b))
    G.prologue_first(p)
    for i in range(2): p.i(f"v_add_u32 v{VF+2+i}, {2*SBY}, v{VF+i}")
    p.i(f"v_mov_b32 v{VT+5}, 0.5")
    p.wait(vm=[("ST", 3)])
    stats_finish(p.i, SC, VT + 4, VMN, VRS)
    p.wait(vm=[("CS", 5)])
    for b in range(6): p.i(f"v_add_f32 v{CSR+2*b}, v{CSR+2*b}, v{CSR+2*b+1}")
    p.i("s_nop 0")
    for b in range(6):
        r = ACC + 16 * b
        if b < 2: p.i(f"v_mfma_f32_32x32x2_f32 v[{r}:{r+15}], v{CSR+2*b}, v{VMN}, 0")
        else: p.i(f"v_mfma_f32_32x32x2_f32 v[{r}:{r+15}], v{VMN}, v{CSR+2*b}, 0")
    p.i(f"v_mfma_f32_32x32x2_f32 v[{RR}:{RR+15}], v{VRS}, v{VT+5}, 0")
    G.prologue_reads(p)
    G.prologue_rest(p)
    KL = SC; QL = VRS + 1
    p.i(f"v_mul_f32 v{QL}, {LOG2E:#x}, v{VRS}")
    for i in range(16): p.i(f"v_mul_f32 v{KL+i}, {LOG2E:#x}, v{RR+i}")
    G.emit(p)
    stamp(A, 5)
    e(f"s_mov_b32 s47, {f2u(1e-6):#x}")
    e(f"s_lshl_b32 s36, s35, 16"); e("s_lshl_b32 s37, s34, 12"); e("s_add_u32 s36, s36, s37"); e(f"s_add_u32 s36, s36, {WS_PQ}")
    e("s_add_u32 s20, s28, s36"); e("s_addc_u32 s21, s29, 0")
    e("s_lshl_b32 s37, s34, 4"); e("s_add_u32 s37, s37, s33")
    e("s_lshl_b32 s38, s37, 13"); e("s_lshl_b32 s36, s30, 11"); e("s_add_u32 s38, s38, s36"); e(f"s_add_u32 s38, s38, {WS_KV}")
    e("s_add_u32 s24, s28, s38"); e("s_addc_u32 s25, s29, 0"); e("s_movk_i32 s26, 2048")
    e("s_lshl_b32 s38, s37, 8"); e(f"s_add_u32 s38, s38, {WS_Z}")
    srd_off(A, 16, "s28", "s29", "s38", 256)
    e("s_waitcnt vmcnt(0) lgkmcnt(0)")
    e("s_barrier")
    TB = VT
    def phi(regs, rs, rl, outs):
        n = len(regs)
        for i in range(n): e(f"v_mul_f32 v{TB+i}, v{regs[i]}, v{rl[i]}")
        for i in range(n): e(f"v_exp_f32 v{TB+i}, v{TB+i} clamp")
        for i in range(n): e(f"v_max_f32 v{regs[i]}, 0, v{regs[i]}")
        for i in range(0, n, 2): e(f"v_pk_add_f32 v[{TB+i}:{TB+i+1}], v[{TB+i}:{TB+i+1}], s[46:47] op_sel:[0,1]")
        for i in range(n): e(f"v_fma_f32 v{regs[i]}, v{regs[i]}, v{rs[i]}, v{TB+i}")
        for i in range(0, n, 2): e(f"v_cvt_pk_bf16_f32 v{outs[i//2]}, v{regs[i]}, v{regs[i+1]}")
    PK = WF; VV = XF; ONE = XF + 16; OB = XF + 24
    for i in range(4): e(f"v_mov_b32 v{ONE+i}, 0x3f803f80")
    KVR = ACC + 32; ZR = ACC + 64
    for hh in range(2):
        r = ACC + (2 + hh) * 16
        phi([r + i for i in range(16)], [RR + i for i in range(16)], [KL + i for i in range(16)], [PK + hh * 8 + i for i in range(8)])
        r = ACC + (4 + hh) * 16
        for i in range(0, 16, 2):
            e(f"v_pk_mul_f32 v[{r+i}:{r+i+1}], v[{r+i}:{r+i+1}], v[{RR+i}:{RR+i+1}]")
        for i in range(0, 16, 2):
            e(f"v_cvt_pk_bf16_f32 v{VV+hh*8+i//2}, v{r+i}, v{r+i+1}")
        e("s_nop 1")
        for ks in range(2):
            a = PK + hh * 8 + 4 * ks; b = VV + hh * 8 + 4 * ks
            r = KVR + hh * 16
            e(f"v_mfma_f32_32x32x16_bf16 v[{r}:{r+15}], v[{a}:{a+3}], v[{b}:{b+3}], {'0' if ks == 0 else f'v[{r}:{r+15}]'}")
        for ks in range(2):
            a = PK + hh * 8 + 4 * ks
            r = ZR + hh * 16
            e(f"v_mfma_f32_32x32x16_bf16 v[{r}:{r+15}], v[{ONE}:{ONE+3}], v[{a}:{a+3}], {'0' if ks == 0 else f'v[{r}:{r+15}]'}")
    e(f"v_and_b32 v{VP}, 0x3ff, v{VXO}"); e(f"v_lshrrev_b32 v{VP+1}, 10, v{VXO}"); e(f"v_lshl_add_u32 v{VP}, v{VP+1}, 13, v{VP}")
    e(f"v_add_u32 v{VP}, s40, v{VP}")
    e(f"v_lshrrev_b32 v{VP+2}, 2, v{VL16}"); e("s_lshl_b32 s36, s30, 8"); e(f"v_add_u32 v{VP+3}, s36, v{VP+2}")
    e("s_lshl_b32 s36, s30, 13"); e(f"v_add_u32 v{VP+1}, s36, v{VL16}")
    def q_part(hh):
        r = ACC + hh * 16
        ob = OB + hh * 8
        outs = [ob + 0, ob + 1, ob + 4, ob + 5, ob + 2, ob + 3, ob + 6, ob + 7]
        phi([r + i for i in range(16)], [VRS] * 16, [QL] * 16, outs)
        for k in range(2):
            e(f"buffer_store_dwordx4 v[{ob+4*k}:{ob+4*k+3}], v{VXO}, s[20:23], 0 offen offset:{hh*2048 + k*512}")
    q_part(0)
    for hh in range(2):
        for rq in range(4):
            r = KVR + hh * 16 + 4 * rq
            e(f"ds_write_b128 v{VP}, v[{r}:{r+3}] offset:{hh*16384 + (rq >> 1)*4096 + (rq & 1)*512}")
    e(f"v_permlane32_swap_b32 v{ZR}, v{ZR+16}")
    e("s_nop 1")
    e(f"ds_write_b32 v{VP+3}, v{ZR} offset:32768")
    e("s_waitcnt lgkmcnt(0)")
    e("s_barrier")
    RB = KVR
    for k in range(8):
        e(f"ds_read_b128 v[{RB+4*k}:{RB+4*k+3}], v{VP+1} offset:{k*1024}")
    for k in range(4):
        e(f"ds_read_b32 v{ZR+k}, v{VP+2} offset:{32768 + k*256}")
    q_part(1)
    e("s_waitcnt lgkmcnt(0)")
    for k in range(2):
        r = RB + 16 * k
        for i in (0, 2):
            e(f"v_pk_add_f32 v[{r+i}:{r+i+1}], v[{r+i}:{r+i+1}], v[{r+4+i}:{r+5+i}]")
            e(f"v_pk_add_f32 v[{r+8+i}:{r+9+i}], v[{r+8+i}:{r+9+i}], v[{r+12+i}:{r+13+i}]")
        for i in (0, 2):
            e(f"v_pk_add_f32 v[{r+i}:{r+i+1}], v[{r+i}:{r+i+1}], v[{r+8+i}:{r+9+i}]")
        e(f"buffer_store_dwordx4 v[{r}:{r+3}], v{VL16}, s[24:27], 0 offen offset:{k*1024}")
    e(f"v_pk_add_f32 v[{ZR}:{ZR+1}], v[{ZR}:{ZR+1}], v[{ZR+2}:{ZR+3}]")
    e(f"v_add_f32 v{ZR}, v{ZR}, v{ZR+1}")
    e(f"buffer_store_dword v{ZR}, v{VP+2}, s[16:19], s36 offen")
    kernel_tail(A, name, NV)
    return dict(name=name, grid=256, block=256, lds=STAGES * SBY)

def colsum_part(A, name, s_item, mats, fin):
    e = A.e
    e(f"s_lshr_b32 s31, s{s_item}, 2"); e(f"s_and_b32 s34, s{s_item}, 3")
    first, lo, hi, ld = mats[-1]
    e(f"s_mov_b32 s8, s{lo}"); e(f"s_mov_b32 s9, s{hi}"); e(f"s_mov_b32 s33, {first}"); e(f"s_mov_b32 s32, {ld}")
    for k in range(len(mats) - 2, -1, -1):
        first, lo, hi, ld = mats[k]
        e(f"s_cmp_lt_u32 s31, {mats[k+1][0]}")
        e(f"s_cselect_b32 s8, s{lo}, s8"); e(f"s_cselect_b32 s9, s{hi}, s9"); e(f"s_cselect_b32 s33, {first}, s33"); e(f"s_cselect_b32 s32, {ld}, s32")
    e("s_lshl_b32 s32, s32, 10")
    e("s_lshl_b32 s10, s32, 10"); e("s_mov_b32 s11, 0x00020000")
    e("s_sub_u32 s33, s31, s33")
    e("v_lshrrev_b32 v2, 3, v5"); e("v_mul_lo_u32 v2, s32, v2"); e("v_and_b32 v3, 7, v5"); e("v_lshl_add_u32 v2, v3, 4, v2")
    e("s_lshl_b32 s36, s34, 2"); e("s_add_u32 s36, s36, s30"); e("s_lshl_b32 s36, s36, 6"); e("s_mul_i32 s36, s36, s32")
    e("s_lshl_b32 s37, s33, 7"); e("s_add_u32 s36, s36, s37")
    e("s_lshl_b32 s37, s32, 3")
    L = 32
    for i in range(8):
        e(f"buffer_load_dwordx4 v[{L+4*i}:{L+4*i+3}], v2, s[8:11], s36 offen")
        if i < 7: e("s_add_u32 s36, s36, s37")
    for i in range(8):
        e(f"s_waitcnt vmcnt({7-i})")
        t = (8 if i == 0 else 16 + 8 * (i % 2))
        for j in range(4):
            e(f"v_lshlrev_b32 v{t+2*j}, 16, v{L+4*i+j}"); e(f"v_and_b32 v{t+2*j+1}, 0xffff0000, v{L+4*i+j}")
        if i:
            for j in range(4):
                e(f"v_pk_add_f32 v[{8+2*j}:{9+2*j}], v[{8+2*j}:{9+2*j}], v[{t+2*j}:{t+2*j+1}]")
    e("v_lshlrev_b32 v2, 5, v0")
    e("ds_write_b128 v2, v[8:11]"); e("ds_write_b128 v2, v[12:15] offset:16")
    e("s_waitcnt lgkmcnt(0)")
    e("s_barrier")
    e("s_cmp_lg_u32 s30, 0")
    e(f"s_cbranch_scc1 {fin}")
    e("v_lshlrev_b32 v2, 2, v5")
    for i in range(32):
        e(f"ds_read_b32 v{L+i}, v2 offset:{i*256}")
    e("s_lshl_b32 s36, s31, 10"); e("s_lshl_b32 s37, s34, 2"); e("s_add_u32 s36, s36, s37")
    srd_off(A, 16, "s28", "s29", WS_CS, CS_N * 16)
    e("v_lshlrev_b32 v2, 4, v5")
    e("s_waitcnt lgkmcnt(0)")
    for st in (16, 8, 4, 2, 1):
        for i in range(st): e(f"v_add_f32 v{L+i}, v{L+i}, v{L+i+st}")
    e(f"buffer_store_dword v{L}, v2, s[16:19], s36 offen")

def warm_part(A, s_item, lo, hi, size):
    e = A.e
    srd(A, 8, f"s{lo}", f"s{hi}", size)
    e(f"s_lshl_b32 s36, s{s_item}, 15")
    e("v_lshlrev_b32 v2, 4, v0")
    for i in range(8):
        e(f"buffer_load_dwordx4 v[{32+4*i}:{35+4*i}], v2, s[8:11], s36 offen")
        if i < 7: e("s_add_u32 s36, s36, 4096")

def k_attn(A, name, extra):
    e = A.e
    nwg = 256 + (448 + 224 if extra else 0)
    kernel_head(A, name, nwg)
    e(f"s_load_dwordx2 s[28:29], s[0:1], {KA['ws']}")
    if extra:
        e(f"s_load_dwordx4 s[24:27], s[0:1], {KA['wg']}")
        e(f"s_load_dwordx2 s[22:23], s[0:1], {KA['wd']}")
    VXO, VT = 1, 2
    P = 8; Z = P + 64; PQ = Z + 8
    e("v_lshrrev_b32 v4, 6, v0"); e("v_and_b32 v5, 63, v0")
    e("v_readfirstlane_b32 s30, v4")
    if extra:
        e("s_cmp_ge_u32 s2, 256")
        e(f"s_cbranch_scc1 {name}_extra")
    e(f"v_lshlrev_b32 v{VXO}, 4, v5")
    e("s_and_b32 s31, s2, 7"); e("s_lshr_b32 s32, s2, 3")
    e("s_lshl_b32 s34, s31, 2"); e("s_and_b32 s35, s32, 3"); e("s_add_u32 s34, s34, s35")
    e("s_lshr_b32 s33, s32, 2")
    e("s_lshl_b32 s35, s33, 3"); e("s_lshl_b32 s36, s30, 1"); e("s_add_u32 s35, s35, s36")
    e("s_lshr_b32 s37, s34, 1"); e("s_and_b32 s40, s34, 1")
    e("s_lshl_b32 s36, s37, 17"); e("s_lshl_b32 s41, s40, 12"); e("s_add_u32 s36, s36, s41")
    e("s_lshl_b32 s41, s30, 10"); e("s_add_u32 s36, s36, s41"); e(f"s_add_u32 s36, s36, {WS_KV}")
    e("s_lshl_b32 s37, s37, 12"); e("s_lshl_b32 s41, s40, 7"); e("s_add_u32 s37, s37, s41"); e(f"s_add_u32 s37, s37, {WS_Z}")
    e("s_lshl_b32 s38, s35, 16"); e("s_lshl_b32 s39, s34, 11"); e("s_add_u32 s38, s38, s39")
    e(f"s_add_u32 s39, s38, {WS_O}"); e(f"s_add_u32 s38, s38, {WS_PQ}")
    e("v_and_b32 v6, 15, v5"); e("v_lshlrev_b32 v6, 8, v6"); e("v_lshrrev_b32 v7, 4, v5"); e("v_lshl_add_u32 v6, v7, 4, v6")
    e("s_mov_b32 s42, 65536")
    e("s_waitcnt lgkmcnt(0)")
    srd_off(A, 8, "s28", "s29", "s36", 16 * 8192)
    srd_off(A, 20, "s28", "s29", "s37", 4096)
    srd_off(A, 12, "s28", "s29", "s38", 65536 + 2048)
    srd_off(A, 16, "s28", "s29", "s39", 65536 + 2048)
    stamp(A, 2)
    for m in range(16):
        if m: e(f"s_mov_b32 s40, {m*8192}")
        e(f"buffer_load_dwordx4 v[{P+4*m}:{P+4*m+3}], v{VXO}, s[8:11], {'s40' if m else '0'} offen")
    for k in range(2):
        e(f"buffer_load_dwordx4 v[{Z+4*k}:{Z+4*k+3}], v6, s[20:23], 0 offen offset:{k*64}")
    for i in range(4):
        e(f"buffer_load_dwordx4 v[{PQ+4*i}:{PQ+4*i+3}], v{VXO}, s[12:15], {'s42' if i >= 2 else '0'} offen offset:{(i%2)*1024}")
    e("s_lshr_b32 s41, s30, 1"); e("s_lshl_b32 s41, s41, 10"); e("s_and_b32 s40, s30, 1"); e("s_lshl_b32 s40, s40, 3"); e("s_add_u32 s41, s41, s40")
    e(f"v_add_u32 v{VT}, s41, v{VXO}")
    for m in range(2, 16):
        if m % 2 == 0: e(f"s_waitcnt vmcnt({6 + 14 - m})")
        r0 = P + 4 * (m % 2); r = P + 4 * m
        for i in (0, 2):
            e(f"v_pk_add_f32 v[{r0+i}:{r0+i+1}], v[{r0+i}:{r0+i+1}], v[{r+i}:{r+i+1}]")
    for i in (0, 2):
        e(f"v_pk_add_f32 v[{P+i}:{P+i+1}], v[{P+i}:{P+i+1}], v[{P+4+i}:{P+5+i}]")
    e(f"v_cvt_pk_bf16_f32 v{P+4}, v{P}, v{P+1}"); e(f"v_cvt_pk_bf16_f32 v{P+5}, v{P+2}, v{P+3}")
    e(f"ds_write_b64 v{VT}, v[{P+4}:{P+5}]")
    stamp(A, 4)
    e("s_waitcnt vmcnt(4)")
    for sh in (8, 4, 2, 1):
        for i in range(8):
            e(f"v_add_f32_dpp v{Z+i}, v{Z+i}, v{Z+i} row_ror:{sh} row_mask:0xf bank_mask:0xf")
    ZF = P + 16
    for i in range(4): e(f"v_cvt_pk_bf16_f32 v{ZF+i}, v{Z+2*i}, v{Z+2*i+1}")
    e("s_waitcnt lgkmcnt(0)")
    e("s_barrier")
    FR = P + 8
    for f in range(2):
        e(f"ds_read_b128 v[{FR+4*f}:{FR+4*f+3}], v{VXO} offset:{f*1024}")
    NUM = P + 20; DEN = P + 52
    e("s_waitcnt vmcnt(0)")
    for i in range(4):
        e(f"v_mfma_f32_16x16x32_bf16 v[{DEN+4*i}:{DEN+4*i+3}], v[{ZF}:{ZF+3}], v[{PQ+4*i}:{PQ+4*i+3}], 0")
    e("s_waitcnt lgkmcnt(0)")
    for i in range(4):
        for et in range(2):
            r = NUM + i * 8 + et * 4
            e(f"v_mfma_f32_16x16x32_bf16 v[{r}:{r+3}], v[{FR+4*et}:{FR+4*et+3}], v[{PQ+4*i}:{PQ+4*i+3}], 0")
    stamp(A, 5)
    for i in range(4): e(f"v_add_f32 v{DEN+4*i}, {f2u(1e-6):#x}, v{DEN+4*i}")
    for i in range(4): e(f"v_rcp_f32 v{DEN+4*i}, v{DEN+4*i}")
    e("s_nop 0")
    for i in range(4):
        r = NUM + i * 8
        for j in range(0, 8, 2):
            e(f"v_pk_mul_f32 v[{r+j}:{r+j+1}], v[{r+j}:{r+j+1}], v[{DEN+4*i}:{DEN+4*i+1}] op_sel_hi:[1,0]")
        for j in range(0, 8, 2):
            e(f"v_cvt_pk_bf16_f32 v{PQ+4*i+j//2}, v{r+j}, v{r+j+1}")
        e(f"buffer_store_dwordx4 v[{PQ+4*i}:{PQ+4*i+3}], v{VXO}, s[16:19], {'s42' if i >= 2 else '0'} offen offset:{(i%2)*1024}")
    if extra:
        e(f"s_branch {name}_fin")
        A.label(f"{name}_extra")
        e("s_waitcnt lgkmcnt(0)")
        e(f"s_cmp_ge_u32 s2, {256+448}")
        e(f"s_cbranch_scc1 {name}_warm")
        e(f"s_sub_u32 s44, s2, {256 - 48*4}")
        colsum_part(A, name, 44, [(48, 24, 25, 7), (104, 26, 27, 7)], f"{name}_fin")
        e(f"s_branch {name}_fin")
        A.label(f"{name}_warm")
        e(f"s_sub_u32 s44, s2, {256+448}")
        warm_part(A, 44, 22, 23, F * D * 2)
        A.label(f"{name}_fin")
    kernel_tail(A, name, PQ + 16)
    return dict(name=name, grid=nwg, block=256, lds=8192 if extra else 2048)

def k_prep(A, name):
    e = A.e
    kernel_head(A, name, 512)
    e(f"s_load_dwordx4 s[4:7], s[0:1], {KA['x']}")
    e(f"s_load_dwordx2 s[22:23], s[0:1], {KA['wo']}")
    e(f"s_load_dwordx2 s[28:29], s[0:1], {KA['ws']}")
    e("v_lshrrev_b32 v4, 6, v0"); e("v_and_b32 v5, 63, v0")
    e("v_readfirstlane_b32 s30, v4")
    e("v_lshlrev_b32 v1, 4, v5")
    e("s_cmp_ge_u32 s2, 256")
    e(f"s_cbranch_scc1 {name}_cs")
    e("s_lshl_b32 s31, s2, 2"); e("s_add_u32 s31, s31, s30")
    e("s_lshr_b32 s35, s31, 4"); e("s_and_b32 s34, s31, 15")
    rowmajor_lane_off(A, 2, 3)
    e("s_lshl_b32 s36, s35, 16"); e("s_lshl_b32 s37, s34, 7"); e("s_add_u32 s36, s36, s37"); e(f"s_add_u32 s37, s36, {16*2048}")
    e("s_lshl_b32 s38, s35, 16"); e("s_lshl_b32 s39, s34, 12"); e("s_add_u32 s38, s38, s39")
    e("s_waitcnt lgkmcnt(0)")
    srd(A, 8, "s4", "s5", S * D * 2)
    srd_off(A, 12, "s28", "s29", "s38", 4096)
    R = 16
    for i in range(4):
        so, off = rowmajor_frag(i, "s36", "s37")
        e(f"buffer_load_dwordx4 v[{R+4*i}:{R+4*i+3}], v2, s[8:11], {so} offen offset:{off}")
    e("s_lshl_b32 s36, s35, 12"); e("s_lshr_b32 s37, s34, 2"); e("s_lshl_b32 s37, s37, 10"); e("s_add_u32 s36, s36, s37")
    e("s_and_b32 s37, s34, 3"); e("s_lshl_b32 s37, s37, 2"); e("s_add_u32 s36, s36, s37")
    srd_off(A, 16, "s28", "s29", WS_ST, 64 * 4096)
    e("s_waitcnt vmcnt(0)")
    for i in range(4):
        e(f"v_permlane16_swap_b32 v{R+4*i}, v{R+4*i+2}")
        e(f"v_permlane16_swap_b32 v{R+4*i+1}, v{R+4*i+3}")
    e("s_nop 1")
    for i in range(4):
        e(f"buffer_store_dwordx4 v[{R+4*i}:{R+4*i+3}], v1, s[12:15], 0 offen offset:{i*1024}")
    stats_emit(A, 16, [R + i for i in range(16)], 8)
    e("buffer_store_dword v8, v1, s[16:19], s36 offen")
    e(f"s_branch {name}_fin")
    A.label(f"{name}_cs")
    e("s_waitcnt lgkmcnt(0)")
    e(f"s_cmp_ge_u32 s2, {256+192}")
    e(f"s_cbranch_scc1 {name}_warm")
    e("s_sub_u32 s44, s2, 256")
    colsum_part(A, name, 44, [(0, 6, 7, 6)], f"{name}_fin")
    e(f"s_branch {name}_fin")
    A.label(f"{name}_warm")
    e(f"s_sub_u32 s44, s2, {256+192}")
    warm_part(A, 44, 22, 23, D * D * 2)
    A.label(f"{name}_fin")
    kernel_tail(A, name, 64)
    return dict(name=name, grid=512, block=256, lds=8192)

HEADER = """; interleave_layers: (linear attention block, SwiGLU FFN) x 2, pre-LN residual ; generated by work/gen.py
"""
def build_all(path, stamp_on=False, o=None):
    global STAMP
    STAMP = stamp_on
    o = o or {}
    A = Asm()
    prep = k_prep(A, "prep_kernel")
    qkv = k_qkv(A, "qkv_kernel", o.get("qkv"))
    att1 = k_attn(A, "attn1_kernel", True)
    att = k_attn(A, "attn_kernel", False)
    wo = k_proj(A, "wo_kernel", D, WS_O, KA["wo"], False, o.get("wo"))
    ffn = k_ffn(A, "ffn_kernel", o.get("ffn"))
    dn = k_proj(A, "down_kernel", F, WS_H, KA["wd"], False, o.get("down"))
    dnf = k_proj(A, "downf_kernel", F, WS_H, KA["wd"], True, o.get("down"))
    for k in (prep, qkv, att1, wo, ffn, dn, qkv, att, wo, ffn, dnf):
        A.launch(k["name"], k["grid"], k["block"], k["lds"])
    open(path, "w").write(A.text(HEADER))

if __name__ == "__main__":
    build_all("full_stamp.s", True)
    build_all("interleave_layers__linear_attn_block__swiglu_ffn__prompt.s", False)
```

```python
import sys, math
import gen
from gen import *

WS_FL = 30 * MB
WS_KV2 = 32 * MB
cQ, cA, cO, cU, cD = 0, 16, 32, 40, 56
LDS_P = 131072
LDS_R = 98304
LDS_Z = LDS_P + 24576
WS_CS2 = WS_CS + 65536
V_RES = 228
V_KEEP = 250
V_CS = 160
WS_CSQ = WS_CS + 320 * 1024
WS_XB = WS_O
WS_STB = WS_ST + 262144
QSBY = 3 * 64 * 128
WS_XC = WS_PQ
S_DUMP = 79
SC1 = " sc1"
S_WV, S_LAYER, S_SIG, S_POFF, S_PTGT, S_PH = 3, 98, 99, 100, 101, 78
FL = 80
NAME = "mega_kernel"

def rs(A, k):
    if gen.STAMP:
        A.e(f"s_memrealtime s[{60+2*k}:{61+2*k}]")
        if k in (3, 4): A.e(f"s_memtime s[{66+2*k}:{67+2*k}]")
def rs_s(st, k):
    if gen.STAMP: st.i(f"s_memrealtime s[{60+2*k}:{61+2*k}]\n    s_waitcnt lgkmcnt(0)")
uid = [0]
DBGOUT = False
SWARM = False
TOUCH = 0
def stamps_flush(A):
    if not gen.STAMP: return
    e = A.e
    uid[0] += 1
    l = f"sf{uid[0]}"
    rs(A, 5)
    e(f"s_cmp_lg_u32 s{S_WV}, 0"); e(f"s_cbranch_scc1 {l}")
    srd_off(A, 52, "s28", "s29", WS_DBG, 32 * 65536)
    e("s_lshl_b32 s58, s2, 6"); e(f"s_lshl_b32 s59, s{S_PH}, 16"); e("s_add_u32 s58, s58, s59")
    e("s_waitcnt lgkmcnt(0)")
    e("s_mov_b64 s[56:57], exec"); e("s_mov_b64 exec, 1")
    e("v_mov_b32 v2, 0")
    for k in range(8):
        e(f"v_mov_b32 v3, s{60+2*k}")
        e(f"buffer_store_dword v3, v2, s[52:55], s58 offen offset:{4*k}")
    for k in range(4):
        e(f"v_mov_b32 v3, s{4+k}")
        e(f"buffer_store_dword v3, v2, s[52:55], s58 offen offset:{48+4*k}")
    if DBGOUT:
        e("s_cmp_lg_u32 s2, 40"); e(f"s_cbranch_scc1 {l}d")
        e(f"s_load_dwordx2 s[52:53], s[0:1], {KA['dbg']}"); e("s_movk_i32 s54, 64"); e("s_mov_b32 s55, 0x00020000")
        e(f"s_mul_i32 s58, s{S_PH}, 43"); e("s_lshr_b32 s58, s58, 7"); e(f"s_add_u32 s58, s58, s{S_PH}"); e("s_add_u32 s58, s58, 5")
        e("s_and_b32 s58, s58, 15"); e("s_lshl_b32 s58, s58, 2")
        e("s_sub_u32 s59, s70, s76"); e("v_mov_b32 v3, s59")
        e("s_waitcnt lgkmcnt(0)")
        e("buffer_store_dword v3, v2, s[52:55], s58 offen sc1")
        e(f"s_cmp_lg_u32 s{S_PH}, 0"); e(f"s_cbranch_scc1 {l}d")
        e("s_sub_u32 s59, s66, s76"); e("v_mov_b32 v3, s59")
        e("buffer_store_dword v3, v2, s[52:55], 0 offen offset:12 sc1")
        A.label(l + "d")
    e("s_mov_b64 exec, s[56:57]")
    A.label(l)
    e(f"s_add_u32 s{S_PH}, s{S_PH}, 1")

def phase_begin(A, first=False):
    rs(A, 0)
    if gen.STAMP and first:
        A.e("s_waitcnt lgkmcnt(0)"); A.e(f"s_cmp_eq_u32 s{S_LAYER}, 0"); A.e("s_cselect_b32 s60, s76, s60")

def set_poll(A, idx_sgpr, base, target, prev_layer=False):
    e = A.e
    e(f"s_lshl_b32 s{S_POFF}, s{S_LAYER}, 6"); e(f"s_add_u32 s{S_POFF}, s{S_POFF}, s{idx_sgpr}")
    if prev_layer:
        e(f"s_add_u32 s{S_POFF}, s{idx_sgpr}, {base}")
        e(f"s_mul_i32 s{S_PTGT}, s{S_LAYER}, {target}")
    else:
        e(f"s_add_u32 s{S_POFF}, s{S_POFF}, {base}")
        e(f"s_mov_b32 s{S_PTGT}, {target}")
    e(f"s_lshl_b32 s{S_POFF}, s{S_POFF}, 7")

def set_signal(A, idx_sgpr, base):
    e = A.e
    e(f"s_lshl_b32 s{S_SIG}, s{S_LAYER}, 6"); e(f"s_add_u32 s{S_SIG}, s{S_SIG}, s{idx_sgpr}")
    e(f"s_add_u32 s{S_SIG}, s{S_SIG}, {base}"); e(f"s_lshl_b32 s{S_SIG}, s{S_SIG}, 7")

def do_signal(o, va, vb, wait=True, fl=FL, off=None):
    off = off or f"s{S_SIG}"
    if gen.STAMP: o("s_memrealtime s[60:61]")
    o("s_mov_b64 exec, 1")
    o(f"v_mov_b32 v{va}, 0"); o(f"v_mov_b32 v{vb}, 1")
    o(f"buffer_atomic_add v{vb}, v{va}, s[{fl}:{fl+3}], {off} offen sc1")
    if wait:
        o("s_waitcnt vmcnt(0)")
        if gen.STAMP: o("s_memrealtime s[62:63]")
    o("s_mov_b64 exec, -1")

def do_poll(o, va, vb, tag, fl=FL, diag=True):
    o("s_mov_b64 exec, 1")
    o(f"v_mov_b32 v{va}, 0")
    o("s_mov_b32 s50, 0x40000")
    o(f"{tag}_poll:")
    o(f"buffer_load_dword v{vb}, v{va}, s[{fl}:{fl+3}], s{S_POFF} offen sc1")
    o("s_sub_u32 s50, s50, 1")
    o(f"s_cbranch_scc1 {tag}_pdone")
    o("s_waitcnt vmcnt(0)")
    o(f"v_readfirstlane_b32 s51, v{vb}")
    o(f"s_cmp_lt_u32 s51, s{S_PTGT}")
    o(f"s_cbranch_scc1 {tag}_poll")
    o(f"{tag}_pdone:")
    if gen.STAMP and diag:
        o("s_memrealtime s[64:65]")
        o(f"s_add_u32 s52, s28, {WS_DBG}"); o("s_addc_u32 s53, s29, 0"); o(f"s_mov_b32 s54, {32*65536}"); o("s_mov_b32 s55, 0x00020000")
        o("s_lshl_b32 s58, s2, 6"); o(f"s_lshl_b32 s59, s{S_PH}, 16"); o("s_add_u32 s58, s58, s59")
        o("s_waitcnt lgkmcnt(0)")
        for k, r in enumerate((60, 62, 64, 50)):
            o(f"v_mov_b32 v{vb}, s{r}")
            o(f"buffer_store_dword v{vb}, v{va}, s[52:55], s58 offen offset:{32+4*k}")
    o("s_mov_b64 exec, -1")

def bar_loop(A, tag, n, body=None):
    e = A.e
    if n <= 2 and not body:
        for _ in range(n): e("s_barrier")
        return
    e(f"s_mov_b32 s43, {n}")
    A.label(tag)
    e("s_barrier")
    if body: body()
    e("s_sub_u32 s43, s43, 1"); e("s_cmp_lg_u32 s43, 0"); e(f"s_cbranch_scc1 {tag}")

def warm(A, offs, adv):
    for o in offs: A.e(f"s_load_dword s{S_DUMP}, s[12:13], {o:#x}")
    A.e(f"s_add_u32 s12, s12, {adv}"); A.e("s_addc_u32 s13, s13, 0")

DBG_X, DBG_G = 0, 8
def idle_head(A, tag, first=False, early=None, pre=None):
    e = A.e
    A.label(f"{tag}_idle")
    fl = FL
    if first:
        fl = 24
        e(f"s_load_dwordx2 s[4:5], s[0:1], {KA['dbg']}")
        e(f"s_lshl_b32 s31, s33, 4")
        e(f"s_cmp_eq_u32 s{S_LAYER}, 0")
        e(f"s_cselect_b32 s{S_POFF}, s31, s{S_POFF}"); e(f"s_cselect_b32 s{S_PTGT}, 16, s{S_PTGT}")
        e(f"s_cselect_b32 s26, 256, s{FL+2}"); e("s_mov_b32 s27, 0x00020000")
        e("s_waitcnt lgkmcnt(0)")
        e(f"s_cselect_b32 s24, s4, s{FL}"); e(f"s_cselect_b32 s25, s5, s{FL+1}")
    if pre: pre()
    e("s_waitcnt vmcnt(0)")
    e("s_barrier")
    e(f"s_cmp_lg_u32 s{S_WV}, 4"); e(f"s_cbranch_scc1 {tag}_i1")
    if first:
        e(f"s_cmp_eq_u32 s{S_LAYER}, 0"); e(f"s_cbranch_scc1 {tag}_i1")
    do_signal(e, 1, 2, wait=False)
    A.label(f"{tag}_i1")
    if early: early()
    e(f"s_cmp_lg_u32 s{S_WV}, 4"); e(f"s_cbranch_scc1 {tag}_i2")
    e("s_waitcnt vmcnt(0)")
    if gen.STAMP: e("s_memrealtime s[62:63]")
    do_poll(e, 1, 2, tag, fl=fl)
    A.label(f"{tag}_i2")
    e("s_barrier")

def idle_tail(A, nxt):
    if gen.STAMP: A.e(f"s_add_u32 s{S_PH}, s{S_PH}, 1")
    A.e(f"s_branch {nxt}")

def col_reduce(A, r, vlane, vt):
    e = A.e
    e("s_nop 1")
    for j in range(4): e(f"v_permlane32_swap_b32 v{r+j}, v{r+4+j}")
    e("s_nop 0")
    for j in (0, 2): e(f"v_pk_add_f32 v[{r+j}:{r+1+j}], v[{r+j}:{r+1+j}], v[{r+4+j}:{r+5+j}]")
    e(f"v_and_b32 v{vt}, 8, v{vlane}"); e(f"v_cmp_ne_u32 vcc, 0, v{vt}")
    for j in range(2): e(f"v_permlane16_swap_b32 v{r+j}, v{r+2+j}")
    e("s_nop 1")
    e(f"v_pk_add_f32 v[{r}:{r+1}], v[{r}:{r+1}], v[{r+2}:{r+3}]")
    e("s_nop 1")
    for j in range(2): e(f"v_add_f32_dpp v{r+j}, v{r+j}, v{r+j} row_ror:8 row_mask:0xf bank_mask:0xf")
    e(f"v_cndmask_b32 v{r}, v{r}, v{r+1}, vcc")

def wd_warm_base(A):
    e = A.e
    e(f"s_load_dwordx2 s[12:13], s[0:1], {KA['wd']}")
    e(f"s_lshl_b32 s16, s2, 2"); e(f"s_add_u32 s16, s16, s{S_WV}"); e("s_sub_u32 s16, s16, 4"); e("s_mul_i32 s16, s16, 7168")
    e("s_waitcnt lgkmcnt(0)")
    e("s_add_u32 s12, s12, s16"); e("s_addc_u32 s13, s13, 0")

SET_A = dict(srd=8, lds=40, woff=41, p=39, stg=38, r=35, m=33, n=34, t0=31, t1=32)
SET_B = dict(srd=24, lds=36, woff=37, p=20, stg=21, r=22, m=16, n=17, t0=18, t1=19)
SET_C = dict(srd=88, lds=92, woff=93, p=94, stg=95, r=96, m=16, n=17, t0=18, t1=19)
class Loader:
    def __init__(self, A, kind, rs_, v, first=0):
        self.A, self.kind, self.s, self.v, self.first = A, kind, rs_, v, first
        self.T = 16
        self.ldw = {"qkv": 3 * D * 2}.get(kind, D * 2)
        self.NT = {"qkv": 16, "wo": 16, "down": 28}[kind]
        self.np = {"qkv": 6, "wo": 2, "down": 4}[kind]
        self.sb = {"qkv": QSBY, "wo": 8192, "down": 16384}[kind]
        self.base = {"qkv": 0, "wo": LDS_P, "down": LDS_R}[kind]
        self.rot = 2 if kind == "down" else 0
    def setup(self, coords=True):
        A, s, v, e = self.A, self.s, self.v, self.A.e
        k, ldw = self.kind, self.ldw
        e(f"s_load_dwordx2 s[4:5], s[0:1], {KA[{'qkv': 'wqkv', 'wo': 'wo', 'down': 'wd'}[k]]}")
        if coords: (qkv_coords if k == "qkv" else proj_coords)(A, s["m"], s["n"], s["t0"], s["t1"])
        lane_consts_fullline(A, self.T, ldw, v + 6, v, None)
        t0, t1 = s["t0"], s["t1"]
        e(f"s_and_b32 s{t1}, s{S_WV}, 3")
        e(f"s_lshl_b32 s{s['lds']}, s{t1}, 10")
        if self.base: e(f"s_add_u32 s{s['lds']}, s{s['lds']}, {self.base}")
        e(f"s_mul_i32 s{t0}, s{t1}, {8*ldw}"); e(f"s_lshl_b32 s{t1}, s{s['n']}, 7"); e(f"s_add_u32 s{t0}, s{t0}, s{t1}")
        e(f"v_add_u32 v{v}, s{t0}, v{v}")
        if k == "qkv":
            for j in range(1, 6): e(f"v_add_u32 v{v+j}, {(j >> 1) * 2048 + (j & 1) * 32 * ldw}, v{v}")
            e(f"s_add_u32 s{s['r']}, s{s['m']}, s{s['n']}")
        else:
            e(f"v_add_u32 v{v+1}, {32*ldw}, v{v}")
            if k == "down": e(f"v_xor_b32 v{v+2}, 0x80, v{v}"); e(f"v_xor_b32 v{v+3}, 0x80, v{v+1}")
            e(f"s_lshr_b32 s{s['r']}, s{s['n']}, 1"); e(f"s_add_u32 s{s['r']}, s{s['r']}, s{s['m']}")
        e(f"s_and_b32 s{s['r']}, s{s['r']}, 3")
        e(f"s_mov_b32 s{s['p']}, {self.first}")
        e(f"s_mov_b32 s{s['stg']}, {((self.first + self.rot) % 4) * self.sb}")
        if k == "down": e(f"s_and_b32 s{t0}, s{s['n']}, 1"); e(f"s_mul_i32 s{t0}, s{t0}, {F * D}")
        e("s_waitcnt lgkmcnt(0)")
        if k == "down": srd_off(A, s["srd"], "s4", "s5", f"s{t0}", F * D)
        else: srd(A, s["srd"], "s4", "s5", D * ldw)
    def issue(self, guard=False):
        A, s, e = self.A, self.s, self.A.e
        uid[0] += 1; l = f"ld{uid[0]}"
        w, t, NT = s["woff"], s["t0"], self.NT
        if guard: e(f"s_cmp_ge_u32 s{s['p']}, {NT}"); e(f"s_cbranch_scc1 {l}")
        e(f"s_and_b32 s{t}, s{s['p']}, 3"); e(f"s_cmp_eq_u32 s{t}, s{s['r']}"); e(f"s_cselect_b32 s{t}, 3, -1")
        e(f"s_add_u32 s{w}, s{s['p']}, s{t}")
        e(f"s_add_u32 s{t}, s{w}, {NT}"); e(f"s_min_u32 s{w}, s{w}, s{t}")
        e(f"s_sub_u32 s{t}, s{w}, {NT}"); e(f"s_min_u32 s{w}, s{w}, s{t}")
        e(f"s_mul_i32 s{w}, s{w}, {64 * self.ldw}")
        e(f"s_add_u32 s{t}, s{s['lds']}, s{s['stg']}")
        for j in range(self.np):
            e(f"s_add_u32 m0, s{t}, {j * 4096}")
            e("s_nop 0")
            e(f"buffer_load_dwordx4 v{self.v + j}, s[{s['srd']}:{s['srd']+3}], s{w} offen lds")
        e(f"s_add_u32 s{s['stg']}, s{s['stg']}, {self.sb}")
        e(f"s_cmp_eq_u32 s{s['stg']}, {4 * self.sb}"); e(f"s_cselect_b32 s{s['stg']}, 0, s{s['stg']}")
        if guard: A.label(l)
        e(f"s_add_u32 s{s['p']}, s{s['p']}, 1")
    def step(self):
        A, s, e = self.A, self.s, self.A.e
        uid[0] += 1; l = f"st{uid[0]}"
        e(f"s_waitcnt vmcnt({self.np})")
        e(f"s_cmp_le_u32 s{s['p']}, {self.NT}"); e(f"s_cbranch_scc1 {l}")
        e("s_waitcnt vmcnt(0)")
        A.label(l)
        e("s_barrier")
        self.issue(guard=True)
    def loop(self, tag, n, body=None):
        A, e = self.A, self.A.e
        e(f"s_mov_b32 s43, {n}")
        if isinstance(n, str): e("s_cmp_eq_u32 s43, 0"); e(f"s_cbranch_scc1 {tag}x")
        A.label(tag)
        self.step()
        if body: body()
        e("s_sub_u32 s43, s43, 1"); e("s_cmp_lg_u32 s43, 0"); e(f"s_cbranch_scc1 {tag}")
        A.label(f"{tag}x")

class MGemm(Gemm):
    npre = 3
    def xload(self, st, q, sb):
        super().xload(st, q, sb)
        op = st.ops[-1]; st.ops[-1] = (op[0], op[1] + self.opt.get("xfl", SC1), op[2])
    def pro_w(self, st, t0, t1):
        for t in range(t0, t1): self.pro_tile(st, t, x=False)
    def pro_w_pre(self, st):
        tmp = Stream()
        self.pro_w(tmp, 0, self.npre)
        st.pre |= {op[2] for op in tmp.ops if op[0] == "vm"}
        if self.skew: self.set_woff(st, self.STAGES - 2)
        else: st.i(f"s_mov_b32 s{self.s_woff}, {(self.npre - 1) * self.BK * self.ldw}")
    def pro_w_emit(self):
        tmp = Stream()
        self.pro_w(tmp, 0, self.npre)
        for op in tmp.ops: self.A.e(op[1])
    def pro_x(self, st):
        for t in range(self.XT): self.pro_tile(st, t, w=False)
    def pro_order(self, o):
        for t in range(self.LOOK):
            for l in self.order_next(t): o(l)
    def sync2(self, st):
        st.i("s_barrier")
        rs_s(st, 2)
    def reads(self, st):
        for f in range(self.LA):
            for rd in range(2): self.wread(st, f, rd)
    def tail_fused(self, groups, x2, epi, mid):
        st = Stream()
        KS, NB, SB, LA, NT = self.KS, self.NB, self.SB, self.LA, self.NT
        assert self.XT == 1 and not self.skew and self.UN == 4 and SB == 2
        FT = KS * NB
        seq = [(t, ks, nb) for t in (NT - 4, NT - 3) for ks in range(KS) for nb in range(NB)]
        gend = []
        for g in groups:
            seq += [(t, ks, nb) for t in (NT - 2, NT - 1) for ks in range(KS) for nb in g]
            gend.append(len(seq))
        f0 = (NT - 4) * FT
        self.fmap = {f0 + i: s for i, s in enumerate(seq)}
        for i in range(LA): self.fmap[f0 + len(seq) + i] = None
        bpos, pos = self.slots()
        def xr(t, ks, sb):
            return (x2 if t == NT - 2 else self.xfrag0) + (ks * SB + sb) * 4
        def xld(t, ks, sb, so):
            r = xr(t, ks, sb)
            st.vm(f"buffer_load_dwordx4 v[{r}:{r+3}], v{self.vxoff}, s[{self.srd_x}:{self.srd_x+3}], {so} offen offset:{(ks*2+sb)*1024}{SC1}", ("X", t * KS + ks, sb))
        seen = set(); fill = []; gi = 0
        for i, (t, ks, nb) in enumerate(seq):
            f = f0 + i
            for sb in range(SB):
                m = (i % FT) * SB + sb
                vmw = None
                if (t, ks, sb) not in seen: seen.add((t, ks, sb)); vmw = [("X", t * KS + ks, sb)]
                dsw = [("R", f + k, rd) for k in range(self.WG) for rd in range(2) if self.fmap[f + k]] if (sb == 0 and i % self.WG == 0) else None
                if vmw or dsw: st.wait(vm=vmw, ds=dsw)
                dj = []
                if i < FT:
                    dj = [(NT - 2, j) for j in range(self.npieces) if pos[j] == m and m <= bpos]
                    dj += [(NT - 1, j) for j in range(self.npieces) if m == bpos + 2 + 3 * j]
                for (tt, j) in dj: self.dma_m0(st, tt, j)
                w = self.wreg(f); x = xr(t, ks, sb); a = self.acc(nb, sb)
                st.i(f"{self.op} {a}, v[{w}:{w+3}], v[{x}:{x+3}], {a}")
                for (tt, j) in dj: self.dma_ld(st, tt, j)
                if i == 0 and sb == 0:
                    st.i(f"s_mov_b32 s{self.s_xoff}, {(NT - 3) * self.XB}"); st.i(f"s_mov_b32 s31, {(NT - 2) * self.XB}"); st.i(f"s_mov_b32 s32, {(NT - 1) * self.XB}")
                if i < 2 * FT and m == bpos:
                    need = [NT - 3] if i < FT else [NT - 2, NT - 1]
                    st.wait(vm=[("W", tt, j) for tt in need for j in range(self.npieces)])
                    st.i("s_barrier")
                    if i < FT: self.set_woff(st, NT - 1)
                self.wread(st, f + LA, sb)
                if i < 2 * FT and nb == NB - 1:
                    if i < FT: xld(NT - 3, ks, sb, f"s{self.s_xoff}")
                    else: xld(NT - 1, ks, sb, "s32")
                if FT <= i < FT + 8 and i % 2 == 0 and sb == 0:
                    k = (i - FT) // 2; xld(NT - 2, k // 2, k % 2, "s31")
                if len(seen) == 4 * KS * SB and mid:
                    for l in mid: st.i(l)
                    mid = None
                if gi > 0 and fill:
                    left = (gend[gi] - i) * SB - sb
                    start = gend[gi - 1]
                    if (i - start) * SB + sb >= 4:
                        n = len(fill) if self.opt.get("blk") else -(-len(fill) // left)
                        for l in fill[:n]: st.i(l)
                        fill = fill[n:]
            if gi < len(gend) and i + 1 == gend[gi]:
                assert not fill
                fill = epi(gi); gi += 1
                if self.opt.get("gbar") and gi < len(gend): st.i("s_barrier")
                if self.opt.get("gflip") and gi < len(gend):
                    st.i(f"s_cmp_{'lt' if gi % 2 else 'ge'}_u32 s{S_WV}, 4\n    s_cbranch_scc1 {self.name}_gf{gi}\n    s_setprio 0\n    s_branch {self.name}_gg{gi}\n{self.name}_gf{gi}:\n    s_setprio 1\n{self.name}_gg{gi}:")
            if self.opt.get("hbar") and gi > 0 and gi < len(gend) and i + 1 == (gend[gi] + gend[gi - 1]) // 2: st.i("s_barrier")
        st.i("s_nop 7")
        for l in fill: st.i(l)
        return st
    def emit_tail(self, pro, tail, loop_end, between):
        A = self.A
        pl, bl, tl = resolve(pro, [self.body(it) for it in range(3)], tail)
        for l in pl: A.e(l)
        if gen.STAMP: A.e("s_waitcnt lgkmcnt(0)"); rs(A, 3); A.e("s_waitcnt lgkmcnt(0)")
        A.e(f"s_mov_b32 s{self.s_it}, 4")
        A.e(".p2align 6")
        A.label(f"{self.name}_loop")
        for l in bl: A.e(l)
        A.e(f"s_sub_u32 s{self.s_it}, s{self.s_it}, 1")
        loop_end()
        A.e(f"s_cmp_lg_u32 s{self.s_it}, 1")
        A.e(f"s_cbranch_scc1 {self.name}_loop")
        between()
        for l in tl: A.e(l)
        rs(A, 4)
    def emit(self, pro, loop_end=None):
        A = self.A
        nit = self.NT // self.UN
        pl, bl = resolve(pro, [self.body(it) for it in range(nit)])
        for l in pl: A.e(l)
        if gen.STAMP: A.e("s_waitcnt lgkmcnt(0)"); rs(A, 3); A.e("s_waitcnt lgkmcnt(0)")
        A.e(f"s_mov_b32 s{self.s_it}, {nit}")
        A.e(".p2align 6")
        A.label(f"{self.name}_loop")
        for l in bl: A.e(l)
        A.e(f"s_sub_u32 s{self.s_it}, s{self.s_it}, 1")
        if loop_end: loop_end()
        A.e(f"s_cmp_lg_u32 s{self.s_it}, 0")
        A.e(f"s_cbranch_scc1 {self.name}_loop")
        rs(A, 4)

def unpack_pk(l):
    import re
    m = re.match(r"v_pk_(mul|fma)_f32 (.*?)(?: op_sel_hi:\[(.*)\])?$", l)
    if not m: return [l]
    regs = [int(x) for x in re.findall(r"v\[(\d+):", m.group(2))]
    hi = [1] + [int(x) for x in (m.group(3) or "1,1,1").split(",")]
    return [f"v_{m.group(1)}_f32 " + ", ".join(f"v{r + (k and hi[i])}" for i, r in enumerate(regs)) for k in (0, 1)]

def sync1(A):
    A.e("s_waitcnt vmcnt(0)")
    A.e("s_barrier")
    rs(A, 1)

def proj_coords(A, sm, sn, t0, t1):
    e = A.e
    e(f"s_and_b32 s{t0}, s2, 7"); e(f"s_lshr_b32 s{t1}, s2, 3")
    e(f"s_lshr_b32 s{sm}, s{t0}, 1"); e(f"s_lshl_b32 s{sm}, s{sm}, 2"); e(f"s_lshr_b32 s{sn}, s{t1}, 3"); e(f"s_add_u32 s{sm}, s{sm}, s{sn}")
    e(f"s_and_b32 s{sn}, s{t0}, 1"); e(f"s_and_b32 s{t1}, s{t1}, 7"); e(f"s_lshl_b32 s{t1}, s{t1}, 1"); e(f"s_add_u32 s{sn}, s{sn}, s{t1}")

def p_proj(A, tag, K, down, nxt, opt=None):
    e = A.e
    opt = opt or {}
    T = 16
    ldw = D * 2
    split = down and opt.get("split", 1)
    A.label(tag)
    phase_begin(A)
    if down: e(f"s_load_dwordx2 s[6:7], s[0:1], {KA['out']}")
    proj_coords(A, 33, 34, 31, 32)
    e("s_lshr_b32 s45, s33, 1")
    if down:
        e("s_and_b32 s31, s33, 14"); e("s_and_b32 s32, s34, 1"); e("s_add_u32 s31, s31, s32")
        set_poll(A, 31, cU, 16)
    else: set_poll(A, 33, cA, 16)
    e(f"s_cmp_ge_u32 s{S_WV}, 4"); e(f"s_cbranch_scc1 {tag}_idle")
    VP, VF, VXO, VT = 1, 5, 9, 10
    ACC, RES, WF = 16, V_RES, 80
    XF = WF + 32
    e(f"v_and_b32 v{VXO}, 63, v0"); e(f"v_lshlrev_b32 v{VXO}, 4, v{VXO}")
    e(f"s_lshl_b32 s35, s33, 2"); e(f"s_add_u32 s35, s35, s{S_WV}")
    e(f"s_lshl_b32 s37, s35, 16"); e("s_lshl_b32 s38, s34, 12"); e("s_add_u32 s37, s37, s38")
    if not down: e(f"s_add_u32 s37, s37, {WS_XB}")
    srd_off(A, 20, "s28", "s29", "s37", 4096)
    assert split or not down
    lane_consts_fullline(A, 16, ldw, VT, VP, VF)
    sb, rot = (16384, 2) if split else (8192, 0)
    opt = dict(opt); opt["now"] = 1
    G = MGemm(A, tag, T=16, NB=8 if split else 4, RG=1, K=K // 2 if split else K, STAGES=4, XT=opt.get("XT", 2), NWR=8,
              LA=opt.get("LA", 6 if split else 4), WG=2, npieces=1, stage_bytes=sb, piece_lds=None,
              frag_addr=fullline_frag_addr(16, VF, 64, lambda stg: (0, ((stg + rot) % 4) * sb)),
              acc=blk_acc(16, "v", ACC, 1), wfrag0=WF, xfrag0=XF, vpiece0=VP, vxoff=VXO,
              srd_w=8, srd_x=12, s_woff=41, s_xoff=42, s_ldsw=40, s_it=43, ldw=ldw, opt=opt)
    e("s_lshr_b32 s36, s34, 1"); e("s_add_u32 s36, s36, s33"); e("s_and_b32 s36, s36, 3")
    G.order_init(36)
    G.pro_order(e)
    for i in range(4): e(f"v_add_u32 v{VF+i}, {LDS_R if split else LDS_P}, v{VF+i}")
    e(f"s_mul_i32 s36, s35, {F*64}"); e(f"s_add_u32 s36, s36, {WS_H}")
    if split:
        e("s_and_b32 s37, s34, 1"); e(f"s_mul_i32 s37, s37, {K*32}"); e("s_add_u32 s36, s36, s37")
    srd_off(A, 12, "s28", "s29", "s36", G.K * 64)
    e("s_waitcnt lgkmcnt(0)")
    sync1(A)
    p = Stream()
    G.reads(p)
    for i in range(16):
        p.i(f"v_lshlrev_b32 v{ACC+2*i}, 16, v{RES+i}")
        p.i(f"v_and_b32 v{ACC+2*i+1}, 0xffff0000, v{RES+i}")
    if split:
        for i in range(0, 32, 2): p.i(f"v_pk_mov_b32 v[{ACC+32+i}:{ACC+33+i}], 0, 0")
    G.sync2(p)
    G.pro_x(p)
    G.emit(p)
    if split:
        e(f"s_lshl_b32 s36, s2, 2"); e(f"s_add_u32 s36, s36, s{S_WV}"); e("s_lshl_b32 s36, s36, 12"); e("s_xor_b32 s37, s36, 0x4000")
        srd_off(A, 16, "s28", "s29", WS_XC, 4 * MB)
        e("s_mov_b32 s50, 0x40000")
        for i in range(16):
            e(f"v_cvt_pk_bf16_f32 v{RES+i}, v{ACC+32+2*i}, v{ACC+33+2*i}")
            if i % 4 == 3:
                e(f"buffer_store_dwordx4 v[{RES+i-3}:{RES+i}], v{VXO}, s[16:19], s37 offen offset:{(i//4)*1024}{SC1}")
        X2 = ACC + 32
        e("s_waitcnt vmcnt(0)")
        if gen.STAMP: e("s_memrealtime s[8:9]"); e("s_waitcnt lgkmcnt(0)"); e("s_mov_b32 s4, s8")
        e(f"s_branch {tag}_xp")
        if True:
            A.label(f"{tag}_xr")
            e("s_mov_b64 exec, 0xff")
            A.label(f"{tag}_xl")
            e(f"buffer_load_dwordx4 v[{X2}:{X2+3}], v{VXO}, s[16:19], s36 offen offset:3968{SC1}")
            e("s_sub_u32 s50, s50, 1"); e(f"s_cbranch_scc1 {tag}_xm")
            e("s_waitcnt vmcnt(0)")
            e(f"v_cmp_eq_u32 vcc, -1, v{X2+3}")
            e("s_nop 4")
            e(f"s_cbranch_vccnz {tag}_xl")
            A.label(f"{tag}_xm")
            e("s_mov_b64 exec, -1")
            e("s_max_i32 s50, s50, 0")
        A.label(f"{tag}_xp")
        for i in range(4):
            e(f"buffer_load_dwordx4 v[{X2+4*i}:{X2+4*i+3}], v{VXO}, s[16:19], s36 offen offset:{i*1024}{SC1}")
        e("s_sub_u32 s50, s50, 1"); e(f"s_cbranch_scc1 {tag}_xd")
        e("s_waitcnt vmcnt(0)")
        e(f"v_max3_u32 v{VT}, v{X2}, v{X2+1}, v{X2+2}")
        e(f"v_max3_u32 v{VT+1}, v{X2+3}, v{X2+4}, v{X2+5}")
        for i in range(6, 14, 4):
            e(f"v_max3_u32 v{VT}, v{VT}, v{X2+i}, v{X2+i+1}")
            e(f"v_max3_u32 v{VT+1}, v{VT+1}, v{X2+i+2}, v{X2+i+3}")
        e(f"v_max3_u32 v{VT}, v{VT}, v{X2+14}, v{X2+15}")
        e(f"v_max_u32 v{VT}, v{VT}, v{VT+1}")
        e(f"v_cmp_eq_u32 vcc, -1, v{VT}")
        e("s_nop 4")
        e(f"s_cbranch_vccnz {tag}_xr")
        A.label(f"{tag}_xd")
        e("s_waitcnt vmcnt(0)")
        if gen.STAMP: e("s_memrealtime s[8:9]"); e("s_waitcnt lgkmcnt(0)"); e("s_mov_b32 s5, s8")
        T2 = X2 + 16
        for i in range(16):
            t = T2 + 2 * (i % 8)
            e(f"v_lshlrev_b32 v{t}, 16, v{X2+i}"); e(f"v_and_b32 v{t+1}, 0xffff0000, v{X2+i}")
            e(f"v_pk_add_f32 v[{ACC+2*i}:{ACC+2*i+1}], v[{ACC+2*i}:{ACC+2*i+1}], v[{t}:{t+1}]")
    if down:
        e(f"s_cmp_lg_u32 s{S_LAYER}, 0"); e(f"s_cbranch_scc1 {tag}_final")
    e("s_lshl_b32 s36, s35, 12"); e("s_lshl_b32 s37, s34, 8"); e("s_add_u32 s36, s36, s37")
    srd_off(A, 24, "s28", "s29", WS_ST if down else WS_STB, 64 * 4096)
    for i in range(16):
        e(f"v_cvt_pk_bf16_f32 v{RES+i}, v{ACC+2*i}, v{ACC+2*i+1}")
        if i % 4 == 3:
            e(f"buffer_store_dwordx4 v[{RES+i-3}:{RES+i}], v{VXO}, s[20:23], 0 offen offset:{(i//4)*1024}{SC1}")
    stats_emit(A, T, [RES + i for i in range(16)], VT)
    e(f"v_lshrrev_b32 v{VXO}, 2, v{VXO}")
    e(f"buffer_store_dword v{VT}, v{VXO}, s[24:27], s36 offen{SC1}")
    stamps_flush(A)
    A.label(f"{tag}_out")
    if down:
        e("s_and_b32 s31, s33, 7"); e("s_and_b32 s32, s33, 8"); e("s_lshl_b32 s32, s32, 3"); e("s_add_u32 s31, s31, s32")
        set_signal(A, 31, cD)
        e(f"s_cmp_lg_u32 s{S_LAYER}, 0"); e(f"s_cbranch_scc1 {NAME}_end")
        e(f"s_mov_b32 s{S_LAYER}, 1")
    else:
        set_signal(A, 45, cO)
    e(f"s_branch {nxt}")
    if down:
        A.label(f"{tag}_final")
        srd(A, 24, "s6", "s7", S * D * 2)
        rowmajor_lane_off(A, VT, VT + 1)
        e("s_lshl_b32 s36, s35, 16"); e("s_lshl_b32 s37, s34, 7"); e("s_add_u32 s36, s36, s37")
        e(f"s_add_u32 s37, s36, {16*2048}")
        for i in range(16):
            e(f"v_cvt_pk_bf16_f32 v{RES+i}, v{ACC+2*i}, v{ACC+2*i+1}")
        e("s_nop 0")
        for i in range(4):
            e(f"v_permlane16_swap_b32 v{RES+4*i}, v{RES+4*i+2}")
            e(f"v_permlane16_swap_b32 v{RES+4*i+1}, v{RES+4*i+3}")
        e("s_nop 1")
        for i in range(4):
            so, off = rowmajor_frag(i, "s36", "s37")
            e(f"buffer_store_dwordx4 v[{RES+4*i}:{RES+4*i+3}], v{VT}, s[24:27], {so} offen offset:{off}{opt.get('ofl', '')}")
        if gen.STAMP: e("s_waitcnt vmcnt(0)")
        stamps_flush(A)
        e(f"s_branch {NAME}_end")
    if down:
        LD = Loader(A, "down", SET_A, 130, first=2)
        NX = Loader(A, "qkv", SET_B, 140)
        idle_head(A, tag, pre=lambda: (LD.setup(coords=False), NX.setup()))
        LD.issue()
        LD.loop(f"{tag}_i3", G.NT - 2)
        e(f"s_cmp_lg_u32 s{S_LAYER}, 0"); e(f"s_cbranch_scc1 {tag}_i5")
        NX.issue()
        e("s_waitcnt vmcnt(6)")
        e("s_barrier")
        NX.issue(); NX.issue()
        e(f"s_branch {tag}_i6")
        A.label(f"{tag}_i5")
        e("s_waitcnt vmcnt(0)")
        e("s_barrier")
        A.label(f"{tag}_i6")
        e("s_barrier")
    else:
        LD = Loader(A, "wo", SET_A, 130, first=3)
        def early():
            e(f"s_cmp_lg_u32 s{S_LAYER}, 0"); e(f"s_cbranch_scc1 {tag}_nw")
            warm(A, [64 * i for i in range(14)], 896)
            A.label(f"{tag}_nw")
        idle_head(A, tag, early=early if SWARM else None, pre=lambda: LD.setup(coords=False))
        def wb():
            e(f"s_cmp_lg_u32 s{S_LAYER}, 0"); e(f"s_cbranch_scc1 {tag}_nw2")
            warm(A, [64 * i for i in range(5)], 320)
            A.label(f"{tag}_nw2")
        LD.loop(f"{tag}_i3", G.NT, body=wb if SWARM else None)
    idle_tail(A, f"{tag}_out")

def ffn_coords(A, sm, sn, t0, t1):
    e = A.e
    e(f"s_and_b32 s{t0}, s2, 7"); e(f"s_lshr_b32 s{t1}, s2, 3")
    e(f"s_and_b32 s{sm}, s{t0}, 1"); e(f"s_lshl_b32 s{sm}, s{sm}, 2"); e(f"s_lshr_b32 s{sn}, s{t1}, 3"); e(f"s_add_u32 s{sm}, s{sm}, s{sn}")
    e(f"s_lshr_b32 s{sn}, s{t0}, 1"); e(f"s_lshl_b32 s{sn}, s{sn}, 3"); e(f"s_and_b32 s{t1}, s{t1}, 7"); e(f"s_add_u32 s{sn}, s{sn}, s{t1}")

FGU = 16384
def ffn_wsetup(A, tag, VP, VF, VT, sn, t0, opt, regs):
    e = A.e
    ldw = F * 2
    e(f"v_and_b32 v{VT}, 63, v0")
    e(f"s_and_b32 s{t0}, s{S_WV}, 3"); e(f"s_lshl_b32 s{t0}, s{t0}, 8")
    e(f"s_mul_i32 s{t0+1}, s{sn}, 224")
    e(f"s_and_b32 s{t0+2}, s{sn}, 1"); e(f"s_lshl_b32 s{t0+2}, s{t0+2}, 1")
    e(f"s_movk_i32 s{t0+3}, 4682")
    for j in range(4):
        u, r, c = VT + 1, VT + 2, VT + 3
        e(f"v_add_u32 v{u}, s{t0}, v{VT}")
        if j: e(f"v_add_u32 v{u}, {64*j}, v{u}")
        e(f"v_mul_u32_u24 v{r}, s{t0+3}, v{u}"); e(f"v_lshrrev_b32 v{r}, 16, v{r}")
        e(f"v_mul_u32_u24 v{c}, 14, v{r}"); e(f"v_sub_u32 v{c}, v{u}, v{c}")
        e(f"v_add_u32 v{c}, s{t0+2}, v{c}")
        e(f"v_subrev_u32 v{u}, 14, v{c}"); e(f"v_min_u32 v{c}, v{c}, v{u}")
        e(f"v_mul_u32_u24 v{VP+j}, {ldw}, v{r}")
        e(f"v_lshl_add_u32 v{VP+j}, v{c}, 4, v{VP+j}")
        e(f"v_add_u32 v{VP+j}, s{t0+1}, v{VP+j}")
        if j >= 2:
            e(f"v_lshrrev_b32 v{r}, 6, v{r}"); e(f"v_lshl_add_u32 v{VP+j}, v{r}, 28, v{VP+j}")
    ACC, WF, XF, VXO = regs
    SBY = 2 * FGU
    assert not opt["skew"]
    return MGemm(A, tag, T=16, NB=14, RG=1, K=D, STAGES=4, XT=opt.get("XT", 1), NWR=8, LA=opt.get("LA", 7), WG=opt.get("WG", 2), npieces=4, stage_bytes=SBY,
                 piece_lds=lambda j: j * 1024,
                 frag_addr=lambda stg, row, nb: (VF + stg // 2, (stg % 2) * SBY + (nb % 2) * FGU + row * 224 + 32 * (nb // 2)),
                 acc=blk_acc(16, "v", ACC, 1), wfrag0=WF, xfrag0=XF, vpiece0=VP, vxoff=VXO,
                 srd_w=8, srd_x=12, s_woff=41, s_xoff=42, s_ldsw=40, s_it=43, ldw=ldw, opt=opt)

def ffn_prefetch(A, vt, opt):
    opt = dict(opt or {}); opt.setdefault("skew", 0)
    h = {}
    def setup():
        A.e(f"s_load_dwordx4 s[84:87], s[0:1], {KA['wg']}")
        ffn_coords(A, 16, 17, 18, 19)
        h["G"] = ffn_wsetup(A, "x", vt, 0, vt + 4, 17, 20, opt, (0, 0, 0, 0))
        A.e("s_waitcnt lgkmcnt(0)")
    def issue(t):
        G = h["G"]
        if True:
            for m in range(2):
                srd(A, 8, f"s{84+2*m}", f"s{85+2*m}", D * F * 2)
                A.e(f"s_and_b32 s40, s{S_WV}, 3"); A.e("s_lshl_b32 s40, s40, 12")
                if m: A.e(f"s_add_u32 s40, s40, {FGU}")
                A.e(f"s_mov_b32 s41, {((t - 1) * 64 * F * 2) & 0xffffffff:#x}")
                tmp = Stream(); G.pro_w(tmp, t, t + 1)
                for op in tmp.ops: A.e(op[1])
    return setup, issue

def p_ffn(A, tag, nxt, opt=None):
    e = A.e
    opt = dict(opt or {}); opt.setdefault("skew", 0); opt.setdefault("prio47", 1)
    XT = opt.get("XT", 1)
    ldw = F * 2
    SBY = 2 * FGU
    A.label(tag)
    phase_begin(A)
    e(f"s_load_dwordx4 s[4:7], s[0:1], {KA['wg']}")
    VP, VF, VXO, VMN, VRS, VT = 1, 5, 7, 8, 10, 12
    WF = 20; XF = WF + 32
    ACC = XF + XT * 16
    SC = ACC + 112; CSR = SC + 16
    assert CSR + 28 <= 254
    ffn_coords(A, 33, 34, 31, 32)
    set_poll(A, 33, cO, 32)
    e(f"s_lshl_b32 s35, s33, 3"); e(f"s_add_u32 s35, s35, s{S_WV}")
    e(f"s_lshr_b32 s37, s{S_WV}, 2")
    e(f"s_lshl_b32 s40, s{S_WV}, 12")
    e("s_and_b32 s45, s34, 1")
    e(f"v_and_b32 v{VT}, 63, v0")
    e(f"v_lshlrev_b32 v{VXO}, 4, v{VT}")
    e("s_lshl_b32 s36, s35, 16"); e(f"s_add_u32 s36, s36, {WS_XB}")
    srd_off(A, 12, "s28", "s29", "s36", D * 64)
    e(f"v_and_b32 v{VT+1}, 3, v{VT}"); e(f"v_lshlrev_b32 v{VF}, 3, v{VT+1}")
    e(f"v_lshrrev_b32 v{VT+1}, 2, v{VT}"); e(f"v_mul_u32_u24 v{VT+1}, 224, v{VT+1}"); e(f"v_add_u32 v{VF}, v{VF}, v{VT+1}")
    e(f"v_add_u32 v{VF+1}, {2*SBY}, v{VF}")
    e("s_lshl_b32 s38, s35, 12"); e(f"s_add_u32 s38, s38, {WS_STB}")
    e(f"s_mul_i32 s39, s34, {112*32}"); e(f"s_add_u32 s39, s39, {WS_CS2}")
    srd_off(A, 20, "s28", "s29", "s38", 4096)
    srd_off(A, 24, "s28", "s29", "s39", (F + 112) * 32)
    e(f"s_mov_b32 s10, {D*ldw}"); e("s_mov_b32 s11, 0x00020000")
    e("s_cmp_eq_u32 s37, 0")
    e("s_waitcnt lgkmcnt(0)")
    e("s_cselect_b32 s8, s4, s6"); e("s_cselect_b32 s9, s5, s7")
    sync1(A)
    e(f"s_cmp_lg_u32 s{S_WV}, 7"); e(f"s_cbranch_scc1 {tag}_nosig")
    do_signal(e, VT + 4, VT + 5, wait=False)
    A.label(f"{tag}_nosig")
    G = ffn_wsetup(A, tag, VP, VF, VT, 34, 46, opt, (ACC, WF, XF, VXO))
    G.order_init(None)
    e(f"v_and_b32 v{VT+1}, 15, v{VT}"); e(f"v_bfe_u32 v{VT+2}, v{VT}, 4, 1"); e(f"v_mul_u32_u24 v{VT+2}, {F}, v{VT+2}")
    e(f"v_add_lshl_u32 v{VT+1}, v{VT+1}, v{VT+2}, 5")
    e(f"v_lshrrev_b32 v{VT+2}, 5, v{VT}"); e(f"v_lshl_add_u32 v{VT+1}, v{VT+2}, 4, v{VT+1}")
    e("s_lshl_b32 s48, s45, 9")
    e("s_mul_i32 s49, s45, 3072"); e("s_sub_u32 s49, 3072, s49")
    nit = G.NT // G.UN
    e(f"s_add_u32 s30, s37, 1")
    if not SWARM:
        e(f"s_load_dwordx2 s[88:89], s[0:1], {KA['wd']}")
        e(f"s_mov_b32 s90, {F*D*2}"); e("s_mov_b32 s91, 0x00020000")
        e(f"s_lshl_b32 s44, s2, 2"); e(f"s_add_u32 s44, s44, s{S_WV}"); e("s_mul_i32 s44, s44, 7168"); e("s_add_u32 s46, s44, 4096")
        NB_ = opt.get("wst", 11)
        e("s_lshr_b32 s31, s2, 3"); e("s_and_b32 s32, s2, 7"); e("s_lshl_b32 s32, s32, 1"); e("s_add_u32 s31, s31, s32")
        e(f"s_mul_i32 s32, s31, {65536 // NB_ + 1}"); e("s_lshr_b32 s32, s32, 16"); e(f"s_mul_i32 s32, s32, {NB_}"); e("s_sub_u32 s31, s31, s32")
        e("s_add_u32 s31, s31, 1"); e("s_lshl_b32 s47, s31, 12")
        e(f"s_lshr_b32 s31, s{S_WV}, 2"); e(f"s_or_b32 s31, s31, s{S_LAYER}"); e("s_cmp_lg_u32 s31, 0"); e("s_cselect_b32 s47, -1, s47")
        e("s_waitcnt lgkmcnt(0)")
        cnt_ = [0]
        def tile_hook(st):
            cnt_[0] += 1
            l = f"{tag}_wb{cnt_[0] % G.UN}"
            st.i(f"s_cmp_lg_u32 s42, s47\n    s_cbranch_scc1 {l}\n" + "".join(
                f"    buffer_load_dwordx4 v[244:247], v{VXO}, s[88:91], {'s44' if i < 4 else 's46'} offen offset:{(i % 4) * 1024}\n" for i in range(7)) + f"{l}:")
        G.tile_hook = tile_hook
    p = Stream()
    G.npre = 2
    G.pro_w_pre(p)
    G.reads(p)
    for i in range(0, 112, 2): p.i(f"v_pk_mov_b32 v[{ACC+i}:{ACC+i+1}], 0, 0")
    p.i(f"s_cmp_lg_u32 s{S_WV}, 7"); p.i(f"s_cbranch_scc1 {tag}_nopoll")
    p.i("s_waitcnt vmcnt(0)")
    if gen.STAMP: p.i("s_memrealtime s[62:63]")
    do_poll(p.i, VT + 4, VT + 5, tag)
    p.i(f"{tag}_nopoll:")
    G.sync2(p)
    G.pro_x(p)
    G.pro_w(p, 2, 3)
    if opt.get("prio47"):
        p.i(f"s_cmp_lt_u32 s{S_WV}, 4"); p.i(f"s_cbranch_scc1 {tag}_np"); p.i("s_setprio 1"); p.i(f"{tag}_np:")
    def fix():
        e("s_add_u32 s31, s30, 1"); e("s_cmp_lg_u32 s43, s31"); e(f"s_cbranch_scc1 {tag}_nold")
        e(f"v_lshrrev_b32 v{VT+2}, 2, v{VXO}")
        for i in range(16):
            e(f"buffer_load_dword v{SC+i}, v{VT+2}, s[20:23], 0 offen offset:{i*256}{SC1}")
        for j in range(7):
            so, off = ("s48", j * 512) if j < 6 else ("s49", 0)
            e(f"buffer_load_dwordx4 v[{CSR+4*j}:{CSR+4*j+3}], v{VT+1}, s[24:27], {so} offen offset:{off}{SC1}")
        A.label(f"{tag}_nold")
        e(f"s_cmp_lg_u32 s43, s30")
        e(f"s_cbranch_scc1 {tag}_nofix")
        stats_finish(e, SC, VT + 4, VMN, VRS)
        for j in range(7): e(f"v_pk_add_f32 v[{CSR+4*j}:{CSR+4*j+1}], v[{CSR+4*j}:{CSR+4*j+1}], v[{CSR+4*j+2}:{CSR+4*j+3}]")
        for j in range(7): e(f"v_add_f32 v{CSR+4*j}, v{CSR+4*j}, v{CSR+4*j+1}")
        for j in range(7): e(f"v_mov_b32 v{CSR+4*j+1}, v{CSR+4*j}")
        split16(e, VRS, VRS + 1)
        for j in range(7): e(f"v_permlane32_swap_b32 v{CSR+4*j}, v{CSR+4*j+1}")
        split16(e, VMN, VT + 4)
        for j in range(7): e(f"v_add_f32 v{CSR+4*j}, v{CSR+4*j}, v{CSR+4*j+1}")
        e(f"v_permlane32_swap_b32 v{VMN}, v{VT+4}"); e("s_nop 1")
        for j in range(7):
            r = ACC + j * 16
            e(f"v_mfma_f32_16x16x1_4b_f32 v[{r}:{r+15}], v{CSR+4*j}, v{VMN}, v[{r}:{r+15}]")
        A.label(f"{tag}_nofix")
    assert CSR + 28 <= 224 and nit == 4 and CSR % 2 == 0
    C1, C2, TB, OB = CSR, CSR + 4, CSR + 8, CSR + 16
    NX = Loader(A, "down", SET_C, 224)
    def between():
        for k in range(2):
            e(f"v_mul_f32 v{C1+2*k}, {NLOG2E:#x}, v{VRS+k}")
            e(f"v_mul_f32 v{C2+2*k}, v{VRS+k}, v{VRS+k}")
            e(f"v_rcp_f32 v{C2+2*k}, v{C2+2*k}")
        e(f"s_mul_i32 s36, s35, {F*64}"); e(f"s_add_u32 s36, s36, {WS_H}")
        srd_off(A, 20, "s28", "s29", "s36", F * 64)
        e("s_mul_i32 s38, s34, 7"); e("s_add_u32 s38, s38, s45"); e("s_lshl_b32 s38, s38, 10")
        e("s_mul_i32 s39, s45, 8184"); e("s_add_u32 s46, s38, 6144"); e("s_sub_u32 s39, s46, s39")
        e("s_add_u32 s46, s38, 4096")
        e(f"s_cmp_lt_u32 s{S_WV}, 4"); e(f"s_cbranch_scc1 {tag}_res")
        NX.setup()
        e(f"s_branch {tag}_nopre")
        A.label(f"{tag}_res")
        proj_coords(A, 16, 17, 18, 19)
        e(f"s_lshl_b32 s16, s16, 2"); e(f"s_add_u32 s16, s16, s{S_WV}"); e("s_lshl_b32 s16, s16, 16"); e("s_lshl_b32 s17, s17, 12"); e("s_add_u32 s16, s16, s17")
        e(f"s_add_u32 s16, s16, {WS_XB}")
        srd_off(A, 24, "s28", "s29", "s16", 4096)
        e("v_pk_mov_b32 v[224:225], 0, 0"); e("v_pk_mov_b32 v[226:227], 0, 0")
        A.label(f"{tag}_nopre")
    def capture(fn):
        n0 = len(A.lines); fn(); out = [l.strip() for l in A.lines[n0:]]; del A.lines[n0:]
        return out
    def midf():
        e(f"s_cmp_lt_u32 s{S_WV}, 4"); e(f"s_cbranch_scc1 {tag}_res2")
        NX.issue(); NX.issue()
        e(f"s_branch {tag}_nopre2")
        A.label(f"{tag}_res2")
        for i in range(4):
            e(f"buffer_load_dwordx4 v[{V_RES+4*i}:{V_RES+3+4*i}], v{VXO}, s[24:27], 0 offen offset:{i*1024}{SC1}")
        A.label(f"{tag}_nopre2")
    def silu(blocks, k, out):
        for b, r in enumerate(blocks):
            for i in (0, 2): e(f"v_pk_mul_f32 v[{TB+4*b+i}:{TB+4*b+i+1}], v[{r+i}:{r+i+1}], v[{C1+2*k}:{C1+2*k+1}] op_sel_hi:[1,0]")
        for i in range(4 * len(blocks)): e(f"v_exp_f32 v{TB+i}, v{TB+i}")
        for b, r in enumerate(blocks):
            for i in (0, 2): e(f"v_pk_mul_f32 v[{r+i}:{r+i+1}], v[{r+i}:{r+i+1}], v[{r+4+i}:{r+5+i}]")
        for i in range(0, 4 * len(blocks), 2):
            e(f"v_pk_fma_f32 v[{TB+i}:{TB+i+1}], v[{TB+i}:{TB+i+1}], v[{C2+2*k}:{C2+2*k+1}], v[{C2+2*k}:{C2+2*k+1}] op_sel_hi:[1,0,0]")
        for i in range(4 * len(blocks)): e(f"v_rcp_f32 v{TB+i}, v{TB+i}")
        for b, r in enumerate(blocks):
            for i in (0, 2): e(f"v_pk_mul_f32 v[{r+i}:{r+i+1}], v[{r+i}:{r+i+1}], v[{TB+4*b+i}:{TB+4*b+i+1}]")
        for b, r in enumerate(blocks):
            for i in (0, 2): e(f"v_cvt_pk_bf16_f32 v{out+2*b+i//2}, v{r+i}, v{r+i+1}")
    def epi(pj):
        def f():
            for sb in range(2):
                ob = OB + 4 * ((2 * pj + sb) % 3)
                silu([ACC + (2 * pj + jj) * 16 + 8 * sb for jj in range(2 if pj < 3 else 1)], sb, ob)
                if pj < 3:
                    so, off = ("s38", pj * 2048 + sb * 1024) if pj < 2 else ("s46", sb * 1024)
                    e(f"buffer_store_dwordx4 v[{ob}:{ob+3}], v{VXO}, s[20:23], {so} offen offset:{off}{SC1}")
                else:
                    e(f"buffer_store_dwordx2 v[{ob}:{ob+1}], v{VXO}, s[20:23], s39 offen offset:{sb*1024}{SC1}")
        out = capture(f)
        if opt.get("unpk", 1) and pj < 3: out = [x for l in out for x in unpack_pk(l)]
        return out
    tail = G.tail_fused([[0, 1, 2, 3], [4, 5, 6, 7], [8, 9, 10, 11], [12, 13]], SC, epi, capture(midf))
    G.emit_tail(p, tail, fix, between)
    if opt.get("prio47"): e("s_setprio 0")
    stamps_flush(A)
    e("s_lshl_b32 s31, s33, 1"); e("s_lshr_b32 s32, s34, 4"); e("s_add_u32 s31, s31, s32")
    set_signal(A, 31, cU)
    e(f"s_branch {nxt}")

def qkv_coords(A, sm, sn, t0, t1):
    e = A.e
    e(f"s_and_b32 s{t0}, s2, 7"); e(f"s_lshr_b32 s{t1}, s2, 3")
    e(f"s_and_b32 s{sm}, s{t0}, 1"); e(f"s_lshl_b32 s{sm}, s{sm}, 3"); e(f"s_lshr_b32 s{sn}, s{t1}, 2"); e(f"s_add_u32 s{sm}, s{sm}, s{sn}")
    e(f"s_lshr_b32 s{sn}, s{t0}, 1"); e(f"s_lshl_b32 s{sn}, s{sn}, 2"); e(f"s_and_b32 s{t1}, s{t1}, 3"); e(f"s_add_u32 s{sn}, s{sn}, s{t1}")

def p_qkv(A, tag, nxt, fpre, opt=None):
    e = A.e
    opt = dict(opt or {})
    XT = opt.get("XT", 2)
    ldw = 3 * D * 2
    A.label(tag)
    phase_begin(A, True)
    qkv_coords(A, 33, 34, 31, 32)
    e("s_and_b32 s31, s33, 7"); e("s_and_b32 s32, s33, 8"); e("s_lshl_b32 s32, s32, 3"); e("s_add_u32 s31, s31, s32")
    set_poll(A, 31, cD, 16, prev_layer=True)
    e(f"s_cmp_ge_u32 s{S_WV}, 4"); e(f"s_cbranch_scc1 {tag}_idle")
    VF, VXO, VA, VT = 1, 9, 10, 16
    ACC = 32; WF = ACC + 96; XF = WF + 32; RR = XF + 32; KL = RR + 8
    CSR = KL + 8; QR = CSR + 12
    assert QR + 8 <= V_RES and XT <= 2
    LCS = LDS_Z + 4096
    LST = LDS_Z + 2048
    e(f"v_and_b32 v{VXO}, 63, v0"); e(f"v_lshlrev_b32 v{VXO}, 4, v{VXO}")
    lane_consts_fullline(A, 16, ldw, VT, VT + 3, VF)
    for i in range(4): e(f"v_add_u32 v{VF+4+i}, {2*QSBY}, v{VF+i}")
    opt["now"] = 1
    def acc(nb, sb):
        blk, lo = divmod(nb, 2)
        r = ACC + blk * 16 + (sb * 8 + lo * 4 if blk < 2 else lo * 8 + sb * 4)
        return f"v[{r}:{r+3}]"
    G = MGemm(A, tag, T=16, NB=12, RG=1, K=D, STAGES=4, XT=XT, NWR=8, LA=opt.get("LA", 4), WG=opt.get("WG", 2), npieces=1, stage_bytes=QSBY, piece_lds=None,
              frag_addr=fullline_frag_addr(16, VF, 64, lambda stg: (4 * (stg // 2), (stg % 2) * QSBY)),
              acc=acc, wfrag0=WF, xfrag0=XF, vpiece0=0, vxoff=VXO,
              srd_w=8, srd_x=12, s_woff=41, s_xoff=42, s_ldsw=40, s_it=43, ldw=ldw,
              swap=[nb >= 4 for nb in range(12)], opt=opt)
    e("s_add_u32 s36, s33, s34"); e("s_and_b32 s36, s36, 3")
    G.order_init(36)
    G.pro_order(e)
    e(f"s_lshl_b32 s35, s33, 2"); e(f"s_add_u32 s35, s35, s{S_WV}")
    e("s_lshl_b32 s36, s35, 16")
    srd_off(A, 12, "s28", "s29", "s36", D * 64)
    sync1(A)
    p = Stream()
    G.reads(p)
    o = p.i
    for i in range(0, 96, 2): o(f"v_pk_mov_b32 v[{ACC+i}:{ACC+i+1}], 0, 0")
    VC = VT + 8
    o(f"s_lshl_b32 s38, s{S_WV}, 9"); o(f"s_add_u32 s38, s38, {LST}"); o(f"s_sub_u32 s39, {LCS}, s38")
    o(f"v_and_b32 v{VC+2}, 31, v{VT}"); o(f"v_lshl_add_u32 v{VC+2}, v{VC+2}, 2, s38")
    o(f"v_and_b32 v{VC+4}, 15, v{VT}"); o(f"v_lshl_add_u32 v{VC+4}, v{VC+4}, 2, s38")
    o(f"v_lshrrev_b32 v{VC+3}, 5, v{VT}"); o(f"v_lshl_add_u32 v{VC+3}, v{VC+3}, 6, v{VC+4}")
    o(f"v_lshrrev_b32 v{VC+5}, 4, v{VT}"); o(f"v_lshl_add_u32 v{VC+5}, v{VC+5}, 4, s38")
    o(f"v_add_u32 v{VC}, s39, v{VC+2}"); o(f"v_add_u32 v{VC+1}, s39, v{VC+3}")
    class O:
        e = staticmethod(o)
    proj_coords(O, 45, 46, 47, 44)
    o(f"s_lshl_b32 s45, s45, 2"); o(f"s_add_u32 s45, s45, s{S_WV}"); o("s_lshl_b32 s45, s45, 16"); o("s_lshl_b32 s46, s46, 12"); o("s_add_u32 s45, s45, s46")
    srd_off(O, 48, "s28", "s29", "s45", 4096)
    o(f"s_mov_b32 s47, {f2u(1e-6):#x}")
    o(f"s_mul_i32 s36, s35, {F*64}"); o("s_lshl_b32 s37, s34, 12"); o("s_add_u32 s36, s36, s37"); o(f"s_add_u32 s36, s36, {WS_H}")
    srd_off(O, 20, "s28", "s29", "s36", 4096)
    o(f"s_mul_i32 s39, s{S_LAYER}, {WS_KV2 - WS_KV}")
    o(f"s_lshl_b32 s38, s34, 16"); o(f"s_lshl_b32 s40, s{S_WV}, 10"); o("s_add_u32 s38, s38, s40"); o(f"s_add_u32 s38, s38, {WS_KV}")
    o("s_add_u32 s38, s38, s39")
    srd_off(O, 24, "s28", "s29", "s38", 65536)
    o("s_lshl_b32 s37, s34, 4"); o("s_add_u32 s37, s37, s33")
    o("s_lshl_b32 s38, s37, 8"); o(f"s_add_u32 s38, s38, {WS_Z}"); o("s_add_u32 s38, s38, s39")
    srd_off(O, 16, "s28", "s29", "s38", 256)
    o("s_lshl_b32 s44, s33, 12")
    o(f"s_add_u32 s40, s40, {LDS_R}")
    o(f"s_lshl_b32 s36, s{S_WV}, 13"); o(f"s_add_u32 s37, s36, {LDS_R}")
    o(f"s_lshl_b32 s38, s{S_WV}, 8"); o(f"s_add_u32 s38, s38, {LDS_Z}")
    o(f"v_add_u32 v{VA}, s40, v{VXO}")
    o(f"v_add_u32 v{VA+1}, s37, v{VXO}")
    o(f"v_and_b32 v{VA+2}, 0xf0, v{VXO}"); o(f"v_lshrrev_b32 v{VA+2}, 2, v{VA+2}"); o(f"v_add_u32 v{VA+2}, s38, v{VA+2}")
    o(f"v_lshrrev_b32 v{VA+3}, 2, v{VXO}"); o(f"v_add_u32 v{VA+4}, {LDS_Z}, v{VA+3}")
    o(f"v_lshrrev_b32 v{VA+5}, 8, v{VXO}"); o(f"v_lshlrev_b32 v{VA+5}, 4, v{VA+5}"); o(f"v_add_u32 v{VA+5}, {LDS_Z + 1024}, v{VA+5}")
    for i in range(4): o(f"v_mov_b32 v{CSR+8+i}, 0x3f803f80")
    G.sync2(p)
    G.pro_x(p)
    def hook():
        if gen.STAMP:
            e("s_memrealtime s[8:9]"); e("s_mov_b32 s4, s5"); e("s_mov_b32 s5, s6"); e("s_mov_b32 s6, s7"); e("s_waitcnt lgkmcnt(0)"); e("s_mov_b32 s7, s8")
    G.emit(p, loop_end=hook)
    e(f"ds_read_b32 v{VT}, v{VC+2}"); e(f"ds_read_b32 v{VT+1}, v{VC+3}")
    order = (4, 2, 5, 3, 0, 1)
    for b in order: e(f"ds_read_b32 v{CSR+b}, v{VC + (0 if b < 2 else 1)} offset:{b*128}")
    for sb in range(2):
        e(f"ds_read_b128 v[{RR+4*sb}:{RR+4*sb+3}], v{VC+5} offset:{128 + 64*sb}"); e(f"ds_read_b128 v[{KL+4*sb}:{KL+4*sb+3}], v{VC+5} offset:{256 + 64*sb}")
    for sb in range(2):
        e(f"ds_read_b32 v{QR+2*sb}, v{VC+4} offset:{128 + 64*sb}"); e(f"ds_read_b32 v{QR+4+2*sb}, v{VC+4} offset:{256 + 64*sb}")
    e("s_waitcnt lgkmcnt(8)")
    for b in order:
        r = ACC + 16 * b
        if b < 2: e(f"v_mfma_f32_16x16x1_4b_f32 v[{r}:{r+15}], v{CSR+b}, v{VT+1}, v[{r}:{r+15}]")
        else: e(f"v_mfma_f32_16x16x1_4b_f32 v[{r}:{r+15}], v{VT}, v{CSR+b}, v[{r}:{r+15}]")
    e("s_waitcnt lgkmcnt(0)")
    e("s_nop 3")
    TB = VT
    def phi(r, rsr, rl, out):
        for i in range(0, 16, 2): e(f"v_pk_mul_f32 v[{TB+i}:{TB+i+1}], v[{r+i}:{r+i+1}], {rl(i)[0]}{rl(i)[1]}")
        for i in range(16): e(f"v_exp_f32 v{TB+i}, v{TB+i} clamp")
        for i in range(0, 16, 2): e(f"v_pk_fma_f32 v[{r+i}:{r+i+1}], v[{r+i}:{r+i+1}], {rsr(i)[0]}, 1.0{rsr(i)[2]}")
        for i in range(16): e(f"v_max_f32 v{r+i}, v{r+i}, v{TB+i}")
        for i in range(0, 16, 2): e(f"v_pk_add_f32 v[{r+i}:{r+i+1}], v[{r+i}:{r+i+1}], s[46:47] op_sel:[0,1]")
        for i in range(0, 16, 2): e(f"v_cvt_pk_bf16_f32 v{out+i//2}, v{r+i}, v{r+i+1}")
    vec = lambda base: (lambda i: (f"v[{base+i%8}:{base+i%8+1}]", "", " op_sel_hi:[1,1,0]"))
    bc = lambda base: (lambda i: (f"v[{base+2*(i//8)}:{base+2*(i//8)+1}]", " op_sel_hi:[1,0]", " op_sel_hi:[1,0,0]"))
    PK = WF; VV = WF + 16; ONE = CSR + 8; OB = ACC + 80
    KVR = ACC + 32; ZR = ACC + 64
    def kv_write(hh):
        for qd in range(4):
            r = KVR + hh * 16 + 4 * qd
            e(f"ds_write_b128 v{VA}, v[{r}:{r+3}] offset:{(hh*4 + qd)*4096}")
        for dt in range(2):
            e(f"ds_write_b32 v{VA+2}, v{ZR + hh*16 + dt*4} offset:{hh*128 + dt*64}")
    for hh in range(2):
        r = ACC + (4 + hh) * 16
        for i in range(0, 16, 2):
            e(f"v_pk_mul_f32 v[{r+i}:{r+i+1}], v[{r+i}:{r+i+1}], v[{RR+i%8}:{RR+i%8+1}]")
        for i in range(0, 16, 2):
            e(f"v_cvt_pk_bf16_f32 v{VV+hh*8+i//2}, v{r+i}, v{r+i+1}")
        if hh == 1: kv_write(0)
        phi(ACC + (2 + hh) * 16, vec(RR), vec(KL), PK + hh * 8)
        e("s_nop 1")
        for et in range(2):
            for dt in range(2):
                r = KVR + hh * 16 + et * 8 + dt * 4; a = PK + hh * 8 + dt * 4; b = VV + hh * 8 + et * 4
                e(f"v_mfma_f32_16x16x32_bf16 v[{r}:{r+3}], v[{a}:{a+3}], v[{b}:{b+3}], 0")
        for dt in range(2):
            r = ZR + hh * 16 + dt * 4; a = PK + hh * 8 + dt * 4
            e(f"v_mfma_f32_16x16x32_bf16 v[{r}:{r+3}], v[{ONE}:{ONE+3}], v[{a}:{a+3}], 0")
    e("s_nop 3")
    kv_write(1)
    e("s_waitcnt lgkmcnt(0)")
    e("s_barrier")
    if gen.STAMP: e("s_memrealtime s[8:9]"); e("s_waitcnt lgkmcnt(0)"); e("s_mov_b32 s7, s8")
    RB = KVR
    for k in range(8):
        e(f"ds_read_b128 v[{RB+4*k}:{RB+4*k+3}], v{VA+1} offset:{k*1024}")
    for k in range(4):
        e(f"ds_read_b32 v{ZR+k}, v{VA+4} offset:{k*256}")
    for k in range(2):
        e(f"s_waitcnt lgkmcnt({8 - 4*k})")
        r = RB + 16 * k
        for i in (0, 2):
            e(f"v_pk_add_f32 v[{r+i}:{r+i+1}], v[{r+i}:{r+i+1}], v[{r+4+i}:{r+5+i}]")
            e(f"v_pk_add_f32 v[{r+8+i}:{r+9+i}], v[{r+8+i}:{r+9+i}], v[{r+12+i}:{r+13+i}]")
        for i in (0, 2):
            e(f"v_pk_add_f32 v[{r+i}:{r+i+1}], v[{r+i}:{r+i+1}], v[{r+8+i}:{r+9+i}]")
        for i in (0, 2):
            e(f"v_cvt_pk_bf16_f32 v{PK+2*k+i//2}, v{r+i}, v{r+i+1}")
    e(f"buffer_store_dwordx4 v[{PK}:{PK+3}], v{VXO}, s[24:27], s44 offen{SC1}")
    e("s_waitcnt lgkmcnt(0)")
    e(f"v_pk_add_f32 v[{ZR}:{ZR+1}], v[{ZR}:{ZR+1}], v[{ZR+2}:{ZR+3}]")
    e(f"v_add_f32 v{ZR}, v{ZR}, v{ZR+1}")
    e(f"buffer_store_dword v{ZR}, v{VA+3}, s[16:19], s36 offen{SC1}")
    stamps_flush(A)
    phase_begin(A)
    phi(ACC, bc(QR), bc(QR + 4), OB)
    sync1(A)
    phi(ACC + 16, bc(QR), bc(QR + 4), OB + 8)
    e(f"v_mov_b32 v{ONE}, 0x3f80"); e(f"v_mov_b32 v{ONE+1}, 0x3f800000")
    e(f"v_add_u32 v{VA+1}, {LDS_R}, v{VXO}")
    SUM = TB
    for i in range(0, 8, 2): e(f"v_pk_mov_b32 v[{SUM+i}:{SUM+i+1}], 0, 0")
    e("s_barrier")
    rs(A, 2)
    P = ACC
    for m in range(16):
        if m: e(f"s_movk_i32 s44, {m*4096}" if m < 8 else f"s_mov_b32 s44, {m*4096}")
        e(f"buffer_load_dwordx4 v[{P+4*m}:{P+4*m+3}], v{VXO}, s[24:27], {'s44' if m else '0'} offen{SC1}")
    for i in range(4):
        e(f"buffer_load_dwordx4 v[{V_RES+4*i}:{V_RES+3+4*i}], v{VXO}, s[48:51], 0 offen offset:{i*1024}{SC1}")
    for m in range(16):
        e(f"s_waitcnt vmcnt({19 - m})")
        for j in range(4):
            e(f"v_dot2_f32_bf16 v{SUM+2*j}, v{P+4*m+j}, v{ONE}, v{SUM+2*j}")
            e(f"v_dot2_f32_bf16 v{SUM+2*j+1}, v{P+4*m+j}, v{ONE+1}, v{SUM+2*j+1}")
    e("s_nop 2")
    for j in range(4): e(f"v_cvt_pk_bf16_f32 v{PK+j}, v{SUM+2*j}, v{SUM+2*j+1}")
    e(f"ds_write_b128 v{VA}, v[{PK}:{PK+3}]")
    e("s_waitcnt lgkmcnt(0)")
    rs(A, 3)
    e("s_barrier")
    FR = PK; ZF = VV
    for hh in range(2):
        e(f"ds_read_b128 v[{ZF+hh*4}:{ZF+hh*4+3}], v{VA+5} offset:{hh*64}")
        for et in range(2):
            e(f"ds_read_b128 v[{FR+(hh*2+et)*4}:{FR+(hh*2+et)*4+3}], v{VA+1} offset:{(hh*2+et)*1024}")
    NUM = ACC; DEN = ACC + 32
    for hh in range(2):
        e(f"s_waitcnt lgkmcnt({3 - 3*hh})")
        for sb in range(2):
            i = hh * 2 + sb; b = OB + 4 * i
            e(f"v_mfma_f32_16x16x32_bf16 v[{DEN+4*i}:{DEN+4*i+3}], v[{ZF+hh*4}:{ZF+hh*4+3}], v[{b}:{b+3}], 0")
        for sb in range(2):
            i = hh * 2 + sb; b = OB + 4 * i
            for et in range(2):
                r = NUM + i * 8 + et * 4; a = FR + (hh * 2 + et) * 4
                e(f"v_mfma_f32_16x16x32_bf16 v[{r}:{r+3}], v[{a}:{a+3}], v[{b}:{b+3}], 0")
    rs(A, 4)
    e("s_nop 1")
    for i in range(4): e(f"v_add_f32 v{DEN+4*i}, s47, v{DEN+4*i}")
    for i in range(4): e(f"v_rcp_f32 v{DEN+4*i}, v{DEN+4*i}")
    e("s_nop 0")
    for i in range(4):
        r = NUM + i * 8; ob = TB + 4 * i
        for j in range(0, 8, 2):
            e(f"v_pk_mul_f32 v[{r+j}:{r+j+1}], v[{r+j}:{r+j+1}], v[{DEN+4*i}:{DEN+4*i+1}] op_sel_hi:[1,0]")
        for j in range(0, 8, 2):
            e(f"v_cvt_pk_bf16_f32 v{ob+j//2}, v{r+j}, v{r+j+1}")
        e(f"buffer_store_dwordx4 v[{ob}:{ob+3}], v{VXO}, s[20:23], 0 offen offset:{i*1024}{SC1}")
    stamps_flush(A)
    A.label(f"{tag}_out")
    set_signal(A, 33, cA)
    e(f"s_branch {nxt}")
    NST = opt.get("stag", 10)
    LD = Loader(A, "qkv", SET_A, 130, first=3)
    NX = Loader(A, "wo", SET_C, 140)
    def unpack_sum(L, i0, i1):
        for i in range(i0, i1):
            t = (32 if i == 0 else 40 + 8 * (i % 2))
            for j in range(4):
                e(f"v_lshlrev_b32 v{t+2*j}, 16, v{L+4*i+j}"); e(f"v_and_b32 v{t+2*j+1}, 0xffff0000, v{L+4*i+j}")
            if i:
                for j in range(4):
                    e(f"v_pk_add_f32 v[{32+2*j}:{33+2*j}], v[{32+2*j}:{33+2*j}], v[{t+2*j}:{t+2*j+1}]")
    def pre():
        LD.setup(coords=False)
        NX.setup()
        fpre[0]()
        e("s_mov_b32 s15, 0"); e("s_mov_b32 s13, 0")
        srd(A, 44, "s28", "s29", 0)
        e("v_and_b32 v3, 63, v0"); e("v_lshlrev_b32 v4, 2, v3")
        e(f"s_lshl_b32 s20, s{S_WV}, 9"); e(f"s_add_u32 s20, s20, {LST - 2048}")
        e("v_and_b32 v3, 31, v3"); e("v_lshlrev_b32 v3, 2, v3"); e("v_add_u32 v3, s20, v3")
        e(f"s_cmp_lg_u32 s{S_LAYER}, 0"); e(f"s_cbranch_scc1 {tag}_e1")
        e(f"s_load_dwordx4 s[4:7], s[0:1], {KA['wg']}")
        e(f"s_load_dwordx2 s[12:13], s[0:1], {KA['wo']}")
        e(f"s_lshl_b32 s20, s2, 2"); e(f"s_add_u32 s20, s20, s{S_WV}"); e("s_sub_u32 s20, s20, 4")
        e("s_lshr_b32 s48, s20, 3"); e("s_and_b32 s49, s20, 7")
        e("s_sub_u32 s30, s48, 56"); e("s_min_u32 s30, s30, s48"); e("s_lshl_b32 s30, s30, 7")
        e(f"s_mul_i32 s21, s49, {128*F*2}"); e("s_add_u32 s30, s30, s21")
        e("s_sub_u32 s21, s20, 896"); e("s_lshl_b32 s21, s21, 14")
        e("s_cmp_lt_u32 s48, 56")
        e("s_waitcnt lgkmcnt(0)")
        e("s_cselect_b32 s44, s4, s6"); e("s_cselect_b32 s45, s5, s7"); e("s_mov_b32 s47, 0x00020000")
        e(f"s_mov_b32 s46, {D*F*2}"); e(f"s_movk_i32 s22, {F*2}")
        e("s_cmp_ge_u32 s2, 224")
        e("s_cselect_b32 s44, s12, s44"); e("s_cselect_b32 s45, s13, s45"); e(f"s_cselect_b32 s46, {D*D*2}, s46")
        e("s_cselect_b32 s30, s21, s30"); e("s_cselect_b32 s22, 128, s22")
        e("s_lshl_b32 s14, s22, 3")
        e("v_and_b32 v20, 63, v0")
        e("v_lshrrev_b32 v21, 3, v20"); e("v_mul_lo_u32 v21, s22, v21"); e("v_and_b32 v22, 7, v20"); e("v_lshl_add_u32 v21, v22, 4, v21")
        e("s_lshr_b32 s20, s2, 3"); e("s_and_b32 s21, s2, 7"); e("s_lshl_b32 s21, s21, 1"); e("s_add_u32 s20, s20, s21")
        e(f"s_mul_i32 s21, s20, {65536 // NST + 1}"); e("s_lshr_b32 s21, s21, 16"); e(f"s_mul_i32 s21, s21, {NST}"); e("s_sub_u32 s15, s20, s21")
        e("s_add_u32 s15, s15, 4")
        e("s_lshl_b32 s48, s48, 11"); e("s_lshl_b32 s49, s49, 2"); e("s_add_u32 s48, s48, s49")
        e("v_lshlrev_b32 v22, 3, v22"); e("v_lshrrev_b32 v6, 3, v20"); e("v_add_lshl_u32 v22, v22, v6, 5")
        e("s_max_u32 s13, s15, 5")
        A.label(f"{tag}_e1")
    def early():
        e(f"s_cmp_lg_u32 s{S_LAYER}, 0"); e(f"s_cbranch_scc1 {tag}_e2")
        unpack_sum(V_CS, 0, 8)
        col_reduce(A, 32, 20, 5)
        A.label(f"{tag}_e2")
    idle_head(A, tag, first=True, pre=pre)
    early()
    L = 64
    def cond():
        uid[0] += 1; l = f"cu{uid[0]}"
        e(f"s_cmp_lg_u32 s{SET_A['p']}, s13"); e(f"s_cbranch_scc1 {l}g")
        e(f"s_cmp_lg_u32 s{S_WV}, 5"); e(f"s_cbranch_scc1 {l}g")
        e("s_cmp_ge_u32 s2, 196"); e(f"s_cbranch_scc1 {l}g")
        do_signal(e, 1, 2, wait=False, fl=24)
        A.label(l + "g")
        e(f"s_cmp_lg_u32 s{SET_A['p']}, s15"); e(f"s_cbranch_scc1 {l}")
        for i in range(16):
            e(f"buffer_load_dwordx4 v[{L+4*i}:{L+4*i+3}], v21, s[44:47], s30 offen")
            if i < 15: e("s_add_u32 s30, s30, s14")
        A.label(l)
    assert NST <= 10
    e(f"s_cmp_lg_u32 s{S_LAYER}, 0"); e(f"s_cbranch_scc1 {tag}_h0")
    e("v_lshrrev_b32 v5, 3, v22")
    srd_off(A, 16, "s28", "s29", WS_CSQ, 3072 * 64)
    e(f"s_lshl_b32 s20, s2, 2"); e(f"s_add_u32 s20, s20, s{S_WV}"); e("s_sub_u32 s20, s20, 4"); e("s_lshl_b32 s20, s20, 8")
    e(f"buffer_store_dword v32, v5, s[16:19], s20 offen{SC1}")
    A.label(f"{tag}_h0")
    e(f"s_lshl_b32 s20, s33, 2"); e(f"s_add_u32 s20, s20, s{S_WV}"); e("s_sub_u32 s20, s20, 4"); e("s_lshl_b32 s20, s20, 12"); e(f"s_add_u32 s20, s20, {WS_ST}")
    srd_off(A, 20, "s28", "s29", "s20", 4096)
    LD.step(); cond()
    e(f"s_cmp_lg_u32 s{S_LAYER}, 0"); e(f"s_cbranch_scc1 {tag}_h7")
    e("s_waitcnt vmcnt(0)")
    A.label(f"{tag}_h7")
    LD.step(); cond()
    for i in range(16):
        e(f"buffer_load_dword v{32+i}, v4, s[20:23], 0 offen offset:{i*256}{SC1}")
    LD.loop(f"{tag}_i3", 9, body=cond)
    if opt.get("hp"): e("s_setprio 2")
    stats_finish(e, 32, 5, 6, 7)
    e(f"v_mul_f32 v5, {LOG2E:#x}, v7")
    e("ds_write_b32 v3, v6"); e("ds_write_b32 v3, v7 offset:128"); e("ds_write_b32 v3, v5 offset:256")
    e("s_waitcnt lgkmcnt(0)")
    LD.step()
    e(f"s_cmp_lg_u32 s{S_LAYER}, 0"); e(f"s_cbranch_scc1 {tag}_h1")
    unpack_sum(L, 0, 8)
    A.label(f"{tag}_h1")
    LD.step()
    e(f"s_cmp_lg_u32 s{S_LAYER}, 0"); e(f"s_cbranch_scc1 {tag}_h2")
    unpack_sum(L, 8, 16)
    col_reduce(A, 32, 20, 21)
    srd_off(A, 44, "s28", "s29", WS_CS2, 2 * F * 32)
    e(f"buffer_store_dword v32, v22, s[44:47], s48 offen{SC1}")
    A.label(f"{tag}_h2")
    LD.step()
    e(f"s_cmp_lg_u32 s{S_WV}, 4"); e(f"s_cbranch_scc1 {tag}_h3")
    e(f"s_cmp_lg_u32 s{S_LAYER}, 0"); e(f"s_cbranch_scc1 {tag}_h3")
    e(f"s_movk_i32 s{S_POFF}, {DBG_G}"); e(f"s_movk_i32 s{S_PTGT}, 196")
    do_poll(e, 30, 31, tag + "g", fl=24, diag=False)
    e("s_lshl_b32 s20, s34, 12"); e(f"s_add_u32 s20, s20, {WS_CSQ}")
    srd_off(A, 44, "s28", "s29", "s20", 131072 + 4096)
    e("s_mov_b32 s21, 65536"); e("s_mov_b32 s22, 131072")
    e("v_lshlrev_b32 v29, 2, v4")
    for b in range(3):
        for k in range(4):
            e(f"buffer_load_dwordx4 v[{32+16*b+4*k}:{35+16*b+4*k}], v29, s[44:47], {('0', 's21', 's22')[b]} offen offset:{k*1024}{SC1}")
    A.label(f"{tag}_h3")
    for _ in range(3): NX.issue()
    e("s_waitcnt vmcnt(6)")
    e("s_barrier")
    fpre[1](0)
    e(f"s_cmp_lg_u32 s{S_WV}, 4"); e(f"s_cbranch_scc1 {tag}_h5")
    e(f"s_cmp_lg_u32 s{S_LAYER}, 0"); e(f"s_cbranch_scc1 {tag}_h6")
    for st in (8, 4):
        for b in range(3):
            for i in range(0, st, 2): e(f"v_pk_add_f32 v[{32+16*b+i}:{33+16*b+i}], v[{32+16*b+i}:{33+16*b+i}], v[{32+16*b+i+st}:{33+16*b+i+st}]")
    e("s_nop 0")
    for b in range(3):
        for i in range(2): e(f"v_permlane32_swap_b32 v{32+16*b+i}, v{34+16*b+i}")
    e("s_nop 0")
    for b in range(3): e(f"v_pk_add_f32 v[{32+16*b}:{33+16*b}], v[{32+16*b}:{33+16*b}], v[{34+16*b}:{35+16*b}]")
    e("s_nop 1")
    for b in range(3): e(f"v_permlane16_swap_b32 v{32+16*b}, v{33+16*b}")
    e("s_nop 1")
    for b in range(3): e(f"v_add_f32 v{V_KEEP+b}, v{32+16*b}, v{33+16*b}")
    A.label(f"{tag}_h6")
    e("v_and_b32 v29, 60, v4"); e("v_lshlrev_b32 v29, 2, v29"); e("v_lshrrev_b32 v30, 6, v4"); e("v_lshl_add_u32 v29, v30, 2, v29")
    e(f"v_add_u32 v29, {LCS}, v29")
    for b in range(3): e(f"ds_write_b32 v29, v{V_KEEP+b} offset:{b*256}")
    e("s_waitcnt lgkmcnt(0)")
    A.label(f"{tag}_h5")
    e("s_barrier")
    fpre[1](1)
    srd_off(A, 44, "s28", "s29", WS_XC, 4 * MB)
    e(f"s_lshl_b32 s48, s2, 2"); e(f"s_add_u32 s48, s48, s{S_WV}"); e("s_sub_u32 s48, s48, 4"); e("s_lshl_b32 s48, s48, 12")
    e("v_and_b32 v20, 63, v0"); e("v_lshlrev_b32 v20, 4, v20")
    for i in range(4): e(f"v_mov_b32 v{24+i}, -1")
    if opt.get("hp"): e("s_setprio 0")
    e("s_barrier")
    for i in range(4): e(f"buffer_store_dwordx4 v[24:27], v20, s[44:47], s48 offen offset:{i*1024}{SC1}")
    if gen.STAMP: e(f"s_add_u32 s{S_PH}, s{S_PH}, 1")
    set_signal(A, 34, cQ)
    set_poll(A, 34, cQ, 16)
    def early2():
        if SWARM:
            wd_warm_base(A)
            e(f"s_cmp_lg_u32 s{S_LAYER}, 0"); e(f"s_cbranch_scc1 {tag}_nw")
            warm(A, [64 * i for i in range(14)], 896)
            A.label(f"{tag}_nw")
        e(f"s_mul_i32 s39, s{S_LAYER}, {WS_KV2 - WS_KV}"); e("s_lshl_b32 s38, s34, 12"); e("s_add_u32 s38, s38, s39"); e(f"s_add_u32 s38, s38, {WS_Z}")
        srd_off(A, 16, "s28", "s29", "s38", 4096)
        e("v_and_b32 v4, 63, v0"); e("v_lshlrev_b32 v5, 2, v4")
        e("v_and_b32 v6, 3, v4"); e("v_lshlrev_b32 v6, 1, v6")
        e("v_bfe_u32 v7, v4, 2, 2"); e("v_lshl_add_u32 v6, v7, 4, v6")
        e("v_bfe_u32 v7, v4, 4, 1"); e("v_lshl_add_u32 v6, v7, 3, v6")
        e("v_lshrrev_b32 v7, 5, v4"); e("v_lshl_add_u32 v6, v7, 6, v6")
        e(f"v_add_u32 v6, {LDS_Z + 1024}, v6")
    idle_head(A, tag + "b", early=early2)
    e(f"s_cmp_lg_u32 s{S_WV}, 5"); e(f"s_cbranch_scc1 {tag}_nz")
    for m in range(16):
        e(f"buffer_load_dword v{8+m}, v5, s[16:19], 0 offen offset:{m*256}{SC1}")
    e("s_waitcnt vmcnt(0)")
    for st in (8, 4, 2, 1):
        for i in range(st): e(f"v_add_f32 v{8+i}, v{8+i}, v{8+i+st}")
    e("v_cvt_pk_bf16_f32 v8, v8, v8")
    e("ds_write_b16 v6, v8")
    e("s_waitcnt lgkmcnt(0)")
    A.label(f"{tag}_nz")
    e("s_barrier")
    idle_tail(A, f"{tag}_out")

def p_start(A):
    e = A.e
    NX = Loader(A, "qkv", SET_B, 140)
    e("v_and_b32 v5, 63, v0"); e("v_lshlrev_b32 v1, 4, v5")
    e(f"s_cmp_ge_u32 s{S_WV}, 4"); e("s_cbranch_scc1 ps_cs")
    e(f"s_lshl_b32 s33, s2, 2"); e(f"s_add_u32 s33, s33, s{S_WV}")
    e("s_lshr_b32 s35, s33, 4"); e("s_and_b32 s34, s33, 15")
    rowmajor_lane_off(A, 2, 3)
    e("s_lshl_b32 s36, s35, 16"); e("s_lshl_b32 s37, s34, 7"); e("s_add_u32 s36, s36, s37"); e(f"s_add_u32 s37, s36, {16*2048}")
    e("s_lshl_b32 s38, s33, 12")
    e("s_waitcnt lgkmcnt(0)")
    srd(A, 8, "s4", "s5", S * D * 2)
    R = 16
    for i in (0, 2, 1, 3):
        so, off = rowmajor_frag(i, "s36", "s37")
        e(f"buffer_load_dwordx4 v[{R+4*i}:{R+4*i+3}], v2, s[8:11], {so} offen offset:{off} nt")
    srd_off(A, FL, "s28", "s29", WS_FL, 16384)
    srd_off(A, 12, "s28", "s29", "s38", 4096)
    srd(A, 24, "s30", "s31", 256)
    e("s_lshl_b32 s36, s33, 8")
    srd_off(A, 16, "s28", "s29", WS_ST, 64 * 4096)
    e("v_lshrrev_b32 v4, 2, v1")
    e("s_and_b32 s38, s2, 0xf0")
    e("s_waitcnt vmcnt(0)")
    for i in range(4):
        e(f"v_permlane16_swap_b32 v{R+4*i}, v{R+4*i+2}")
        e(f"v_permlane16_swap_b32 v{R+4*i+1}, v{R+4*i+3}")
    e("s_nop 1")
    for i in range(4):
        e(f"buffer_store_dwordx4 v[{R+4*i}:{R+4*i+3}], v1, s[12:15], 0 offen offset:{i*1024}{SC1}")
    stats_emit(A, 16, [R + i for i in range(16)], 8)
    e(f"buffer_store_dword v8, v4, s[16:19], s36 offen{SC1}")
    e("s_barrier")
    e("s_waitcnt vmcnt(0)")
    e("s_barrier")
    e(f"s_cmp_lg_u32 s{S_WV}, 0"); e("s_cbranch_scc1 ps_x1")
    do_signal(e, 1, 2, wait=False, fl=24, off="s38")
    A.label("ps_x1")
    e("s_branch pq")
    A.label("ps_cs")
    e("s_lshr_b32 s45, s2, 2"); e("s_and_b32 s46, s2, 3")
    e(f"v_lshrrev_b32 v2, 3, v5"); e(f"v_mul_u32_u24 v2, {3*D*2}, v2"); e("v_and_b32 v3, 7, v5"); e("v_lshl_add_u32 v2, v3, 4, v2")
    e(f"s_lshl_b32 s38, s46, 2"); e(f"s_add_u32 s38, s38, s{S_WV}"); e("s_sub_u32 s38, s38, 4"); e(f"s_mul_i32 s38, s38, {64*3*D*2}")
    e("s_lshl_b32 s39, s45, 7"); e("s_add_u32 s38, s38, s39")
    e("s_cmp_lt_u32 s2, 192"); e(f"s_cselect_b32 s10, {D*3*D*2}, 0"); e("s_mov_b32 s11, 0x00020000")
    e("s_waitcnt lgkmcnt(0)")
    e("s_mov_b32 s8, s6"); e("s_mov_b32 s9, s7")
    srd_off(A, FL, "s28", "s29", WS_FL, 16384)
    for i in range(4): e(f"v_mov_b32 v{40+i}, 0")
    e(f"s_lshl_b32 s47, s2, 2"); e(f"s_add_u32 s47, s47, s{S_WV}"); e(f"s_add_u32 s47, s47, {1024 - 192*4 - 4}"); e("s_and_b32 s47, s47, 1023")
    e("s_lshl_b32 s47, s47, 10")
    e(f"buffer_store_dwordx4 v[40:43], v1, s[{FL}:{FL+3}], s47 offen{SC1}")
    NX.setup()
    NX.issue()
    e("s_barrier")
    for i in range(8):
        e(f"buffer_load_dwordx4 v[{V_CS+4*i}:{V_CS+4*i+3}], v2, s[8:11], s38 offen")
        if i < 7: e(f"s_add_u32 s38, s38, {8*3*D*2}")
    e("s_barrier")
    NX.issue(); NX.issue()
    if TOUCH:
        srd(A, 12, "s28", "s29", 35 * MB)
        e(f"v_lshlrev_b32 v6, {21 if TOUCH == 1 else 19}, v5")
        e(f"s_lshl_b32 s39, s2, 7")
        e("buffer_load_dword v7, v6, s[12:15], s39 offen nt")

def k_mega(A, o):
    e = A.e
    A.begin_kernel(NAME)
    e("s_cmp_ge_u32 s2, 256")
    e(f"s_cbranch_scc1 {NAME}_end")
    if gen.STAMP: e("s_memrealtime s[76:77]")
    e(f"s_load_dwordx4 s[4:7], s[0:1], {KA['x']}")
    e(f"s_load_dwordx2 s[28:29], s[0:1], {KA['ws']}")
    e(f"s_load_dwordx2 s[30:31], s[0:1], {KA['dbg']}")
    e("v_lshrrev_b32 v1, 6, v0")
    e(f"s_mov_b32 s{S_LAYER}, 0"); e(f"s_movk_i32 s{S_SIG}, {DBG_G}"); e(f"s_mov_b32 s{S_PH}, 0")
    e(f"v_readfirstlane_b32 s{S_WV}, v1")
    p_start(A)
    p_qkv(A, "pq", "po", ffn_prefetch(A, 150, o.get("ffn")), o.get("qkv"))
    p_proj(A, "po", D, False, "pu", o.get("wo"))
    p_ffn(A, "pu", "pd", o.get("ffn"))
    p_proj(A, "pd", F, True, "pq", o.get("down"))
    A.label(f"{NAME}_end")
    e("s_endpgm")
    A.add_desc(NAME, 256, 102, 256)
    return dict(name=NAME, grid=256, block=512, lds=163840)

def build_mega(path, stamp_on=False, o=None, single=False):
    gen.STAMP = stamp_on
    uid[0] = 0
    A = Asm()
    mega = k_mega(A, o or {})
    A.launch(mega["name"], mega["grid"], mega["block"], mega["lds"])
    txt = A.text(HEADER)
    if single:
        txt = txt.replace(f"; @launch kernel={NAME} ", "; @launch ").replace(NAME, "interleave_layers__linear_attn_block__swiglu_ffn__prompt_kernel")
    open(path, "w").write(txt)

if __name__ == "__main__":
    if len(sys.argv) > 1:
        import json
        for name, o in json.loads(sys.argv[1]).items():
            SWARM = o.get("swarm", False); TOUCH = o.get("touch", 0)
            build_mega(f"m_{name}_stamp.s", True, o)
        sys.exit(0)
    build_mega("mega_stamp.s", True)
    build_mega("mega.s", False, single=True)
    DBGOUT = True
    build_mega("mega_dbg.s", True, single=True)
```

```python
import sys, math
from asmlib import Asm

S, D, F = 2048, 1024, 3584
MB = 1 << 20
WS_X, WS_PQ, WS_O, WS_H = 0, 4 * MB, 8 * MB, 12 * MB
WS_KV, WS_Z, WS_ST, WS_CS = 27 * MB, 29 * MB, 31 * MB, 31 * MB + 512 * 1024
CS_N = 10240
WS_DBG = 40 * MB
KA = dict(x=0, wqkv=8, wo=16, bx=24, wg=32, wu=40, wd=48, out=56, dbg=64, ws=72)
LOG2E = 0x3fb8aa3b
NLOG2E = 0xbfb8aa3b

def f2u(x):
    import struct
    return struct.unpack("<I", struct.pack("<f", x))[0]

class Stream:
    def __init__(self):
        self.ops = []
        self.pre = set()
    def i(self, s): self.ops.append(("i", s))
    def vm(self, s, tag): self.ops.append(("vm", s, tag))
    def ds(self, s, tag): self.ops.append(("ds", s, tag))
    def wait(self, vm=None, ds=None): self.ops.append(("w", vm, ds))

def resolve(pro, bodies, tail=None):
    vq, dq = [], []
    def cnt(q, tags):
        if not tags: return None
        idx = -1
        for t in tags:
            if t in pro.pre: continue
            assert t in q, ("wait on never-issued tag", t)
            idx = max(idx, len(q) - 1 - q[::-1].index(t))
        if idx < 0: return None
        return len(q) - 1 - idx
    def run(st):
        res = []
        for op in st.ops:
            if op[0] == "vm": vq.append(op[2]); res.append(None)
            elif op[0] == "ds": dq.append(op[2]); res.append(None)
            elif op[0] == "w": res.append((cnt(vq, op[1]), cnt(dq, op[2])))
            else: res.append(None)
        return res
    def lines(st, res):
        out = []
        for op, r in zip(st.ops, res):
            if op[0] == "w":
                v, d = r
                parts = []
                if v is not None and v < 63: parts.append(f"vmcnt({v})")
                if d is not None and d < 15: parts.append(f"lgkmcnt({d})")
                if v is not None and v >= 63: parts.append("vmcnt(63)")
                if d is not None and d >= 15: parts.append("lgkmcnt(15)")
                if parts: out.append("s_waitcnt " + " ".join(parts))
            else:
                out.append(op[1])
        return out
    rp = run(pro)
    rs = [run(b) for b in bodies]
    for b in bodies[1:]:
        assert [o[1] for o in b.ops if o[0] != "w"] == [o[1] for o in bodies[0].ops if o[0] != "w"]
    merged = []
    for k in range(len(bodies[0].ops)):
        if bodies[0].ops[k][0] == "w":
            vs = [r[k][0] for r in rs if r[k][0] is not None]
            dsx = [r[k][1] for r in rs if r[k][1] is not None]
            merged.append((min(vs) if vs else None, min(dsx) if dsx else None))
        else:
            merged.append(None)
    if tail is not None:
        return lines(pro, rp), lines(bodies[0], merged), lines(tail, run(tail))
    return lines(pro, rp), lines(bodies[0], merged)

STAMP = False
def stamp(A, k):
    if STAMP:
        A.e(f"s_memtime s[{60+2*k}:{61+2*k}]")
def stamp_real(A, k):
    if STAMP:
        A.e(f"s_memrealtime s[{60+2*k}:{61+2*k}]")
def stamp_out(A, name, n):
    if not STAMP: return
    e = A.e
    e("s_waitcnt vmcnt(0) lgkmcnt(0)")
    stamp(A, n - 2)
    stamp_real(A, n - 1)
    e(f"s_load_dwordx2 s[56:57], s[0:1], {KA['ws']}")
    e(f"s_load_dword s79, s[0:1], {KA['dbg']}")
    e("s_getreg_b32 s59, hwreg(HW_REG_XCC_ID)")
    e("s_waitcnt lgkmcnt(0)")
    e("v_cmp_gt_u32 vcc, 1, v0")
    e("s_and_saveexec_b64 s[50:51], vcc")
    e(f"s_cbranch_execz {name}_end")
    srd_off(A, 52, "s56", "s57", WS_DBG, 32 * 65536)
    e("s_lshl_b32 s58, s2, 6")
    e("s_lshr_b32 s79, s79, 9"); e("s_and_b32 s79, s79, 31"); e("s_lshl_b32 s79, s79, 16"); e("s_add_u32 s58, s58, s79")
    e("v_mov_b32 v1, 0")
    for k in range(n):
        e(f"v_mov_b32 v2, s{60+2*k}")
        e(f"buffer_store_dword v2, v1, s[52:55], s58 offen offset:{4*k}")
    e(f"v_mov_b32 v2, s59")
    e(f"buffer_store_dword v2, v1, s[52:55], s58 offen offset:60")

def srd(A, r, lo, hi, size):
    A.e(f"s_mov_b32 s{r}, {lo}"); A.e(f"s_mov_b32 s{r+1}, {hi}")
    A.e(f"s_mov_b32 s{r+2}, {size}"); A.e(f"s_mov_b32 s{r+3}, 0x00020000")

def srd_off(A, r, lo, hi, off, size):
    A.e(f"s_add_u32 s{r}, {lo}, {off}"); A.e(f"s_addc_u32 s{r+1}, {hi}, 0")
    A.e(f"s_mov_b32 s{r+2}, {size}"); A.e(f"s_mov_b32 s{r+3}, 0x00020000")

class Gemm:
    def __init__(self, A, name, T, NB, RG, K, STAGES, XT, NWR, npieces, stage_bytes, piece_lds, frag_addr,
                 acc, wfrag0, xfrag0, vpiece0, vxoff, srd_w, srd_x, s_woff, s_xoff, s_ldsw, s_it, ldw, swap=None,
                 opt=None, BK=64, LA=None, WG=1):
        self.__dict__.update(locals())
        self.opt = opt or {}
        self.LA = LA or NWR
        self.kstep = 512 // T
        self.KS = BK // self.kstep
        self.SB = RG * (32 // T)
        self.NT = K // BK
        self.skew = self.opt.get("skew", 1)
        self.UN = STAGES * XT // math.gcd(STAGES, XT)
        while (self.skew and self.UN % (4 * self.skew)) or (self.UN * self.KS * NB) % NWR: self.UN *= 2
        assert self.NT % self.UN == 0, (self.NT, self.UN)
        assert self.LA <= NWR and self.LA <= self.KS * NB
        self.swap = swap or [False] * NB
        self.op = "v_mfma_f32_32x32x16_bf16" if T == 32 else "v_mfma_f32_16x16x32_bf16"
        self.XB = BK * 64
        self.LOOK = XT if self.opt.get("now") else max(XT, STAGES - 1)
        self.RING = min(8, self.UN)
        if self.skew: assert self.UN % self.RING == 0 and self.LOOK <= self.RING
        self.s_tq, self.s_sd, self.s_p, self.s_t1 = 84, 92, 96, 97
        assert self.skew in (0, 1, 2)
    def order_init(self, s_r):
        A = self.A
        if not self.skew:
            A.e(f"s_mov_b32 s{self.s_woff}, {-self.BK * self.ldw & 0xffffffff:#x}")
            A.e(f"s_mov_b32 s{self.s_xoff}, {-self.XB & 0xffffffff:#x}")
            return
        A.e(f"s_mov_b32 s{self.s_p}, 0")
        for i in range(4):
            A.e(f"s_cmp_eq_u32 s{s_r}, {i}")
            A.e(f"s_cselect_b32 s{self.s_sd+i}, {3 * self.skew}, {-self.skew}")
    def order_next(self, p):
        if not self.skew: return []
        t = self.s_tq + p % self.RING; t1 = self.s_t1; NT = self.NT
        sg = self.opt.get("seg")
        if sg:
            return [f"s_cmp_lt_u32 s{self.s_p}, {sg}\n    s_cselect_b32 s90, 0, {sg}\n    s_cselect_b32 s91, {sg}, {NT - sg}",
                    f"s_add_u32 s{t}, s{self.s_p}, s{self.s_sd + p % 4}",
                    f"s_sub_u32 s{t}, s{t}, s90",
                    f"s_add_u32 s{t1}, s{t}, s91",
                    f"s_min_u32 s{t}, s{t}, s{t1}",
                    f"s_sub_u32 s{t1}, s{t}, s91",
                    f"s_min_u32 s{t}, s{t}, s{t1}",
                    f"s_add_u32 s{t}, s{t}, s90",
                    f"s_cmp_ge_u32 s{self.s_p}, {NT}\n    s_cselect_b32 s{t}, {NT * self.RG}, s{t}",
                    f"s_add_u32 s{self.s_p}, s{self.s_p}, 1"]
        l = [f"s_add_u32 s{t}, s{self.s_p}, s{self.s_sd + (p // self.skew) % 4}",
             f"s_add_u32 s{t1}, s{t}, {NT}",
             f"s_min_u32 s{t}, s{t}, s{t1}",
             f"s_sub_u32 s{t1}, s{t}, {NT}",
             f"s_min_u32 s{t}, s{t}, s{t1}"]
        l += [f"s_cmp_ge_u32 s{self.s_p}, {NT}\n    s_cselect_b32 s{t}, {NT * self.RG}, s{t}",
              f"s_add_u32 s{self.s_p}, s{self.s_p}, 1"]
        return l
    def set_woff(self, st, p):
        if self.skew: st.i(f"s_mul_i32 s{self.s_woff}, s{self.s_tq + p % self.RING}, {self.BK * self.ldw}")
        else: st.i(f"s_add_u32 s{self.s_woff}, s{self.s_woff}, {self.BK * self.ldw}")
    def set_xoff(self, st, p):
        if self.skew: st.i(f"s_mul_i32 s{self.s_xoff}, s{self.s_tq + p % self.RING}, {self.XB}")
        else:
            assert self.RG == 1
            st.i(f"s_add_u32 s{self.s_xoff}, s{self.s_xoff}, {self.XB}")
    def stage_off(self, stg):
        return ((stg + self.opt.get("rot", 0)) % self.STAGES) * self.stage_bytes
    def wreg(self, f):
        return self.wfrag0 + (f % self.NWR) * 4
    def xreg(self, q, sb):
        return self.xfrag0 + ((q % (self.XT * self.KS)) * self.SB + sb) * 4
    def dma_m0(self, st, tile, j):
        st.i(f"s_add_u32 m0, s{self.s_ldsw}, {self.stage_off(tile % self.STAGES) + self.piece_lds(j)}")
    def dma_ld(self, st, tile, j):
        st.vm(f"buffer_load_dwordx4 v{self.vpiece0 + j}, s[{self.srd_w}:{self.srd_w+3}], s{self.s_woff} offen lds", ("W", tile, j))
    def dma(self, st, tile, j):
        self.dma_m0(st, tile, j); st.i("s_nop 0"); self.dma_ld(st, tile, j)
    def xload(self, st, q, sb):
        r = self.xreg(q, sb)
        ks = q % self.KS
        if self.T == 32: rg, off = sb, (ks >> 1) * 2048 + (ks & 1) * 512
        else: rg, off = sb // 2, (ks * 2 + sb % 2) * 1024
        off = f" offset:{off}" if off else ""
        st.vm(f"buffer_load_dwordx4 v[{r}:{r+3}], v{self.vxoff + rg}, s[{self.srd_x}:{self.srd_x+3}], s{self.s_xoff} offen{off}", ("X", q, sb))
    def wread(self, st, f, rd):
        q, nb = divmod(f, self.NB)
        tile, ks = divmod(q, self.KS)
        if f in getattr(self, "fmap", {}):
            if self.fmap[f] is None: return
            tile, ks, nb = self.fmap[f]
        if self.opt.get("kin"):
            tile, r_ = divmod(f, self.KS * self.NB)
            nb, ks = divmod(r_, self.KS)
        row = (32 * (ks >> 1) + 8 * (ks & 1) + 16 * rd) if self.T == 32 else (32 * ks + 16 * rd)
        base, off = self.frag_addr(tile % self.STAGES, row, nb)
        assert 0 <= off < 65536, off
        r = self.wreg(f) + 2 * rd
        st.ds(f"ds_read_b64_tr_b16 v[{r}:{r+1}], v{base} offset:{off}", ("R", f, rd))
    def slots(self):
        tot = self.KS * self.NB * self.SB
        bpos = (self.KS * self.NB - self.LA) * self.SB
        pos = [(bpos + 2 + (j * tot) // self.npieces + self.opt.get("dma_shift", 0)) % tot for j in range(self.npieces)]
        assert len(set(pos)) == len(pos)
        return bpos, pos
    def pro_tile(self, st, t, w=True, x=True):
        bpos, pos = self.slots()
        if w and t < self.STAGES - 1:
            self.set_woff(st, t)
            for j in range(self.npieces):
                if t < self.STAGES - 2 or pos[j] > bpos:
                    self.dma(st, t, j)
        if x and t < self.XT:
            self.set_xoff(st, t)
            for ks in range(self.KS):
                for sb in range(self.SB):
                    self.xload(st, t * self.KS + ks, sb)
    def prologue_first(self, st):
        n0 = self.opt.get("first", 1)
        for t in range(n0):
            for l in self.order_next(t): st.i(l)
            if self.opt.get("xfirst"):
                self.pro_tile(st, t, w=False); self.pro_tile(st, t, x=False)
            else: self.pro_tile(st, t)
    def prologue_reads(self, st):
        st.wait(vm=[("W", 0, j) for j in range(self.npieces)])
        st.i("s_barrier")
        if STAMP: st.i("s_memtime s[66:67]\n    s_waitcnt lgkmcnt(0)")
        for f in range(self.LA):
            for rd in range(2):
                self.wread(st, f, rd)
    def prologue_rest(self, st):
        for t in range(self.opt.get("first", 1), self.LOOK):
            for l in self.order_next(t): st.i(l)
            self.pro_tile(st, t)
    def body_cluster(self, it):
        st = Stream()
        KS, NB, SB, LA, CL = self.KS, self.NB, self.SB, self.LA, self.opt["CL"]
        prio = self.opt.get("prio", 1)
        now = self.opt.get("now")
        assert LA == self.NWR and NB % CL == 0 and LA % CL == 0
        bpos, pos = self.slots()
        for tt in range(self.UN):
            t = it * self.UN + tt
            pend = self.order_next(t + self.LOOK)
            for ks in range(KS):
                q = t * KS + ks
                for nb0 in range(0, NB, CL):
                    f0 = q * NB + nb0
                    m0 = (ks * NB + nb0) * SB; m1 = m0 + CL * SB
                    st.wait(vm=[("X", q, sb) for sb in range(SB)] if nb0 == 0 else None,
                            ds=[("R", f0 + i, rd) for i in range(CL) for rd in range(2)])
                    first = True
                    for nb in range(nb0, nb0 + CL):
                        for sb in range(SB):
                            w = self.wreg(q * NB + nb); x = self.xreg(q, sb); a = self.acc(nb, sb)
                            wv, xv = f"v[{w}:{w+3}]", f"v[{x}:{x+3}]"
                            if self.swap[nb]: st.i(f"{self.op} {a}, {xv}, {wv}, {a}")
                            else: st.i(f"{self.op} {a}, {wv}, {xv}, {a}")
                            if first and prio: st.i("s_setprio 1")
                            first = False
                    if prio: st.i("s_setprio 0")
                    if m0 == 0:
                        for l in pend: st.i(l)
                        self.set_xoff(st, t + self.XT)
                    dj = [j for j in range(self.npieces) if m0 <= pos[j] < m1 and not now]
                    early = [j for j in dj if pos[j] <= bpos]; late = [j for j in dj if pos[j] > bpos]
                    for j in early: self.dma(st, t + self.STAGES - 2, j)
                    if m0 <= bpos < m1:
                        assert m0 == bpos
                        if not now: st.wait(vm=[("W", t + 1, j) for j in range(self.npieces)])
                        st.i("s_barrier")
                        if not now: self.set_woff(st, t + self.STAGES - 1)
                    for j in late: self.dma_m0(st, t + self.STAGES - 1, j)
                    assert len(late) <= 1
                    for i in range(CL):
                        self.wread(st, f0 + i + LA, 0); self.wread(st, f0 + i + LA, 1)
                    for j in late: self.dma_ld(st, t + self.STAGES - 1, j)
                    if nb0 + CL == NB:
                        for sb in range(SB): self.xload(st, q + self.XT * KS, sb)
        return st
    def body_kin(self, it):
        st = Stream()
        KS, NB, SB, LA = self.KS, self.NB, self.SB, self.LA
        now = self.opt.get("now")
        assert LA % KS == 0 and LA + KS <= self.NWR and self.XT >= 2 and SB * KS == 2 * KS
        bpos, pos = self.slots()
        for tt in range(self.UN):
            t = it * self.UN + tt
            pend = self.order_next(t + self.LOOK)
            xset = False
            for nb in range(NB):
                f0 = (t * NB + nb) * KS
                rds = [(f0 + LA + i, rd) for i in range(KS) for rd in range(2)]
                for sb in range(SB):
                    for ks in range(KS):
                        q = t * KS + ks
                        m = (nb * SB + sb) * KS + ks
                        vmw = [("X", q, sb)] if nb == 0 else None
                        dsw = [("R", f0 + i, rd) for i in range(KS) for rd in range(2)] if (sb == 0 and ks == 0) else None
                        if vmw or dsw: st.wait(vm=vmw, ds=dsw)
                        w = self.wreg(f0 + ks); x = self.xreg(q, sb); a = self.acc(nb, sb)
                        wv, xv = f"v[{w}:{w+3}]", f"v[{x}:{x+3}]"
                        dj = [j for j in range(self.npieces) if pos[j] == m and not now]
                        tgt = t + self.STAGES - 1 if m > bpos else t + self.STAGES - 2
                        for j in dj: self.dma_m0(st, tgt, j)
                        if self.swap[nb]: st.i(f"{self.op} {a}, {xv}, {wv}, {a}")
                        else: st.i(f"{self.op} {a}, {wv}, {xv}, {a}")
                        for j in dj: self.dma_ld(st, tgt, j)
                        for l in pend[:1]: st.i(l)
                        pend = pend[1:]
                        if not pend and not xset:
                            self.set_xoff(st, t + self.XT); xset = True
                        if m == bpos:
                            assert not pend or now
                            if not now: st.wait(vm=[("W", t + 1, j) for j in range(self.npieces)])
                            st.i("s_barrier")
                            if not now: self.set_woff(st, t + self.STAGES - 1)
                        self.wread(st, *rds.pop(0))
                        if nb == NB - 1:
                            assert xset
                            self.xload(st, q + self.XT * KS, sb)
        return st
    def body(self, it):
        if self.opt.get("CL"): return self.body_cluster(it)
        if self.opt.get("kin"): return self.body_kin(it)
        st = Stream()
        KS, NB, SB, LA = self.KS, self.NB, self.SB, self.LA
        bpos, pos = self.slots()
        o = self.opt
        nomfma, noread, noload, nox, now, nobar = (o.get(k) for k in ("nomfma", "noread", "noload", "nox", "now", "nobar"))
        spread = LA < self.NWR and SB >= 2
        for tt in range(self.UN):
            t = it * self.UN + tt
            pend = self.order_next(t + self.LOOK)
            lim = max(1, min((NB - 1) * SB, bpos if bpos else 1))
            per = max(1, -(-len(pend) // lim))
            xset = False
            for ks in range(KS):
                q = t * KS + ks
                for nb in range(NB):
                    f = q * NB + nb
                    for sb in range(SB):
                        m = (ks * NB + nb) * SB + sb
                        vmw = [("X", q, sb)] if (nb == 0 and not noload and not nox) else None
                        dsw = None
                        if sb == 0 and not noread and f % self.WG == 0:
                            dsw = [("R", f + i, rd) for i in range(self.WG) for rd in range(2)]
                        if vmw or dsw: st.wait(vm=vmw, ds=dsw)
                        w = self.wreg(f); x = self.xreg(q, sb)
                        a = self.acc(nb, sb)
                        wv, xv = f"v[{w}:{w+3}]", f"v[{x}:{x+3}]"
                        dj = [j for j in range(self.npieces) if pos[j] == m and not now and not noload]
                        tgt = t + self.STAGES - 1 if m > bpos else t + self.STAGES - 2
                        for j in dj: self.dma_m0(st, tgt, j)
                        if not nomfma:
                            if self.swap[nb]: st.i(f"{self.op} {a}, {xv}, {wv}, {a}")
                            else: st.i(f"{self.op} {a}, {wv}, {xv}, {a}")
                        elif dj: st.i("s_nop 0")
                        for j in dj: self.dma_ld(st, tgt, j)
                        for l in pend[:per]: st.i(l)
                        pend = pend[per:]
                        if not pend and not xset:
                            self.set_xoff(st, t + self.XT); xset = True
                        if m == 2 and getattr(self, "tile_hook", None): self.tile_hook(st)
                        if m == bpos:
                            assert not pend
                            if not noload and not now: st.wait(vm=[("W", t + 1, j) for j in range(self.npieces)])
                            if not nobar: st.i("s_barrier")
                            if not now: self.set_woff(st, t + self.STAGES - 1)
                        if not noread:
                            if spread:
                                if sb == 0: self.wread(st, f + LA, 0)
                                if sb == SB // 2: self.wread(st, f + LA, 1)
                            elif sb == SB - 1:
                                self.wread(st, f + LA, 0); self.wread(st, f + LA, 1)
                        if not noload and nb == NB - 1 and not nox:
                            assert xset
                            self.xload(st, q + self.XT * KS, sb)
        return st
    def emit(self, pro, loop_end=None):
        A = self.A
        nit = self.NT // self.UN
        pl, bl = resolve(pro, [self.body(it) for it in range(nit)])
        for l in pl: A.e(l)
        if STAMP:
            A.e("s_waitcnt lgkmcnt(0)"); stamp(A, 4); A.e("s_waitcnt lgkmcnt(0)")
        if nit > 1:
            A.e(f"s_mov_b32 s{self.s_it}, {nit}")
            A.e(".p2align 6")
            A.label(f"{self.name}_loop")
        for l in bl: A.e(l)
        if nit > 1:
            A.e(f"s_sub_u32 s{self.s_it}, s{self.s_it}, 1")
            if loop_end: loop_end()
            A.e(f"s_cmp_lg_u32 s{self.s_it}, 0")
            A.e(f"s_cbranch_scc1 {self.name}_loop")

def lane_consts_fullline(A, T, ldw, vtmp, vpiece_base, vfrag0):
    e = A.e
    t0, t1, t2 = vtmp, vtmp + 1, vtmp + 2
    e(f"v_and_b32 v{t0}, 63, v0")
    e(f"v_lshrrev_b32 v{t1}, 3, v{t0}")
    e(f"v_mul_u32_u24 v{vpiece_base}, {ldw}, v{t1}")
    e(f"v_and_b32 v{t2}, 7, v{t0}")
    if T == 32:
        e(f"v_and_b32 v{t1}, 2, v{t1}")
        e(f"v_lshlrev_b32 v{t1}, 1, v{t1}")
    else:
        e(f"v_and_b32 v{t1}, 6, v{t1}")
    e(f"v_xor_b32 v{t2}, v{t2}, v{t1}")
    e(f"v_lshl_add_u32 v{vpiece_base}, v{t2}, 4, v{vpiece_base}")
    if vfrag0 is None: return
    e(f"v_and_b32 v{t1}, 3, v{t0}")
    e(f"v_lshlrev_b32 v{vfrag0}, 3, v{t1}")
    if T == 32:
        e(f"v_lshrrev_b32 v{t1}, 5, v{t0}")
        e(f"v_lshl_add_u32 v{vfrag0}, v{t1}, 9, v{vfrag0}")
        e(f"v_bfe_u32 v{t1}, v{t0}, 2, 2")
        e(f"v_lshl_add_u32 v{vfrag0}, v{t1}, 7, v{vfrag0}")
        e(f"v_bfe_u32 v{t1}, v{t0}, 3, 1")
        e(f"v_lshl_add_u32 v{vfrag0}, v{t1}, 6, v{vfrag0}")
        e(f"v_bfe_u32 v{t1}, v{t0}, 4, 1")
        e(f"v_lshl_add_u32 v{vfrag0}, v{t1}, 5, v{vfrag0}")
        e(f"v_xor_b32 v{vfrag0+1}, 64, v{vfrag0}")
    else:
        e(f"v_lshrrev_b32 v{t1}, 2, v{t0}")
        e(f"v_lshl_add_u32 v{vfrag0}, v{t1}, 7, v{vfrag0}")
        e(f"v_bfe_u32 v{t1}, v{t0}, 3, 2")
        e(f"v_lshl_add_u32 v{vfrag0}, v{t1}, 5, v{vfrag0}")
        for i in range(1, 4):
            e(f"v_xor_b32 v{vfrag0+i}, {32*i}, v{vfrag0}")

def fullline_frag_addr(T, VF, BK, nbase):
    per = 64 // T
    def fa(stg, row, nb):
        cg, lo = divmod(nb, per)
        ro, so = nbase(stg)
        return (VF + ro + lo, so + cg * BK * 128 + row * 128)
    return fa

def blk_acc(T, pre, base, RG):
    def acc(nb, sb):
        if T == 32:
            r = base + (nb * RG + sb) * 16
            return f"{pre}[{r}:{r+15}]"
        r = base + ((nb // 2) * RG + sb // 2) * 16 + (sb % 2) * 8 + (nb % 2) * 4
        return f"{pre}[{r}:{r+3}]"
    return acc

def stats_finish(o, vs, vt, vmean_neg, vrstd):
    e = o
    for st in (8, 4, 2, 1):
        for i in range(st):
            e(f"v_add_f32 v{vs+i}, v{vs+i}, v{vs+i+st}")
    e(f"v_mov_b32 v{vt}, v{vs}")
    e("s_nop 1")
    e(f"v_permlane32_swap_b32 v{vs}, v{vt}")
    e("s_nop 1")
    e(f"v_mul_f32 v{vmean_neg}, {f2u(-1.0/D):#x}, v{vs}")
    e(f"v_mul_f32 v{vt}, {f2u(1.0/D):#x}, v{vt}")
    e(f"v_fma_f32 v{vt}, -v{vmean_neg}, v{vmean_neg}, v{vt}")
    e(f"v_max_f32 v{vt}, 0, v{vt}")
    e(f"v_add_f32 v{vt}, {f2u(1e-5):#x}, v{vt}")
    e(f"v_rsq_f32 v{vrstd}, v{vt}")
    e("s_nop 0")

def split16(o, v, v2):
    o(f"v_mov_b32 v{v2}, v{v}")
    o("s_nop 1")
    o(f"v_permlane16_swap_b32 v{v}, v{v2}")
    o("s_nop 1")

def stats_emit(A, T, packed, vt):
    e = A.e
    one = vt + 4
    e(f"v_mov_b32 v{one}, 0x3f803f80")
    for i in range(4): e(f"v_mov_b32 v{vt+i}, 0")
    for i, r in enumerate(packed):
        s = vt + 2 * ((i // 4) % 2)
        e(f"v_dot2_f32_bf16 v{s}, v{r}, v{one}, v{s}")
        e(f"v_dot2_f32_bf16 v{s+1}, v{r}, v{r}, v{s+1}")
    e("s_nop 3")
    e(f"v_permlane32_swap_b32 v{vt}, v{vt+1}")
    e(f"v_permlane32_swap_b32 v{vt+2}, v{vt+3}")
    e("s_nop 1")
    e(f"v_add_f32 v{vt}, v{vt}, v{vt+1}")
    e(f"v_add_f32 v{vt+2}, v{vt+2}, v{vt+3}")
    if T == 16:
        e("s_nop 1")
        e(f"v_permlane16_swap_b32 v{vt}, v{vt+2}")
        e("s_nop 1")
    e(f"v_add_f32 v{vt}, v{vt}, v{vt+2}")

def kernel_head(A, name, nwg):
    A.begin_kernel(name)
    A.e(f"s_cmp_ge_u32 s2, {nwg}")
    A.e(f"s_cbranch_scc1 {name}_end")
    stamp_real(A, 0); stamp(A, 1)

def kernel_tail(A, name, vgpr, accum=None):
    stamp(A, 6)
    stamp_out(A, name, 9)
    A.label(f"{name}_end")
    A.e("s_endpgm")
    A.add_desc(name, vgpr, 100, accum if accum else (vgpr + 3) // 4 * 4)

def rowmajor_lane_off(A, v, t):
    e = A.e
    e(f"v_and_b32 v{v}, 15, v0"); e(f"v_lshlrev_b32 v{v}, 11, v{v}")
    e(f"v_bfe_u32 v{t}, v0, 5, 1"); e(f"v_lshl_add_u32 v{v}, v{t}, 4, v{v}")
    e(f"v_bfe_u32 v{t}, v0, 4, 1"); e(f"v_lshl_add_u32 v{v}, v{t}, 5, v{v}")

def rowmajor_frag(i, s_lo, s_hi):
    return (s_hi if i % 2 else s_lo), (i // 2) * 64

def k_proj(A, name, K, ws_a, ka_w, final, opt=None):
    e = A.e
    opt = opt or {}
    T = 16
    BK, STAGES, XT, NWR, LA = 64, opt.get("STAGES", 4), opt.get("XT", 2), opt.get("NWR", 8), opt.get("LA", 4)
    ldw = D * 2
    kernel_head(A, name, opt.get("nwg", 256))
    e(f"s_load_dwordx2 s[4:5], s[0:1], {ka_w}")
    e(f"s_load_dwordx2 s[6:7], s[0:1], {KA['ws']}")
    if final: e(f"s_load_dwordx2 s[28:29], s[0:1], {KA['out']}")
    VP, VF, VXO, VT = 1, 3, 7, 8
    ACC, RES, WF = 16, 48, 64
    XF = WF + 4 * NWR
    NV = XF + XT * 16
    e(f"v_lshrrev_b32 v{VT+3}, 6, v0")
    lane_consts_fullline(A, T, ldw, VT, VP, VF)
    e(f"v_readfirstlane_b32 s30, v{VT+3}")
    e(f"v_lshlrev_b32 v{VXO}, 4, v{VT}")
    e("s_and_b32 s31, s2, 7"); e("s_lshr_b32 s32, s2, 3")
    e("s_lshr_b32 s33, s31, 1"); e("s_lshl_b32 s33, s33, 2"); e("s_lshr_b32 s34, s32, 3"); e("s_add_u32 s33, s33, s34")
    e("s_and_b32 s34, s31, 1"); e("s_lshl_b32 s34, s34, 3"); e("s_and_b32 s35, s32, 7"); e("s_add_u32 s34, s34, s35")
    e("s_lshl_b32 s35, s33, 2"); e("s_add_u32 s35, s35, s30")
    e(f"s_mul_i32 s36, s30, {8*ldw}"); e("s_lshl_b32 s37, s34, 7"); e("s_add_u32 s36, s36, s37")
    e(f"v_add_u32 v{VP}, s36, v{VP}")
    e(f"v_add_u32 v{VP+1}, {4*8*ldw}, v{VP}")
    e("s_lshl_b32 s40, s30, 10")
    e(f"s_mul_i32 s36, s35, {K*64}"); e(f"s_add_u32 s36, s36, {ws_a}")
    e(f"s_lshl_b32 s37, s35, 16"); e("s_lshl_b32 s38, s34, 12"); e("s_add_u32 s37, s37, s38")
    G = Gemm(A, name, T=T, NB=4, RG=1, K=K, STAGES=STAGES, XT=XT, NWR=NWR, LA=LA, WG=opt.get("WG", 2), npieces=2, stage_bytes=BK * 128,
             piece_lds=lambda j: j * 4096,
             frag_addr=fullline_frag_addr(T, VF, BK, lambda stg: (0, stg * BK * 128)),
             acc=blk_acc(T, "v", ACC, 1), wfrag0=WF, xfrag0=XF, vpiece0=VP, vxoff=VXO,
             srd_w=8, srd_x=12, s_woff=41, s_xoff=42, s_ldsw=40, s_it=43, ldw=ldw, opt=opt)
    e("s_add_u32 s44, s33, s34"); e("s_and_b32 s44, s44, 3")
    G.order_init(44)
    e(f"s_mov_b32 s10, {K * ldw}"); e("s_mov_b32 s11, 0x00020000")
    e(f"s_mov_b32 s14, {K * 64}"); e("s_mov_b32 s15, 0x00020000")
    e("s_mov_b32 s22, 4096"); e("s_mov_b32 s23, 0x00020000")
    e("s_waitcnt lgkmcnt(0)")
    e("s_mov_b32 s8, s4"); e("s_mov_b32 s9, s5")
    e("s_add_u32 s12, s6, s36"); e("s_addc_u32 s13, s7, 0")
    e("s_add_u32 s20, s6, s37"); e("s_addc_u32 s21, s7, 0")
    stamp(A, 2)
    p = Stream()
    for i in range(4):
        p.vm(f"buffer_load_dwordx4 v[{RES+4*i}:{RES+4*i+3}], v{VXO}, s[20:23], 0 offen offset:{i*1024}", ("RES", i))
    G.prologue_first(p)
    p.wait(vm=[("RES", 3)])
    for i in range(16):
        p.i(f"v_lshlrev_b32 v{ACC+2*i}, 16, v{RES+i}")
        p.i(f"v_and_b32 v{ACC+2*i+1}, 0xffff0000, v{RES+i}")
    G.prologue_reads(p)
    G.prologue_rest(p)
    G.emit(p)
    stamp(A, 5)
    st = opt.get("st", "")
    if not final:
        e("s_lshl_b32 s36, s35, 12"); e("s_lshr_b32 s37, s34, 2"); e("s_lshl_b32 s37, s37, 10"); e("s_add_u32 s36, s36, s37")
        e("s_and_b32 s37, s34, 3"); e("s_lshl_b32 s37, s37, 2"); e("s_add_u32 s36, s36, s37")
        srd_off(A, 24, "s6", "s7", WS_ST, 64 * 4096)
        for i in range(16):
            e(f"v_cvt_pk_bf16_f32 v{RES+i}, v{ACC+2*i}, v{ACC+2*i+1}")
            if i % 4 == 3:
                e(f"buffer_store_dwordx4 v[{RES+i-3}:{RES+i}], v{VXO}, s[20:23], 0 offen offset:{(i//4)*1024}{st}")
        stats_emit(A, T, [RES + i for i in range(16)], VT)
        e(f"buffer_store_dword v{VT}, v{VXO}, s[24:27], s36 offen")
    else:
        srd(A, 24, "s28", "s29", S * D * 2)
        rowmajor_lane_off(A, VT, VT + 1)
        e("s_lshl_b32 s36, s35, 16"); e("s_lshl_b32 s37, s34, 7"); e("s_add_u32 s36, s36, s37")
        e(f"s_add_u32 s37, s36, {16*2048}")
        for i in range(16):
            e(f"v_cvt_pk_bf16_f32 v{RES+i}, v{ACC+2*i}, v{ACC+2*i+1}")
        e("s_nop 0")
        for i in range(4):
            e(f"v_permlane16_swap_b32 v{RES+4*i}, v{RES+4*i+2}")
            e(f"v_permlane16_swap_b32 v{RES+4*i+1}, v{RES+4*i+3}")
        e("s_nop 1")
        for i in range(4):
            so, off = rowmajor_frag(i, "s36", "s37")
            e(f"buffer_store_dwordx4 v[{RES+4*i}:{RES+4*i+3}], v{VT}, s[24:27], {so} offen offset:{off}{st}")
    kernel_tail(A, name, NV)
    return dict(name=name, grid=opt.get("nwg", 256), block=256, lds=STAGES * BK * 128)

def k_ffn(A, name, opt=None):
    e = A.e
    opt = dict(opt or {}); opt.setdefault("skew", 0)
    T, NW = 16, 8
    BK, STAGES, XT, NWR, LA = 64, opt.get("STAGES", 4), opt.get("XT", 1), opt.get("NWR", 8), opt.get("LA", 7)
    ldw = F * 2
    NP = 4
    GU = 16384
    SBY = 2 * GU
    kernel_head(A, name, opt.get("nwg", 256))
    e(f"s_load_dwordx4 s[4:7], s[0:1], {KA['wg']}")
    e(f"s_load_dwordx2 s[28:29], s[0:1], {KA['ws']}")
    VP, VF, VXO, VMN, VRS, VT = 1, 5, 7, 8, 10, 12
    WF = 20; XF = WF + 4 * NWR
    ACC = XF + XT * 16
    SC = ACC + 112; CSR = SC + 16
    NV = CSR + 14
    e(f"v_lshrrev_b32 v{VT+3}, 6, v0")
    e(f"v_and_b32 v{VT}, 63, v0")
    e(f"v_readfirstlane_b32 s30, v{VT+3}")
    e("s_and_b32 s31, s2, 7"); e("s_lshr_b32 s32, s2, 3")
    e("s_and_b32 s33, s31, 1"); e("s_lshl_b32 s33, s33, 2"); e("s_lshr_b32 s34, s32, 3"); e("s_add_u32 s33, s33, s34")
    e("s_lshr_b32 s34, s31, 1"); e("s_lshl_b32 s34, s34, 3"); e("s_and_b32 s35, s32, 7"); e("s_add_u32 s34, s34, s35")
    e("s_lshl_b32 s35, s33, 3"); e("s_add_u32 s35, s35, s30")
    e("s_lshr_b32 s37, s30, 2")
    e("s_lshl_b32 s40, s30, 12")
    e("s_and_b32 s38, s30, 3"); e("s_lshl_b32 s38, s38, 8")
    e(f"s_mul_i32 s39, s34, 224")
    e("s_and_b32 s45, s34, 1"); e("s_lshl_b32 s46, s45, 1")
    e("s_movk_i32 s47, 4682")
    for j in range(NP):
        u, r, c = VT + 1, VT + 2, VT + 3
        e(f"v_add_u32 v{u}, s38, v{VT}")
        if j: e(f"v_add_u32 v{u}, {64*j}, v{u}")
        e(f"v_mul_u32_u24 v{r}, s47, v{u}"); e(f"v_lshrrev_b32 v{r}, 16, v{r}")
        e(f"v_mul_u32_u24 v{c}, 14, v{r}"); e(f"v_sub_u32 v{c}, v{u}, v{c}")
        e(f"v_add_u32 v{c}, s46, v{c}")
        e(f"v_subrev_u32 v{u}, 14, v{c}"); e(f"v_min_u32 v{c}, v{c}, v{u}")
        e(f"v_mul_u32_u24 v{VP+j}, {ldw}, v{r}")
        e(f"v_lshl_add_u32 v{VP+j}, v{c}, 4, v{VP+j}")
        e(f"v_add_u32 v{VP+j}, s39, v{VP+j}")
        if j >= 2:
            e(f"v_lshrrev_b32 v{r}, 6, v{r}"); e(f"v_lshl_add_u32 v{VP+j}, v{r}, 28, v{VP+j}")
    e(f"v_lshlrev_b32 v{VXO}, 4, v{VT}")
    G = Gemm(A, name, T=T, NB=14, RG=1, K=D, STAGES=STAGES, XT=XT, NWR=NWR, LA=LA, WG=opt.get("WG", 2), npieces=NP, stage_bytes=SBY,
             piece_lds=lambda j: j * 1024,
             frag_addr=lambda stg, row, nb: (VF + stg // 2, (stg % 2) * SBY + (nb % 2) * GU + row * 224 + 32 * (nb // 2)),
             acc=blk_acc(T, "v", ACC, 1), wfrag0=WF, xfrag0=XF, vpiece0=VP, vxoff=VXO,
             srd_w=8, srd_x=12, s_woff=41, s_xoff=42, s_ldsw=40, s_it=43, ldw=ldw, opt=opt)
    e("s_add_u32 s44, s33, s34"); e("s_and_b32 s44, s44, 3")
    G.order_init(44)
    e("s_lshl_b32 s36, s35, 16")
    e(f"s_mov_b32 s10, {D*ldw}"); e("s_mov_b32 s11, 0x00020000")
    e(f"s_mov_b32 s14, {D*64}"); e("s_mov_b32 s15, 0x00020000")
    e("s_cmp_eq_u32 s37, 0")
    e("s_waitcnt lgkmcnt(0)")
    e("s_cselect_b32 s8, s4, s6"); e("s_cselect_b32 s9, s5, s7")
    e("s_add_u32 s12, s28, s36"); e("s_addc_u32 s13, s29, 0")
    stamp(A, 2)
    p = Stream()
    G.prologue_first(p)
    o = p.i
    o(f"v_and_b32 v{VT+1}, 3, v{VT}"); o(f"v_lshlrev_b32 v{VF}, 3, v{VT+1}")
    o(f"v_lshrrev_b32 v{VT+1}, 2, v{VT}"); o(f"v_mul_u32_u24 v{VT+1}, 224, v{VT+1}"); o(f"v_add_u32 v{VF}, v{VF}, v{VT+1}")
    o(f"v_add_u32 v{VF+1}, {2*SBY}, v{VF}")
    o(f"v_and_b32 v{VT+1}, 15, v{VT}"); o(f"v_bfe_u32 v{VT+2}, v{VT}, 4, 1"); o(f"v_mul_u32_u24 v{VT+2}, {F}, v{VT+2}")
    o(f"v_add_lshl_u32 v{VT+1}, v{VT+1}, v{VT+2}, 4")
    o(f"v_lshrrev_b32 v{VT+2}, 5, v{VT}"); o(f"v_lshl_add_u32 v{VT+1}, v{VT+2}, 3, v{VT+1}")
    o("s_lshl_b32 s38, s35, 12"); o(f"s_add_u32 s38, s38, {WS_ST}")
    o(f"s_mul_i32 s39, s34, {112*16}"); o(f"s_add_u32 s39, s39, {WS_CS + 3072*16}")
    o("s_add_u32 s20, s28, s38"); o("s_addc_u32 s21, s29, 0"); o("s_movk_i32 s22, 4096"); o("s_mov_b32 s23, 0x00020000")
    o("s_add_u32 s24, s28, s39"); o("s_addc_u32 s25, s29, 0"); o(f"s_mov_b32 s26, {(F+112)*16}"); o("s_mov_b32 s27, 0x00020000")
    o("s_lshl_b32 s48, s45, 8")
    o("s_mul_i32 s49, s45, 1536"); o("s_sub_u32 s49, 1536, s49")
    nit = G.NT // G.UN
    o(f"s_sub_u32 s51, {nit - 1}, s37")
    for i in range(112): o(f"v_mov_b32 v{ACC+i}, 0")
    G.prologue_reads(p)
    G.prologue_rest(p)
    for i in range(4):
        p.vm(f"buffer_load_dwordx4 v[{SC+4*i}:{SC+4*i+3}], v{VXO}, s[20:23], 0 offen offset:{i*1024}", ("ST", i))
    for j in range(7):
        so, off = ("s48", j * 256) if j < 6 else ("s49", 0)
        p.vm(f"buffer_load_dwordx2 v[{CSR+2*j}:{CSR+2*j+1}], v{VT+1}, s[24:27], {so} offen offset:{off}", ("CS", j))
    def fix():
        e(f"s_cmp_lg_u32 s43, s51")
        e(f"s_cbranch_scc1 {name}_nofix")
        stats_finish(e, SC, VT + 4, VMN, VRS)
        for j in range(7): e(f"v_add_f32 v{CSR+2*j}, v{CSR+2*j}, v{CSR+2*j+1}")
        for j in range(7): e(f"v_mov_b32 v{CSR+2*j+1}, v{CSR+2*j}")
        split16(e, VRS, VRS + 1)
        for j in range(7): e(f"v_permlane32_swap_b32 v{CSR+2*j}, v{CSR+2*j+1}")
        split16(e, VMN, VT + 4)
        for j in range(7): e(f"v_add_f32 v{CSR+2*j}, v{CSR+2*j}, v{CSR+2*j+1}")
        e(f"v_permlane32_swap_b32 v{VMN}, v{VT+4}"); e("s_nop 1")
        for j in range(7):
            r = ACC + j * 16
            e(f"v_mfma_f32_16x16x1_4b_f32 v[{r}:{r+15}], v{CSR+2*j}, v{VMN}, v[{r}:{r+15}]")
        A.label(f"{name}_nofix")
    G.emit(p, loop_end=fix)
    stamp(A, 5)
    C1, C2 = SC, SC + 4
    for k in range(2):
        e(f"v_mul_f32 v{C1+2*k}, {NLOG2E:#x}, v{VRS+k}")
        e(f"v_mul_f32 v{C2+2*k}, v{VRS+k}, v{VRS+k}")
    e(f"s_mul_i32 s36, s35, {F*64}"); e(f"s_add_u32 s36, s36, {WS_H}")
    srd_off(A, 20, "s28", "s29", "s36", F * 64)
    e("s_mul_i32 s38, s34, 7"); e("s_add_u32 s38, s38, s45"); e("s_lshl_b32 s38, s38, 10")
    e("s_mul_i32 s39, s45, 8184"); e("s_add_u32 s46, s38, 6144"); e("s_sub_u32 s39, s46, s39")
    e("s_add_u32 s46, s38, 4096")
    TB = SC + 8
    OB = CSR + (CSR % 2)
    st = opt.get("st", "")
    def silu(blocks, k, out):
        for b, r in enumerate(blocks):
            for i in (0, 2): e(f"v_pk_mul_f32 v[{TB+4*b+i}:{TB+4*b+i+1}], v[{r+i}:{r+i+1}], v[{C1+2*k}:{C1+2*k+1}] op_sel_hi:[1,0]")
        for b, r in enumerate(blocks):
            for i in (0, 2): e(f"v_pk_mul_f32 v[{r+i}:{r+i+1}], v[{r+i}:{r+i+1}], v[{r+4+i}:{r+5+i}]")
        for i in range(4 * len(blocks)): e(f"v_exp_f32 v{TB+i}, v{TB+i}")
        for b, r in enumerate(blocks):
            for i in (0, 2): e(f"v_pk_mul_f32 v[{r+i}:{r+i+1}], v[{r+i}:{r+i+1}], v[{C2+2*k}:{C2+2*k+1}] op_sel_hi:[1,0]")
        for i in range(0, 4 * len(blocks), 2): e(f"v_pk_add_f32 v[{TB+i}:{TB+i+1}], v[{TB+i}:{TB+i+1}], 1.0 op_sel_hi:[1,0]")
        for i in range(4 * len(blocks)): e(f"v_rcp_f32 v{TB+i}, v{TB+i}")
        e("s_nop 0")
        for b, r in enumerate(blocks):
            for i in (0, 2): e(f"v_pk_mul_f32 v[{r+i}:{r+i+1}], v[{r+i}:{r+i+1}], v[{TB+4*b+i}:{TB+4*b+i+1}]")
        for b, r in enumerate(blocks):
            for i in (0, 2): e(f"v_cvt_pk_bf16_f32 v{out+2*b+i//2}, v{r+i}, v{r+i+1}")
    cnt = 0
    for pj in range(4):
        for sb in range(2):
            ob = OB + 4 * (cnt % 3); cnt += 1
            silu([ACC + (2 * pj + jj) * 16 + 8 * sb for jj in range(2 if pj < 3 else 1)], sb, ob)
            if pj < 3:
                so, off = ("s38", pj * 2048 + sb * 1024) if pj < 2 else ("s46", sb * 1024)
                e(f"buffer_store_dwordx4 v[{ob}:{ob+3}], v{VXO}, s[20:23], {so} offen offset:{off}{st}")
            else:
                e(f"buffer_store_dwordx2 v[{ob}:{ob+1}], v{VXO}, s[20:23], s39 offen offset:{sb*1024}{st}")
    kernel_tail(A, name, NV)
    return dict(name=name, grid=opt.get("nwg", 256), block=NW * 64, lds=STAGES * SBY)

def k_qkv(A, name, opt=None):
    e = A.e
    opt = dict(opt or {})
    T = 32
    BK, STAGES, XT, NWR, LA = 64, opt.get("STAGES", 4), opt.get("XT", 2), opt.get("NWR", 6), opt.get("LA", 6)
    ldw = 3 * D * 2
    SBY = 3 * BK * 128
    NP = 6
    kernel_head(A, name, 256)
    e(f"s_load_dwordx2 s[4:5], s[0:1], {KA['wqkv']}")
    e(f"s_load_dwordx2 s[28:29], s[0:1], {KA['ws']}")
    VP, VF, VXO, VL16, VMN, VRS, VT = 1, 7, 11, 12, 13, 14, 16
    ACC = 32; WF = ACC + 96; XF = WF + 4 * NWR; SC = XF + max(XT * 16, 48)
    CSR = SC + 16; RR = CSR + 12
    NV = RR + 16
    e(f"v_lshrrev_b32 v{VT+3}, 6, v0")
    lane_consts_fullline(A, T, ldw, VT, VP, VF)
    e(f"v_readfirstlane_b32 s30, v{VT+3}")
    e(f"v_lshlrev_b32 v{VL16}, 4, v{VT}")
    e(f"v_and_b32 v{VT+1}, 15, v{VT}"); e(f"v_lshlrev_b32 v{VXO}, 4, v{VT+1}")
    e(f"v_lshrrev_b32 v{VT+2}, 5, v{VT}"); e(f"v_lshl_add_u32 v{VXO}, v{VT+2}, 8, v{VXO}")
    e(f"v_bfe_u32 v{VT+1}, v{VT}, 4, 1"); e(f"v_lshl_add_u32 v{VXO}, v{VT+1}, 10, v{VXO}")
    e(f"v_and_b32 v{VT+1}, 31, v{VT}"); e(f"v_lshlrev_b32 v{VT+1}, 4, v{VT+1}"); e(f"v_lshl_add_u32 v{VT+1}, v{VT+2}, 3, v{VT+1}")
    e("s_and_b32 s31, s2, 7"); e("s_lshr_b32 s32, s2, 3")
    e("s_and_b32 s33, s31, 1"); e("s_lshl_b32 s33, s33, 3"); e("s_lshr_b32 s34, s32, 2"); e("s_add_u32 s33, s33, s34")
    e("s_lshr_b32 s34, s31, 1"); e("s_lshl_b32 s34, s34, 2"); e("s_and_b32 s35, s32, 3"); e("s_add_u32 s34, s34, s35")
    e("s_lshl_b32 s35, s33, 2"); e("s_add_u32 s35, s35, s30")
    e(f"s_mul_i32 s36, s30, {8*ldw}"); e("s_lshl_b32 s37, s34, 7"); e("s_add_u32 s36, s36, s37")
    e(f"v_add_u32 v{VP}, s36, v{VP}")
    for j in range(1, NP):
        e(f"v_add_u32 v{VP+j}, {(j >> 1) * 2048 + (j & 1) * 32 * ldw}, v{VP}")
    e("s_lshl_b32 s40, s30, 10")
    G = Gemm(A, name, T=T, NB=6, RG=1, K=D, STAGES=STAGES, XT=XT, NWR=NWR, LA=LA, WG=opt.get("WG", 2), npieces=NP, stage_bytes=SBY,
             piece_lds=lambda j: (j >> 1) * BK * 128 + (j & 1) * 4096,
             frag_addr=fullline_frag_addr(T, VF, BK, lambda stg: (2 * (stg // 2), (stg % 2) * SBY)),
             acc=blk_acc(T, "v", ACC, 1), wfrag0=WF, xfrag0=XF, vpiece0=VP, vxoff=VXO,
             srd_w=8, srd_x=12, s_woff=41, s_xoff=42, s_ldsw=40, s_it=43, ldw=ldw,
             swap=[nb >= 2 for nb in range(6)], opt=opt)
    e("s_add_u32 s44, s33, s34"); e("s_and_b32 s44, s44, 3")
    G.order_init(44)
    e("s_lshl_b32 s36, s35, 16")
    e("s_lshl_b32 s38, s35, 12"); e(f"s_add_u32 s38, s38, {WS_ST}")
    e("s_lshl_b32 s39, s34, 10"); e(f"s_add_u32 s39, s39, {WS_CS}")
    e("s_movk_i32 s45, 16384"); e("s_mov_b32 s46, 32768")
    e(f"s_mov_b32 s10, {D*ldw}"); e("s_mov_b32 s11, 0x00020000")
    e(f"s_mov_b32 s14, {D*64}"); e("s_mov_b32 s15, 0x00020000")
    e("s_movk_i32 s22, 4096"); e("s_mov_b32 s23, 0x00020000")
    e(f"s_mov_b32 s26, {32768+1024}"); e("s_mov_b32 s27, 0x00020000")
    e("s_waitcnt lgkmcnt(0)")
    e("s_add_u32 s20, s28, s38"); e("s_addc_u32 s21, s29, 0")
    e("s_add_u32 s24, s28, s39"); e("s_addc_u32 s25, s29, 0")
    e("s_mov_b32 s8, s4"); e("s_mov_b32 s9, s5")
    e("s_add_u32 s12, s28, s36"); e("s_addc_u32 s13, s29, 0")
    stamp(A, 2)
    p = Stream()
    for i in range(4):
        p.vm(f"buffer_load_dwordx4 v[{SC+4*i}:{SC+4*i+3}], v{VL16}, s[20:23], 0 offen offset:{i*1024}", ("ST", i))
    for b in range(6):
        so = ("0", "s45", "s46")[b // 2]
        p.vm(f"buffer_load_dwordx2 v[{CSR+2*b}:{CSR+2*b+1}], v{VT+1}, s[24:27], {so} offen offset:{(b % 2) * 512}", ("CS", b))
    G.prologue_first(p)
    for i in range(2): p.i(f"v_add_u32 v{VF+2+i}, {2*SBY}, v{VF+i}")
    p.i(f"v_mov_b32 v{VT+5}, 0.5")
    p.wait(vm=[("ST", 3)])
    stats_finish(p.i, SC, VT + 4, VMN, VRS)
    p.wait(vm=[("CS", 5)])
    for b in range(6): p.i(f"v_add_f32 v{CSR+2*b}, v{CSR+2*b}, v{CSR+2*b+1}")
    p.i("s_nop 0")
    for b in range(6):
        r = ACC + 16 * b
        if b < 2: p.i(f"v_mfma_f32_32x32x2_f32 v[{r}:{r+15}], v{CSR+2*b}, v{VMN}, 0")
        else: p.i(f"v_mfma_f32_32x32x2_f32 v[{r}:{r+15}], v{VMN}, v{CSR+2*b}, 0")
    p.i(f"v_mfma_f32_32x32x2_f32 v[{RR}:{RR+15}], v{VRS}, v{VT+5}, 0")
    G.prologue_reads(p)
    G.prologue_rest(p)
    KL = SC; QL = VRS + 1
    p.i(f"v_mul_f32 v{QL}, {LOG2E:#x}, v{VRS}")
    for i in range(16): p.i(f"v_mul_f32 v{KL+i}, {LOG2E:#x}, v{RR+i}")
    G.emit(p)
    stamp(A, 5)
    e(f"s_mov_b32 s47, {f2u(1e-6):#x}")
    e(f"s_lshl_b32 s36, s35, 16"); e("s_lshl_b32 s37, s34, 12"); e("s_add_u32 s36, s36, s37"); e(f"s_add_u32 s36, s36, {WS_PQ}")
    e("s_add_u32 s20, s28, s36"); e("s_addc_u32 s21, s29, 0")
    e("s_lshl_b32 s37, s34, 4"); e("s_add_u32 s37, s37, s33")
    e("s_lshl_b32 s38, s37, 13"); e("s_lshl_b32 s36, s30, 11"); e("s_add_u32 s38, s38, s36"); e(f"s_add_u32 s38, s38, {WS_KV}")
    e("s_add_u32 s24, s28, s38"); e("s_addc_u32 s25, s29, 0"); e("s_movk_i32 s26, 2048")
    e("s_lshl_b32 s38, s37, 8"); e(f"s_add_u32 s38, s38, {WS_Z}")
    srd_off(A, 16, "s28", "s29", "s38", 256)
    e("s_waitcnt vmcnt(0) lgkmcnt(0)")
    e("s_barrier")
    TB = VT
    def phi(regs, rs, rl, outs):
        n = len(regs)
        for i in range(n): e(f"v_mul_f32 v{TB+i}, v{regs[i]}, v{rl[i]}")
        for i in range(n): e(f"v_exp_f32 v{TB+i}, v{TB+i} clamp")
        for i in range(n): e(f"v_max_f32 v{regs[i]}, 0, v{regs[i]}")
        for i in range(0, n, 2): e(f"v_pk_add_f32 v[{TB+i}:{TB+i+1}], v[{TB+i}:{TB+i+1}], s[46:47] op_sel:[0,1]")
        for i in range(n): e(f"v_fma_f32 v{regs[i]}, v{regs[i]}, v{rs[i]}, v{TB+i}")
        for i in range(0, n, 2): e(f"v_cvt_pk_bf16_f32 v{outs[i//2]}, v{regs[i]}, v{regs[i+1]}")
    PK = WF; VV = XF; ONE = XF + 16; OB = XF + 24
    for i in range(4): e(f"v_mov_b32 v{ONE+i}, 0x3f803f80")
    KVR = ACC + 32; ZR = ACC + 64
    for hh in range(2):
        r = ACC + (2 + hh) * 16
        phi([r + i for i in range(16)], [RR + i for i in range(16)], [KL + i for i in range(16)], [PK + hh * 8 + i for i in range(8)])
        r = ACC + (4 + hh) * 16
        for i in range(0, 16, 2):
            e(f"v_pk_mul_f32 v[{r+i}:{r+i+1}], v[{r+i}:{r+i+1}], v[{RR+i}:{RR+i+1}]")
        for i in range(0, 16, 2):
            e(f"v_cvt_pk_bf16_f32 v{VV+hh*8+i//2}, v{r+i}, v{r+i+1}")
        e("s_nop 1")
        for ks in range(2):
            a = PK + hh * 8 + 4 * ks; b = VV + hh * 8 + 4 * ks
            r = KVR + hh * 16
            e(f"v_mfma_f32_32x32x16_bf16 v[{r}:{r+15}], v[{a}:{a+3}], v[{b}:{b+3}], {'0' if ks == 0 else f'v[{r}:{r+15}]'}")
        for ks in range(2):
            a = PK + hh * 8 + 4 * ks
            r = ZR + hh * 16
            e(f"v_mfma_f32_32x32x16_bf16 v[{r}:{r+15}], v[{ONE}:{ONE+3}], v[{a}:{a+3}], {'0' if ks == 0 else f'v[{r}:{r+15}]'}")
    e(f"v_and_b32 v{VP}, 0x3ff, v{VXO}"); e(f"v_lshrrev_b32 v{VP+1}, 10, v{VXO}"); e(f"v_lshl_add_u32 v{VP}, v{VP+1}, 13, v{VP}")
    e(f"v_add_u32 v{VP}, s40, v{VP}")
    e(f"v_lshrrev_b32 v{VP+2}, 2, v{VL16}"); e("s_lshl_b32 s36, s30, 8"); e(f"v_add_u32 v{VP+3}, s36, v{VP+2}")
    e("s_lshl_b32 s36, s30, 13"); e(f"v_add_u32 v{VP+1}, s36, v{VL16}")
    def q_part(hh):
        r = ACC + hh * 16
        ob = OB + hh * 8
        outs = [ob + 0, ob + 1, ob + 4, ob + 5, ob + 2, ob + 3, ob + 6, ob + 7]
        phi([r + i for i in range(16)], [VRS] * 16, [QL] * 16, outs)
        for k in range(2):
            e(f"buffer_store_dwordx4 v[{ob+4*k}:{ob+4*k+3}], v{VXO}, s[20:23], 0 offen offset:{hh*2048 + k*512}")
    q_part(0)
    for hh in range(2):
        for rq in range(4):
            r = KVR + hh * 16 + 4 * rq
            e(f"ds_write_b128 v{VP}, v[{r}:{r+3}] offset:{hh*16384 + (rq >> 1)*4096 + (rq & 1)*512}")
    e(f"v_permlane32_swap_b32 v{ZR}, v{ZR+16}")
    e("s_nop 1")
    e(f"ds_write_b32 v{VP+3}, v{ZR} offset:32768")
    e("s_waitcnt lgkmcnt(0)")
    e("s_barrier")
    RB = KVR
    for k in range(8):
        e(f"ds_read_b128 v[{RB+4*k}:{RB+4*k+3}], v{VP+1} offset:{k*1024}")
    for k in range(4):
        e(f"ds_read_b32 v{ZR+k}, v{VP+2} offset:{32768 + k*256}")
    q_part(1)
    e("s_waitcnt lgkmcnt(0)")
    for k in range(2):
        r = RB + 16 * k
        for i in (0, 2):
            e(f"v_pk_add_f32 v[{r+i}:{r+i+1}], v[{r+i}:{r+i+1}], v[{r+4+i}:{r+5+i}]")
            e(f"v_pk_add_f32 v[{r+8+i}:{r+9+i}], v[{r+8+i}:{r+9+i}], v[{r+12+i}:{r+13+i}]")
        for i in (0, 2):
            e(f"v_pk_add_f32 v[{r+i}:{r+i+1}], v[{r+i}:{r+i+1}], v[{r+8+i}:{r+9+i}]")
        e(f"buffer_store_dwordx4 v[{r}:{r+3}], v{VL16}, s[24:27], 0 offen offset:{k*1024}")
    e(f"v_pk_add_f32 v[{ZR}:{ZR+1}], v[{ZR}:{ZR+1}], v[{ZR+2}:{ZR+3}]")
    e(f"v_add_f32 v{ZR}, v{ZR}, v{ZR+1}")
    e(f"buffer_store_dword v{ZR}, v{VP+2}, s[16:19], s36 offen")
    kernel_tail(A, name, NV)
    return dict(name=name, grid=256, block=256, lds=STAGES * SBY)

def colsum_part(A, name, s_item, mats, fin):
    e = A.e
    e(f"s_lshr_b32 s31, s{s_item}, 2"); e(f"s_and_b32 s34, s{s_item}, 3")
    first, lo, hi, ld = mats[-1]
    e(f"s_mov_b32 s8, s{lo}"); e(f"s_mov_b32 s9, s{hi}"); e(f"s_mov_b32 s33, {first}"); e(f"s_mov_b32 s32, {ld}")
    for k in range(len(mats) - 2, -1, -1):
        first, lo, hi, ld = mats[k]
        e(f"s_cmp_lt_u32 s31, {mats[k+1][0]}")
        e(f"s_cselect_b32 s8, s{lo}, s8"); e(f"s_cselect_b32 s9, s{hi}, s9"); e(f"s_cselect_b32 s33, {first}, s33"); e(f"s_cselect_b32 s32, {ld}, s32")
    e("s_lshl_b32 s32, s32, 10")
    e("s_lshl_b32 s10, s32, 10"); e("s_mov_b32 s11, 0x00020000")
    e("s_sub_u32 s33, s31, s33")
    e("v_lshrrev_b32 v2, 3, v5"); e("v_mul_lo_u32 v2, s32, v2"); e("v_and_b32 v3, 7, v5"); e("v_lshl_add_u32 v2, v3, 4, v2")
    e("s_lshl_b32 s36, s34, 2"); e("s_add_u32 s36, s36, s30"); e("s_lshl_b32 s36, s36, 6"); e("s_mul_i32 s36, s36, s32")
    e("s_lshl_b32 s37, s33, 7"); e("s_add_u32 s36, s36, s37")
    e("s_lshl_b32 s37, s32, 3")
    L = 32
    for i in range(8):
        e(f"buffer_load_dwordx4 v[{L+4*i}:{L+4*i+3}], v2, s[8:11], s36 offen")
        if i < 7: e("s_add_u32 s36, s36, s37")
    for i in range(8):
        e(f"s_waitcnt vmcnt({7-i})")
        t = (8 if i == 0 else 16 + 8 * (i % 2))
        for j in range(4):
            e(f"v_lshlrev_b32 v{t+2*j}, 16, v{L+4*i+j}"); e(f"v_and_b32 v{t+2*j+1}, 0xffff0000, v{L+4*i+j}")
        if i:
            for j in range(4):
                e(f"v_pk_add_f32 v[{8+2*j}:{9+2*j}], v[{8+2*j}:{9+2*j}], v[{t+2*j}:{t+2*j+1}]")
    e("v_lshlrev_b32 v2, 5, v0")
    e("ds_write_b128 v2, v[8:11]"); e("ds_write_b128 v2, v[12:15] offset:16")
    e("s_waitcnt lgkmcnt(0)")
    e("s_barrier")
    e("s_cmp_lg_u32 s30, 0")
    e(f"s_cbranch_scc1 {fin}")
    e("v_lshlrev_b32 v2, 2, v5")
    for i in range(32):
        e(f"ds_read_b32 v{L+i}, v2 offset:{i*256}")
    e("s_lshl_b32 s36, s31, 10"); e("s_lshl_b32 s37, s34, 2"); e("s_add_u32 s36, s36, s37")
    srd_off(A, 16, "s28", "s29", WS_CS, CS_N * 16)
    e("v_lshlrev_b32 v2, 4, v5")
    e("s_waitcnt lgkmcnt(0)")
    for st in (16, 8, 4, 2, 1):
        for i in range(st): e(f"v_add_f32 v{L+i}, v{L+i}, v{L+i+st}")
    e(f"buffer_store_dword v{L}, v2, s[16:19], s36 offen")

def warm_part(A, s_item, lo, hi, size):
    e = A.e
    srd(A, 8, f"s{lo}", f"s{hi}", size)
    e(f"s_lshl_b32 s36, s{s_item}, 15")
    e("v_lshlrev_b32 v2, 4, v0")
    for i in range(8):
        e(f"buffer_load_dwordx4 v[{32+4*i}:{35+4*i}], v2, s[8:11], s36 offen")
        if i < 7: e("s_add_u32 s36, s36, 4096")

def k_attn(A, name, extra):
    e = A.e
    nwg = 256 + (448 + 224 if extra else 0)
    kernel_head(A, name, nwg)
    e(f"s_load_dwordx2 s[28:29], s[0:1], {KA['ws']}")
    if extra:
        e(f"s_load_dwordx4 s[24:27], s[0:1], {KA['wg']}")
        e(f"s_load_dwordx2 s[22:23], s[0:1], {KA['wd']}")
    VXO, VT = 1, 2
    P = 8; Z = P + 64; PQ = Z + 8
    e("v_lshrrev_b32 v4, 6, v0"); e("v_and_b32 v5, 63, v0")
    e("v_readfirstlane_b32 s30, v4")
    if extra:
        e("s_cmp_ge_u32 s2, 256")
        e(f"s_cbranch_scc1 {name}_extra")
    e(f"v_lshlrev_b32 v{VXO}, 4, v5")
    e("s_and_b32 s31, s2, 7"); e("s_lshr_b32 s32, s2, 3")
    e("s_lshl_b32 s34, s31, 2"); e("s_and_b32 s35, s32, 3"); e("s_add_u32 s34, s34, s35")
    e("s_lshr_b32 s33, s32, 2")
    e("s_lshl_b32 s35, s33, 3"); e("s_lshl_b32 s36, s30, 1"); e("s_add_u32 s35, s35, s36")
    e("s_lshr_b32 s37, s34, 1"); e("s_and_b32 s40, s34, 1")
    e("s_lshl_b32 s36, s37, 17"); e("s_lshl_b32 s41, s40, 12"); e("s_add_u32 s36, s36, s41")
    e("s_lshl_b32 s41, s30, 10"); e("s_add_u32 s36, s36, s41"); e(f"s_add_u32 s36, s36, {WS_KV}")
    e("s_lshl_b32 s37, s37, 12"); e("s_lshl_b32 s41, s40, 7"); e("s_add_u32 s37, s37, s41"); e(f"s_add_u32 s37, s37, {WS_Z}")
    e("s_lshl_b32 s38, s35, 16"); e("s_lshl_b32 s39, s34, 11"); e("s_add_u32 s38, s38, s39")
    e(f"s_add_u32 s39, s38, {WS_O}"); e(f"s_add_u32 s38, s38, {WS_PQ}")
    e("v_and_b32 v6, 15, v5"); e("v_lshlrev_b32 v6, 8, v6"); e("v_lshrrev_b32 v7, 4, v5"); e("v_lshl_add_u32 v6, v7, 4, v6")
    e("s_mov_b32 s42, 65536")
    e("s_waitcnt lgkmcnt(0)")
    srd_off(A, 8, "s28", "s29", "s36", 16 * 8192)
    srd_off(A, 20, "s28", "s29", "s37", 4096)
    srd_off(A, 12, "s28", "s29", "s38", 65536 + 2048)
    srd_off(A, 16, "s28", "s29", "s39", 65536 + 2048)
    stamp(A, 2)
    for m in range(16):
        if m: e(f"s_mov_b32 s40, {m*8192}")
        e(f"buffer_load_dwordx4 v[{P+4*m}:{P+4*m+3}], v{VXO}, s[8:11], {'s40' if m else '0'} offen")
    for k in range(2):
        e(f"buffer_load_dwordx4 v[{Z+4*k}:{Z+4*k+3}], v6, s[20:23], 0 offen offset:{k*64}")
    for i in range(4):
        e(f"buffer_load_dwordx4 v[{PQ+4*i}:{PQ+4*i+3}], v{VXO}, s[12:15], {'s42' if i >= 2 else '0'} offen offset:{(i%2)*1024}")
    e("s_lshr_b32 s41, s30, 1"); e("s_lshl_b32 s41, s41, 10"); e("s_and_b32 s40, s30, 1"); e("s_lshl_b32 s40, s40, 3"); e("s_add_u32 s41, s41, s40")
    e(f"v_add_u32 v{VT}, s41, v{VXO}")
    for m in range(2, 16):
        if m % 2 == 0: e(f"s_waitcnt vmcnt({6 + 14 - m})")
        r0 = P + 4 * (m % 2); r = P + 4 * m
        for i in (0, 2):
            e(f"v_pk_add_f32 v[{r0+i}:{r0+i+1}], v[{r0+i}:{r0+i+1}], v[{r+i}:{r+i+1}]")
    for i in (0, 2):
        e(f"v_pk_add_f32 v[{P+i}:{P+i+1}], v[{P+i}:{P+i+1}], v[{P+4+i}:{P+5+i}]")
    e(f"v_cvt_pk_bf16_f32 v{P+4}, v{P}, v{P+1}"); e(f"v_cvt_pk_bf16_f32 v{P+5}, v{P+2}, v{P+3}")
    e(f"ds_write_b64 v{VT}, v[{P+4}:{P+5}]")
    stamp(A, 4)
    e("s_waitcnt vmcnt(4)")
    for sh in (8, 4, 2, 1):
        for i in range(8):
            e(f"v_add_f32_dpp v{Z+i}, v{Z+i}, v{Z+i} row_ror:{sh} row_mask:0xf bank_mask:0xf")
    ZF = P + 16
    for i in range(4): e(f"v_cvt_pk_bf16_f32 v{ZF+i}, v{Z+2*i}, v{Z+2*i+1}")
    e("s_waitcnt lgkmcnt(0)")
    e("s_barrier")
    FR = P + 8
    for f in range(2):
        e(f"ds_read_b128 v[{FR+4*f}:{FR+4*f+3}], v{VXO} offset:{f*1024}")
    NUM = P + 20; DEN = P + 52
    e("s_waitcnt vmcnt(0)")
    for i in range(4):
        e(f"v_mfma_f32_16x16x32_bf16 v[{DEN+4*i}:{DEN+4*i+3}], v[{ZF}:{ZF+3}], v[{PQ+4*i}:{PQ+4*i+3}], 0")
    e("s_waitcnt lgkmcnt(0)")
    for i in range(4):
        for et in range(2):
            r = NUM + i * 8 + et * 4
            e(f"v_mfma_f32_16x16x32_bf16 v[{r}:{r+3}], v[{FR+4*et}:{FR+4*et+3}], v[{PQ+4*i}:{PQ+4*i+3}], 0")
    stamp(A, 5)
    for i in range(4): e(f"v_add_f32 v{DEN+4*i}, {f2u(1e-6):#x}, v{DEN+4*i}")
    for i in range(4): e(f"v_rcp_f32 v{DEN+4*i}, v{DEN+4*i}")
    e("s_nop 0")
    for i in range(4):
        r = NUM + i * 8
        for j in range(0, 8, 2):
            e(f"v_pk_mul_f32 v[{r+j}:{r+j+1}], v[{r+j}:{r+j+1}], v[{DEN+4*i}:{DEN+4*i+1}] op_sel_hi:[1,0]")
        for j in range(0, 8, 2):
            e(f"v_cvt_pk_bf16_f32 v{PQ+4*i+j//2}, v{r+j}, v{r+j+1}")
        e(f"buffer_store_dwordx4 v[{PQ+4*i}:{PQ+4*i+3}], v{VXO}, s[16:19], {'s42' if i >= 2 else '0'} offen offset:{(i%2)*1024}")
    if extra:
        e(f"s_branch {name}_fin")
        A.label(f"{name}_extra")
        e("s_waitcnt lgkmcnt(0)")
        e(f"s_cmp_ge_u32 s2, {256+448}")
        e(f"s_cbranch_scc1 {name}_warm")
        e(f"s_sub_u32 s44, s2, {256 - 48*4}")
        colsum_part(A, name, 44, [(48, 24, 25, 7), (104, 26, 27, 7)], f"{name}_fin")
        e(f"s_branch {name}_fin")
        A.label(f"{name}_warm")
        e(f"s_sub_u32 s44, s2, {256+448}")
        warm_part(A, 44, 22, 23, F * D * 2)
        A.label(f"{name}_fin")
    kernel_tail(A, name, PQ + 16)
    return dict(name=name, grid=nwg, block=256, lds=8192 if extra else 2048)

def k_prep(A, name):
    e = A.e
    kernel_head(A, name, 512)
    e(f"s_load_dwordx4 s[4:7], s[0:1], {KA['x']}")
    e(f"s_load_dwordx2 s[22:23], s[0:1], {KA['wo']}")
    e(f"s_load_dwordx2 s[28:29], s[0:1], {KA['ws']}")
    e("v_lshrrev_b32 v4, 6, v0"); e("v_and_b32 v5, 63, v0")
    e("v_readfirstlane_b32 s30, v4")
    e("v_lshlrev_b32 v1, 4, v5")
    e("s_cmp_ge_u32 s2, 256")
    e(f"s_cbranch_scc1 {name}_cs")
    e("s_lshl_b32 s31, s2, 2"); e("s_add_u32 s31, s31, s30")
    e("s_lshr_b32 s35, s31, 4"); e("s_and_b32 s34, s31, 15")
    rowmajor_lane_off(A, 2, 3)
    e("s_lshl_b32 s36, s35, 16"); e("s_lshl_b32 s37, s34, 7"); e("s_add_u32 s36, s36, s37"); e(f"s_add_u32 s37, s36, {16*2048}")
    e("s_lshl_b32 s38, s35, 16"); e("s_lshl_b32 s39, s34, 12"); e("s_add_u32 s38, s38, s39")
    e("s_waitcnt lgkmcnt(0)")
    srd(A, 8, "s4", "s5", S * D * 2)
    srd_off(A, 12, "s28", "s29", "s38", 4096)
    R = 16
    for i in range(4):
        so, off = rowmajor_frag(i, "s36", "s37")
        e(f"buffer_load_dwordx4 v[{R+4*i}:{R+4*i+3}], v2, s[8:11], {so} offen offset:{off}")
    e("s_lshl_b32 s36, s35, 12"); e("s_lshr_b32 s37, s34, 2"); e("s_lshl_b32 s37, s37, 10"); e("s_add_u32 s36, s36, s37")
    e("s_and_b32 s37, s34, 3"); e("s_lshl_b32 s37, s37, 2"); e("s_add_u32 s36, s36, s37")
    srd_off(A, 16, "s28", "s29", WS_ST, 64 * 4096)
    e("s_waitcnt vmcnt(0)")
    for i in range(4):
        e(f"v_permlane16_swap_b32 v{R+4*i}, v{R+4*i+2}")
        e(f"v_permlane16_swap_b32 v{R+4*i+1}, v{R+4*i+3}")
    e("s_nop 1")
    for i in range(4):
        e(f"buffer_store_dwordx4 v[{R+4*i}:{R+4*i+3}], v1, s[12:15], 0 offen offset:{i*1024}")
    stats_emit(A, 16, [R + i for i in range(16)], 8)
    e("buffer_store_dword v8, v1, s[16:19], s36 offen")
    e(f"s_branch {name}_fin")
    A.label(f"{name}_cs")
    e("s_waitcnt lgkmcnt(0)")
    e(f"s_cmp_ge_u32 s2, {256+192}")
    e(f"s_cbranch_scc1 {name}_warm")
    e("s_sub_u32 s44, s2, 256")
    colsum_part(A, name, 44, [(0, 6, 7, 6)], f"{name}_fin")
    e(f"s_branch {name}_fin")
    A.label(f"{name}_warm")
    e(f"s_sub_u32 s44, s2, {256+192}")
    warm_part(A, 44, 22, 23, D * D * 2)
    A.label(f"{name}_fin")
    kernel_tail(A, name, 64)
    return dict(name=name, grid=512, block=256, lds=8192)

HEADER = """; interleave_layers: (linear attention block, SwiGLU FFN) x 2, pre-LN residual ; generated by work/gen.py
"""
def build_all(path, stamp_on=False, o=None):
    global STAMP
    STAMP = stamp_on
    o = o or {}
    A = Asm()
    prep = k_prep(A, "prep_kernel")
    qkv = k_qkv(A, "qkv_kernel", o.get("qkv"))
    att1 = k_attn(A, "attn1_kernel", True)
    att = k_attn(A, "attn_kernel", False)
    wo = k_proj(A, "wo_kernel", D, WS_O, KA["wo"], False, o.get("wo"))
    ffn = k_ffn(A, "ffn_kernel", o.get("ffn"))
    dn = k_proj(A, "down_kernel", F, WS_H, KA["wd"], False, o.get("down"))
    dnf = k_proj(A, "downf_kernel", F, WS_H, KA["wd"], True, o.get("down"))
    for k in (prep, qkv, att1, wo, ffn, dn, qkv, att, wo, ffn, dnf):
        A.launch(k["name"], k["grid"], k["block"], k["lds"])
    open(path, "w").write(A.text(HEADER))

if __name__ == "__main__":
    build_all("full_stamp.s", True)
    build_all("interleave_layers__linear_attn_block__swiglu_ffn__prompt.s", False)
```

```python
import sys, math
import gen
from gen import *

WS_FL = 30 * MB
WS_KV2 = 32 * MB
cQ, cA, cO, cU, cD = 0, 16, 32, 40, 56
LDS_P = 131072
LDS_R = 98304
LDS_Z = LDS_P + 24576
WS_CS2 = WS_CS + 65536
V_RES = 228
V_KEEP = 250
V_CS = 160
WS_CSQ = WS_CS + 320 * 1024
WS_XB = WS_O
WS_STB = WS_ST + 262144
QSBY = 3 * 64 * 128
WS_XC = WS_PQ
S_DUMP = 79
SC1 = " sc1"
S_WV, S_LAYER, S_SIG, S_POFF, S_PTGT, S_PH = 3, 98, 99, 100, 101, 78
FL = 80
NAME = "mega_kernel"

def rs(A, k):
    if gen.STAMP:
        A.e(f"s_memrealtime s[{60+2*k}:{61+2*k}]")
        if k in (3, 4): A.e(f"s_memtime s[{66+2*k}:{67+2*k}]")
def rs_s(st, k):
    if gen.STAMP: st.i(f"s_memrealtime s[{60+2*k}:{61+2*k}]\n    s_waitcnt lgkmcnt(0)")
uid = [0]
DBGOUT = False
SWARM = False
TOUCH = 0
PS0, PSL = 0, 0
APOLL, PFL, NOWAIT, REP = 1, ' sc1', 0, 1
FSTR = 256
def stamps_flush(A):
    if not gen.STAMP: return
    e = A.e
    uid[0] += 1
    l = f"sf{uid[0]}"
    rs(A, 5)
    e(f"s_cmp_lg_u32 s{S_WV}, 0"); e(f"s_cbranch_scc1 {l}")
    srd_off(A, 52, "s28", "s29", WS_DBG, 32 * 65536)
    e("s_lshl_b32 s58, s2, 6"); e(f"s_lshl_b32 s59, s{S_PH}, 16"); e("s_add_u32 s58, s58, s59")
    e("s_waitcnt lgkmcnt(0)")
    e("s_mov_b64 s[56:57], exec"); e("s_mov_b64 exec, 1")
    e("v_mov_b32 v2, 0")
    for k in range(8):
        e(f"v_mov_b32 v3, s{60+2*k}")
        e(f"buffer_store_dword v3, v2, s[52:55], s58 offen offset:{4*k}")
    for k in range(4):
        e(f"v_mov_b32 v3, s{4+k}")
        e(f"buffer_store_dword v3, v2, s[52:55], s58 offen offset:{48+4*k}")
    if DBGOUT:
        e("s_cmp_lg_u32 s2, 40"); e(f"s_cbranch_scc1 {l}d")
        e(f"s_load_dwordx2 s[52:53], s[0:1], {KA['dbg']}"); e("s_movk_i32 s54, 64"); e("s_mov_b32 s55, 0x00020000")
        e(f"s_mul_i32 s58, s{S_PH}, 43"); e("s_lshr_b32 s58, s58, 7"); e(f"s_add_u32 s58, s58, s{S_PH}"); e("s_add_u32 s58, s58, 5")
        e("s_and_b32 s58, s58, 15"); e("s_lshl_b32 s58, s58, 2")
        e("s_sub_u32 s59, s70, s76"); e("v_mov_b32 v3, s59")
        e("s_waitcnt lgkmcnt(0)")
        e("buffer_store_dword v3, v2, s[52:55], s58 offen sc1")
        e(f"s_cmp_lg_u32 s{S_PH}, 0"); e(f"s_cbranch_scc1 {l}d")
        e("s_sub_u32 s59, s66, s76"); e("v_mov_b32 v3, s59")
        e("buffer_store_dword v3, v2, s[52:55], 0 offen offset:12 sc1")
        A.label(l + "d")
    e("s_mov_b64 exec, s[56:57]")
    A.label(l)
    e(f"s_add_u32 s{S_PH}, s{S_PH}, 1")

def phase_begin(A, first=False):
    rs(A, 0)
    if gen.STAMP and first:
        A.e("s_waitcnt lgkmcnt(0)"); A.e(f"s_cmp_eq_u32 s{S_LAYER}, 0"); A.e("s_cselect_b32 s60, s76, s60")

def set_poll(A, idx_sgpr, base, target, prev_layer=False):
    e = A.e
    e(f"s_lshl_b32 s{S_POFF}, s{S_LAYER}, 6"); e(f"s_add_u32 s{S_POFF}, s{S_POFF}, s{idx_sgpr}")
    if prev_layer:
        e(f"s_add_u32 s{S_POFF}, s{idx_sgpr}, {base}")
        e(f"s_mul_i32 s{S_PTGT}, s{S_LAYER}, {target}")
    else:
        e(f"s_add_u32 s{S_POFF}, s{S_POFF}, {base}")
        e(f"s_mov_b32 s{S_PTGT}, {target}")
    if REP > 1:
        e(f"s_lshr_b32 s50, s2, 3"); e(f"s_and_b32 s50, s50, {REP-1}"); e("s_lshl_b32 s50, s50, 7"); e(f"s_add_u32 s{S_POFF}, s{S_POFF}, s50")
    e(f"s_mul_i32 s{S_POFF}, s{S_POFF}, {FSTR}")

def set_signal(A, idx_sgpr, base):
    e = A.e
    e(f"s_lshl_b32 s{S_SIG}, s{S_LAYER}, 6"); e(f"s_add_u32 s{S_SIG}, s{S_SIG}, s{idx_sgpr}")
    e(f"s_add_u32 s{S_SIG}, s{S_SIG}, {base}"); e(f"s_mul_i32 s{S_SIG}, s{S_SIG}, {FSTR}")

def do_signal(o, va, vb, wait=True, fl=FL, off=None):
    off = off or f"s{S_SIG}"
    if gen.STAMP: o("s_memrealtime s[60:61]")
    if REP > 1 and fl == FL:
        o(f"s_mov_b64 exec, {(1 << REP) - 1}")
        o(f"v_and_b32 v{va}, 63, v0"); o(f"v_mul_u32_u24 v{va}, {128 * FSTR}, v{va}"); o(f"v_mov_b32 v{vb}, 1")
    else:
        o("s_mov_b64 exec, 1")
        o(f"v_mov_b32 v{va}, 0"); o(f"v_mov_b32 v{vb}, 1")
    o(f"buffer_atomic_add v{vb}, v{va}, s[{fl}:{fl+3}], {off} offen sc1")
    if wait:
        o("s_waitcnt vmcnt(0)")
        if gen.STAMP: o("s_memrealtime s[62:63]")
    o("s_mov_b64 exec, -1")

def do_poll(o, va, vb, tag, fl=FL, diag=True, load=False):
    o("s_mov_b64 exec, 1")
    o(f"v_mov_b32 v{va}, 0")
    o("s_mov_b32 s50, 0x40000")
    if PS0: o(f"s_sleep {PS0}")
    o(f"s_branch {tag}_pgo")
    o(f"{tag}_poll:")
    if PSL: o(f"s_sleep {PSL}")
    o(f"{tag}_pgo:")
    if APOLL and not load:
        o(f"v_mov_b32 v{vb}, 0")
        o(f"buffer_atomic_add v{vb}, v{va}, s[{fl}:{fl+3}], s{S_POFF} offen sc0 sc1")
    else:
        o(f"buffer_load_dword v{vb}, v{va}, s[{fl}:{fl+3}], s{S_POFF} offen{PFL}")
    o("s_sub_u32 s50, s50, 1")
    o(f"s_cbranch_scc1 {tag}_pdone")
    o("s_waitcnt vmcnt(0)")
    o(f"v_readfirstlane_b32 s51, v{vb}")
    o(f"s_cmp_lt_u32 s51, s{S_PTGT}")
    o(f"s_cbranch_scc1 {tag}_poll")
    o(f"{tag}_pdone:")
    if gen.STAMP and diag:
        o("s_memrealtime s[64:65]")
        o(f"s_add_u32 s52, s28, {WS_DBG}"); o("s_addc_u32 s53, s29, 0"); o(f"s_mov_b32 s54, {32*65536}"); o("s_mov_b32 s55, 0x00020000")
        o("s_lshl_b32 s58, s2, 6"); o(f"s_lshl_b32 s59, s{S_PH}, 16"); o("s_add_u32 s58, s58, s59")
        o("s_waitcnt lgkmcnt(0)")
        for k, r in enumerate((60, 62, 64, 50)):
            o(f"v_mov_b32 v{vb}, s{r}")
            o(f"buffer_store_dword v{vb}, v{va}, s[52:55], s58 offen offset:{32+4*k}")
    o("s_mov_b64 exec, -1")

def bar_loop(A, tag, n, body=None):
    e = A.e
    if n <= 2 and not body:
        for _ in range(n): e("s_barrier")
        return
    e(f"s_mov_b32 s43, {n}")
    A.label(tag)
    e("s_barrier")
    if body: body()
    e("s_sub_u32 s43, s43, 1"); e("s_cmp_lg_u32 s43, 0"); e(f"s_cbranch_scc1 {tag}")

def warm(A, offs, adv):
    for o in offs: A.e(f"s_load_dword s{S_DUMP}, s[12:13], {o:#x}")
    A.e(f"s_add_u32 s12, s12, {adv}"); A.e("s_addc_u32 s13, s13, 0")

DBG_X, DBG_G = 0, 8
def idle_head(A, tag, first=False, early=None, pre=None):
    e = A.e
    A.label(f"{tag}_idle")
    fl = FL
    if first:
        fl = 24
        e(f"s_load_dwordx2 s[4:5], s[0:1], {KA['dbg']}")
        e(f"s_lshl_b32 s31, s33, 4")
        e(f"s_cmp_eq_u32 s{S_LAYER}, 0")
        e(f"s_cselect_b32 s{S_POFF}, s31, s{S_POFF}"); e(f"s_cselect_b32 s{S_PTGT}, 16, s{S_PTGT}")
        e(f"s_cselect_b32 s26, 256, s{FL+2}"); e("s_mov_b32 s27, 0x00020000")
        e("s_waitcnt lgkmcnt(0)")
        e(f"s_cselect_b32 s24, s4, s{FL}"); e(f"s_cselect_b32 s25, s5, s{FL+1}")
    if pre: pre()
    e("s_waitcnt vmcnt(0)")
    e("s_barrier")
    e(f"s_cmp_lg_u32 s{S_WV}, 4"); e(f"s_cbranch_scc1 {tag}_i1")
    if first:
        e(f"s_cmp_eq_u32 s{S_LAYER}, 0"); e(f"s_cbranch_scc1 {tag}_i1")
    do_signal(e, 1, 2, wait=False)
    A.label(f"{tag}_i1")
    if early: early()
    e(f"s_cmp_lg_u32 s{S_WV}, 4"); e(f"s_cbranch_scc1 {tag}_i2")
    if not NOWAIT: e("s_waitcnt vmcnt(0)")
    if gen.STAMP: e("s_memrealtime s[62:63]")
    if first:
        e(f"s_cmp_lg_u32 s{S_LAYER}, 0"); e(f"s_cbranch_scc1 {tag}_i9")
        do_poll(e, 1, 2, tag + "0", fl=fl, load=True)
        e(f"s_branch {tag}_i2")
        A.label(f"{tag}_i9")
    do_poll(e, 1, 3 if not first else 2, tag, fl=fl)
    A.label(f"{tag}_i2")
    e("s_barrier")

def idle_tail(A, nxt):
    if gen.STAMP: A.e(f"s_add_u32 s{S_PH}, s{S_PH}, 1")
    A.e(f"s_branch {nxt}")

def col_reduce(A, r, vlane, vt):
    e = A.e
    e("s_nop 1")
    for j in range(4): e(f"v_permlane32_swap_b32 v{r+j}, v{r+4+j}")
    e("s_nop 0")
    for j in (0, 2): e(f"v_pk_add_f32 v[{r+j}:{r+1+j}], v[{r+j}:{r+1+j}], v[{r+4+j}:{r+5+j}]")
    e(f"v_and_b32 v{vt}, 8, v{vlane}"); e(f"v_cmp_ne_u32 vcc, 0, v{vt}")
    for j in range(2): e(f"v_permlane16_swap_b32 v{r+j}, v{r+2+j}")
    e("s_nop 1")
    e(f"v_pk_add_f32 v[{r}:{r+1}], v[{r}:{r+1}], v[{r+2}:{r+3}]")
    e("s_nop 1")
    for j in range(2): e(f"v_add_f32_dpp v{r+j}, v{r+j}, v{r+j} row_ror:8 row_mask:0xf bank_mask:0xf")
    e(f"v_cndmask_b32 v{r}, v{r}, v{r+1}, vcc")

def wd_warm_base(A):
    e = A.e
    e(f"s_load_dwordx2 s[12:13], s[0:1], {KA['wd']}")
    e(f"s_lshl_b32 s16, s2, 2"); e(f"s_add_u32 s16, s16, s{S_WV}"); e("s_sub_u32 s16, s16, 4"); e("s_mul_i32 s16, s16, 7168")
    e("s_waitcnt lgkmcnt(0)")
    e("s_add_u32 s12, s12, s16"); e("s_addc_u32 s13, s13, 0")

SET_A = dict(srd=8, lds=40, woff=41, p=39, stg=38, r=35, m=33, n=34, t0=31, t1=32)
SET_B = dict(srd=24, lds=36, woff=37, p=20, stg=21, r=22, m=16, n=17, t0=18, t1=19)
SET_C = dict(srd=88, lds=92, woff=93, p=94, stg=95, r=96, m=16, n=17, t0=18, t1=19)
class Loader:
    def __init__(self, A, kind, rs_, v, first=0):
        self.A, self.kind, self.s, self.v, self.first = A, kind, rs_, v, first
        self.T = 16
        self.ldw = {"qkv": 3 * D * 2}.get(kind, D * 2)
        self.NT = {"qkv": 16, "wo": 16, "down": 28}[kind]
        self.np = {"qkv": 6, "wo": 2, "down": 4}[kind]
        self.sb = {"qkv": QSBY, "wo": 8192, "down": 16384}[kind]
        self.base = {"qkv": 0, "wo": LDS_P, "down": LDS_R}[kind]
        self.rot = 2 if kind == "down" else 0
    def setup(self, coords=True):
        A, s, v, e = self.A, self.s, self.v, self.A.e
        k, ldw = self.kind, self.ldw
        e(f"s_load_dwordx2 s[4:5], s[0:1], {KA[{'qkv': 'wqkv', 'wo': 'wo', 'down': 'wd'}[k]]}")
        if coords: (qkv_coords if k == "qkv" else proj_coords)(A, s["m"], s["n"], s["t0"], s["t1"])
        lane_consts_fullline(A, self.T, ldw, v + 6, v, None)
        t0, t1 = s["t0"], s["t1"]
        e(f"s_and_b32 s{t1}, s{S_WV}, 3")
        e(f"s_lshl_b32 s{s['lds']}, s{t1}, 10")
        if self.base: e(f"s_add_u32 s{s['lds']}, s{s['lds']}, {self.base}")
        e(f"s_mul_i32 s{t0}, s{t1}, {8*ldw}"); e(f"s_lshl_b32 s{t1}, s{s['n']}, 7"); e(f"s_add_u32 s{t0}, s{t0}, s{t1}")
        e(f"v_add_u32 v{v}, s{t0}, v{v}")
        if k == "qkv":
            for j in range(1, 6): e(f"v_add_u32 v{v+j}, {(j >> 1) * 2048 + (j & 1) * 32 * ldw}, v{v}")
            e(f"s_add_u32 s{s['r']}, s{s['m']}, s{s['n']}")
        else:
            e(f"v_add_u32 v{v+1}, {32*ldw}, v{v}")
            if k == "down": e(f"v_xor_b32 v{v+2}, 0x80, v{v}"); e(f"v_xor_b32 v{v+3}, 0x80, v{v+1}")
            e(f"s_lshr_b32 s{s['r']}, s{s['n']}, 1"); e(f"s_add_u32 s{s['r']}, s{s['r']}, s{s['m']}")
        e(f"s_and_b32 s{s['r']}, s{s['r']}, 3")
        e(f"s_mov_b32 s{s['p']}, {self.first}")
        e(f"s_mov_b32 s{s['stg']}, {((self.first + self.rot) % 4) * self.sb}")
        if k == "down": e(f"s_and_b32 s{t0}, s{s['n']}, 1"); e(f"s_mul_i32 s{t0}, s{t0}, {F * D}")
        e("s_waitcnt lgkmcnt(0)")
        if k == "down": srd_off(A, s["srd"], "s4", "s5", f"s{t0}", F * D)
        else: srd(A, s["srd"], "s4", "s5", D * ldw)
    def issue(self, guard=False):
        A, s, e = self.A, self.s, self.A.e
        uid[0] += 1; l = f"ld{uid[0]}"
        w, t, NT = s["woff"], s["t0"], self.NT
        if guard: e(f"s_cmp_ge_u32 s{s['p']}, {NT}"); e(f"s_cbranch_scc1 {l}")
        e(f"s_and_b32 s{t}, s{s['p']}, 3"); e(f"s_cmp_eq_u32 s{t}, s{s['r']}"); e(f"s_cselect_b32 s{t}, 3, -1")
        e(f"s_add_u32 s{w}, s{s['p']}, s{t}")
        e(f"s_add_u32 s{t}, s{w}, {NT}"); e(f"s_min_u32 s{w}, s{w}, s{t}")
        e(f"s_sub_u32 s{t}, s{w}, {NT}"); e(f"s_min_u32 s{w}, s{w}, s{t}")
        e(f"s_mul_i32 s{w}, s{w}, {64 * self.ldw}")
        e(f"s_add_u32 s{t}, s{s['lds']}, s{s['stg']}")
        for j in range(self.np):
            e(f"s_add_u32 m0, s{t}, {j * 4096}")
            e("s_nop 0")
            e(f"buffer_load_dwordx4 v{self.v + j}, s[{s['srd']}:{s['srd']+3}], s{w} offen lds")
        e(f"s_add_u32 s{s['stg']}, s{s['stg']}, {self.sb}")
        e(f"s_cmp_eq_u32 s{s['stg']}, {4 * self.sb}"); e(f"s_cselect_b32 s{s['stg']}, 0, s{s['stg']}")
        if guard: A.label(l)
        e(f"s_add_u32 s{s['p']}, s{s['p']}, 1")
    def step(self):
        A, s, e = self.A, self.s, self.A.e
        uid[0] += 1; l = f"st{uid[0]}"
        e(f"s_waitcnt vmcnt({self.np})")
        e(f"s_cmp_le_u32 s{s['p']}, {self.NT}"); e(f"s_cbranch_scc1 {l}")
        e("s_waitcnt vmcnt(0)")
        A.label(l)
        e("s_barrier")
        self.issue(guard=True)
    def loop(self, tag, n, body=None):
        A, e = self.A, self.A.e
        e(f"s_mov_b32 s43, {n}")
        if isinstance(n, str): e("s_cmp_eq_u32 s43, 0"); e(f"s_cbranch_scc1 {tag}x")
        A.label(tag)
        self.step()
        if body: body()
        e("s_sub_u32 s43, s43, 1"); e("s_cmp_lg_u32 s43, 0"); e(f"s_cbranch_scc1 {tag}")
        A.label(f"{tag}x")

class MGemm(Gemm):
    npre = 3
    def xload(self, st, q, sb):
        super().xload(st, q, sb)
        op = st.ops[-1]; st.ops[-1] = (op[0], op[1] + self.opt.get("xfl", SC1), op[2])
    def pro_w(self, st, t0, t1):
        for t in range(t0, t1): self.pro_tile(st, t, x=False)
    def pro_w_pre(self, st):
        tmp = Stream()
        self.pro_w(tmp, 0, self.npre)
        st.pre |= {op[2] for op in tmp.ops if op[0] == "vm"}
        if self.skew: self.set_woff(st, self.STAGES - 2)
        else: st.i(f"s_mov_b32 s{self.s_woff}, {(self.npre - 1) * self.BK * self.ldw}")
    def pro_w_emit(self):
        tmp = Stream()
        self.pro_w(tmp, 0, self.npre)
        for op in tmp.ops: self.A.e(op[1])
    def pro_x(self, st):
        for t in range(self.XT): self.pro_tile(st, t, w=False)
    def pro_order(self, o):
        for t in range(self.LOOK):
            for l in self.order_next(t): o(l)
    def sync2(self, st):
        st.i("s_barrier")
        rs_s(st, 2)
    def reads(self, st):
        for f in range(self.LA):
            for rd in range(2): self.wread(st, f, rd)
    def tail_fused(self, groups, x2, epi, mid):
        st = Stream()
        KS, NB, SB, LA, NT = self.KS, self.NB, self.SB, self.LA, self.NT
        assert self.XT == 1 and not self.skew and self.UN == 4 and SB == 2
        FT = KS * NB
        seq = [(t, ks, nb) for t in (NT - 4, NT - 3) for ks in range(KS) for nb in range(NB)]
        gend = []
        for g in groups:
            seq += [(t, ks, nb) for t in (NT - 2, NT - 1) for ks in range(KS) for nb in g]
            gend.append(len(seq))
        f0 = (NT - 4) * FT
        self.fmap = {f0 + i: s for i, s in enumerate(seq)}
        for i in range(LA): self.fmap[f0 + len(seq) + i] = None
        bpos, pos = self.slots()
        def xr(t, ks, sb):
            return (x2 if t == NT - 2 else self.xfrag0) + (ks * SB + sb) * 4
        def xld(t, ks, sb, so):
            r = xr(t, ks, sb)
            st.vm(f"buffer_load_dwordx4 v[{r}:{r+3}], v{self.vxoff}, s[{self.srd_x}:{self.srd_x+3}], {so} offen offset:{(ks*2+sb)*1024}{SC1}", ("X", t * KS + ks, sb))
        seen = set(); fill = []; gi = 0
        for i, (t, ks, nb) in enumerate(seq):
            f = f0 + i
            for sb in range(SB):
                m = (i % FT) * SB + sb
                vmw = None
                if (t, ks, sb) not in seen: seen.add((t, ks, sb)); vmw = [("X", t * KS + ks, sb)]
                dsw = [("R", f + k, rd) for k in range(self.WG) for rd in range(2) if self.fmap[f + k]] if (sb == 0 and i % self.WG == 0) else None
                if vmw or dsw: st.wait(vm=vmw, ds=dsw)
                dj = []
                if i < FT:
                    dj = [(NT - 2, j) for j in range(self.npieces) if pos[j] == m and m <= bpos]
                    dj += [(NT - 1, j) for j in range(self.npieces) if m == bpos + 2 + 3 * j]
                for (tt, j) in dj: self.dma_m0(st, tt, j)
                w = self.wreg(f); x = xr(t, ks, sb); a = self.acc(nb, sb)
                st.i(f"{self.op} {a}, v[{w}:{w+3}], v[{x}:{x+3}], {a}")
                for (tt, j) in dj: self.dma_ld(st, tt, j)
                if i == 0 and sb == 0:
                    st.i(f"s_mov_b32 s{self.s_xoff}, {(NT - 3) * self.XB}"); st.i(f"s_mov_b32 s31, {(NT - 2) * self.XB}"); st.i(f"s_mov_b32 s32, {(NT - 1) * self.XB}")
                if i < 2 * FT and m == bpos:
                    need = [NT - 3] if i < FT else [NT - 2, NT - 1]
                    st.wait(vm=[("W", tt, j) for tt in need for j in range(self.npieces)])
                    st.i("s_barrier")
                    if i < FT: self.set_woff(st, NT - 1)
                self.wread(st, f + LA, sb)
                if i < 2 * FT and nb == NB - 1:
                    if i < FT: xld(NT - 3, ks, sb, f"s{self.s_xoff}")
                    else: xld(NT - 1, ks, sb, "s32")
                if FT <= i < FT + 8 and i % 2 == 0 and sb == 0:
                    k = (i - FT) // 2; xld(NT - 2, k // 2, k % 2, "s31")
                if len(seen) == 4 * KS * SB and mid:
                    for l in mid: st.i(l)
                    mid = None
                if gi > 0 and fill:
                    left = (gend[gi] - i) * SB - sb
                    start = gend[gi - 1]
                    if (i - start) * SB + sb >= 4:
                        n = len(fill) if self.opt.get("blk") else -(-len(fill) // left)
                        for l in fill[:n]: st.i(l)
                        fill = fill[n:]
            if gi < len(gend) and i + 1 == gend[gi]:
                assert not fill
                fill = epi(gi); gi += 1
                if self.opt.get("gbar") and gi < len(gend): st.i("s_barrier")
                if self.opt.get("gflip") and gi < len(gend):
                    st.i(f"s_cmp_{'lt' if gi % 2 else 'ge'}_u32 s{S_WV}, 4\n    s_cbranch_scc1 {self.name}_gf{gi}\n    s_setprio 0\n    s_branch {self.name}_gg{gi}\n{self.name}_gf{gi}:\n    s_setprio 1\n{self.name}_gg{gi}:")
            if self.opt.get("hbar") and gi > 0 and gi < len(gend) and i + 1 == (gend[gi] + gend[gi - 1]) // 2: st.i("s_barrier")
        st.i("s_nop 7")
        for l in fill: st.i(l)
        return st
    def emit_tail(self, pro, tail, loop_end, between):
        A = self.A
        pl, bl, tl = resolve(pro, [self.body(it) for it in range(3)], tail)
        for l in pl: A.e(l)
        if gen.STAMP: A.e("s_waitcnt lgkmcnt(0)"); rs(A, 3); A.e("s_waitcnt lgkmcnt(0)")
        A.e(f"s_mov_b32 s{self.s_it}, 4")
        A.e(".p2align 6")
        A.label(f"{self.name}_loop")
        for l in bl: A.e(l)
        A.e(f"s_sub_u32 s{self.s_it}, s{self.s_it}, 1")
        loop_end()
        A.e(f"s_cmp_lg_u32 s{self.s_it}, 1")
        A.e(f"s_cbranch_scc1 {self.name}_loop")
        between()
        for l in tl: A.e(l)
        rs(A, 4)
    def emit(self, pro, loop_end=None):
        A = self.A
        nit = self.NT // self.UN
        pl, bl = resolve(pro, [self.body(it) for it in range(nit)])
        for l in pl: A.e(l)
        if gen.STAMP: A.e("s_waitcnt lgkmcnt(0)"); rs(A, 3); A.e("s_waitcnt lgkmcnt(0)")
        A.e(f"s_mov_b32 s{self.s_it}, {nit}")
        A.e(".p2align 6")
        A.label(f"{self.name}_loop")
        for l in bl: A.e(l)
        A.e(f"s_sub_u32 s{self.s_it}, s{self.s_it}, 1")
        if loop_end: loop_end()
        A.e(f"s_cmp_lg_u32 s{self.s_it}, 0")
        A.e(f"s_cbranch_scc1 {self.name}_loop")
        rs(A, 4)

def unpack_pk(l):
    import re
    m = re.match(r"v_pk_(mul|fma)_f32 (.*?)(?: op_sel_hi:\[(.*)\])?$", l)
    if not m: return [l]
    regs = [int(x) for x in re.findall(r"v\[(\d+):", m.group(2))]
    hi = [1] + [int(x) for x in (m.group(3) or "1,1,1").split(",")]
    return [f"v_{m.group(1)}_f32 " + ", ".join(f"v{r + (k and hi[i])}" for i, r in enumerate(regs)) for k in (0, 1)]

def sync1(A):
    A.e("s_waitcnt vmcnt(0)")
    A.e("s_barrier")
    rs(A, 1)

def proj_coords(A, sm, sn, t0, t1):
    e = A.e
    e(f"s_and_b32 s{t0}, s2, 7"); e(f"s_lshr_b32 s{t1}, s2, 3")
    e(f"s_lshr_b32 s{sm}, s{t0}, 1"); e(f"s_lshl_b32 s{sm}, s{sm}, 2"); e(f"s_lshr_b32 s{sn}, s{t1}, 3"); e(f"s_add_u32 s{sm}, s{sm}, s{sn}")
    e(f"s_and_b32 s{sn}, s{t0}, 1"); e(f"s_and_b32 s{t1}, s{t1}, 7"); e(f"s_lshl_b32 s{t1}, s{t1}, 1"); e(f"s_add_u32 s{sn}, s{sn}, s{t1}")

def p_proj(A, tag, K, down, nxt, opt=None):
    e = A.e
    opt = opt or {}
    T = 16
    ldw = D * 2
    split = down and opt.get("split", 1)
    A.label(tag)
    phase_begin(A)
    if down: e(f"s_load_dwordx2 s[6:7], s[0:1], {KA['out']}")
    proj_coords(A, 33, 34, 31, 32)
    e("s_lshr_b32 s45, s33, 1")
    if down:
        e("s_and_b32 s31, s33, 14"); e("s_and_b32 s32, s34, 1"); e("s_add_u32 s31, s31, s32")
        set_poll(A, 31, cU, 16)
    else: set_poll(A, 33, cA, 16)
    e(f"s_cmp_ge_u32 s{S_WV}, 4"); e(f"s_cbranch_scc1 {tag}_idle")
    VP, VF, VXO, VT = 1, 5, 9, 10
    ACC, RES, WF = 16, V_RES, 80
    XF = WF + 32
    e(f"v_and_b32 v{VXO}, 63, v0"); e(f"v_lshlrev_b32 v{VXO}, 4, v{VXO}")
    e(f"s_lshl_b32 s35, s33, 2"); e(f"s_add_u32 s35, s35, s{S_WV}")
    e(f"s_lshl_b32 s37, s35, 16"); e("s_lshl_b32 s38, s34, 12"); e("s_add_u32 s37, s37, s38")
    if not down: e(f"s_add_u32 s37, s37, {WS_XB}")
    srd_off(A, 20, "s28", "s29", "s37", 4096)
    assert split or not down
    lane_consts_fullline(A, 16, ldw, VT, VP, VF)
    sb, rot = (16384, 2) if split else (8192, 0)
    opt = dict(opt); opt["now"] = 1
    G = MGemm(A, tag, T=16, NB=8 if split else 4, RG=1, K=K // 2 if split else K, STAGES=4, XT=opt.get("XT", 2), NWR=8,
              LA=opt.get("LA", 6 if split else 4), WG=2, npieces=1, stage_bytes=sb, piece_lds=None,
              frag_addr=fullline_frag_addr(16, VF, 64, lambda stg: (0, ((stg + rot) % 4) * sb)),
              acc=blk_acc(16, "v", ACC, 1), wfrag0=WF, xfrag0=XF, vpiece0=VP, vxoff=VXO,
              srd_w=8, srd_x=12, s_woff=41, s_xoff=42, s_ldsw=40, s_it=43, ldw=ldw, opt=opt)
    e("s_lshr_b32 s36, s34, 1"); e("s_add_u32 s36, s36, s33"); e("s_and_b32 s36, s36, 3")
    G.order_init(36)
    G.pro_order(e)
    for i in range(4): e(f"v_add_u32 v{VF+i}, {LDS_R if split else LDS_P}, v{VF+i}")
    e(f"s_mul_i32 s36, s35, {F*64}"); e(f"s_add_u32 s36, s36, {WS_H}")
    if split:
        e("s_and_b32 s37, s34, 1"); e(f"s_mul_i32 s37, s37, {K*32}"); e("s_add_u32 s36, s36, s37")
    srd_off(A, 12, "s28", "s29", "s36", G.K * 64)
    e("s_waitcnt lgkmcnt(0)")
    sync1(A)
    p = Stream()
    G.reads(p)
    for i in range(16):
        p.i(f"v_lshlrev_b32 v{ACC+2*i}, 16, v{RES+i}")
        p.i(f"v_and_b32 v{ACC+2*i+1}, 0xffff0000, v{RES+i}")
    if split:
        for i in range(0, 32, 2): p.i(f"v_pk_mov_b32 v[{ACC+32+i}:{ACC+33+i}], 0, 0")
    G.sync2(p)
    G.pro_x(p)
    G.emit(p)
    if split:
        e(f"s_lshl_b32 s36, s2, 2"); e(f"s_add_u32 s36, s36, s{S_WV}"); e("s_lshl_b32 s36, s36, 12"); e("s_xor_b32 s37, s36, 0x4000")
        srd_off(A, 16, "s28", "s29", WS_XC, 4 * MB)
        e("s_mov_b32 s50, 0x40000")
        for i in range(16):
            e(f"v_cvt_pk_bf16_f32 v{RES+i}, v{ACC+32+2*i}, v{ACC+33+2*i}")
            if i % 4 == 3:
                e(f"buffer_store_dwordx4 v[{RES+i-3}:{RES+i}], v{VXO}, s[16:19], s37 offen offset:{(i//4)*1024}{SC1}")
        X2 = ACC + 32
        xm = opt.get("xm", 0)
        if xm != 2: e("s_waitcnt vmcnt(0)")
        if gen.STAMP: e("s_memrealtime s[8:9]"); e("s_waitcnt lgkmcnt(0)"); e("s_mov_b32 s4, s8")
        if xm == 0: e(f"s_branch {tag}_xp")
        A.label(f"{tag}_xr")
        e("s_mov_b64 exec, 1")
        A.label(f"{tag}_xl")
        e(f"v_mov_b32 v{X2}, 0")
        e(f"buffer_atomic_add v{X2}, v{VXO}, s[16:19], s36 offen offset:4092 sc0 sc1")
        e("s_sub_u32 s50, s50, 1"); e(f"s_cbranch_scc1 {tag}_xm")
        e("s_waitcnt vmcnt(0)")
        e(f"v_readfirstlane_b32 s51, v{X2}")
        e("s_cmp_eq_u32 s51, -1"); e(f"s_cbranch_scc1 {tag}_xl")
        A.label(f"{tag}_xm")
        e("s_mov_b64 exec, -1")
        e("s_max_i32 s50, s50, 0")
        A.label(f"{tag}_xp")
        for i in range(4):
            e(f"buffer_load_dwordx4 v[{X2+4*i}:{X2+4*i+3}], v{VXO}, s[16:19], s36 offen offset:{i*1024}{SC1}")
        e("s_sub_u32 s50, s50, 1"); e(f"s_cbranch_scc1 {tag}_xd")
        e("s_waitcnt vmcnt(0)")
        e(f"v_max3_u32 v{VT}, v{X2}, v{X2+1}, v{X2+2}")
        e(f"v_max3_u32 v{VT+1}, v{X2+3}, v{X2+4}, v{X2+5}")
        for i in range(6, 14, 4):
            e(f"v_max3_u32 v{VT}, v{VT}, v{X2+i}, v{X2+i+1}")
            e(f"v_max3_u32 v{VT+1}, v{VT+1}, v{X2+i+2}, v{X2+i+3}")
        e(f"v_max3_u32 v{VT}, v{VT}, v{X2+14}, v{X2+15}")
        e(f"v_max_u32 v{VT}, v{VT}, v{VT+1}")
        e(f"v_cmp_eq_u32 vcc, -1, v{VT}")
        e("s_nop 4")
        e(f"s_cbranch_vccnz {tag}_xr")
        A.label(f"{tag}_xd")
        e("s_waitcnt vmcnt(0)")
        if gen.STAMP: e("s_memrealtime s[8:9]"); e("s_waitcnt lgkmcnt(0)"); e("s_mov_b32 s5, s8")
        T2 = X2 + 16
        for i in range(16):
            t = T2 + 2 * (i % 8)
            e(f"v_lshlrev_b32 v{t}, 16, v{X2+i}"); e(f"v_and_b32 v{t+1}, 0xffff0000, v{X2+i}")
            e(f"v_pk_add_f32 v[{ACC+2*i}:{ACC+2*i+1}], v[{ACC+2*i}:{ACC+2*i+1}], v[{t}:{t+1}]")
    if down:
        e(f"s_cmp_lg_u32 s{S_LAYER}, 0"); e(f"s_cbranch_scc1 {tag}_final")
    e("s_lshl_b32 s36, s35, 12"); e("s_lshl_b32 s37, s34, 8"); e("s_add_u32 s36, s36, s37")
    srd_off(A, 24, "s28", "s29", WS_ST if down else WS_STB, 64 * 4096)
    for i in range(16):
        e(f"v_cvt_pk_bf16_f32 v{RES+i}, v{ACC+2*i}, v{ACC+2*i+1}")
        if i % 4 == 3:
            e(f"buffer_store_dwordx4 v[{RES+i-3}:{RES+i}], v{VXO}, s[20:23], 0 offen offset:{(i//4)*1024}{SC1}")
    stats_emit(A, T, [RES + i for i in range(16)], VT)
    e(f"v_lshrrev_b32 v{VXO}, 2, v{VXO}")
    e(f"buffer_store_dword v{VT}, v{VXO}, s[24:27], s36 offen{SC1}")
    stamps_flush(A)
    A.label(f"{tag}_out")
    if down:
        e("s_and_b32 s31, s33, 7"); e("s_and_b32 s32, s33, 8"); e("s_lshl_b32 s32, s32, 3"); e("s_add_u32 s31, s31, s32")
        set_signal(A, 31, cD)
        e(f"s_cmp_lg_u32 s{S_LAYER}, 0"); e(f"s_cbranch_scc1 {NAME}_end")
        e(f"s_mov_b32 s{S_LAYER}, 1")
    else:
        set_signal(A, 45, cO)
    e(f"s_branch {nxt}")
    if down:
        A.label(f"{tag}_final")
        srd(A, 24, "s6", "s7", S * D * 2)
        rowmajor_lane_off(A, VT, VT + 1)
        e("s_lshl_b32 s36, s35, 16"); e("s_lshl_b32 s37, s34, 7"); e("s_add_u32 s36, s36, s37")
        e(f"s_add_u32 s37, s36, {16*2048}")
        for i in range(16):
            e(f"v_cvt_pk_bf16_f32 v{RES+i}, v{ACC+2*i}, v{ACC+2*i+1}")
        e("s_nop 0")
        for i in range(4):
            e(f"v_permlane16_swap_b32 v{RES+4*i}, v{RES+4*i+2}")
            e(f"v_permlane16_swap_b32 v{RES+4*i+1}, v{RES+4*i+3}")
        e("s_nop 1")
        for i in range(4):
            so, off = rowmajor_frag(i, "s36", "s37")
            e(f"buffer_store_dwordx4 v[{RES+4*i}:{RES+4*i+3}], v{VT}, s[24:27], {so} offen offset:{off}{opt.get('ofl', '')}")
        if gen.STAMP: e("s_waitcnt vmcnt(0)")
        stamps_flush(A)
        e(f"s_branch {NAME}_end")
    if down:
        LD = Loader(A, "down", SET_A, 130, first=2)
        NX = Loader(A, "qkv", SET_B, 140)
        idle_head(A, tag, pre=lambda: (LD.setup(coords=False), NX.setup()))
        LD.issue()
        LD.loop(f"{tag}_i3", G.NT - 2)
        e(f"s_cmp_lg_u32 s{S_LAYER}, 0"); e(f"s_cbranch_scc1 {tag}_i5")
        NX.issue()
        e("s_waitcnt vmcnt(6)")
        e("s_barrier")
        NX.issue(); NX.issue()
        e(f"s_branch {tag}_i6")
        A.label(f"{tag}_i5")
        e("s_waitcnt vmcnt(0)")
        e("s_barrier")
        A.label(f"{tag}_i6")
        e("s_barrier")
    else:
        LD = Loader(A, "wo", SET_A, 130, first=3)
        def early():
            e(f"s_cmp_lg_u32 s{S_LAYER}, 0"); e(f"s_cbranch_scc1 {tag}_nw")
            warm(A, [64 * i for i in range(14)], 896)
            A.label(f"{tag}_nw")
        idle_head(A, tag, early=early if SWARM else None, pre=lambda: LD.setup(coords=False))
        def wb():
            e(f"s_cmp_lg_u32 s{S_LAYER}, 0"); e(f"s_cbranch_scc1 {tag}_nw2")
            warm(A, [64 * i for i in range(5)], 320)
            A.label(f"{tag}_nw2")
        LD.loop(f"{tag}_i3", G.NT, body=wb if SWARM else None)
    idle_tail(A, f"{tag}_out")

def ffn_coords(A, sm, sn, t0, t1):
    e = A.e
    e(f"s_and_b32 s{t0}, s2, 7"); e(f"s_lshr_b32 s{t1}, s2, 3")
    e(f"s_and_b32 s{sm}, s{t0}, 1"); e(f"s_lshl_b32 s{sm}, s{sm}, 2"); e(f"s_lshr_b32 s{sn}, s{t1}, 3"); e(f"s_add_u32 s{sm}, s{sm}, s{sn}")
    e(f"s_lshr_b32 s{sn}, s{t0}, 1"); e(f"s_lshl_b32 s{sn}, s{sn}, 3"); e(f"s_and_b32 s{t1}, s{t1}, 7"); e(f"s_add_u32 s{sn}, s{sn}, s{t1}")

FGU = 16384
def ffn_wsetup(A, tag, VP, VF, VT, sn, t0, opt, regs):
    e = A.e
    ldw = F * 2
    e(f"v_and_b32 v{VT}, 63, v0")
    e(f"s_and_b32 s{t0}, s{S_WV}, 3"); e(f"s_lshl_b32 s{t0}, s{t0}, 8")
    e(f"s_mul_i32 s{t0+1}, s{sn}, 224")
    e(f"s_and_b32 s{t0+2}, s{sn}, 1"); e(f"s_lshl_b32 s{t0+2}, s{t0+2}, 1")
    e(f"s_movk_i32 s{t0+3}, 4682")
    for j in range(4):
        u, r, c = VT + 1, VT + 2, VT + 3
        e(f"v_add_u32 v{u}, s{t0}, v{VT}")
        if j: e(f"v_add_u32 v{u}, {64*j}, v{u}")
        e(f"v_mul_u32_u24 v{r}, s{t0+3}, v{u}"); e(f"v_lshrrev_b32 v{r}, 16, v{r}")
        e(f"v_mul_u32_u24 v{c}, 14, v{r}"); e(f"v_sub_u32 v{c}, v{u}, v{c}")
        e(f"v_add_u32 v{c}, s{t0+2}, v{c}")
        e(f"v_subrev_u32 v{u}, 14, v{c}"); e(f"v_min_u32 v{c}, v{c}, v{u}")
        e(f"v_mul_u32_u24 v{VP+j}, {ldw}, v{r}")
        e(f"v_lshl_add_u32 v{VP+j}, v{c}, 4, v{VP+j}")
        e(f"v_add_u32 v{VP+j}, s{t0+1}, v{VP+j}")
        if j >= 2:
            e(f"v_lshrrev_b32 v{r}, 6, v{r}"); e(f"v_lshl_add_u32 v{VP+j}, v{r}, 28, v{VP+j}")
    ACC, WF, XF, VXO = regs
    SBY = 2 * FGU
    assert not opt["skew"]
    return MGemm(A, tag, T=16, NB=14, RG=1, K=D, STAGES=4, XT=opt.get("XT", 1), NWR=8, LA=opt.get("LA", 7), WG=opt.get("WG", 2), npieces=4, stage_bytes=SBY,
                 piece_lds=lambda j: j * 1024,
                 frag_addr=lambda stg, row, nb: (VF + stg // 2, (stg % 2) * SBY + (nb % 2) * FGU + row * 224 + 32 * (nb // 2)),
                 acc=blk_acc(16, "v", ACC, 1), wfrag0=WF, xfrag0=XF, vpiece0=VP, vxoff=VXO,
                 srd_w=8, srd_x=12, s_woff=41, s_xoff=42, s_ldsw=40, s_it=43, ldw=ldw, opt=opt)

def ffn_prefetch(A, vt, opt):
    opt = dict(opt or {}); opt.setdefault("skew", 0)
    h = {}
    def setup():
        A.e(f"s_load_dwordx4 s[84:87], s[0:1], {KA['wg']}")
        ffn_coords(A, 16, 17, 18, 19)
        h["G"] = ffn_wsetup(A, "x", vt, 0, vt + 4, 17, 20, opt, (0, 0, 0, 0))
        A.e("s_waitcnt lgkmcnt(0)")
    def issue(t):
        G = h["G"]
        if True:
            for m in range(2):
                srd(A, 8, f"s{84+2*m}", f"s{85+2*m}", D * F * 2)
                A.e(f"s_and_b32 s40, s{S_WV}, 3"); A.e("s_lshl_b32 s40, s40, 12")
                if m: A.e(f"s_add_u32 s40, s40, {FGU}")
                A.e(f"s_mov_b32 s41, {((t - 1) * 64 * F * 2) & 0xffffffff:#x}")
                tmp = Stream(); G.pro_w(tmp, t, t + 1)
                for op in tmp.ops: A.e(op[1])
    return setup, issue

def p_ffn(A, tag, nxt, opt=None):
    e = A.e
    opt = dict(opt or {}); opt.setdefault("skew", 0); opt.setdefault("prio47", 1)
    XT = opt.get("XT", 1)
    ldw = F * 2
    SBY = 2 * FGU
    A.label(tag)
    phase_begin(A)
    e(f"s_load_dwordx4 s[4:7], s[0:1], {KA['wg']}")
    VP, VF, VXO, VMN, VRS, VT = 1, 5, 7, 8, 10, 12
    WF = 20; XF = WF + 32
    ACC = XF + XT * 16
    SC = ACC + 112; CSR = SC + 16
    assert CSR + 28 <= 254
    ffn_coords(A, 33, 34, 31, 32)
    set_poll(A, 33, cO, 32)
    e(f"s_lshl_b32 s35, s33, 3"); e(f"s_add_u32 s35, s35, s{S_WV}")
    e(f"s_lshr_b32 s37, s{S_WV}, 2")
    e(f"s_lshl_b32 s40, s{S_WV}, 12")
    e("s_and_b32 s45, s34, 1")
    e(f"v_and_b32 v{VT}, 63, v0")
    e(f"v_lshlrev_b32 v{VXO}, 4, v{VT}")
    e("s_lshl_b32 s36, s35, 16"); e(f"s_add_u32 s36, s36, {WS_XB}")
    srd_off(A, 12, "s28", "s29", "s36", D * 64)
    e(f"v_and_b32 v{VT+1}, 3, v{VT}"); e(f"v_lshlrev_b32 v{VF}, 3, v{VT+1}")
    e(f"v_lshrrev_b32 v{VT+1}, 2, v{VT}"); e(f"v_mul_u32_u24 v{VT+1}, 224, v{VT+1}"); e(f"v_add_u32 v{VF}, v{VF}, v{VT+1}")
    e(f"v_add_u32 v{VF+1}, {2*SBY}, v{VF}")
    e("s_lshl_b32 s38, s35, 12"); e(f"s_add_u32 s38, s38, {WS_STB}")
    e(f"s_mul_i32 s39, s34, {112*32}"); e(f"s_add_u32 s39, s39, {WS_CS2}")
    srd_off(A, 20, "s28", "s29", "s38", 4096)
    srd_off(A, 24, "s28", "s29", "s39", (F + 112) * 32)
    e(f"s_mov_b32 s10, {D*ldw}"); e("s_mov_b32 s11, 0x00020000")
    e("s_cmp_eq_u32 s37, 0")
    e("s_waitcnt lgkmcnt(0)")
    e("s_cselect_b32 s8, s4, s6"); e("s_cselect_b32 s9, s5, s7")
    h = {}
    def setup2():
        h["G"] = G = ffn_wsetup(A, tag, VP, VF, VT, 34, 46, opt, (ACC, WF, XF, VXO))
        G.order_init(None)
        e(f"v_lshlrev_b32 v{VT+1}, 2, v{VT}"); e(f"v_add_u32 v{VT+1}, {LDS_P}, v{VT+1}")
        e(f"s_add_u32 s30, s37, 1")
        if not SWARM:
            e(f"s_load_dwordx2 s[88:89], s[0:1], {KA['wd']}")
            e(f"s_mov_b32 s90, {F*D*2}"); e("s_mov_b32 s91, 0x00020000")
            e(f"s_lshl_b32 s44, s2, 2"); e(f"s_add_u32 s44, s44, s{S_WV}"); e("s_mul_i32 s44, s44, 7168"); e("s_add_u32 s46, s44, 4096")
            NB_ = opt.get("wst", 11)
            e("s_lshr_b32 s31, s2, 3"); e("s_and_b32 s32, s2, 7"); e("s_lshl_b32 s32, s32, 1"); e("s_add_u32 s31, s31, s32")
            e(f"s_mul_i32 s32, s31, {65536 // NB_ + 1}"); e("s_lshr_b32 s32, s32, 16"); e(f"s_mul_i32 s32, s32, {NB_}"); e("s_sub_u32 s31, s31, s32")
            e("s_add_u32 s31, s31, 1"); e("s_lshl_b32 s47, s31, 12")
            e(f"s_lshr_b32 s31, s{S_WV}, 2"); e(f"s_or_b32 s31, s31, s{S_LAYER}"); e("s_cmp_lg_u32 s31, 0"); e("s_cselect_b32 s47, -1, s47")
            e("s_waitcnt lgkmcnt(0)")
            cnt_ = [0]
            def tile_hook(st):
                cnt_[0] += 1
                l = f"{tag}_wb{cnt_[0] % G.UN}"
                st.i(f"s_cmp_lg_u32 s42, s47\n    s_cbranch_scc1 {l}\n" + "".join(
                    f"    buffer_load_dwordx4 v[244:247], v{VXO}, s[88:91], {'s44' if i < 4 else 's46'} offen offset:{(i % 4) * 1024}\n" for i in range(7)) + f"{l}:")
            G.tile_hook = tile_hook
        for i in range(0, 112, 2): e(f"v_pk_mov_b32 v[{ACC+i}:{ACC+i+1}], 0, 0")
    e(f"s_cmp_lt_u32 s{S_WV}, 4"); e(f"s_cbranch_scc1 {tag}_lo")
    e(f"s_cmp_lg_u32 s{S_WV}, 4"); e(f"s_cbranch_scc1 {tag}_c1")
    if True:
        e(f"v_and_b32 v{VT+1}, 15, v{VT}"); e(f"v_bfe_u32 v{VT+2}, v{VT}, 4, 1"); e(f"v_mul_u32_u24 v{VT+2}, {F}, v{VT+2}")
        e(f"v_add_lshl_u32 v{VT+1}, v{VT+1}, v{VT+2}, 5")
        e(f"v_lshrrev_b32 v{VT+2}, 5, v{VT}"); e(f"v_lshl_add_u32 v{VT+1}, v{VT+2}, 4, v{VT+1}")
        e("s_lshl_b32 s48, s45, 9")
        e("s_mul_i32 s49, s45, 3072"); e("s_sub_u32 s49, 3072, s49")
        for j in range(7):
            so, off = ("s48", j * 512) if j < 6 else ("s49", 0)
            e(f"buffer_load_dwordx4 v[{CSR+4*j}:{CSR+4*j+3}], v{VT+1}, s[24:27], {so} offen offset:{off}{SC1}")
    A.label(f"{tag}_c1")
    setup2()
    sync1(A)
    e(f"s_cmp_lg_u32 s{S_WV}, 4"); e(f"s_cbranch_scc1 {tag}_c2")
    for j in range(7): e(f"v_pk_add_f32 v[{CSR+4*j}:{CSR+4*j+1}], v[{CSR+4*j}:{CSR+4*j+1}], v[{CSR+4*j+2}:{CSR+4*j+3}]")
    for j in range(7): e(f"v_add_f32 v{CSR+4*j}, v{CSR+4*j}, v{CSR+4*j+1}")
    for j in range(7): e(f"v_mov_b32 v{CSR+4*j+1}, v{CSR+4*j}")
    e("s_nop 1")
    for j in range(7): e(f"v_permlane32_swap_b32 v{CSR+4*j}, v{CSR+4*j+1}")
    e("s_nop 1")
    for j in range(7): e(f"v_add_f32 v{CSR+4*j}, v{CSR+4*j}, v{CSR+4*j+1}")
    for j in range(7): e(f"ds_write_b32 v{VT+1}, v{CSR+4*j} offset:{j*256}")
    A.label(f"{tag}_c2")
    e(f"s_cmp_lg_u32 s{S_WV}, 7"); e(f"s_cbranch_scc1 {tag}_join")
    do_signal(e, VT + 4, VT + 5, wait=False)
    e(f"s_branch {tag}_join")
    A.label(f"{tag}_lo")
    sync1(A)
    setup2()
    A.label(f"{tag}_join")
    G = h["G"]
    nit = G.NT // G.UN
    p = Stream()
    G.npre = 2
    G.pro_w_pre(p)
    G.reads(p)
    p.i(f"s_cmp_lg_u32 s{S_WV}, 7"); p.i(f"s_cbranch_scc1 {tag}_nopoll")
    if not NOWAIT: p.i("s_waitcnt vmcnt(0)")
    if gen.STAMP: p.i("s_memrealtime s[62:63]")
    do_poll(p.i, VT + 4, VT + 6, tag)
    p.i(f"{tag}_nopoll:")
    G.sync2(p)
    G.pro_x(p)
    G.pro_w(p, 2, 3)
    if opt.get("prio47"):
        p.i(f"s_cmp_lt_u32 s{S_WV}, 4"); p.i(f"s_cbranch_scc1 {tag}_np"); p.i("s_setprio 1"); p.i(f"{tag}_np:")
    def fix():
        e("s_add_u32 s31, s30, 1"); e("s_cmp_lg_u32 s43, s31"); e(f"s_cbranch_scc1 {tag}_nold")
        e(f"v_lshrrev_b32 v{VT+2}, 2, v{VXO}")
        for i in range(16):
            e(f"buffer_load_dword v{SC+i}, v{VT+2}, s[20:23], 0 offen offset:{i*256}{SC1}")
        A.label(f"{tag}_nold")
        e(f"s_cmp_lg_u32 s43, s30")
        e(f"s_cbranch_scc1 {tag}_nofix")
        for j in range(7): e(f"ds_read_b32 v{CSR+4*j}, v{VT+1} offset:{j*256}")
        stats_finish(e, SC, VT + 4, VMN, VRS)
        split16(e, VRS, VRS + 1)
        split16(e, VMN, VT + 4)
        e("s_waitcnt lgkmcnt(0)")
        e(f"v_permlane32_swap_b32 v{VMN}, v{VT+4}"); e("s_nop 1")
        for j in range(7):
            r = ACC + j * 16
            e(f"v_mfma_f32_16x16x1_4b_f32 v[{r}:{r+15}], v{CSR+4*j}, v{VMN}, v[{r}:{r+15}]")
        A.label(f"{tag}_nofix")
    assert CSR + 28 <= 224 and nit == 4 and CSR % 2 == 0
    C1, C2, TB, OB = CSR, CSR + 4, CSR + 8, CSR + 16
    NX = Loader(A, "down", SET_C, 224)
    def between():
        for k in range(2):
            e(f"v_mul_f32 v{C1+2*k}, {NLOG2E:#x}, v{VRS+k}")
            e(f"v_mul_f32 v{C2+2*k}, v{VRS+k}, v{VRS+k}")
            e(f"v_rcp_f32 v{C2+2*k}, v{C2+2*k}")
        e(f"s_mul_i32 s36, s35, {F*64}"); e(f"s_add_u32 s36, s36, {WS_H}")
        srd_off(A, 20, "s28", "s29", "s36", F * 64)
        e("s_mul_i32 s38, s34, 7"); e("s_add_u32 s38, s38, s45"); e("s_lshl_b32 s38, s38, 10")
        e("s_mul_i32 s39, s45, 8184"); e("s_add_u32 s46, s38, 6144"); e("s_sub_u32 s39, s46, s39")
        e("s_add_u32 s46, s38, 4096")
        e(f"s_cmp_lt_u32 s{S_WV}, 4"); e(f"s_cbranch_scc1 {tag}_res")
        NX.setup()
        e(f"s_branch {tag}_nopre")
        A.label(f"{tag}_res")
        proj_coords(A, 16, 17, 18, 19)
        e(f"s_lshl_b32 s16, s16, 2"); e(f"s_add_u32 s16, s16, s{S_WV}"); e("s_lshl_b32 s16, s16, 16"); e("s_lshl_b32 s17, s17, 12"); e("s_add_u32 s16, s16, s17")
        e(f"s_add_u32 s16, s16, {WS_XB}")
        srd_off(A, 24, "s28", "s29", "s16", 4096)
        e("v_pk_mov_b32 v[224:225], 0, 0"); e("v_pk_mov_b32 v[226:227], 0, 0")
        A.label(f"{tag}_nopre")
    def capture(fn):
        n0 = len(A.lines); fn(); out = [l.strip() for l in A.lines[n0:]]; del A.lines[n0:]
        return out
    def midf():
        e(f"s_cmp_lt_u32 s{S_WV}, 4"); e(f"s_cbranch_scc1 {tag}_res2")
        NX.issue(); NX.issue()
        e(f"s_branch {tag}_nopre2")
        A.label(f"{tag}_res2")
        for i in range(4):
            e(f"buffer_load_dwordx4 v[{V_RES+4*i}:{V_RES+3+4*i}], v{VXO}, s[24:27], 0 offen offset:{i*1024}{SC1}")
        A.label(f"{tag}_nopre2")
    def silu(blocks, k, out):
        for b, r in enumerate(blocks):
            for i in (0, 2): e(f"v_pk_mul_f32 v[{TB+4*b+i}:{TB+4*b+i+1}], v[{r+i}:{r+i+1}], v[{C1+2*k}:{C1+2*k+1}] op_sel_hi:[1,0]")
        for i in range(4 * len(blocks)): e(f"v_exp_f32 v{TB+i}, v{TB+i}")
        for b, r in enumerate(blocks):
            for i in (0, 2): e(f"v_pk_mul_f32 v[{r+i}:{r+i+1}], v[{r+i}:{r+i+1}], v[{r+4+i}:{r+5+i}]")
        for i in range(0, 4 * len(blocks), 2):
            e(f"v_pk_fma_f32 v[{TB+i}:{TB+i+1}], v[{TB+i}:{TB+i+1}], v[{C2+2*k}:{C2+2*k+1}], v[{C2+2*k}:{C2+2*k+1}] op_sel_hi:[1,0,0]")
        for i in range(4 * len(blocks)): e(f"v_rcp_f32 v{TB+i}, v{TB+i}")
        for b, r in enumerate(blocks):
            for i in (0, 2): e(f"v_pk_mul_f32 v[{r+i}:{r+i+1}], v[{r+i}:{r+i+1}], v[{TB+4*b+i}:{TB+4*b+i+1}]")
        for b, r in enumerate(blocks):
            for i in (0, 2): e(f"v_cvt_pk_bf16_f32 v{out+2*b+i//2}, v{r+i}, v{r+i+1}")
    def epi(pj):
        def f():
            for sb in range(2):
                ob = OB + 4 * ((2 * pj + sb) % 3)
                silu([ACC + (2 * pj + jj) * 16 + 8 * sb for jj in range(2 if pj < 3 else 1)], sb, ob)
                if pj < 3:
                    so, off = ("s38", pj * 2048 + sb * 1024) if pj < 2 else ("s46", sb * 1024)
                    e(f"buffer_store_dwordx4 v[{ob}:{ob+3}], v{VXO}, s[20:23], {so} offen offset:{off}{SC1}")
                else:
                    e(f"buffer_store_dwordx2 v[{ob}:{ob+1}], v{VXO}, s[20:23], s39 offen offset:{sb*1024}{SC1}")
        out = capture(f)
        if opt.get("unpk", 1) and pj < 3: out = [x for l in out for x in unpack_pk(l)]
        return out
    tail = G.tail_fused([[0, 1, 2, 3], [4, 5, 6, 7], [8, 9, 10, 11], [12, 13]], SC, epi, capture(midf))
    G.emit_tail(p, tail, fix, between)
    if opt.get("prio47"): e("s_setprio 0")
    stamps_flush(A)
    e("s_lshl_b32 s31, s33, 1"); e("s_lshr_b32 s32, s34, 4"); e("s_add_u32 s31, s31, s32")
    set_signal(A, 31, cU)
    e(f"s_branch {nxt}")

def qkv_coords(A, sm, sn, t0, t1):
    e = A.e
    e(f"s_and_b32 s{t0}, s2, 7"); e(f"s_lshr_b32 s{t1}, s2, 3")
    e(f"s_and_b32 s{sm}, s{t0}, 1"); e(f"s_lshl_b32 s{sm}, s{sm}, 3"); e(f"s_lshr_b32 s{sn}, s{t1}, 2"); e(f"s_add_u32 s{sm}, s{sm}, s{sn}")
    e(f"s_lshr_b32 s{sn}, s{t0}, 1"); e(f"s_lshl_b32 s{sn}, s{sn}, 2"); e(f"s_and_b32 s{t1}, s{t1}, 3"); e(f"s_add_u32 s{sn}, s{sn}, s{t1}")

def p_qkv(A, tag, nxt, fpre, opt=None):
    e = A.e
    opt = dict(opt or {})
    XT = opt.get("XT", 2)
    ldw = 3 * D * 2
    A.label(tag)
    phase_begin(A, True)
    qkv_coords(A, 33, 34, 31, 32)
    e("s_and_b32 s31, s33, 7"); e("s_and_b32 s32, s33, 8"); e("s_lshl_b32 s32, s32, 3"); e("s_add_u32 s31, s31, s32")
    set_poll(A, 31, cD, 16, prev_layer=True)
    e(f"s_cmp_ge_u32 s{S_WV}, 4"); e(f"s_cbranch_scc1 {tag}_idle")
    VF, VXO, VA, VT = 1, 9, 10, 16
    ACC = 32; WF = ACC + 96; XF = WF + 32; RR = XF + 32; KL = RR + 8
    CSR = KL + 8; QR = CSR + 12
    assert QR + 8 <= V_RES and XT <= 2
    LCS = LDS_Z + 4096
    LST = LDS_Z + 2048
    e(f"v_and_b32 v{VXO}, 63, v0"); e(f"v_lshlrev_b32 v{VXO}, 4, v{VXO}")
    lane_consts_fullline(A, 16, ldw, VT, VT + 3, VF)
    for i in range(4): e(f"v_add_u32 v{VF+4+i}, {2*QSBY}, v{VF+i}")
    opt["now"] = 1
    def acc(nb, sb):
        blk, lo = divmod(nb, 2)
        r = ACC + blk * 16 + (sb * 8 + lo * 4 if blk < 2 else lo * 8 + sb * 4)
        return f"v[{r}:{r+3}]"
    G = MGemm(A, tag, T=16, NB=12, RG=1, K=D, STAGES=4, XT=XT, NWR=8, LA=opt.get("LA", 4), WG=opt.get("WG", 2), npieces=1, stage_bytes=QSBY, piece_lds=None,
              frag_addr=fullline_frag_addr(16, VF, 64, lambda stg: (4 * (stg // 2), (stg % 2) * QSBY)),
              acc=acc, wfrag0=WF, xfrag0=XF, vpiece0=0, vxoff=VXO,
              srd_w=8, srd_x=12, s_woff=41, s_xoff=42, s_ldsw=40, s_it=43, ldw=ldw,
              swap=[nb >= 4 for nb in range(12)], opt=opt)
    e("s_add_u32 s36, s33, s34"); e("s_and_b32 s36, s36, 3")
    G.order_init(36)
    G.pro_order(e)
    e(f"s_lshl_b32 s35, s33, 2"); e(f"s_add_u32 s35, s35, s{S_WV}")
    e("s_lshl_b32 s36, s35, 16")
    srd_off(A, 12, "s28", "s29", "s36", D * 64)
    sync1(A)
    p = Stream()
    G.reads(p)
    o = p.i
    for i in range(0, 96, 2): o(f"v_pk_mov_b32 v[{ACC+i}:{ACC+i+1}], 0, 0")
    VC = VT + 8
    o(f"s_lshl_b32 s38, s{S_WV}, 9"); o(f"s_add_u32 s38, s38, {LST}"); o(f"s_sub_u32 s39, {LCS}, s38")
    o(f"v_and_b32 v{VC+2}, 31, v{VT}"); o(f"v_lshl_add_u32 v{VC+2}, v{VC+2}, 2, s38")
    o(f"v_and_b32 v{VC+4}, 15, v{VT}"); o(f"v_lshl_add_u32 v{VC+4}, v{VC+4}, 2, s38")
    o(f"v_lshrrev_b32 v{VC+3}, 5, v{VT}"); o(f"v_lshl_add_u32 v{VC+3}, v{VC+3}, 6, v{VC+4}")
    o(f"v_lshrrev_b32 v{VC+5}, 4, v{VT}"); o(f"v_lshl_add_u32 v{VC+5}, v{VC+5}, 4, s38")
    o(f"v_add_u32 v{VC}, s39, v{VC+2}"); o(f"v_add_u32 v{VC+1}, s39, v{VC+3}")
    class O:
        e = staticmethod(o)
    proj_coords(O, 45, 46, 47, 44)
    o(f"s_lshl_b32 s45, s45, 2"); o(f"s_add_u32 s45, s45, s{S_WV}"); o("s_lshl_b32 s45, s45, 16"); o("s_lshl_b32 s46, s46, 12"); o("s_add_u32 s45, s45, s46")
    srd_off(O, 48, "s28", "s29", "s45", 4096)
    o(f"s_mov_b32 s47, {f2u(1e-6):#x}")
    o(f"s_mul_i32 s36, s35, {F*64}"); o("s_lshl_b32 s37, s34, 12"); o("s_add_u32 s36, s36, s37"); o(f"s_add_u32 s36, s36, {WS_H}")
    srd_off(O, 20, "s28", "s29", "s36", 4096)
    o(f"s_mul_i32 s39, s{S_LAYER}, {WS_KV2 - WS_KV}")
    o(f"s_lshl_b32 s38, s34, 16"); o(f"s_lshl_b32 s40, s{S_WV}, 10"); o("s_add_u32 s38, s38, s40"); o(f"s_add_u32 s38, s38, {WS_KV}")
    o("s_add_u32 s38, s38, s39")
    srd_off(O, 24, "s28", "s29", "s38", 65536)
    o("s_lshl_b32 s37, s34, 4"); o("s_add_u32 s37, s37, s33")
    o("s_lshl_b32 s38, s37, 8"); o(f"s_add_u32 s38, s38, {WS_Z}"); o("s_add_u32 s38, s38, s39")
    srd_off(O, 16, "s28", "s29", "s38", 256)
    o("s_lshl_b32 s44, s33, 12")
    o(f"s_add_u32 s40, s40, {LDS_R}")
    o(f"s_lshl_b32 s36, s{S_WV}, 13"); o(f"s_add_u32 s37, s36, {LDS_R}")
    o(f"s_lshl_b32 s38, s{S_WV}, 8"); o(f"s_add_u32 s38, s38, {LDS_Z}")
    o(f"v_add_u32 v{VA}, s40, v{VXO}")
    o(f"v_add_u32 v{VA+1}, s37, v{VXO}")
    o(f"v_and_b32 v{VA+2}, 0xf0, v{VXO}"); o(f"v_lshrrev_b32 v{VA+2}, 2, v{VA+2}"); o(f"v_add_u32 v{VA+2}, s38, v{VA+2}")
    o(f"v_lshrrev_b32 v{VA+3}, 2, v{VXO}"); o(f"v_add_u32 v{VA+4}, {LDS_Z}, v{VA+3}")
    o(f"v_lshrrev_b32 v{VA+5}, 8, v{VXO}"); o(f"v_lshlrev_b32 v{VA+5}, 4, v{VA+5}"); o(f"v_add_u32 v{VA+5}, {LDS_Z + 1024}, v{VA+5}")
    for i in range(4): o(f"v_mov_b32 v{CSR+8+i}, 0x3f803f80")
    G.sync2(p)
    G.pro_x(p)
    def hook():
        if gen.STAMP:
            e("s_memrealtime s[8:9]"); e("s_mov_b32 s4, s5"); e("s_mov_b32 s5, s6"); e("s_mov_b32 s6, s7"); e("s_waitcnt lgkmcnt(0)"); e("s_mov_b32 s7, s8")
    G.emit(p, loop_end=hook)
    e(f"ds_read_b32 v{VT}, v{VC+2}"); e(f"ds_read_b32 v{VT+1}, v{VC+3}")
    order = (4, 2, 5, 3, 0, 1)
    for b in order: e(f"ds_read_b32 v{CSR+b}, v{VC + (0 if b < 2 else 1)} offset:{b*128}")
    for sb in range(2):
        e(f"ds_read_b128 v[{RR+4*sb}:{RR+4*sb+3}], v{VC+5} offset:{128 + 64*sb}"); e(f"ds_read_b128 v[{KL+4*sb}:{KL+4*sb+3}], v{VC+5} offset:{256 + 64*sb}")
    for sb in range(2):
        e(f"ds_read_b32 v{QR+2*sb}, v{VC+4} offset:{128 + 64*sb}"); e(f"ds_read_b32 v{QR+4+2*sb}, v{VC+4} offset:{256 + 64*sb}")
    e("s_waitcnt lgkmcnt(8)")
    for b in order:
        r = ACC + 16 * b
        if b < 2: e(f"v_mfma_f32_16x16x1_4b_f32 v[{r}:{r+15}], v{CSR+b}, v{VT+1}, v[{r}:{r+15}]")
        else: e(f"v_mfma_f32_16x16x1_4b_f32 v[{r}:{r+15}], v{VT}, v{CSR+b}, v[{r}:{r+15}]")
    e("s_waitcnt lgkmcnt(0)")
    e("s_nop 3")
    TB = VT
    def phi(r, rsr, rl, out):
        for i in range(0, 16, 2): e(f"v_pk_mul_f32 v[{TB+i}:{TB+i+1}], v[{r+i}:{r+i+1}], {rl(i)[0]}{rl(i)[1]}")
        for i in range(16): e(f"v_exp_f32 v{TB+i}, v{TB+i} clamp")
        for i in range(0, 16, 2): e(f"v_pk_fma_f32 v[{r+i}:{r+i+1}], v[{r+i}:{r+i+1}], {rsr(i)[0]}, 1.0{rsr(i)[2]}")
        for i in range(16): e(f"v_max_f32 v{r+i}, v{r+i}, v{TB+i}")
        for i in range(0, 16, 2): e(f"v_pk_add_f32 v[{r+i}:{r+i+1}], v[{r+i}:{r+i+1}], s[46:47] op_sel:[0,1]")
        for i in range(0, 16, 2): e(f"v_cvt_pk_bf16_f32 v{out+i//2}, v{r+i}, v{r+i+1}")
    vec = lambda base: (lambda i: (f"v[{base+i%8}:{base+i%8+1}]", "", " op_sel_hi:[1,1,0]"))
    bc = lambda base: (lambda i: (f"v[{base+2*(i//8)}:{base+2*(i//8)+1}]", " op_sel_hi:[1,0]", " op_sel_hi:[1,0,0]"))
    PK = WF; VV = WF + 16; ONE = CSR + 8; OB = ACC + 80
    KVR = ACC + 32; ZR = ACC + 64
    def kv_write(hh):
        for qd in range(4):
            r = KVR + hh * 16 + 4 * qd
            e(f"ds_write_b128 v{VA}, v[{r}:{r+3}] offset:{(hh*4 + qd)*4096}")
        for dt in range(2):
            e(f"ds_write_b32 v{VA+2}, v{ZR + hh*16 + dt*4} offset:{hh*128 + dt*64}")
    for hh in range(2):
        r = ACC + (4 + hh) * 16
        for i in range(0, 16, 2):
            e(f"v_pk_mul_f32 v[{r+i}:{r+i+1}], v[{r+i}:{r+i+1}], v[{RR+i%8}:{RR+i%8+1}]")
        for i in range(0, 16, 2):
            e(f"v_cvt_pk_bf16_f32 v{VV+hh*8+i//2}, v{r+i}, v{r+i+1}")
        if hh == 1: kv_write(0)
        phi(ACC + (2 + hh) * 16, vec(RR), vec(KL), PK + hh * 8)
        e("s_nop 1")
        for et in range(2):
            for dt in range(2):
                r = KVR + hh * 16 + et * 8 + dt * 4; a = PK + hh * 8 + dt * 4; b = VV + hh * 8 + et * 4
                e(f"v_mfma_f32_16x16x32_bf16 v[{r}:{r+3}], v[{a}:{a+3}], v[{b}:{b+3}], 0")
        for dt in range(2):
            r = ZR + hh * 16 + dt * 4; a = PK + hh * 8 + dt * 4
            e(f"v_mfma_f32_16x16x32_bf16 v[{r}:{r+3}], v[{ONE}:{ONE+3}], v[{a}:{a+3}], 0")
    e("s_nop 3")
    kv_write(1)
    e("s_waitcnt lgkmcnt(0)")
    e("s_barrier")
    if gen.STAMP: e("s_memrealtime s[8:9]"); e("s_waitcnt lgkmcnt(0)"); e("s_mov_b32 s7, s8")
    RB = KVR
    for k in range(8):
        e(f"ds_read_b128 v[{RB+4*k}:{RB+4*k+3}], v{VA+1} offset:{k*1024}")
    for k in range(4):
        e(f"ds_read_b32 v{ZR+k}, v{VA+4} offset:{k*256}")
    for k in range(2):
        e(f"s_waitcnt lgkmcnt({8 - 4*k})")
        r = RB + 16 * k
        for i in (0, 2):
            e(f"v_pk_add_f32 v[{r+i}:{r+i+1}], v[{r+i}:{r+i+1}], v[{r+4+i}:{r+5+i}]")
            e(f"v_pk_add_f32 v[{r+8+i}:{r+9+i}], v[{r+8+i}:{r+9+i}], v[{r+12+i}:{r+13+i}]")
        for i in (0, 2):
            e(f"v_pk_add_f32 v[{r+i}:{r+i+1}], v[{r+i}:{r+i+1}], v[{r+8+i}:{r+9+i}]")
        for i in (0, 2):
            e(f"v_cvt_pk_bf16_f32 v{PK+2*k+i//2}, v{r+i}, v{r+i+1}")
    e(f"buffer_store_dwordx4 v[{PK}:{PK+3}], v{VXO}, s[24:27], s44 offen{SC1}")
    e("s_waitcnt lgkmcnt(0)")
    e(f"v_pk_add_f32 v[{ZR}:{ZR+1}], v[{ZR}:{ZR+1}], v[{ZR+2}:{ZR+3}]")
    e(f"v_add_f32 v{ZR}, v{ZR}, v{ZR+1}")
    e(f"buffer_store_dword v{ZR}, v{VA+3}, s[16:19], s36 offen{SC1}")
    stamps_flush(A)
    phase_begin(A)
    phi(ACC, bc(QR), bc(QR + 4), OB)
    sync1(A)
    phi(ACC + 16, bc(QR), bc(QR + 4), OB + 8)
    e(f"v_mov_b32 v{ONE}, 0x3f80"); e(f"v_mov_b32 v{ONE+1}, 0x3f800000")
    e(f"v_add_u32 v{VA+1}, {LDS_R}, v{VXO}")
    SUM = TB
    for i in range(0, 8, 2): e(f"v_pk_mov_b32 v[{SUM+i}:{SUM+i+1}], 0, 0")
    e("s_barrier")
    rs(A, 2)
    P = ACC
    for m in range(16):
        if m: e(f"s_movk_i32 s44, {m*4096}" if m < 8 else f"s_mov_b32 s44, {m*4096}")
        e(f"buffer_load_dwordx4 v[{P+4*m}:{P+4*m+3}], v{VXO}, s[24:27], {'s44' if m else '0'} offen{SC1}")
    for m in range(16):
        if m == 8:
            for i in range(4):
                e(f"buffer_load_dwordx4 v[{V_RES+4*i}:{V_RES+3+4*i}], v{VXO}, s[48:51], 0 offen offset:{i*1024}{SC1}")
        e(f"s_waitcnt vmcnt({(15 if m < 8 else 19) - m})")
        for j in range(4):
            e(f"v_dot2_f32_bf16 v{SUM+2*j}, v{P+4*m+j}, v{ONE}, v{SUM+2*j}")
            e(f"v_dot2_f32_bf16 v{SUM+2*j+1}, v{P+4*m+j}, v{ONE+1}, v{SUM+2*j+1}")
    e("s_nop 2")
    for j in range(4): e(f"v_cvt_pk_bf16_f32 v{PK+j}, v{SUM+2*j}, v{SUM+2*j+1}")
    e(f"ds_write_b128 v{VA}, v[{PK}:{PK+3}]")
    e("s_waitcnt lgkmcnt(0)")
    rs(A, 3)
    e("s_barrier")
    FR = PK; ZF = VV
    for hh in range(2):
        e(f"ds_read_b128 v[{ZF+hh*4}:{ZF+hh*4+3}], v{VA+5} offset:{hh*64}")
        for et in range(2):
            e(f"ds_read_b128 v[{FR+(hh*2+et)*4}:{FR+(hh*2+et)*4+3}], v{VA+1} offset:{(hh*2+et)*1024}")
    NUM = ACC; DEN = ACC + 32
    for hh in range(2):
        e(f"s_waitcnt lgkmcnt({3 - 3*hh})")
        for sb in range(2):
            i = hh * 2 + sb; b = OB + 4 * i
            e(f"v_mfma_f32_16x16x32_bf16 v[{DEN+4*i}:{DEN+4*i+3}], v[{ZF+hh*4}:{ZF+hh*4+3}], v[{b}:{b+3}], 0")
        for sb in range(2):
            i = hh * 2 + sb; b = OB + 4 * i
            for et in range(2):
                r = NUM + i * 8 + et * 4; a = FR + (hh * 2 + et) * 4
                e(f"v_mfma_f32_16x16x32_bf16 v[{r}:{r+3}], v[{a}:{a+3}], v[{b}:{b+3}], 0")
    rs(A, 4)
    e("s_nop 1")
    for i in range(4): e(f"v_add_f32 v{DEN+4*i}, s47, v{DEN+4*i}")
    for i in range(4): e(f"v_rcp_f32 v{DEN+4*i}, v{DEN+4*i}")
    e("s_nop 0")
    for i in range(4):
        r = NUM + i * 8; ob = TB + 4 * i
        for j in range(0, 8, 2):
            e(f"v_pk_mul_f32 v[{r+j}:{r+j+1}], v[{r+j}:{r+j+1}], v[{DEN+4*i}:{DEN+4*i+1}] op_sel_hi:[1,0]")
        for j in range(0, 8, 2):
            e(f"v_cvt_pk_bf16_f32 v{ob+j//2}, v{r+j}, v{r+j+1}")
        e(f"buffer_store_dwordx4 v[{ob}:{ob+3}], v{VXO}, s[20:23], 0 offen offset:{i*1024}{SC1}")
    stamps_flush(A)
    A.label(f"{tag}_out")
    set_signal(A, 33, cA)
    e(f"s_branch {nxt}")
    NST = opt.get("stag", 10)
    LD = Loader(A, "qkv", SET_A, 130, first=3)
    NX = Loader(A, "wo", SET_C, 140)
    def unpack_sum(L, i0, i1):
        for i in range(i0, i1):
            t = (32 if i == 0 else 40 + 8 * (i % 2))
            for j in range(4):
                e(f"v_lshlrev_b32 v{t+2*j}, 16, v{L+4*i+j}"); e(f"v_and_b32 v{t+2*j+1}, 0xffff0000, v{L+4*i+j}")
            if i:
                for j in range(4):
                    e(f"v_pk_add_f32 v[{32+2*j}:{33+2*j}], v[{32+2*j}:{33+2*j}], v[{t+2*j}:{t+2*j+1}]")
    def pre():
        LD.setup(coords=False)
        NX.setup()
        fpre[0]()
        e("s_mov_b32 s15, 0"); e("s_mov_b32 s13, 0")
        srd(A, 44, "s28", "s29", 0)
        e("v_and_b32 v3, 63, v0"); e("v_lshlrev_b32 v4, 2, v3")
        e(f"s_lshl_b32 s20, s{S_WV}, 9"); e(f"s_add_u32 s20, s20, {LST - 2048}")
        e("v_and_b32 v3, 31, v3"); e("v_lshlrev_b32 v3, 2, v3"); e("v_add_u32 v3, s20, v3")
        e(f"s_cmp_lg_u32 s{S_LAYER}, 0"); e(f"s_cbranch_scc1 {tag}_e1")
        e(f"s_load_dwordx4 s[4:7], s[0:1], {KA['wg']}")
        e(f"s_load_dwordx2 s[12:13], s[0:1], {KA['wo']}")
        e(f"s_lshl_b32 s20, s2, 2"); e(f"s_add_u32 s20, s20, s{S_WV}"); e("s_sub_u32 s20, s20, 4")
        e("s_lshr_b32 s48, s20, 3"); e("s_and_b32 s49, s20, 7")
        e("s_sub_u32 s30, s48, 56"); e("s_min_u32 s30, s30, s48"); e("s_lshl_b32 s30, s30, 7")
        e(f"s_mul_i32 s21, s49, {128*F*2}"); e("s_add_u32 s30, s30, s21")
        e("s_sub_u32 s21, s20, 896"); e("s_lshl_b32 s21, s21, 14")
        e("s_cmp_lt_u32 s48, 56")
        e("s_waitcnt lgkmcnt(0)")
        e("s_cselect_b32 s44, s4, s6"); e("s_cselect_b32 s45, s5, s7"); e("s_mov_b32 s47, 0x00020000")
        e(f"s_mov_b32 s46, {D*F*2}"); e(f"s_movk_i32 s22, {F*2}")
        e("s_cmp_ge_u32 s2, 224")
        e("s_cselect_b32 s44, s12, s44"); e("s_cselect_b32 s45, s13, s45"); e(f"s_cselect_b32 s46, {D*D*2}, s46")
        e("s_cselect_b32 s30, s21, s30"); e("s_cselect_b32 s22, 128, s22")
        e("s_lshl_b32 s14, s22, 3")
        e("v_and_b32 v20, 63, v0")
        e("v_lshrrev_b32 v21, 3, v20"); e("v_mul_lo_u32 v21, s22, v21"); e("v_and_b32 v22, 7, v20"); e("v_lshl_add_u32 v21, v22, 4, v21")
        e("s_lshr_b32 s20, s2, 3"); e("s_and_b32 s21, s2, 7"); e("s_lshl_b32 s21, s21, 1"); e("s_add_u32 s20, s20, s21")
        e(f"s_mul_i32 s21, s20, {65536 // NST + 1}"); e("s_lshr_b32 s21, s21, 16"); e(f"s_mul_i32 s21, s21, {NST}"); e("s_sub_u32 s15, s20, s21")
        e("s_add_u32 s15, s15, 4")
        e("s_lshl_b32 s48, s48, 11"); e("s_lshl_b32 s49, s49, 2"); e("s_add_u32 s48, s48, s49")
        e("v_lshlrev_b32 v22, 3, v22"); e("v_lshrrev_b32 v6, 3, v20"); e("v_add_lshl_u32 v22, v22, v6, 5")
        e("s_max_u32 s13, s15, 5")
        A.label(f"{tag}_e1")
    def early():
        e(f"s_cmp_lg_u32 s{S_LAYER}, 0"); e(f"s_cbranch_scc1 {tag}_e2")
        unpack_sum(V_CS, 0, 8)
        col_reduce(A, 32, 20, 5)
        A.label(f"{tag}_e2")
    idle_head(A, tag, first=True, pre=pre)
    early()
    L = 64
    def cond():
        uid[0] += 1; l = f"cu{uid[0]}"
        e(f"s_cmp_lg_u32 s{SET_A['p']}, s13"); e(f"s_cbranch_scc1 {l}g")
        e(f"s_cmp_lg_u32 s{S_WV}, 5"); e(f"s_cbranch_scc1 {l}g")
        e(f"s_cmp_ge_u32 s2, {192 + (REP + 1) // 2}"); e(f"s_cbranch_scc1 {l}g")
        do_signal(e, 1, 2, wait=False, fl=24)
        A.label(l + "g")
        e(f"s_cmp_lg_u32 s{SET_A['p']}, s15"); e(f"s_cbranch_scc1 {l}")
        for i in range(16):
            e(f"buffer_load_dwordx4 v[{L+4*i}:{L+4*i+3}], v21, s[44:47], s30 offen")
            if i < 15: e("s_add_u32 s30, s30, s14")
        A.label(l)
    assert NST <= 10
    e(f"s_cmp_lg_u32 s{S_LAYER}, 0"); e(f"s_cbranch_scc1 {tag}_h0")
    e("v_lshrrev_b32 v5, 3, v22")
    srd_off(A, 16, "s28", "s29", WS_CSQ, 3072 * 64)
    e(f"s_lshl_b32 s20, s2, 2"); e(f"s_add_u32 s20, s20, s{S_WV}"); e("s_sub_u32 s20, s20, 4"); e("s_lshl_b32 s20, s20, 8")
    e(f"buffer_store_dword v32, v5, s[16:19], s20 offen{SC1}")
    A.label(f"{tag}_h0")
    e(f"s_lshl_b32 s20, s33, 2"); e(f"s_add_u32 s20, s20, s{S_WV}"); e("s_sub_u32 s20, s20, 4"); e("s_lshl_b32 s20, s20, 12"); e(f"s_add_u32 s20, s20, {WS_ST}")
    srd_off(A, 20, "s28", "s29", "s20", 4096)
    LD.step(); cond()
    e(f"s_cmp_lg_u32 s{S_LAYER}, 0"); e(f"s_cbranch_scc1 {tag}_h7")
    e("s_waitcnt vmcnt(0)")
    A.label(f"{tag}_h7")
    LD.step(); cond()
    for i in range(16):
        e(f"buffer_load_dword v{32+i}, v4, s[20:23], 0 offen offset:{i*256}{SC1}")
    LD.loop(f"{tag}_i3", 9, body=cond)
    if opt.get("hp"): e("s_setprio 2")
    stats_finish(e, 32, 5, 6, 7)
    e(f"v_mul_f32 v5, {LOG2E:#x}, v7")
    e("ds_write_b32 v3, v6"); e("ds_write_b32 v3, v7 offset:128"); e("ds_write_b32 v3, v5 offset:256")
    e("s_waitcnt lgkmcnt(0)")
    LD.step()
    e(f"s_cmp_lg_u32 s{S_LAYER}, 0"); e(f"s_cbranch_scc1 {tag}_h1")
    unpack_sum(L, 0, 8)
    A.label(f"{tag}_h1")
    LD.step()
    e(f"s_cmp_lg_u32 s{S_LAYER}, 0"); e(f"s_cbranch_scc1 {tag}_h2")
    unpack_sum(L, 8, 16)
    col_reduce(A, 32, 20, 21)
    srd_off(A, 44, "s28", "s29", WS_CS2, 2 * F * 32)
    e(f"buffer_store_dword v32, v22, s[44:47], s48 offen{SC1}")
    A.label(f"{tag}_h2")
    LD.step()
    e(f"s_cmp_lg_u32 s{S_WV}, 4"); e(f"s_cbranch_scc1 {tag}_h3")
    e(f"s_cmp_lg_u32 s{S_LAYER}, 0"); e(f"s_cbranch_scc1 {tag}_h3")
    e(f"s_movk_i32 s{S_POFF}, {DBG_G}"); e(f"s_movk_i32 s{S_PTGT}, {192 + (REP + 1) // 2}")
    do_poll(e, 30, 31, tag + "g", fl=24, diag=False)
    e("s_lshl_b32 s20, s34, 12"); e(f"s_add_u32 s20, s20, {WS_CSQ}")
    srd_off(A, 44, "s28", "s29", "s20", 131072 + 4096)
    e("s_mov_b32 s21, 65536"); e("s_mov_b32 s22, 131072")
    e("v_lshlrev_b32 v29, 2, v4")
    for b in range(3):
        for k in range(4):
            e(f"buffer_load_dwordx4 v[{32+16*b+4*k}:{35+16*b+4*k}], v29, s[44:47], {('0', 's21', 's22')[b]} offen offset:{k*1024}{SC1}")
    A.label(f"{tag}_h3")
    for _ in range(3): NX.issue()
    e("s_waitcnt vmcnt(6)")
    e("s_barrier")
    fpre[1](0)
    e(f"s_cmp_lg_u32 s{S_WV}, 4"); e(f"s_cbranch_scc1 {tag}_h5")
    e(f"s_cmp_lg_u32 s{S_LAYER}, 0"); e(f"s_cbranch_scc1 {tag}_h6")
    for st in (8, 4):
        for b in range(3):
            for i in range(0, st, 2): e(f"v_pk_add_f32 v[{32+16*b+i}:{33+16*b+i}], v[{32+16*b+i}:{33+16*b+i}], v[{32+16*b+i+st}:{33+16*b+i+st}]")
    e("s_nop 0")
    for b in range(3):
        for i in range(2): e(f"v_permlane32_swap_b32 v{32+16*b+i}, v{34+16*b+i}")
    e("s_nop 0")
    for b in range(3): e(f"v_pk_add_f32 v[{32+16*b}:{33+16*b}], v[{32+16*b}:{33+16*b}], v[{34+16*b}:{35+16*b}]")
    e("s_nop 1")
    for b in range(3): e(f"v_permlane16_swap_b32 v{32+16*b}, v{33+16*b}")
    e("s_nop 1")
    for b in range(3): e(f"v_add_f32 v{V_KEEP+b}, v{32+16*b}, v{33+16*b}")
    A.label(f"{tag}_h6")
    e("v_and_b32 v29, 60, v4"); e("v_lshlrev_b32 v29, 2, v29"); e("v_lshrrev_b32 v30, 6, v4"); e("v_lshl_add_u32 v29, v30, 2, v29")
    e(f"v_add_u32 v29, {LCS}, v29")
    for b in range(3): e(f"ds_write_b32 v29, v{V_KEEP+b} offset:{b*256}")
    e("s_waitcnt lgkmcnt(0)")
    A.label(f"{tag}_h5")
    e("s_barrier")
    fpre[1](1)
    srd_off(A, 44, "s28", "s29", WS_XC, 4 * MB)
    e(f"s_lshl_b32 s48, s2, 2"); e(f"s_add_u32 s48, s48, s{S_WV}"); e("s_sub_u32 s48, s48, 4"); e("s_lshl_b32 s48, s48, 12")
    e("v_and_b32 v20, 63, v0"); e("v_lshlrev_b32 v20, 4, v20")
    for i in range(4): e(f"v_mov_b32 v{24+i}, -1")
    if opt.get("hp"): e("s_setprio 0")
    e("s_barrier")
    for i in range(4): e(f"buffer_store_dwordx4 v[24:27], v20, s[44:47], s48 offen offset:{i*1024}{SC1}")
    if gen.STAMP: e(f"s_add_u32 s{S_PH}, s{S_PH}, 1")
    set_signal(A, 34, cQ)
    set_poll(A, 34, cQ, 16)
    def early2():
        if SWARM:
            wd_warm_base(A)
            e(f"s_cmp_lg_u32 s{S_LAYER}, 0"); e(f"s_cbranch_scc1 {tag}_nw")
            warm(A, [64 * i for i in range(14)], 896)
            A.label(f"{tag}_nw")
        e(f"s_mul_i32 s39, s{S_LAYER}, {WS_KV2 - WS_KV}"); e("s_lshl_b32 s38, s34, 12"); e("s_add_u32 s38, s38, s39"); e(f"s_add_u32 s38, s38, {WS_Z}")
        srd_off(A, 16, "s28", "s29", "s38", 4096)
        e("v_and_b32 v4, 63, v0"); e("v_lshlrev_b32 v5, 2, v4")
        e("v_and_b32 v6, 3, v4"); e("v_lshlrev_b32 v6, 1, v6")
        e("v_bfe_u32 v7, v4, 2, 2"); e("v_lshl_add_u32 v6, v7, 4, v6")
        e("v_bfe_u32 v7, v4, 4, 1"); e("v_lshl_add_u32 v6, v7, 3, v6")
        e("v_lshrrev_b32 v7, 5, v4"); e("v_lshl_add_u32 v6, v7, 6, v6")
        e(f"v_add_u32 v6, {LDS_Z + 1024}, v6")
    idle_head(A, tag + "b", pre=early2)
    e(f"s_cmp_lg_u32 s{S_WV}, 5"); e(f"s_cbranch_scc1 {tag}_nz")
    for m in range(16):
        e(f"buffer_load_dword v{8+m}, v5, s[16:19], 0 offen offset:{m*256}{SC1}")
    e("s_waitcnt vmcnt(0)")
    for st in (8, 4, 2, 1):
        for i in range(st): e(f"v_add_f32 v{8+i}, v{8+i}, v{8+i+st}")
    e("v_cvt_pk_bf16_f32 v8, v8, v8")
    e("ds_write_b16 v6, v8")
    e("s_waitcnt lgkmcnt(0)")
    A.label(f"{tag}_nz")
    e("s_barrier")
    idle_tail(A, f"{tag}_out")

def p_start(A):
    e = A.e
    NX = Loader(A, "qkv", SET_B, 140)
    e("v_and_b32 v5, 63, v0"); e("v_lshlrev_b32 v1, 4, v5")
    e(f"s_cmp_ge_u32 s{S_WV}, 4"); e("s_cbranch_scc1 ps_cs")
    e(f"s_lshl_b32 s33, s2, 2"); e(f"s_add_u32 s33, s33, s{S_WV}")
    e("s_lshr_b32 s35, s33, 4"); e("s_and_b32 s34, s33, 15")
    rowmajor_lane_off(A, 2, 3)
    e("s_lshl_b32 s36, s35, 16"); e("s_lshl_b32 s37, s34, 7"); e("s_add_u32 s36, s36, s37"); e(f"s_add_u32 s37, s36, {16*2048}")
    e("s_lshl_b32 s38, s33, 12")
    e("s_waitcnt lgkmcnt(0)")
    srd(A, 8, "s4", "s5", S * D * 2)
    R = 16
    for i in (0, 2, 1, 3):
        so, off = rowmajor_frag(i, "s36", "s37")
        e(f"buffer_load_dwordx4 v[{R+4*i}:{R+4*i+3}], v2, s[8:11], {so} offen offset:{off} nt")
    srd_off(A, FL, "s28", "s29", WS_FL, 128 * FSTR * REP)
    srd_off(A, 12, "s28", "s29", "s38", 4096)
    srd(A, 24, "s30", "s31", 256)
    e("s_lshl_b32 s36, s33, 8")
    srd_off(A, 16, "s28", "s29", WS_ST, 64 * 4096)
    e("v_lshrrev_b32 v4, 2, v1")
    e("s_and_b32 s38, s2, 0xf0")
    e("s_waitcnt vmcnt(0)")
    for i in range(4):
        e(f"v_permlane16_swap_b32 v{R+4*i}, v{R+4*i+2}")
        e(f"v_permlane16_swap_b32 v{R+4*i+1}, v{R+4*i+3}")
    e("s_nop 1")
    for i in range(4):
        e(f"buffer_store_dwordx4 v[{R+4*i}:{R+4*i+3}], v1, s[12:15], 0 offen offset:{i*1024}{SC1}")
    stats_emit(A, 16, [R + i for i in range(16)], 8)
    e(f"buffer_store_dword v8, v4, s[16:19], s36 offen{SC1}")
    e("s_barrier")
    e("s_waitcnt vmcnt(0)")
    e("s_barrier")
    e(f"s_cmp_lg_u32 s{S_WV}, 0"); e("s_cbranch_scc1 ps_x1")
    do_signal(e, 1, 2, wait=False, fl=24, off="s38")
    A.label("ps_x1")
    e("s_branch pq")
    A.label("ps_cs")
    e("s_lshr_b32 s45, s2, 2"); e("s_and_b32 s46, s2, 3")
    e(f"v_lshrrev_b32 v2, 3, v5"); e(f"v_mul_u32_u24 v2, {3*D*2}, v2"); e("v_and_b32 v3, 7, v5"); e("v_lshl_add_u32 v2, v3, 4, v2")
    e(f"s_lshl_b32 s38, s46, 2"); e(f"s_add_u32 s38, s38, s{S_WV}"); e("s_sub_u32 s38, s38, 4"); e(f"s_mul_i32 s38, s38, {64*3*D*2}")
    e("s_lshl_b32 s39, s45, 7"); e("s_add_u32 s38, s38, s39")
    e("s_cmp_lt_u32 s2, 192"); e(f"s_cselect_b32 s10, {D*3*D*2}, 0"); e("s_mov_b32 s11, 0x00020000")
    e("s_waitcnt lgkmcnt(0)")
    e("s_mov_b32 s8, s6"); e("s_mov_b32 s9, s7")
    srd_off(A, FL, "s28", "s29", WS_FL, 128 * FSTR * REP)
    e("v_mov_b32 v40, 0"); e(f"v_mul_u32_u24 v41, {FSTR}, v5")
    e(f"s_lshl_b32 s47, s2, 2"); e(f"s_add_u32 s47, s47, s{S_WV}"); e(f"s_add_u32 s47, s47, {1024 - 192*4 - 4}"); e("s_and_b32 s47, s47, 1023")
    e(f"s_mul_i32 s47, s47, {64 * FSTR}")
    e(f"buffer_store_dword v40, v41, s[{FL}:{FL+3}], s47 offen{SC1}")
    NX.setup()
    NX.issue()
    e("s_barrier")
    for i in range(8):
        e(f"buffer_load_dwordx4 v[{V_CS+4*i}:{V_CS+4*i+3}], v2, s[8:11], s38 offen")
        if i < 7: e(f"s_add_u32 s38, s38, {8*3*D*2}")
    e("s_barrier")
    NX.issue(); NX.issue()
    if TOUCH:
        srd(A, 12, "s28", "s29", 35 * MB)
        e(f"v_lshlrev_b32 v6, {21 if TOUCH == 1 else 19}, v5")
        e(f"s_lshl_b32 s39, s2, 7")
        e("buffer_load_dword v7, v6, s[12:15], s39 offen nt")

def k_mega(A, o):
    e = A.e
    A.begin_kernel(NAME)
    e("s_cmp_ge_u32 s2, 256")
    e(f"s_cbranch_scc1 {NAME}_end")
    if gen.STAMP: e("s_memrealtime s[76:77]")
    e(f"s_load_dwordx4 s[4:7], s[0:1], {KA['x']}")
    e(f"s_load_dwordx2 s[28:29], s[0:1], {KA['ws']}")
    e(f"s_load_dwordx2 s[30:31], s[0:1], {KA['dbg']}")
    e("v_lshrrev_b32 v1, 6, v0")
    e(f"s_mov_b32 s{S_LAYER}, 0"); e(f"s_movk_i32 s{S_SIG}, {DBG_G}"); e(f"s_mov_b32 s{S_PH}, 0")
    e(f"v_readfirstlane_b32 s{S_WV}, v1")
    p_start(A)
    p_qkv(A, "pq", "po", ffn_prefetch(A, 150, o.get("ffn")), o.get("qkv"))
    p_proj(A, "po", D, False, "pu", o.get("wo"))
    p_ffn(A, "pu", "pd", o.get("ffn"))
    p_proj(A, "pd", F, True, "pq", o.get("down"))
    A.label(f"{NAME}_end")
    e("s_endpgm")
    A.add_desc(NAME, 256, 102, 256)
    return dict(name=NAME, grid=256, block=512, lds=163840)

def build_mega(path, stamp_on=False, o=None, single=False):
    gen.STAMP = stamp_on
    uid[0] = 0
    A = Asm()
    mega = k_mega(A, o or {})
    A.launch(mega["name"], mega["grid"], mega["block"], mega["lds"])
    txt = A.text(HEADER)
    if single:
        txt = txt.replace(f"; @launch kernel={NAME} ", "; @launch ").replace(NAME, "interleave_layers__linear_attn_block__swiglu_ffn__prompt_kernel")
    open(path, "w").write(txt)

if __name__ == "__main__":
    if len(sys.argv) > 1:
        import json
        for name, o in json.loads(sys.argv[1]).items():
            SWARM = o.get("swarm", False); TOUCH = o.get("touch", 0); PS0 = o.get("ps0", 0); PSL = o.get("psl", 0); APOLL = o.get("apoll", 1); NOWAIT = o.get("nowait", 0); REP = o.get("rep", 1); PFL = o.get("pfl", " sc1"); FSTR = o.get("fstr", 256)
            build_mega(f"m_{name}_stamp.s", True, o)
        sys.exit(0)
    build_mega("mega_stamp.s", True)
    build_mega("mega.s", False, single=True)
    DBGOUT = True
    build_mega("mega_dbg.s", True, single=True)
```

```python
import sys, math
import gen
from gen import *

WS_FL = 30 * MB
WS_KV2 = 32 * MB
cQ, cA, cO, cU, cD = 0, 16, 32, 40, 56
LDS_P = 131072
LDS_R = 98304
LDS_Z = LDS_P + 24576
WS_CS2 = WS_CS + 65536
V_RES = 228
V_KEEP = 250
V_CS = 160
WS_CSQ = WS_CS + 320 * 1024
WS_XB = WS_O
WS_STB = WS_ST + 262144
QSBY = 3 * 64 * 128
WS_XC = WS_PQ
S_DUMP = 79
SC1 = " sc1"
S_WV, S_LAYER, S_SIG, S_POFF, S_PTGT, S_PH = 3, 98, 99, 100, 101, 78
FL = 80
NAME = "mega_kernel"

def rs(A, k):
    if gen.STAMP:
        A.e(f"s_memrealtime s[{60+2*k}:{61+2*k}]")
        if k in (3, 4): A.e(f"s_memtime s[{66+2*k}:{67+2*k}]")
def rs_s(st, k):
    if gen.STAMP: st.i(f"s_memrealtime s[{60+2*k}:{61+2*k}]\n    s_waitcnt lgkmcnt(0)")
uid = [0]
DBGOUT = False
SWARM = False
TOUCH = 0
SV = 0
PS0, PSL = 0, 0
APOLL, PFL, NOWAIT, REP = 1, ' sc1', 0, 1
FSTR = 256
def stamps_flush(A):
    if not gen.STAMP: return
    e = A.e
    uid[0] += 1
    l = f"sf{uid[0]}"
    rs(A, 5)
    e(f"s_cmp_lg_u32 s{S_WV}, 0"); e(f"s_cbranch_scc1 {l}")
    srd_off(A, 52, "s28", "s29", WS_DBG, 32 * 65536)
    e("s_lshl_b32 s58, s2, 6"); e(f"s_lshl_b32 s59, s{S_PH}, 16"); e("s_add_u32 s58, s58, s59")
    e("s_waitcnt lgkmcnt(0)")
    e("s_mov_b64 s[56:57], exec"); e("s_mov_b64 exec, 1")
    e("v_mov_b32 v2, 0")
    for k in range(8):
        e(f"v_mov_b32 v3, s{60+2*k}")
        e(f"buffer_store_dword v3, v2, s[52:55], s58 offen offset:{4*k}")
    for k in range(4):
        e(f"v_mov_b32 v3, s{4+k}")
        e(f"buffer_store_dword v3, v2, s[52:55], s58 offen offset:{48+4*k}")
    if DBGOUT:
        e("s_cmp_lg_u32 s2, 40"); e(f"s_cbranch_scc1 {l}d")
        e(f"s_load_dwordx2 s[52:53], s[0:1], {KA['dbg']}"); e("s_movk_i32 s54, 64"); e("s_mov_b32 s55, 0x00020000")
        e(f"s_mul_i32 s58, s{S_PH}, 43"); e("s_lshr_b32 s58, s58, 7"); e(f"s_add_u32 s58, s58, s{S_PH}"); e("s_add_u32 s58, s58, 5")
        e("s_and_b32 s58, s58, 15"); e("s_lshl_b32 s58, s58, 2")
        e("s_sub_u32 s59, s70, s76"); e("v_mov_b32 v3, s59")
        e("s_waitcnt lgkmcnt(0)")
        e("buffer_store_dword v3, v2, s[52:55], s58 offen sc1")
        e(f"s_cmp_lg_u32 s{S_PH}, 0"); e(f"s_cbranch_scc1 {l}d")
        e("s_sub_u32 s59, s66, s76"); e("v_mov_b32 v3, s59")
        e("buffer_store_dword v3, v2, s[52:55], 0 offen offset:12 sc1")
        A.label(l + "d")
    e("s_mov_b64 exec, s[56:57]")
    A.label(l)
    e(f"s_add_u32 s{S_PH}, s{S_PH}, 1")

def phase_begin(A, first=False):
    rs(A, 0)
    if gen.STAMP and first:
        A.e("s_waitcnt lgkmcnt(0)"); A.e(f"s_cmp_eq_u32 s{S_LAYER}, 0"); A.e("s_cselect_b32 s60, s76, s60")

def set_poll(A, idx_sgpr, base, target, prev_layer=False):
    e = A.e
    e(f"s_lshl_b32 s{S_POFF}, s{S_LAYER}, 6"); e(f"s_add_u32 s{S_POFF}, s{S_POFF}, s{idx_sgpr}")
    if prev_layer:
        e(f"s_add_u32 s{S_POFF}, s{idx_sgpr}, {base}")
        e(f"s_mul_i32 s{S_PTGT}, s{S_LAYER}, {target}")
    else:
        e(f"s_add_u32 s{S_POFF}, s{S_POFF}, {base}")
        e(f"s_mov_b32 s{S_PTGT}, {target}")
    if REP > 1:
        e(f"s_lshr_b32 s50, s2, 3"); e(f"s_and_b32 s50, s50, {REP-1}"); e("s_lshl_b32 s50, s50, 7"); e(f"s_add_u32 s{S_POFF}, s{S_POFF}, s50")
    e(f"s_mul_i32 s{S_POFF}, s{S_POFF}, {FSTR}")

def set_signal(A, idx_sgpr, base):
    e = A.e
    e(f"s_lshl_b32 s{S_SIG}, s{S_LAYER}, 6"); e(f"s_add_u32 s{S_SIG}, s{S_SIG}, s{idx_sgpr}")
    e(f"s_add_u32 s{S_SIG}, s{S_SIG}, {base}"); e(f"s_mul_i32 s{S_SIG}, s{S_SIG}, {FSTR}")

def do_signal(o, va, vb, wait=True, fl=FL, off=None):
    off = off or f"s{S_SIG}"
    if gen.STAMP: o("s_memrealtime s[60:61]")
    if REP > 1 and fl == FL:
        o(f"s_mov_b64 exec, {(1 << REP) - 1}")
        o(f"v_and_b32 v{va}, 63, v0"); o(f"v_mul_u32_u24 v{va}, {128 * FSTR}, v{va}"); o(f"v_mov_b32 v{vb}, 1")
    else:
        o("s_mov_b64 exec, 1")
        o(f"v_mov_b32 v{va}, 0"); o(f"v_mov_b32 v{vb}, 1")
    o(f"buffer_atomic_add v{vb}, v{va}, s[{fl}:{fl+3}], {off} offen sc1")
    if wait:
        o("s_waitcnt vmcnt(0)")
        if gen.STAMP: o("s_memrealtime s[62:63]")
    o("s_mov_b64 exec, -1")

def do_poll(o, va, vb, tag, fl=FL, diag=True, load=False):
    o("s_mov_b64 exec, 1")
    o(f"v_mov_b32 v{va}, 0")
    o("s_mov_b32 s50, 0x40000")
    if PS0: o(f"s_sleep {PS0}")
    o(f"s_branch {tag}_pgo")
    o(f"{tag}_poll:")
    if PSL: o(f"s_sleep {PSL}")
    o(f"{tag}_pgo:")
    if APOLL and not load:
        o(f"v_mov_b32 v{vb}, 0")
        o(f"buffer_atomic_add v{vb}, v{va}, s[{fl}:{fl+3}], s{S_POFF} offen sc0 sc1")
    else:
        o(f"buffer_load_dword v{vb}, v{va}, s[{fl}:{fl+3}], s{S_POFF} offen{PFL}")
    o("s_sub_u32 s50, s50, 1")
    o(f"s_cbranch_scc1 {tag}_pdone")
    o("s_waitcnt vmcnt(0)")
    o(f"v_readfirstlane_b32 s51, v{vb}")
    o(f"s_cmp_lt_u32 s51, s{S_PTGT}")
    o(f"s_cbranch_scc1 {tag}_poll")
    o(f"{tag}_pdone:")
    if gen.STAMP and diag:
        o("s_memrealtime s[64:65]")
        o(f"s_add_u32 s52, s28, {WS_DBG}"); o("s_addc_u32 s53, s29, 0"); o(f"s_mov_b32 s54, {32*65536}"); o("s_mov_b32 s55, 0x00020000")
        o("s_lshl_b32 s58, s2, 6"); o(f"s_lshl_b32 s59, s{S_PH}, 16"); o("s_add_u32 s58, s58, s59")
        o("s_waitcnt lgkmcnt(0)")
        for k, r in enumerate((60, 62, 64, 50)):
            o(f"v_mov_b32 v{vb}, s{r}")
            o(f"buffer_store_dword v{vb}, v{va}, s[52:55], s58 offen offset:{32+4*k}")
    o("s_mov_b64 exec, -1")

def bar_loop(A, tag, n, body=None):
    e = A.e
    if n <= 2 and not body:
        for _ in range(n): e("s_barrier")
        return
    e(f"s_mov_b32 s43, {n}")
    A.label(tag)
    e("s_barrier")
    if body: body()
    e("s_sub_u32 s43, s43, 1"); e("s_cmp_lg_u32 s43, 0"); e(f"s_cbranch_scc1 {tag}")

def warm(A, offs, adv):
    for o in offs: A.e(f"s_load_dword s{S_DUMP}, s[12:13], {o:#x}")
    A.e(f"s_add_u32 s12, s12, {adv}"); A.e("s_addc_u32 s13, s13, 0")

DBG_X, DBG_G = 0, 8
def idle_head(A, tag, first=False, early=None, pre=None):
    e = A.e
    A.label(f"{tag}_idle")
    fl = FL
    if first:
        fl = 24
        e(f"s_load_dwordx2 s[4:5], s[0:1], {KA['dbg']}")
        e(f"s_lshl_b32 s31, s33, 4")
        e(f"s_cmp_eq_u32 s{S_LAYER}, 0")
        e(f"s_cselect_b32 s{S_POFF}, s31, s{S_POFF}"); e(f"s_cselect_b32 s{S_PTGT}, 16, s{S_PTGT}")
        e(f"s_cselect_b32 s26, 256, s{FL+2}"); e("s_mov_b32 s27, 0x00020000")
        e("s_waitcnt lgkmcnt(0)")
        e(f"s_cselect_b32 s24, s4, s{FL}"); e(f"s_cselect_b32 s25, s5, s{FL+1}")
    if pre: pre()
    e("s_waitcnt vmcnt(0)")
    e("s_barrier")
    e(f"s_cmp_lg_u32 s{S_WV}, 4"); e(f"s_cbranch_scc1 {tag}_i1")
    if first:
        e(f"s_cmp_eq_u32 s{S_LAYER}, 0"); e(f"s_cbranch_scc1 {tag}_i1")
    do_signal(e, 1, 2, wait=False)
    A.label(f"{tag}_i1")
    if early: early()
    e(f"s_cmp_lg_u32 s{S_WV}, 4"); e(f"s_cbranch_scc1 {tag}_i2")
    if not NOWAIT: e("s_waitcnt vmcnt(0)")
    if gen.STAMP: e("s_memrealtime s[62:63]")
    if first:
        e(f"s_cmp_lg_u32 s{S_LAYER}, 0"); e(f"s_cbranch_scc1 {tag}_i9")
        do_poll(e, 1, 2, tag + "0", fl=fl, load=True)
        e(f"s_branch {tag}_i2")
        A.label(f"{tag}_i9")
    do_poll(e, 1, 3 if not first else 2, tag, fl=fl)
    A.label(f"{tag}_i2")
    e("s_barrier")

def idle_tail(A, nxt):
    if gen.STAMP: A.e(f"s_add_u32 s{S_PH}, s{S_PH}, 1")
    A.e(f"s_branch {nxt}")

def col_reduce(A, r, vlane, vt):
    e = A.e
    e("s_nop 1")
    for j in range(4): e(f"v_permlane32_swap_b32 v{r+j}, v{r+4+j}")
    e("s_nop 0")
    for j in (0, 2): e(f"v_pk_add_f32 v[{r+j}:{r+1+j}], v[{r+j}:{r+1+j}], v[{r+4+j}:{r+5+j}]")
    e(f"v_and_b32 v{vt}, 8, v{vlane}"); e(f"v_cmp_ne_u32 vcc, 0, v{vt}")
    for j in range(2): e(f"v_permlane16_swap_b32 v{r+j}, v{r+2+j}")
    e("s_nop 1")
    e(f"v_pk_add_f32 v[{r}:{r+1}], v[{r}:{r+1}], v[{r+2}:{r+3}]")
    e("s_nop 1")
    for j in range(2): e(f"v_add_f32_dpp v{r+j}, v{r+j}, v{r+j} row_ror:8 row_mask:0xf bank_mask:0xf")
    e(f"v_cndmask_b32 v{r}, v{r}, v{r+1}, vcc")

def wd_warm_base(A):
    e = A.e
    e(f"s_load_dwordx2 s[12:13], s[0:1], {KA['wd']}")
    e(f"s_lshl_b32 s16, s2, 2"); e(f"s_add_u32 s16, s16, s{S_WV}"); e("s_sub_u32 s16, s16, 4"); e("s_mul_i32 s16, s16, 7168")
    e("s_waitcnt lgkmcnt(0)")
    e("s_add_u32 s12, s12, s16"); e("s_addc_u32 s13, s13, 0")

SET_A = dict(srd=8, lds=40, woff=41, p=39, stg=38, r=35, m=16, n=17, t0=31, t1=32)
SET_B = dict(srd=24, lds=36, woff=37, p=20, stg=21, r=22, m=16, n=17, t0=18, t1=19)
SET_C = dict(srd=88, lds=92, woff=93, p=94, stg=95, r=96, m=16, n=17, t0=18, t1=19)
class Loader:
    def __init__(self, A, kind, rs_, v, first=0):
        self.A, self.kind, self.s, self.v, self.first = A, kind, rs_, v, first
        self.T = 16
        self.ldw = {"qkv": 3 * D * 2}.get(kind, D * 2)
        self.NT = {"qkv": 16, "wo": 16, "down": 28}[kind]
        self.np = {"qkv": 6, "wo": 2, "down": 4}[kind]
        self.sb = {"qkv": QSBY, "wo": 8192, "down": 16384}[kind]
        self.base = {"qkv": 0, "wo": LDS_P, "down": LDS_R}[kind]
        self.rot = 2 if kind == "down" else 0
    def setup(self, coords=True):
        A, s, v, e = self.A, self.s, self.v, self.A.e
        k, ldw = self.kind, self.ldw
        e(f"s_load_dwordx2 s[4:5], s[0:1], {KA[{'qkv': 'wqkv', 'wo': 'wo', 'down': 'wd'}[k]]}")
        if coords: (qkv_coords if k == "qkv" else proj_coords)(A, s["m"], s["n"], s["t0"], s["t1"])
        lane_consts_fullline(A, self.T, ldw, v + 6, v, None)
        t0, t1 = s["t0"], s["t1"]
        e(f"s_and_b32 s{t1}, s{S_WV}, 3")
        e(f"s_lshl_b32 s{s['lds']}, s{t1}, 10")
        if self.base: e(f"s_add_u32 s{s['lds']}, s{s['lds']}, {self.base}")
        e(f"s_mul_i32 s{t0}, s{t1}, {8*ldw}"); e(f"s_lshl_b32 s{t1}, s{s['n']}, 7"); e(f"s_add_u32 s{t0}, s{t0}, s{t1}")
        e(f"v_add_u32 v{v}, s{t0}, v{v}")
        if k == "qkv":
            for j in range(1, 6): e(f"v_add_u32 v{v+j}, {(j >> 1) * 2048 + (j & 1) * 32 * ldw}, v{v}")
            e(f"s_add_u32 s{s['r']}, s{s['m']}, s{s['n']}")
        else:
            e(f"v_add_u32 v{v+1}, {32*ldw}, v{v}")
            if k == "down": e(f"v_xor_b32 v{v+2}, 0x80, v{v}"); e(f"v_xor_b32 v{v+3}, 0x80, v{v+1}")
            e(f"s_lshr_b32 s{s['r']}, s{s['n']}, 1"); e(f"s_add_u32 s{s['r']}, s{s['r']}, s{s['m']}")
        e(f"s_and_b32 s{s['r']}, s{s['r']}, 3")
        e(f"s_mov_b32 s{s['p']}, {self.first}")
        e(f"s_mov_b32 s{s['stg']}, {((self.first + self.rot) % 4) * self.sb}")
        if k == "down": e(f"s_and_b32 s{t0}, s{s['n']}, 1"); e(f"s_mul_i32 s{t0}, s{t0}, {F * D}")
        e("s_waitcnt lgkmcnt(0)")
        if k == "down": srd_off(A, s["srd"], "s4", "s5", f"s{t0}", F * D)
        else: srd(A, s["srd"], "s4", "s5", D * ldw)
    def issue(self, guard=False):
        A, s, e = self.A, self.s, self.A.e
        uid[0] += 1; l = f"ld{uid[0]}"
        w, t, NT = s["woff"], s["t0"], self.NT
        if guard: e(f"s_cmp_ge_u32 s{s['p']}, {NT}"); e(f"s_cbranch_scc1 {l}")
        e(f"s_and_b32 s{t}, s{s['p']}, 3"); e(f"s_cmp_eq_u32 s{t}, s{s['r']}"); e(f"s_cselect_b32 s{t}, 3, -1")
        e(f"s_add_u32 s{w}, s{s['p']}, s{t}")
        e(f"s_add_u32 s{t}, s{w}, {NT}"); e(f"s_min_u32 s{w}, s{w}, s{t}")
        e(f"s_sub_u32 s{t}, s{w}, {NT}"); e(f"s_min_u32 s{w}, s{w}, s{t}")
        e(f"s_mul_i32 s{w}, s{w}, {64 * self.ldw}")
        e(f"s_add_u32 s{t}, s{s['lds']}, s{s['stg']}")
        for j in range(self.np):
            e(f"s_add_u32 m0, s{t}, {j * 4096}")
            e("s_nop 0")
            e(f"buffer_load_dwordx4 v{self.v + j}, s[{s['srd']}:{s['srd']+3}], s{w} offen lds")
        e(f"s_add_u32 s{s['stg']}, s{s['stg']}, {self.sb}")
        e(f"s_cmp_eq_u32 s{s['stg']}, {4 * self.sb}"); e(f"s_cselect_b32 s{s['stg']}, 0, s{s['stg']}")
        if guard: A.label(l)
        e(f"s_add_u32 s{s['p']}, s{s['p']}, 1")
    def step(self):
        A, s, e = self.A, self.s, self.A.e
        uid[0] += 1; l = f"st{uid[0]}"
        if getattr(self, "relax", None):
            e(f"s_waitcnt vmcnt({self.np + self.relax[1]})")
            e(f"s_sub_u32 s{s['t0']}, s{s['p']}, s{self.relax[0]}"); e(f"s_cmp_lt_u32 s{s['t0']}, 2"); e(f"s_cbranch_scc1 {l}")
        e(f"s_waitcnt vmcnt({self.np})")
        e(f"s_cmp_le_u32 s{s['p']}, {self.NT}"); e(f"s_cbranch_scc1 {l}")
        e("s_waitcnt vmcnt(0)")
        A.label(l)
        e("s_barrier")
        self.issue(guard=True)
    def loop(self, tag, n, body=None):
        A, e = self.A, self.A.e
        e(f"s_mov_b32 s43, {n}")
        if isinstance(n, str): e("s_cmp_eq_u32 s43, 0"); e(f"s_cbranch_scc1 {tag}x")
        A.label(tag)
        self.step()
        if body: body()
        e("s_sub_u32 s43, s43, 1"); e("s_cmp_lg_u32 s43, 0"); e(f"s_cbranch_scc1 {tag}")
        A.label(f"{tag}x")

class MGemm(Gemm):
    npre = 3
    def xload(self, st, q, sb):
        super().xload(st, q, sb)
        op = st.ops[-1]; st.ops[-1] = (op[0], op[1] + self.opt.get("xfl", SC1), op[2])
    def pro_w(self, st, t0, t1):
        for t in range(t0, t1): self.pro_tile(st, t, x=False)
    def pro_w_pre(self, st):
        tmp = Stream()
        self.pro_w(tmp, 0, self.npre)
        st.pre |= {op[2] for op in tmp.ops if op[0] == "vm"}
        if self.skew: self.set_woff(st, self.STAGES - 2)
        else: st.i(f"s_mov_b32 s{self.s_woff}, {(self.npre - 1) * self.BK * self.ldw}")
    def pro_w_emit(self):
        tmp = Stream()
        self.pro_w(tmp, 0, self.npre)
        for op in tmp.ops: self.A.e(op[1])
    def pro_x(self, st):
        for t in range(self.XT): self.pro_tile(st, t, w=False)
    def pro_order(self, o):
        for t in range(self.LOOK):
            for l in self.order_next(t): o(l)
    def sync2(self, st):
        st.i("s_barrier")
        rs_s(st, 2)
    def reads(self, st):
        for f in range(self.LA):
            for rd in range(2): self.wread(st, f, rd)
    def tail_fused(self, groups, x2, epi, mid):
        st = Stream()
        KS, NB, SB, LA, NT = self.KS, self.NB, self.SB, self.LA, self.NT
        assert self.XT == 1 and not self.skew and self.UN == 4 and SB == 2
        FT = KS * NB
        seq = [(t, ks, nb) for t in (NT - 4, NT - 3) for ks in range(KS) for nb in range(NB)]
        gend = []
        for g in groups:
            seq += [(t, ks, nb) for t in (NT - 2, NT - 1) for ks in range(KS) for nb in g]
            gend.append(len(seq))
        f0 = (NT - 4) * FT
        self.fmap = {f0 + i: s for i, s in enumerate(seq)}
        for i in range(LA): self.fmap[f0 + len(seq) + i] = None
        bpos, pos = self.slots()
        def xr(t, ks, sb):
            return (x2 if t == NT - 2 else self.xfrag0) + (ks * SB + sb) * 4
        def xld(t, ks, sb, so):
            r = xr(t, ks, sb)
            st.vm(f"buffer_load_dwordx4 v[{r}:{r+3}], v{self.vxoff}, s[{self.srd_x}:{self.srd_x+3}], {so} offen offset:{(ks*2+sb)*1024}{SC1}", ("X", t * KS + ks, sb))
        seen = set(); fill = []; gi = 0
        for i, (t, ks, nb) in enumerate(seq):
            f = f0 + i
            for sb in range(SB):
                m = (i % FT) * SB + sb
                vmw = None
                if (t, ks, sb) not in seen: seen.add((t, ks, sb)); vmw = [("X", t * KS + ks, sb)]
                dsw = [("R", f + k, rd) for k in range(self.WG) for rd in range(2) if self.fmap[f + k]] if (sb == 0 and i % self.WG == 0) else None
                if vmw or dsw: st.wait(vm=vmw, ds=dsw)
                dj = []
                if i < FT:
                    dj = [(NT - 2, j) for j in range(self.npieces) if pos[j] == m and m <= bpos]
                    dj += [(NT - 1, j) for j in range(self.npieces) if m == bpos + 2 + 3 * j]
                for (tt, j) in dj: self.dma_m0(st, tt, j)
                w = self.wreg(f); x = xr(t, ks, sb); a = self.acc(nb, sb)
                st.i(f"{self.op} {a}, v[{w}:{w+3}], v[{x}:{x+3}], {a}")
                for (tt, j) in dj: self.dma_ld(st, tt, j)
                if i == 0 and sb == 0:
                    st.i(f"s_mov_b32 s{self.s_xoff}, {(NT - 3) * self.XB}"); st.i(f"s_mov_b32 s31, {(NT - 2) * self.XB}"); st.i(f"s_mov_b32 s32, {(NT - 1) * self.XB}")
                if i < 2 * FT and m == bpos:
                    need = [NT - 3] if i < FT else [NT - 2, NT - 1]
                    st.wait(vm=[("W", tt, j) for tt in need for j in range(self.npieces)])
                    st.i("s_barrier")
                    if i < FT: self.set_woff(st, NT - 1)
                self.wread(st, f + LA, sb)
                if i < 2 * FT and nb == NB - 1:
                    if i < FT: xld(NT - 3, ks, sb, f"s{self.s_xoff}")
                    else: xld(NT - 1, ks, sb, "s32")
                if FT <= i < FT + 8 and i % 2 == 0 and sb == 0:
                    k = (i - FT) // 2; xld(NT - 2, k // 2, k % 2, "s31")
                if len(seen) == 4 * KS * SB and mid:
                    for l in mid: st.i(l)
                    mid = None
                if gi > 0 and fill:
                    left = (gend[gi] - i) * SB - sb
                    start = gend[gi - 1]
                    if (i - start) * SB + sb >= 4:
                        n = len(fill) if self.opt.get("blk") else -(-len(fill) // left)
                        for l in fill[:n]: st.i(l)
                        fill = fill[n:]
            if gi < len(gend) and i + 1 == gend[gi]:
                assert not fill
                fill = epi(gi); gi += 1
                if self.opt.get("gbar") and gi < len(gend): st.i("s_barrier")
                if self.opt.get("gflip") and gi < len(gend):
                    st.i(f"s_cmp_{'lt' if gi % 2 else 'ge'}_u32 s{S_WV}, 4\n    s_cbranch_scc1 {self.name}_gf{gi}\n    s_setprio 0\n    s_branch {self.name}_gg{gi}\n{self.name}_gf{gi}:\n    s_setprio 1\n{self.name}_gg{gi}:")
            if self.opt.get("hbar") and gi > 0 and gi < len(gend) and i + 1 == (gend[gi] + gend[gi - 1]) // 2: st.i("s_barrier")
        st.i("s_nop 7")
        for l in fill: st.i(l)
        return st
    def emit_tail(self, pro, tail, loop_end, between):
        A = self.A
        pl, bl, tl = resolve(pro, [self.body(it) for it in range(3)], tail)
        for l in pl: A.e(l)
        if gen.STAMP: A.e("s_waitcnt lgkmcnt(0)"); rs(A, 3); A.e("s_waitcnt lgkmcnt(0)")
        A.e(f"s_mov_b32 s{self.s_it}, 4")
        A.e(".p2align 6")
        A.label(f"{self.name}_loop")
        for l in bl: A.e(l)
        A.e(f"s_sub_u32 s{self.s_it}, s{self.s_it}, 1")
        loop_end()
        A.e(f"s_cmp_lg_u32 s{self.s_it}, 1")
        A.e(f"s_cbranch_scc1 {self.name}_loop")
        between()
        for l in tl: A.e(l)
        rs(A, 4)
    def emit(self, pro, loop_end=None):
        A = self.A
        nit = self.NT // self.UN
        pl, bl = resolve(pro, [self.body(it) for it in range(nit)])
        for l in pl: A.e(l)
        if gen.STAMP: A.e("s_waitcnt lgkmcnt(0)"); rs(A, 3); A.e("s_waitcnt lgkmcnt(0)")
        A.e(f"s_mov_b32 s{self.s_it}, {nit}")
        A.e(".p2align 6")
        A.label(f"{self.name}_loop")
        for l in bl: A.e(l)
        A.e(f"s_sub_u32 s{self.s_it}, s{self.s_it}, 1")
        if loop_end: loop_end()
        A.e(f"s_cmp_lg_u32 s{self.s_it}, 0")
        A.e(f"s_cbranch_scc1 {self.name}_loop")
        rs(A, 4)

def unpack_pk(l):
    import re
    m = re.match(r"v_pk_(mul|fma)_f32 (.*?)(?: op_sel_hi:\[(.*)\])?$", l)
    if not m: return [l]
    regs = [int(x) for x in re.findall(r"v\[(\d+):", m.group(2))]
    hi = [1] + [int(x) for x in (m.group(3) or "1,1,1").split(",")]
    return [f"v_{m.group(1)}_f32 " + ", ".join(f"v{r + (k and hi[i])}" for i, r in enumerate(regs)) for k in (0, 1)]

def sync1(A):
    A.e("s_waitcnt vmcnt(0)")
    A.e("s_barrier")
    rs(A, 1)

def proj_coords(A, sm, sn, t0, t1):
    e = A.e
    e(f"s_and_b32 s{t0}, s2, 7"); e(f"s_lshr_b32 s{t1}, s2, 3")
    e(f"s_lshr_b32 s{sm}, s{t0}, 1"); e(f"s_lshl_b32 s{sm}, s{sm}, 2"); e(f"s_lshr_b32 s{sn}, s{t1}, 3"); e(f"s_add_u32 s{sm}, s{sm}, s{sn}")
    e(f"s_and_b32 s{sn}, s{t0}, 1"); e(f"s_and_b32 s{t1}, s{t1}, 7"); e(f"s_lshl_b32 s{t1}, s{t1}, 1"); e(f"s_add_u32 s{sn}, s{sn}, s{t1}")

def p_proj(A, tag, K, down, nxt, opt=None):
    e = A.e
    opt = opt or {}
    T = 16
    ldw = D * 2
    split = down and opt.get("split", 1)
    A.label(tag)
    phase_begin(A)
    if down: e(f"s_load_dwordx2 s[6:7], s[0:1], {KA['out']}")
    proj_coords(A, 33, 34, 31, 32)
    e("s_lshr_b32 s45, s33, 1")
    if down:
        e("s_and_b32 s31, s33, 14"); e("s_and_b32 s32, s34, 1"); e("s_add_u32 s31, s31, s32")
        set_poll(A, 31, cU, 16)
    else: set_poll(A, 33, cA, 16)
    e(f"s_cmp_ge_u32 s{S_WV}, 4"); e(f"s_cbranch_scc1 {tag}_idle")
    VP, VF, VXO, VT = 1, 5, 9, 10
    ACC, RES, WF = 16, V_RES, 80
    XF = WF + 32
    e(f"v_and_b32 v{VXO}, 63, v0"); e(f"v_lshlrev_b32 v{VXO}, 4, v{VXO}")
    e(f"s_lshl_b32 s35, s33, 2"); e(f"s_add_u32 s35, s35, s{S_WV}")
    e(f"s_lshl_b32 s37, s35, 16"); e("s_lshl_b32 s38, s34, 12"); e("s_add_u32 s37, s37, s38")
    if not down: e(f"s_add_u32 s37, s37, {WS_XB}")
    srd_off(A, 20, "s28", "s29", "s37", 4096)
    assert split or not down
    lane_consts_fullline(A, 16, ldw, VT, VP, VF)
    sb, rot = (16384, 2) if split else (8192, 0)
    opt = dict(opt); opt["now"] = 1
    G = MGemm(A, tag, T=16, NB=8 if split else 4, RG=1, K=K // 2 if split else K, STAGES=4, XT=opt.get("XT", 2), NWR=8,
              LA=opt.get("LA", 6 if split else 4), WG=2, npieces=1, stage_bytes=sb, piece_lds=None,
              frag_addr=fullline_frag_addr(16, VF, 64, lambda stg: (0, ((stg + rot) % 4) * sb)),
              acc=blk_acc(16, "v", ACC, 1), wfrag0=WF, xfrag0=XF, vpiece0=VP, vxoff=VXO,
              srd_w=8, srd_x=12, s_woff=41, s_xoff=42, s_ldsw=40, s_it=43, ldw=ldw, opt=opt)
    e("s_lshr_b32 s36, s34, 1"); e("s_add_u32 s36, s36, s33"); e("s_and_b32 s36, s36, 3")
    G.order_init(36)
    G.pro_order(e)
    for i in range(4): e(f"v_add_u32 v{VF+i}, {LDS_R if split else LDS_P}, v{VF+i}")
    e(f"s_mul_i32 s36, s35, {F*64}"); e(f"s_add_u32 s36, s36, {WS_H}")
    if split:
        e("s_and_b32 s37, s34, 1"); e(f"s_mul_i32 s37, s37, {K*32}"); e("s_add_u32 s36, s36, s37")
    srd_off(A, 12, "s28", "s29", "s36", G.K * 64)
    e("s_waitcnt lgkmcnt(0)")
    sync1(A)
    p = Stream()
    G.reads(p)
    for i in range(16):
        p.i(f"v_lshlrev_b32 v{ACC+2*i}, 16, v{RES+i}")
        p.i(f"v_and_b32 v{ACC+2*i+1}, 0xffff0000, v{RES+i}")
    if split:
        for i in range(0, 32, 2): p.i(f"v_pk_mov_b32 v[{ACC+32+i}:{ACC+33+i}], 0, 0")
    G.sync2(p)
    G.pro_x(p)
    G.emit(p)
    if split:
        e(f"s_lshl_b32 s36, s2, 2"); e(f"s_add_u32 s36, s36, s{S_WV}"); e("s_lshl_b32 s36, s36, 12"); e("s_xor_b32 s37, s36, 0x4000")
        srd_off(A, 16, "s28", "s29", WS_XC, 4 * MB)
        e("s_mov_b32 s50, 0x40000")
        for i in range(16):
            e(f"v_cvt_pk_bf16_f32 v{RES+i}, v{ACC+32+2*i}, v{ACC+33+2*i}")
            if i % 4 == 3:
                e(f"buffer_store_dwordx4 v[{RES+i-3}:{RES+i}], v{VXO}, s[16:19], s37 offen offset:{(i//4)*1024}{SC1}")
        X2 = ACC + 32
        xm = opt.get("xm", 0)
        if xm != 2: e("s_waitcnt vmcnt(0)")
        if gen.STAMP: e("s_memrealtime s[58:59]"); e("s_waitcnt lgkmcnt(0)"); e("s_mov_b32 s4, s58")
        if xm == 0: e(f"s_branch {tag}_xp")
        A.label(f"{tag}_xr")
        e("s_mov_b64 exec, 1")
        A.label(f"{tag}_xl")
        e(f"v_mov_b32 v{X2}, 0")
        e(f"buffer_atomic_add v{X2}, v{VXO}, s[16:19], s36 offen offset:4092 sc0 sc1")
        e("s_sub_u32 s50, s50, 1"); e(f"s_cbranch_scc1 {tag}_xm")
        e("s_waitcnt vmcnt(0)")
        e(f"v_readfirstlane_b32 s51, v{X2}")
        e("s_cmp_eq_u32 s51, -1"); e(f"s_cbranch_scc1 {tag}_xl")
        A.label(f"{tag}_xm")
        e("s_mov_b64 exec, -1")
        e("s_max_i32 s50, s50, 0")
        A.label(f"{tag}_xp")
        for i in range(4):
            e(f"buffer_load_dwordx4 v[{X2+4*i}:{X2+4*i+3}], v{VXO}, s[16:19], s36 offen offset:{i*1024}{SC1}")
        e("s_sub_u32 s50, s50, 1"); e(f"s_cbranch_scc1 {tag}_xd")
        e("s_waitcnt vmcnt(0)")
        e(f"v_max3_u32 v{VT}, v{X2}, v{X2+1}, v{X2+2}")
        e(f"v_max3_u32 v{VT+1}, v{X2+3}, v{X2+4}, v{X2+5}")
        for i in range(6, 14, 4):
            e(f"v_max3_u32 v{VT}, v{VT}, v{X2+i}, v{X2+i+1}")
            e(f"v_max3_u32 v{VT+1}, v{VT+1}, v{X2+i+2}, v{X2+i+3}")
        e(f"v_max3_u32 v{VT}, v{VT}, v{X2+14}, v{X2+15}")
        e(f"v_max_u32 v{VT}, v{VT}, v{VT+1}")
        e(f"v_cmp_eq_u32 vcc, -1, v{VT}")
        e("s_nop 4")
        e(f"s_cbranch_vccnz {tag}_xr")
        A.label(f"{tag}_xd")
        e("s_waitcnt vmcnt(0)")
        if gen.STAMP: e("s_memrealtime s[58:59]"); e("s_waitcnt lgkmcnt(0)"); e("s_mov_b32 s5, s58")
        T2 = X2 + 16
        for i in range(16):
            t = T2 + 2 * (i % 8)
            e(f"v_lshlrev_b32 v{t}, 16, v{X2+i}"); e(f"v_and_b32 v{t+1}, 0xffff0000, v{X2+i}")
            e(f"v_pk_add_f32 v[{ACC+2*i}:{ACC+2*i+1}], v[{ACC+2*i}:{ACC+2*i+1}], v[{t}:{t+1}]")
    if down:
        e(f"s_cmp_lg_u32 s{S_LAYER}, 0"); e(f"s_cbranch_scc1 {tag}_final")
    e("s_lshl_b32 s36, s35, 12"); e("s_lshl_b32 s37, s34, 8"); e("s_add_u32 s36, s36, s37")
    srd_off(A, 24, "s28", "s29", WS_ST if down else WS_STB, 64 * 4096)
    for i in range(16):
        e(f"v_cvt_pk_bf16_f32 v{RES+i}, v{ACC+2*i}, v{ACC+2*i+1}")
        if i % 4 == 3:
            e(f"buffer_store_dwordx4 v[{RES+i-3}:{RES+i}], v{VXO}, s[20:23], 0 offen offset:{(i//4)*1024}{SC1}")
    stats_emit(A, T, [RES + i for i in range(16)], VT)
    e(f"v_lshrrev_b32 v{VXO}, 2, v{VXO}")
    e(f"buffer_store_dword v{VT}, v{VXO}, s[24:27], s36 offen{SC1}")
    stamps_flush(A)
    A.label(f"{tag}_out")
    if down:
        e("s_and_b32 s31, s33, 7"); e("s_and_b32 s32, s33, 8"); e("s_lshl_b32 s32, s32, 3"); e("s_add_u32 s31, s31, s32")
        set_signal(A, 31, cD)
        e(f"s_cmp_lg_u32 s{S_LAYER}, 0"); e(f"s_cbranch_scc1 {NAME}_end")
        e(f"s_mov_b32 s{S_LAYER}, 1")
    else:
        set_signal(A, 45, cO)
    e(f"s_branch {nxt}")
    if down:
        A.label(f"{tag}_final")
        srd(A, 24, "s6", "s7", S * D * 2)
        rowmajor_lane_off(A, VT, VT + 1)
        e("s_lshl_b32 s36, s35, 16"); e("s_lshl_b32 s37, s34, 7"); e("s_add_u32 s36, s36, s37")
        e(f"s_add_u32 s37, s36, {16*2048}")
        for i in range(16):
            e(f"v_cvt_pk_bf16_f32 v{RES+i}, v{ACC+2*i}, v{ACC+2*i+1}")
        e("s_nop 0")
        for i in range(4):
            e(f"v_permlane16_swap_b32 v{RES+4*i}, v{RES+4*i+2}")
            e(f"v_permlane16_swap_b32 v{RES+4*i+1}, v{RES+4*i+3}")
        e("s_nop 1")
        for i in range(4):
            so, off = rowmajor_frag(i, "s36", "s37")
            e(f"buffer_store_dwordx4 v[{RES+4*i}:{RES+4*i+3}], v{VT}, s[24:27], {so} offen offset:{off}{opt.get('ofl', '')}")
        if gen.STAMP: e("s_waitcnt vmcnt(0)")
        stamps_flush(A)
        e(f"s_branch {NAME}_end")
    if down:
        LD = Loader(A, "down", SET_C, 224)
        NX = Loader(A, "qkv", SET_A, 130)
        idle_head(A, tag, early=NX.setup)
        LD.issue()
        LD.loop(f"{tag}_i3", G.NT - 2)
        e(f"s_cmp_lg_u32 s{S_LAYER}, 0"); e(f"s_cbranch_scc1 {tag}_i5")
        NX.issue()
        e("s_waitcnt vmcnt(6)")
        e("s_barrier")
        NX.issue(); NX.issue()
        e(f"s_branch {tag}_i6")
        A.label(f"{tag}_i5")
        e("s_waitcnt vmcnt(0)")
        e("s_barrier")
        A.label(f"{tag}_i6")
        e("s_barrier")
    else:
        LD = Loader(A, "wo", SET_C, 140)
        def early():
            e(f"s_cmp_lg_u32 s{S_LAYER}, 0"); e(f"s_cbranch_scc1 {tag}_nw")
            warm(A, [64 * i for i in range(14)], 896)
            A.label(f"{tag}_nw")
        idle_head(A, tag, early=early if SWARM else None)
        def wb():
            e(f"s_cmp_lg_u32 s{S_LAYER}, 0"); e(f"s_cbranch_scc1 {tag}_nw2")
            warm(A, [64 * i for i in range(5)], 320)
            A.label(f"{tag}_nw2")
        LD.loop(f"{tag}_i3", G.NT, body=wb if SWARM else None)
    idle_tail(A, f"{tag}_out")

def ffn_coords(A, sm, sn, t0, t1):
    e = A.e
    e(f"s_and_b32 s{t0}, s2, 7"); e(f"s_lshr_b32 s{t1}, s2, 3")
    e(f"s_and_b32 s{sm}, s{t0}, 1"); e(f"s_lshl_b32 s{sm}, s{sm}, 2"); e(f"s_lshr_b32 s{sn}, s{t1}, 3"); e(f"s_add_u32 s{sm}, s{sm}, s{sn}")
    e(f"s_lshr_b32 s{sn}, s{t0}, 1"); e(f"s_lshl_b32 s{sn}, s{sn}, 3"); e(f"s_and_b32 s{t1}, s{t1}, 7"); e(f"s_add_u32 s{sn}, s{sn}, s{t1}")

FGU = 16384
def ffn_wsetup(A, tag, VP, VF, VT, sn, t0, opt, regs):
    e = A.e
    ldw = F * 2
    e(f"v_and_b32 v{VT}, 63, v0")
    e(f"s_and_b32 s{t0}, s{S_WV}, 3"); e(f"s_lshl_b32 s{t0}, s{t0}, 8")
    e(f"s_mul_i32 s{t0+1}, s{sn}, 224")
    e(f"s_and_b32 s{t0+2}, s{sn}, 1"); e(f"s_lshl_b32 s{t0+2}, s{t0+2}, 1")
    e(f"s_movk_i32 s{t0+3}, 4682")
    for j in range(4):
        u, r, c = VT + 1, VT + 2, VT + 3
        e(f"v_add_u32 v{u}, s{t0}, v{VT}")
        if j: e(f"v_add_u32 v{u}, {64*j}, v{u}")
        e(f"v_mul_u32_u24 v{r}, s{t0+3}, v{u}"); e(f"v_lshrrev_b32 v{r}, 16, v{r}")
        e(f"v_mul_u32_u24 v{c}, 14, v{r}"); e(f"v_sub_u32 v{c}, v{u}, v{c}")
        e(f"v_add_u32 v{c}, s{t0+2}, v{c}")
        e(f"v_subrev_u32 v{u}, 14, v{c}"); e(f"v_min_u32 v{c}, v{c}, v{u}")
        e(f"v_mul_u32_u24 v{VP+j}, {ldw}, v{r}")
        e(f"v_lshl_add_u32 v{VP+j}, v{c}, 4, v{VP+j}")
        e(f"v_add_u32 v{VP+j}, s{t0+1}, v{VP+j}")
        if j >= 2:
            e(f"v_lshrrev_b32 v{r}, 6, v{r}"); e(f"v_lshl_add_u32 v{VP+j}, v{r}, 28, v{VP+j}")
    ACC, WF, XF, VXO = regs
    SBY = 2 * FGU
    assert not opt["skew"]
    return MGemm(A, tag, T=16, NB=14, RG=1, K=D, STAGES=4, XT=opt.get("XT", 1), NWR=8, LA=opt.get("LA", 7), WG=opt.get("WG", 2), npieces=4, stage_bytes=SBY,
                 piece_lds=lambda j: j * 1024,
                 frag_addr=lambda stg, row, nb: (VF + stg // 2, (stg % 2) * SBY + (nb % 2) * FGU + row * 224 + 32 * (nb // 2)),
                 acc=blk_acc(16, "v", ACC, 1), wfrag0=WF, xfrag0=XF, vpiece0=VP, vxoff=VXO,
                 srd_w=8, srd_x=12, s_woff=41, s_xoff=42, s_ldsw=40, s_it=43, ldw=ldw, opt=opt)

def ffn_prefetch(A, vt, opt):
    opt = dict(opt or {}); opt.setdefault("skew", 0)
    h = {}
    def setup():
        A.e(f"s_load_dwordx4 s[84:87], s[0:1], {KA['wg']}")
        ffn_coords(A, 16, 17, 18, 19)
        h["G"] = ffn_wsetup(A, "x", vt, 0, vt + 4, 17, 20, opt, (0, 0, 0, 0))
        A.e("s_waitcnt lgkmcnt(0)")
    def issue(t):
        G = h["G"]
        if True:
            for m in range(2):
                srd(A, 8, f"s{84+2*m}", f"s{85+2*m}", D * F * 2)
                A.e(f"s_and_b32 s40, s{S_WV}, 3"); A.e("s_lshl_b32 s40, s40, 12")
                if m: A.e(f"s_add_u32 s40, s40, {FGU}")
                A.e(f"s_mov_b32 s41, {((t - 1) * 64 * F * 2) & 0xffffffff:#x}")
                tmp = Stream(); G.pro_w(tmp, t, t + 1)
                for op in tmp.ops: A.e(op[1])
    return setup, issue

def p_ffn(A, tag, nxt, opt=None):
    e = A.e
    opt = dict(opt or {}); opt.setdefault("skew", 0); opt.setdefault("prio47", 1)
    XT = opt.get("XT", 1)
    ldw = F * 2
    SBY = 2 * FGU
    A.label(tag)
    phase_begin(A)
    e(f"s_load_dwordx4 s[4:7], s[0:1], {KA['wg']}")
    VP, VF, VXO, VMN, VRS, VT = 1, 5, 7, 8, 10, 12
    WF = 20; XF = WF + 32
    ACC = XF + XT * 16
    SC = ACC + 112; CSR = SC + 16
    assert CSR + 28 <= 254
    ffn_coords(A, 33, 34, 31, 32)
    set_poll(A, 33, cO, 32)
    e(f"s_lshl_b32 s35, s33, 3"); e(f"s_add_u32 s35, s35, s{S_WV}")
    e(f"s_lshr_b32 s37, s{S_WV}, 2")
    e(f"s_lshl_b32 s40, s{S_WV}, 12")
    e("s_and_b32 s45, s34, 1")
    e(f"v_and_b32 v{VT}, 63, v0")
    e(f"v_lshlrev_b32 v{VXO}, 4, v{VT}")
    e("s_lshl_b32 s36, s35, 16"); e(f"s_add_u32 s36, s36, {WS_XB}")
    srd_off(A, 12, "s28", "s29", "s36", D * 64)
    e(f"v_and_b32 v{VT+1}, 3, v{VT}"); e(f"v_lshlrev_b32 v{VF}, 3, v{VT+1}")
    e(f"v_lshrrev_b32 v{VT+1}, 2, v{VT}"); e(f"v_mul_u32_u24 v{VT+1}, 224, v{VT+1}"); e(f"v_add_u32 v{VF}, v{VF}, v{VT+1}")
    e(f"v_add_u32 v{VF+1}, {2*SBY}, v{VF}")
    e("s_lshl_b32 s38, s35, 12"); e(f"s_add_u32 s38, s38, {WS_STB}")
    e(f"s_mul_i32 s39, s34, {112*32}"); e(f"s_add_u32 s39, s39, {WS_CS2}")
    srd_off(A, 20, "s28", "s29", "s38", 4096)
    srd_off(A, 24, "s28", "s29", "s39", (F + 112) * 32)
    e(f"s_mov_b32 s10, {D*ldw}"); e("s_mov_b32 s11, 0x00020000")
    e("s_cmp_eq_u32 s37, 0")
    e("s_waitcnt lgkmcnt(0)")
    e("s_cselect_b32 s8, s4, s6"); e("s_cselect_b32 s9, s5, s7")
    h = {}
    def setup2():
        h["G"] = G = ffn_wsetup(A, tag, VP, VF, VT, 34, 46, opt, (ACC, WF, XF, VXO))
        G.order_init(None)
        e(f"v_lshlrev_b32 v{VT+1}, 2, v{VT}"); e(f"v_add_u32 v{VT+1}, {LDS_P}, v{VT+1}")
        e(f"s_add_u32 s30, s37, 1")
        if not SWARM:
            e(f"s_load_dwordx2 s[88:89], s[0:1], {KA['wd']}")
            e(f"s_mov_b32 s90, {F*D*2}"); e("s_mov_b32 s91, 0x00020000")
            e(f"s_lshl_b32 s44, s2, 2"); e(f"s_add_u32 s44, s44, s{S_WV}"); e("s_mul_i32 s44, s44, 7168"); e("s_add_u32 s46, s44, 4096")
            NB_ = opt.get("wst", 11)
            e("s_lshr_b32 s31, s2, 3"); e("s_and_b32 s32, s2, 7"); e("s_lshl_b32 s32, s32, 1"); e("s_add_u32 s31, s31, s32")
            e(f"s_mul_i32 s32, s31, {65536 // NB_ + 1}"); e("s_lshr_b32 s32, s32, 16"); e(f"s_mul_i32 s32, s32, {NB_}"); e("s_sub_u32 s31, s31, s32")
            e("s_add_u32 s31, s31, 1"); e("s_lshl_b32 s47, s31, 12")
            e(f"s_lshr_b32 s31, s{S_WV}, 2"); e(f"s_or_b32 s31, s31, s{S_LAYER}"); e("s_cmp_lg_u32 s31, 0"); e("s_cselect_b32 s47, -1, s47")
            e("s_waitcnt lgkmcnt(0)")
            cnt_ = [0]
            def tile_hook(st):
                cnt_[0] += 1
                l = f"{tag}_wb{cnt_[0] % G.UN}"
                st.i(f"s_cmp_lg_u32 s42, s47\n    s_cbranch_scc1 {l}\n" + "".join(
                    f"    buffer_load_dwordx4 v[244:247], v{VXO}, s[88:91], {'s44' if i < 4 else 's46'} offen offset:{(i % 4) * 1024}\n" for i in range(7)) + f"{l}:")
            G.tile_hook = tile_hook
        for i in range(0, 112, 2): e(f"v_pk_mov_b32 v[{ACC+i}:{ACC+i+1}], 0, 0")
    e(f"s_cmp_lt_u32 s{S_WV}, 4"); e(f"s_cbranch_scc1 {tag}_lo")
    e(f"s_cmp_lg_u32 s{S_WV}, 4"); e(f"s_cbranch_scc1 {tag}_c1")
    if True:
        e(f"v_and_b32 v{VT+1}, 15, v{VT}"); e(f"v_bfe_u32 v{VT+2}, v{VT}, 4, 1"); e(f"v_mul_u32_u24 v{VT+2}, {F}, v{VT+2}")
        e(f"v_add_lshl_u32 v{VT+1}, v{VT+1}, v{VT+2}, 5")
        e(f"v_lshrrev_b32 v{VT+2}, 5, v{VT}"); e(f"v_lshl_add_u32 v{VT+1}, v{VT+2}, 4, v{VT+1}")
        e("s_lshl_b32 s48, s45, 9")
        e("s_mul_i32 s49, s45, 3072"); e("s_sub_u32 s49, 3072, s49")
        for j in range(7):
            so, off = ("s48", j * 512) if j < 6 else ("s49", 0)
            e(f"buffer_load_dwordx4 v[{CSR+4*j}:{CSR+4*j+3}], v{VT+1}, s[24:27], {so} offen offset:{off}{SC1}")
    A.label(f"{tag}_c1")
    setup2()
    sync1(A)
    e(f"s_cmp_lg_u32 s{S_WV}, 4"); e(f"s_cbranch_scc1 {tag}_c2")
    for j in range(7): e(f"v_pk_add_f32 v[{CSR+4*j}:{CSR+4*j+1}], v[{CSR+4*j}:{CSR+4*j+1}], v[{CSR+4*j+2}:{CSR+4*j+3}]")
    for j in range(7): e(f"v_add_f32 v{CSR+4*j}, v{CSR+4*j}, v{CSR+4*j+1}")
    for j in range(7): e(f"v_mov_b32 v{CSR+4*j+1}, v{CSR+4*j}")
    e("s_nop 1")
    for j in range(7): e(f"v_permlane32_swap_b32 v{CSR+4*j}, v{CSR+4*j+1}")
    e("s_nop 1")
    for j in range(7): e(f"v_add_f32 v{CSR+4*j}, v{CSR+4*j}, v{CSR+4*j+1}")
    for j in range(7): e(f"ds_write_b32 v{VT+1}, v{CSR+4*j} offset:{j*256}")
    A.label(f"{tag}_c2")
    e(f"s_cmp_lg_u32 s{S_WV}, 7"); e(f"s_cbranch_scc1 {tag}_join")
    do_signal(e, VT + 4, VT + 5, wait=False)
    e(f"s_branch {tag}_join")
    A.label(f"{tag}_lo")
    sync1(A)
    setup2()
    A.label(f"{tag}_join")
    G = h["G"]
    nit = G.NT // G.UN
    p = Stream()
    G.npre = 2
    G.pro_w_pre(p)
    G.reads(p)
    p.i(f"s_cmp_lg_u32 s{S_WV}, 7"); p.i(f"s_cbranch_scc1 {tag}_nopoll")
    if not NOWAIT: p.i("s_waitcnt vmcnt(0)")
    if gen.STAMP: p.i("s_memrealtime s[62:63]")
    do_poll(p.i, VT + 4, VT + 6, tag)
    p.i(f"{tag}_nopoll:")
    G.sync2(p)
    G.pro_x(p)
    G.pro_w(p, 2, 3)
    if opt.get("prio47"):
        p.i(f"s_cmp_lt_u32 s{S_WV}, 4"); p.i(f"s_cbranch_scc1 {tag}_np"); p.i("s_setprio 1"); p.i(f"{tag}_np:")
    def fix():
        e("s_add_u32 s31, s30, 1"); e("s_cmp_lg_u32 s43, s31"); e(f"s_cbranch_scc1 {tag}_nold")
        e(f"v_lshrrev_b32 v{VT+2}, 2, v{VXO}")
        for i in range(16):
            e(f"buffer_load_dword v{SC+i}, v{VT+2}, s[20:23], 0 offen offset:{i*256}{SC1}")
        A.label(f"{tag}_nold")
        e(f"s_cmp_lg_u32 s43, s30")
        e(f"s_cbranch_scc1 {tag}_nofix")
        for j in range(7): e(f"ds_read_b32 v{CSR+4*j}, v{VT+1} offset:{j*256}")
        stats_finish(e, SC, VT + 4, VMN, VRS)
        split16(e, VRS, VRS + 1)
        split16(e, VMN, VT + 4)
        e("s_waitcnt lgkmcnt(0)")
        e(f"v_permlane32_swap_b32 v{VMN}, v{VT+4}"); e("s_nop 1")
        for j in range(7):
            r = ACC + j * 16
            e(f"v_mfma_f32_16x16x1_4b_f32 v[{r}:{r+15}], v{CSR+4*j}, v{VMN}, v[{r}:{r+15}]")
        A.label(f"{tag}_nofix")
    assert CSR + 28 <= 224 and nit == 4 and CSR % 2 == 0
    C1, C2, TB, OB = CSR, CSR + 4, CSR + 8, CSR + 16
    NX = Loader(A, "down", SET_C, 224)
    def between():
        for k in range(2):
            e(f"v_mul_f32 v{C1+2*k}, {NLOG2E:#x}, v{VRS+k}")
            e(f"v_mul_f32 v{C2+2*k}, v{VRS+k}, v{VRS+k}")
            e(f"v_rcp_f32 v{C2+2*k}, v{C2+2*k}")
        e(f"s_mul_i32 s36, s35, {F*64}"); e(f"s_add_u32 s36, s36, {WS_H}")
        srd_off(A, 20, "s28", "s29", "s36", F * 64)
        e("s_mul_i32 s38, s34, 7"); e("s_add_u32 s38, s38, s45"); e("s_lshl_b32 s38, s38, 10")
        e("s_mul_i32 s39, s45, 8184"); e("s_add_u32 s46, s38, 6144"); e("s_sub_u32 s39, s46, s39")
        e("s_add_u32 s46, s38, 4096")
        e(f"s_cmp_lt_u32 s{S_WV}, 4"); e(f"s_cbranch_scc1 {tag}_res")
        NX.setup()
        e(f"s_branch {tag}_nopre")
        A.label(f"{tag}_res")
        proj_coords(A, 16, 17, 18, 19)
        e(f"s_lshl_b32 s16, s16, 2"); e(f"s_add_u32 s16, s16, s{S_WV}"); e("s_lshl_b32 s16, s16, 16"); e("s_lshl_b32 s17, s17, 12"); e("s_add_u32 s16, s16, s17")
        e(f"s_add_u32 s16, s16, {WS_XB}")
        srd_off(A, 24, "s28", "s29", "s16", 4096)
        e("v_pk_mov_b32 v[224:225], 0, 0"); e("v_pk_mov_b32 v[226:227], 0, 0")
        A.label(f"{tag}_nopre")
    def capture(fn):
        n0 = len(A.lines); fn(); out = [l.strip() for l in A.lines[n0:]]; del A.lines[n0:]
        return out
    def midf():
        e(f"s_cmp_lt_u32 s{S_WV}, 4"); e(f"s_cbranch_scc1 {tag}_res2")
        NX.issue(); NX.issue()
        e(f"s_branch {tag}_nopre2")
        A.label(f"{tag}_res2")
        for i in range(4):
            e(f"buffer_load_dwordx4 v[{V_RES+4*i}:{V_RES+3+4*i}], v{VXO}, s[24:27], 0 offen offset:{i*1024}{SC1}")
        A.label(f"{tag}_nopre2")
    def silu(blocks, k, out):
        for b, r in enumerate(blocks):
            for i in (0, 2): e(f"v_pk_mul_f32 v[{TB+4*b+i}:{TB+4*b+i+1}], v[{r+i}:{r+i+1}], v[{C1+2*k}:{C1+2*k+1}] op_sel_hi:[1,0]")
        for i in range(4 * len(blocks)): e(f"v_exp_f32 v{TB+i}, v{TB+i}")
        for b, r in enumerate(blocks):
            for i in (0, 2): e(f"v_pk_mul_f32 v[{r+i}:{r+i+1}], v[{r+i}:{r+i+1}], v[{r+4+i}:{r+5+i}]")
        for i in range(0, 4 * len(blocks), 2):
            e(f"v_pk_fma_f32 v[{TB+i}:{TB+i+1}], v[{TB+i}:{TB+i+1}], v[{C2+2*k}:{C2+2*k+1}], v[{C2+2*k}:{C2+2*k+1}] op_sel_hi:[1,0,0]")
        for i in range(4 * len(blocks)): e(f"v_rcp_f32 v{TB+i}, v{TB+i}")
        for b, r in enumerate(blocks):
            for i in (0, 2): e(f"v_pk_mul_f32 v[{r+i}:{r+i+1}], v[{r+i}:{r+i+1}], v[{TB+4*b+i}:{TB+4*b+i+1}]")
        for b, r in enumerate(blocks):
            for i in (0, 2): e(f"v_cvt_pk_bf16_f32 v{out+2*b+i//2}, v{r+i}, v{r+i+1}")
    def epi(pj):
        def f():
            for sb in range(2):
                ob = OB + 4 * ((2 * pj + sb) % 3)
                silu([ACC + (2 * pj + jj) * 16 + 8 * sb for jj in range(2 if pj < 3 else 1)], sb, ob)
                if pj < 3:
                    so, off = ("s38", pj * 2048 + sb * 1024) if pj < 2 else ("s46", sb * 1024)
                    e(f"buffer_store_dwordx4 v[{ob}:{ob+3}], v{VXO}, s[20:23], {so} offen offset:{off}{SC1}")
                else:
                    e(f"buffer_store_dwordx2 v[{ob}:{ob+1}], v{VXO}, s[20:23], s39 offen offset:{sb*1024}{SC1}")
        out = capture(f)
        if opt.get("unpk", 1) and pj < 3: out = [x for l in out for x in unpack_pk(l)]
        return out
    tail = G.tail_fused([[0, 1, 2, 3], [4, 5, 6, 7], [8, 9, 10, 11], [12, 13]], SC, epi, capture(midf))
    G.emit_tail(p, tail, fix, between)
    if opt.get("prio47"): e("s_setprio 0")
    stamps_flush(A)
    e("s_lshl_b32 s31, s33, 1"); e("s_lshr_b32 s32, s34, 4"); e("s_add_u32 s31, s31, s32")
    set_signal(A, 31, cU)
    e(f"s_branch {nxt}")

def qkv_coords(A, sm, sn, t0, t1):
    e = A.e
    e(f"s_and_b32 s{t0}, s2, 7"); e(f"s_lshr_b32 s{t1}, s2, 3")
    e(f"s_and_b32 s{sm}, s{t0}, 1"); e(f"s_lshl_b32 s{sm}, s{sm}, 3"); e(f"s_lshr_b32 s{sn}, s{t1}, 2"); e(f"s_add_u32 s{sm}, s{sm}, s{sn}")
    e(f"s_lshr_b32 s{sn}, s{t0}, 1"); e(f"s_lshl_b32 s{sn}, s{sn}, 2"); e(f"s_and_b32 s{t1}, s{t1}, 3"); e(f"s_add_u32 s{sn}, s{sn}, s{t1}")

def p_qkv(A, tag, nxt, fpre, opt=None):
    e = A.e
    opt = dict(opt or {})
    XT = opt.get("XT", 2)
    ldw = 3 * D * 2
    A.label(tag)
    phase_begin(A, True)
    qkv_coords(A, 33, 34, 31, 32)
    e("s_and_b32 s31, s33, 7"); e("s_and_b32 s32, s33, 8"); e("s_lshl_b32 s32, s32, 3"); e("s_add_u32 s31, s31, s32")
    set_poll(A, 31, cD, 16, prev_layer=True)
    e(f"s_cmp_ge_u32 s{S_WV}, 4"); e(f"s_cbranch_scc1 {tag}_idle")
    VF, VXO, VA, VT = 1, 9, 10, 16
    ACC = 32; WF = ACC + 96; XF = WF + 32; RR = XF + 32; KL = RR + 8
    CSR = KL + 8; QR = CSR + 12
    assert QR + 8 <= V_RES and XT <= 2
    LCS = LDS_Z + 4096
    LST = LDS_Z + 2048
    e(f"v_and_b32 v{VXO}, 63, v0"); e(f"v_lshlrev_b32 v{VXO}, 4, v{VXO}")
    lane_consts_fullline(A, 16, ldw, VT, VT + 3, VF)
    for i in range(4): e(f"v_add_u32 v{VF+4+i}, {2*QSBY}, v{VF+i}")
    opt["now"] = 1
    def acc(nb, sb):
        blk, lo = divmod(nb, 2)
        r = ACC + blk * 16 + (sb * 8 + lo * 4 if blk < 2 else lo * 8 + sb * 4)
        return f"v[{r}:{r+3}]"
    G = MGemm(A, tag, T=16, NB=12, RG=1, K=D, STAGES=4, XT=XT, NWR=8, LA=opt.get("LA", 4), WG=opt.get("WG", 2), npieces=1, stage_bytes=QSBY, piece_lds=None,
              frag_addr=fullline_frag_addr(16, VF, 64, lambda stg: (4 * (stg // 2), (stg % 2) * QSBY)),
              acc=acc, wfrag0=WF, xfrag0=XF, vpiece0=0, vxoff=VXO,
              srd_w=8, srd_x=12, s_woff=41, s_xoff=42, s_ldsw=40, s_it=43, ldw=ldw,
              swap=[nb >= 4 for nb in range(12)], opt=opt)
    e("s_add_u32 s36, s33, s34"); e("s_and_b32 s36, s36, 3")
    G.order_init(36)
    G.pro_order(e)
    e(f"s_lshl_b32 s35, s33, 2"); e(f"s_add_u32 s35, s35, s{S_WV}")
    e("s_lshl_b32 s36, s35, 16")
    srd_off(A, 12, "s28", "s29", "s36", D * 64)
    sync1(A)
    p = Stream()
    G.reads(p)
    o = p.i
    for i in range(0, 96, 2): o(f"v_pk_mov_b32 v[{ACC+i}:{ACC+i+1}], 0, 0")
    VC = VT + 8
    o(f"s_lshl_b32 s38, s{S_WV}, 9"); o(f"s_add_u32 s38, s38, {LST}"); o(f"s_sub_u32 s39, {LCS}, s38")
    o(f"v_and_b32 v{VC+2}, 31, v{VT}"); o(f"v_lshl_add_u32 v{VC+2}, v{VC+2}, 2, s38")
    o(f"v_and_b32 v{VC+4}, 15, v{VT}"); o(f"v_lshl_add_u32 v{VC+4}, v{VC+4}, 2, s38")
    o(f"v_lshrrev_b32 v{VC+3}, 5, v{VT}"); o(f"v_lshl_add_u32 v{VC+3}, v{VC+3}, 6, v{VC+4}")
    o(f"v_lshrrev_b32 v{VC+5}, 4, v{VT}"); o(f"v_lshl_add_u32 v{VC+5}, v{VC+5}, 4, s38")
    o(f"v_add_u32 v{VC}, s39, v{VC+2}"); o(f"v_add_u32 v{VC+1}, s39, v{VC+3}")
    class O:
        e = staticmethod(o)
    proj_coords(O, 45, 46, 47, 44)
    o(f"s_lshl_b32 s45, s45, 2"); o(f"s_add_u32 s45, s45, s{S_WV}"); o("s_lshl_b32 s45, s45, 16"); o("s_lshl_b32 s46, s46, 12"); o("s_add_u32 s45, s45, s46")
    srd_off(O, 48, "s28", "s29", "s45", 4096)
    o(f"s_mov_b32 s47, {f2u(1e-6):#x}")
    o(f"s_mul_i32 s36, s35, {F*64}"); o("s_lshl_b32 s37, s34, 12"); o("s_add_u32 s36, s36, s37"); o(f"s_add_u32 s36, s36, {WS_H}")
    srd_off(O, 20, "s28", "s29", "s36", 4096)
    o(f"s_mul_i32 s39, s{S_LAYER}, {WS_KV2 - WS_KV}")
    o(f"s_lshl_b32 s38, s34, 16"); o(f"s_lshl_b32 s40, s{S_WV}, 10"); o("s_add_u32 s38, s38, s40"); o(f"s_add_u32 s38, s38, {WS_KV}")
    o("s_add_u32 s38, s38, s39")
    srd_off(O, 24, "s28", "s29", "s38", 65536)
    o("s_lshl_b32 s37, s34, 4"); o("s_add_u32 s37, s37, s33")
    o("s_lshl_b32 s38, s37, 8"); o(f"s_add_u32 s38, s38, {WS_Z}"); o("s_add_u32 s38, s38, s39")
    srd_off(O, 16, "s28", "s29", "s38", 256)
    o("s_lshl_b32 s44, s33, 12")
    o(f"s_add_u32 s40, s40, {LDS_R}")
    o(f"s_lshl_b32 s36, s{S_WV}, 13"); o(f"s_add_u32 s37, s36, {LDS_R}")
    o(f"s_lshl_b32 s38, s{S_WV}, 8"); o(f"s_add_u32 s38, s38, {LDS_Z}")
    o(f"v_add_u32 v{VA}, s40, v{VXO}")
    o(f"v_add_u32 v{VA+1}, s37, v{VXO}")
    o(f"v_and_b32 v{VA+2}, 0xf0, v{VXO}"); o(f"v_lshrrev_b32 v{VA+2}, 2, v{VA+2}"); o(f"v_add_u32 v{VA+2}, s38, v{VA+2}")
    o(f"v_lshrrev_b32 v{VA+3}, 2, v{VXO}"); o(f"v_add_u32 v{VA+4}, {LDS_Z}, v{VA+3}")
    o(f"v_lshrrev_b32 v{VA+5}, 8, v{VXO}"); o(f"v_lshlrev_b32 v{VA+5}, 4, v{VA+5}"); o(f"v_add_u32 v{VA+5}, {LDS_Z + 1024}, v{VA+5}")
    for i in range(4): o(f"v_mov_b32 v{CSR+8+i}, 0x3f803f80")
    G.sync2(p)
    G.pro_x(p)
    def hook():
        if gen.STAMP:
            e("s_memrealtime s[58:59]"); e("s_mov_b32 s4, s5"); e("s_mov_b32 s5, s6"); e("s_mov_b32 s6, s7"); e("s_waitcnt lgkmcnt(0)"); e("s_mov_b32 s7, s58")
    G.emit(p, loop_end=hook)
    e(f"ds_read_b32 v{VT}, v{VC+2}"); e(f"ds_read_b32 v{VT+1}, v{VC+3}")
    order = (4, 2, 5, 3, 0, 1)
    for b in order: e(f"ds_read_b32 v{CSR+b}, v{VC + (0 if b < 2 else 1)} offset:{b*128}")
    for sb in range(2):
        e(f"ds_read_b128 v[{RR+4*sb}:{RR+4*sb+3}], v{VC+5} offset:{128 + 64*sb}"); e(f"ds_read_b128 v[{KL+4*sb}:{KL+4*sb+3}], v{VC+5} offset:{256 + 64*sb}")
    for sb in range(2):
        e(f"ds_read_b32 v{QR+2*sb}, v{VC+4} offset:{128 + 64*sb}"); e(f"ds_read_b32 v{QR+4+2*sb}, v{VC+4} offset:{256 + 64*sb}")
    e("s_waitcnt lgkmcnt(8)")
    for b in order:
        r = ACC + 16 * b
        if b < 2: e(f"v_mfma_f32_16x16x1_4b_f32 v[{r}:{r+15}], v{CSR+b}, v{VT+1}, v[{r}:{r+15}]")
        else: e(f"v_mfma_f32_16x16x1_4b_f32 v[{r}:{r+15}], v{VT}, v{CSR+b}, v[{r}:{r+15}]")
    e("s_waitcnt lgkmcnt(0)")
    e("s_nop 3")
    TB = VT
    def phi(r, rsr, rl, out):
        for i in range(0, 16, 2): e(f"v_pk_mul_f32 v[{TB+i}:{TB+i+1}], v[{r+i}:{r+i+1}], {rl(i)[0]}{rl(i)[1]}")
        for i in range(16): e(f"v_exp_f32 v{TB+i}, v{TB+i} clamp")
        for i in range(0, 16, 2): e(f"v_pk_fma_f32 v[{r+i}:{r+i+1}], v[{r+i}:{r+i+1}], {rsr(i)[0]}, 1.0{rsr(i)[2]}")
        for i in range(16): e(f"v_max_f32 v{r+i}, v{r+i}, v{TB+i}")
        for i in range(0, 16, 2): e(f"v_pk_add_f32 v[{r+i}:{r+i+1}], v[{r+i}:{r+i+1}], s[46:47] op_sel:[0,1]")
        for i in range(0, 16, 2): e(f"v_cvt_pk_bf16_f32 v{out+i//2}, v{r+i}, v{r+i+1}")
    vec = lambda base: (lambda i: (f"v[{base+i%8}:{base+i%8+1}]", "", " op_sel_hi:[1,1,0]"))
    bc = lambda base: (lambda i: (f"v[{base+2*(i//8)}:{base+2*(i//8)+1}]", " op_sel_hi:[1,0]", " op_sel_hi:[1,0,0]"))
    PK = WF; VV = WF + 16; ONE = CSR + 8; OB = ACC + 80
    KVR = ACC + 32; ZR = ACC + 64
    def kv_write(hh):
        for qd in range(4):
            r = KVR + hh * 16 + 4 * qd
            e(f"ds_write_b128 v{VA}, v[{r}:{r+3}] offset:{(hh*4 + qd)*4096}")
        for dt in range(2):
            e(f"ds_write_b32 v{VA+2}, v{ZR + hh*16 + dt*4} offset:{hh*128 + dt*64}")
    for hh in range(2):
        r = ACC + (4 + hh) * 16
        for i in range(0, 16, 2):
            e(f"v_pk_mul_f32 v[{r+i}:{r+i+1}], v[{r+i}:{r+i+1}], v[{RR+i%8}:{RR+i%8+1}]")
        for i in range(0, 16, 2):
            e(f"v_cvt_pk_bf16_f32 v{VV+hh*8+i//2}, v{r+i}, v{r+i+1}")
        if hh == 1: kv_write(0)
        phi(ACC + (2 + hh) * 16, vec(RR), vec(KL), PK + hh * 8)
        e("s_nop 1")
        for et in range(2):
            for dt in range(2):
                r = KVR + hh * 16 + et * 8 + dt * 4; a = PK + hh * 8 + dt * 4; b = VV + hh * 8 + et * 4
                e(f"v_mfma_f32_16x16x32_bf16 v[{r}:{r+3}], v[{a}:{a+3}], v[{b}:{b+3}], 0")
        for dt in range(2):
            r = ZR + hh * 16 + dt * 4; a = PK + hh * 8 + dt * 4
            e(f"v_mfma_f32_16x16x32_bf16 v[{r}:{r+3}], v[{ONE}:{ONE+3}], v[{a}:{a+3}], 0")
    e("s_nop 3")
    kv_write(1)
    e("s_waitcnt lgkmcnt(0)")
    e("s_barrier")
    if gen.STAMP: e("s_memrealtime s[58:59]"); e("s_waitcnt lgkmcnt(0)"); e("s_mov_b32 s7, s58")
    RB = KVR
    for k in range(8):
        e(f"ds_read_b128 v[{RB+4*k}:{RB+4*k+3}], v{VA+1} offset:{k*1024}")
    for k in range(4):
        e(f"ds_read_b32 v{ZR+k}, v{VA+4} offset:{k*256}")
    for k in range(2):
        e(f"s_waitcnt lgkmcnt({8 - 4*k})")
        r = RB + 16 * k
        for i in (0, 2):
            e(f"v_pk_add_f32 v[{r+i}:{r+i+1}], v[{r+i}:{r+i+1}], v[{r+4+i}:{r+5+i}]")
            e(f"v_pk_add_f32 v[{r+8+i}:{r+9+i}], v[{r+8+i}:{r+9+i}], v[{r+12+i}:{r+13+i}]")
        for i in (0, 2):
            e(f"v_pk_add_f32 v[{r+i}:{r+i+1}], v[{r+i}:{r+i+1}], v[{r+8+i}:{r+9+i}]")
        for i in (0, 2):
            e(f"v_cvt_pk_bf16_f32 v{PK+2*k+i//2}, v{r+i}, v{r+i+1}")
    e(f"buffer_store_dwordx4 v[{PK}:{PK+3}], v{VXO}, s[24:27], s44 offen{SC1}")
    e("s_waitcnt lgkmcnt(0)")
    e(f"v_pk_add_f32 v[{ZR}:{ZR+1}], v[{ZR}:{ZR+1}], v[{ZR+2}:{ZR+3}]")
    e(f"v_add_f32 v{ZR}, v{ZR}, v{ZR+1}")
    e(f"buffer_store_dword v{ZR}, v{VA+3}, s[16:19], s36 offen{SC1}")
    stamps_flush(A)
    phase_begin(A)
    phi(ACC, bc(QR), bc(QR + 4), OB)
    sync1(A)
    phi(ACC + 16, bc(QR), bc(QR + 4), OB + 8)
    e(f"v_mov_b32 v{ONE}, 0x3f80"); e(f"v_mov_b32 v{ONE+1}, 0x3f800000")
    e(f"v_add_u32 v{VA+1}, {LDS_R}, v{VXO}")
    SUM = TB
    for i in range(0, 8, 2): e(f"v_pk_mov_b32 v[{SUM+i}:{SUM+i+1}], 0, 0")
    e("s_barrier")
    rs(A, 2)
    P = ACC
    for m in range(16):
        if m: e(f"s_movk_i32 s44, {m*4096}" if m < 8 else f"s_mov_b32 s44, {m*4096}")
        e(f"buffer_load_dwordx4 v[{P+4*m}:{P+4*m+3}], v{VXO}, s[24:27], {'s44' if m else '0'} offen{SC1}")
    for m in range(16):
        if m == 8:
            for i in range(4):
                e(f"buffer_load_dwordx4 v[{V_RES+4*i}:{V_RES+3+4*i}], v{VXO}, s[48:51], 0 offen offset:{i*1024}{SC1}")
        e(f"s_waitcnt vmcnt({(15 if m < 8 else 19) - m})")
        for j in range(4):
            e(f"v_dot2_f32_bf16 v{SUM+2*j}, v{P+4*m+j}, v{ONE}, v{SUM+2*j}")
            e(f"v_dot2_f32_bf16 v{SUM+2*j+1}, v{P+4*m+j}, v{ONE+1}, v{SUM+2*j+1}")
    e("s_nop 2")
    for j in range(4): e(f"v_cvt_pk_bf16_f32 v{PK+j}, v{SUM+2*j}, v{SUM+2*j+1}")
    e(f"ds_write_b128 v{VA}, v[{PK}:{PK+3}]")
    e("s_waitcnt lgkmcnt(0)")
    rs(A, 3)
    e("s_barrier")
    FR = PK; ZF = VV
    for hh in range(2):
        e(f"ds_read_b128 v[{ZF+hh*4}:{ZF+hh*4+3}], v{VA+5} offset:{hh*64}")
        for et in range(2):
            e(f"ds_read_b128 v[{FR+(hh*2+et)*4}:{FR+(hh*2+et)*4+3}], v{VA+1} offset:{(hh*2+et)*1024}")
    NUM = ACC; DEN = ACC + 32
    for hh in range(2):
        e(f"s_waitcnt lgkmcnt({3 - 3*hh})")
        for sb in range(2):
            i = hh * 2 + sb; b = OB + 4 * i
            e(f"v_mfma_f32_16x16x32_bf16 v[{DEN+4*i}:{DEN+4*i+3}], v[{ZF+hh*4}:{ZF+hh*4+3}], v[{b}:{b+3}], 0")
        for sb in range(2):
            i = hh * 2 + sb; b = OB + 4 * i
            for et in range(2):
                r = NUM + i * 8 + et * 4; a = FR + (hh * 2 + et) * 4
                e(f"v_mfma_f32_16x16x32_bf16 v[{r}:{r+3}], v[{a}:{a+3}], v[{b}:{b+3}], 0")
    rs(A, 4)
    e("s_nop 1")
    for i in range(4): e(f"v_add_f32 v{DEN+4*i}, s47, v{DEN+4*i}")
    for i in range(4): e(f"v_rcp_f32 v{DEN+4*i}, v{DEN+4*i}")
    e("s_nop 0")
    for i in range(4):
        r = NUM + i * 8; ob = TB + 4 * i
        for j in range(0, 8, 2):
            e(f"v_pk_mul_f32 v[{r+j}:{r+j+1}], v[{r+j}:{r+j+1}], v[{DEN+4*i}:{DEN+4*i+1}] op_sel_hi:[1,0]")
        for j in range(0, 8, 2):
            e(f"v_cvt_pk_bf16_f32 v{ob+j//2}, v{r+j}, v{r+j+1}")
        e(f"buffer_store_dwordx4 v[{ob}:{ob+3}], v{VXO}, s[20:23], 0 offen offset:{i*1024}{SC1}")
    stamps_flush(A)
    A.label(f"{tag}_out")
    set_signal(A, 33, cA)
    e(f"s_branch {nxt}")
    NBUR = opt.get("nbur", 1); NST = opt.get("stag", 10 // NBUR)
    LD = Loader(A, "qkv", SET_A, 130)
    NX = Loader(A, "wo", SET_C, 140)
    SEL = 56
    def col_sums(L, n):
        for i in range(n):
            e(f"v_mfma_f32_16x16x32_bf16 v[32:35], v[{SEL}:{SEL+3}], v[{L+4*i}:{L+4*i+3}], {'0' if i == 0 else 'v[32:35]'}")
        e("v_and_b32 v36, 8, v20"); e("v_cmp_ne_u32 vcc, 0, v36"); e("v_cmp_lt_u32 s[20:21], 31, v20")
        e("s_nop 5")
        for j in range(4): e(f"v_add_f32_dpp v{32+j}, v{32+j}, v{32+j} row_ror:8 row_mask:0xf bank_mask:0xf")
        e("v_cndmask_b32 v32, v32, v33, vcc"); e("v_cndmask_b32 v34, v34, v35, vcc")
        e("v_cndmask_b32 v32, v32, v34, s[20:21]")
    def pre():
        NX.setup()
        fpre[0]()
        e("s_movk_i32 s15, 0x200"); e("s_mov_b32 s13, 0")
        srd(A, 44, "s28", "s29", 0)
        e("v_and_b32 v3, 63, v0"); e("v_lshlrev_b32 v4, 2, v3")
        e(f"s_lshl_b32 s20, s{S_WV}, 9"); e(f"s_add_u32 s20, s20, {LST - 2048}")
        e("v_and_b32 v3, 31, v3"); e("v_lshlrev_b32 v3, 2, v3"); e("v_add_u32 v3, s20, v3")
        e(f"s_cmp_lg_u32 s{S_LAYER}, 0"); e(f"s_cbranch_scc1 {tag}_e1")
        e(f"s_load_dwordx4 s[4:7], s[0:1], {KA['wg']}")
        e(f"s_load_dwordx2 s[12:13], s[0:1], {KA['wo']}")
        e(f"s_lshl_b32 s20, s2, 2"); e(f"s_add_u32 s20, s20, s{S_WV}"); e("s_sub_u32 s20, s20, 4")
        e("s_lshr_b32 s48, s20, 3"); e("s_and_b32 s49, s20, 7")
        e("s_sub_u32 s30, s48, 56"); e("s_min_u32 s30, s30, s48"); e("s_lshl_b32 s30, s30, 7")
        e(f"s_mul_i32 s21, s49, {128*F*2}"); e("s_add_u32 s30, s30, s21")
        e("s_sub_u32 s21, s20, 896"); e("s_lshl_b32 s21, s21, 14")
        e("s_cmp_lt_u32 s48, 56")
        e("s_waitcnt lgkmcnt(0)")
        e("s_cselect_b32 s44, s4, s6"); e("s_cselect_b32 s45, s5, s7"); e("s_mov_b32 s47, 0x00020000")
        e(f"s_mov_b32 s46, {D*F*2}"); e(f"s_movk_i32 s22, {F*2}")
        e("s_cmp_ge_u32 s2, 224")
        e("s_cselect_b32 s44, s12, s44"); e("s_cselect_b32 s45, s13, s45"); e(f"s_cselect_b32 s46, {D*D*2}, s46")
        e("s_cselect_b32 s30, s21, s30"); e("s_cselect_b32 s22, 128, s22")
        e("s_lshl_b32 s14, s22, 3")
        e("v_and_b32 v20, 63, v0")
        e("v_lshrrev_b32 v21, 3, v20"); e("v_mul_lo_u32 v21, s22, v21"); e("v_and_b32 v22, 7, v20"); e("v_lshl_add_u32 v21, v22, 4, v21")
        e("s_lshr_b32 s20, s2, 3"); e("s_and_b32 s21, s2, 7"); e("s_lshl_b32 s21, s21, 1"); e("s_add_u32 s20, s20, s21")
        e(f"s_mul_i32 s21, s20, {65536 // NST + 1}"); e("s_lshr_b32 s21, s21, 16"); e(f"s_mul_i32 s21, s21, {NST}"); e("s_sub_u32 s15, s20, s21")
        e("s_add_u32 s15, s15, 4")
        e("s_lshl_b32 s48, s48, 11"); e("s_lshl_b32 s49, s49, 2"); e("s_add_u32 s48, s48, s49")
        for i in range(4):
            e(f"v_cmp_eq_u32 vcc, {2*i}, v22"); e(f"v_mov_b32 v5, 0x3f80"); e("s_nop 0"); e(f"v_cndmask_b32 v{SEL+i}, 0, v5, vcc")
            e(f"v_cmp_eq_u32 vcc, {2*i+1}, v22"); e(f"v_mov_b32 v5, 0x3f800000"); e("s_nop 0"); e(f"v_cndmask_b32 v{SEL+i}, v{SEL+i}, v5, vcc")
        e("v_lshlrev_b32 v22, 3, v22"); e("v_bfe_u32 v6, v20, 4, 1"); e("v_lshl_add_u32 v22, v6, 2, v22")
        e("v_lshrrev_b32 v6, 5, v20"); e("v_lshl_add_u32 v22, v6, 1, v22"); e("v_bfe_u32 v6, v20, 3, 1"); e("v_add_lshl_u32 v22, v22, v6, 5")
        e("s_and_b32 s13, s15, 3"); e("s_add_u32 s13, s13, 5")
        A.label(f"{tag}_e1")
    def early():
        e(f"s_cmp_lg_u32 s{S_LAYER}, 0"); e(f"s_cbranch_scc1 {tag}_e2")
        col_sums(V_CS, 8)
        A.label(f"{tag}_e2")
    idle_head(A, tag, first=True, pre=pre)
    early()
    L = 64
    def cond():
        uid[0] += 1; l = f"cu{uid[0]}"
        e(f"s_cmp_lg_u32 s{SET_A['p']}, s13"); e(f"s_cbranch_scc1 {l}g")
        e(f"s_cmp_lg_u32 s{S_WV}, 5"); e(f"s_cbranch_scc1 {l}g")
        e(f"s_cmp_ge_u32 s2, {192 + (REP + 1) // 2}"); e(f"s_cbranch_scc1 {l}g")
        do_signal(e, 1, 2, wait=False, fl=24)
        A.label(l + "g")
        per = 16 // NBUR
        for k in range(NBUR):
            e(f"s_add_u32 s31, s15, {k * NST}"); e(f"s_cmp_lg_u32 s{SET_A['p']}, s31"); e(f"s_cbranch_scc1 {l}b{k}")
            e(f"s_mov_b32 s12, s{SET_A['p']}")
            for i in range(k * per, (k + 1) * per):
                e(f"buffer_load_dwordx4 v[{L+4*i}:{L+4*i+3}], v21, s[44:47], s30 offen")
                e("s_add_u32 s30, s30, s14")
            A.label(f"{l}b{k}")
    if opt.get("relax", 0): LD.relax = (12, 16 // NBUR)
    e("s_movk_i32 s12, 0x100")
    assert NST * NBUR <= (9 if opt.get('relax', 0) else 10)
    e(f"s_cmp_lg_u32 s{S_LAYER}, 0"); e(f"s_cbranch_scc1 {tag}_h0")
    e("v_lshrrev_b32 v5, 3, v22")
    srd_off(A, 16, "s28", "s29", WS_CSQ, 3072 * 64)
    e(f"s_lshl_b32 s20, s2, 2"); e(f"s_add_u32 s20, s20, s{S_WV}"); e("s_sub_u32 s20, s20, 4"); e("s_lshl_b32 s20, s20, 8")
    e(f"buffer_store_dword v32, v5, s[16:19], s20 offen{SC1}")
    A.label(f"{tag}_h0")
    e(f"s_lshl_b32 s20, s33, 2"); e(f"s_add_u32 s20, s20, s{S_WV}"); e("s_sub_u32 s20, s20, 4"); e("s_lshl_b32 s20, s20, 12"); e(f"s_add_u32 s20, s20, {WS_ST}")
    srd_off(A, 20, "s28", "s29", "s20", 4096)
    LD.step(); cond()
    e(f"s_cmp_lg_u32 s{S_LAYER}, 0"); e(f"s_cbranch_scc1 {tag}_h7")
    e("s_waitcnt vmcnt(0)")
    A.label(f"{tag}_h7")
    LD.step(); cond()
    for i in range(16):
        e(f"buffer_load_dword v{32+i}, v4, s[20:23], 0 offen offset:{i*256}{SC1}")
    LD.loop(f"{tag}_i3", 9, body=cond)
    if opt.get("hp"): e("s_setprio 2")
    stats_finish(e, 32, 5, 6, 7)
    e(f"v_mul_f32 v5, {LOG2E:#x}, v7")
    e("ds_write_b32 v3, v6"); e("ds_write_b32 v3, v7 offset:128"); e("ds_write_b32 v3, v5 offset:256")
    e("s_waitcnt lgkmcnt(0)")
    LD.step()
    e(f"s_cmp_lg_u32 s{S_LAYER}, 0"); e(f"s_cbranch_scc1 {tag}_h2")
    col_sums(L, 16)
    e("v_mov_b32 v28, v32")
    A.label(f"{tag}_h2")
    LD.step()
    e(f"s_cmp_lg_u32 s{S_WV}, 4"); e(f"s_cbranch_scc1 {tag}_h3")
    e(f"s_cmp_lg_u32 s{S_LAYER}, 0"); e(f"s_cbranch_scc1 {tag}_h3")
    e(f"s_movk_i32 s{S_POFF}, {DBG_G}"); e(f"s_movk_i32 s{S_PTGT}, {192 + (REP + 1) // 2}")
    do_poll(e, 30, 31, tag + "g", fl=24, diag=False, load=True)
    e("s_lshl_b32 s20, s34, 12"); e(f"s_add_u32 s20, s20, {WS_CSQ}")
    srd_off(A, 44, "s28", "s29", "s20", 131072 + 4096)
    e("s_mov_b32 s21, 65536"); e("s_mov_b32 s22, 131072")
    e("v_lshlrev_b32 v29, 2, v4")
    for b in range(3):
        for k in range(4):
            e(f"buffer_load_dwordx4 v[{32+16*b+4*k}:{35+16*b+4*k}], v29, s[44:47], {('0', 's21', 's22')[b]} offen offset:{k*1024}{SC1}")
    A.label(f"{tag}_h3")
    LD.step()
    for _ in range(3): NX.issue()
    e("s_waitcnt vmcnt(6)")
    e("s_barrier")
    e(f"s_cmp_lg_u32 s{S_LAYER}, 0"); e(f"s_cbranch_scc1 {tag}_h8")
    srd_off(A, 44, "s28", "s29", WS_CS2, 2 * F * 32)
    e(f"buffer_store_dword v28, v22, s[44:47], s48 offen{SC1}")
    A.label(f"{tag}_h8")
    fpre[1](0)
    e(f"s_cmp_lg_u32 s{S_WV}, 4"); e(f"s_cbranch_scc1 {tag}_h5")
    e(f"s_cmp_lg_u32 s{S_LAYER}, 0"); e(f"s_cbranch_scc1 {tag}_h6")
    for st in (8, 4):
        for b in range(3):
            for i in range(0, st, 2): e(f"v_pk_add_f32 v[{32+16*b+i}:{33+16*b+i}], v[{32+16*b+i}:{33+16*b+i}], v[{32+16*b+i+st}:{33+16*b+i+st}]")
    e("s_nop 0")
    for b in range(3):
        for i in range(2): e(f"v_permlane32_swap_b32 v{32+16*b+i}, v{34+16*b+i}")
    e("s_nop 0")
    for b in range(3): e(f"v_pk_add_f32 v[{32+16*b}:{33+16*b}], v[{32+16*b}:{33+16*b}], v[{34+16*b}:{35+16*b}]")
    e("s_nop 1")
    for b in range(3): e(f"v_permlane16_swap_b32 v{32+16*b}, v{33+16*b}")
    e("s_nop 1")
    for b in range(3): e(f"v_add_f32 v{V_KEEP+b}, v{32+16*b}, v{33+16*b}")
    A.label(f"{tag}_h6")
    e("v_and_b32 v29, 60, v4"); e("v_lshlrev_b32 v29, 2, v29"); e("v_lshrrev_b32 v30, 6, v4"); e("v_lshl_add_u32 v29, v30, 2, v29")
    e(f"v_add_u32 v29, {LCS}, v29")
    for b in range(3): e(f"ds_write_b32 v29, v{V_KEEP+b} offset:{b*256}")
    e("s_waitcnt lgkmcnt(0)")
    A.label(f"{tag}_h5")
    e("s_barrier")
    fpre[1](1)
    srd_off(A, 44, "s28", "s29", WS_XC, 4 * MB)
    e(f"s_lshl_b32 s48, s2, 2"); e(f"s_add_u32 s48, s48, s{S_WV}"); e("s_sub_u32 s48, s48, 4"); e("s_lshl_b32 s48, s48, 12")
    e("v_and_b32 v20, 63, v0"); e("v_lshlrev_b32 v20, 4, v20")
    for i in range(4): e(f"v_mov_b32 v{24+i}, -1")
    if opt.get("hp"): e("s_setprio 0")
    e("s_barrier")
    for i in range(4): e(f"buffer_store_dwordx4 v[24:27], v20, s[44:47], s48 offen offset:{i*1024}{SC1}")
    if gen.STAMP: e(f"s_add_u32 s{S_PH}, s{S_PH}, 1")
    set_signal(A, 34, cQ)
    set_poll(A, 34, cQ, 16)
    def early2():
        if SWARM:
            wd_warm_base(A)
            e(f"s_cmp_lg_u32 s{S_LAYER}, 0"); e(f"s_cbranch_scc1 {tag}_nw")
            warm(A, [64 * i for i in range(14)], 896)
            A.label(f"{tag}_nw")
        e(f"s_mul_i32 s39, s{S_LAYER}, {WS_KV2 - WS_KV}"); e("s_lshl_b32 s38, s34, 12"); e("s_add_u32 s38, s38, s39"); e(f"s_add_u32 s38, s38, {WS_Z}")
        srd_off(A, 16, "s28", "s29", "s38", 4096)
        e("v_and_b32 v4, 63, v0"); e("v_lshlrev_b32 v5, 2, v4")
        e("v_and_b32 v6, 3, v4"); e("v_lshlrev_b32 v6, 1, v6")
        e("v_bfe_u32 v7, v4, 2, 2"); e("v_lshl_add_u32 v6, v7, 4, v6")
        e("v_bfe_u32 v7, v4, 4, 1"); e("v_lshl_add_u32 v6, v7, 3, v6")
        e("v_lshrrev_b32 v7, 5, v4"); e("v_lshl_add_u32 v6, v7, 6, v6")
        e(f"v_add_u32 v6, {LDS_Z + 1024}, v6")
    idle_head(A, tag + "b", pre=early2)
    e(f"s_cmp_lg_u32 s{S_WV}, 5"); e(f"s_cbranch_scc1 {tag}_nz")
    for m in range(16):
        e(f"buffer_load_dword v{8+m}, v5, s[16:19], 0 offen offset:{m*256}{SC1}")
    e("s_waitcnt vmcnt(0)")
    for st in (8, 4, 2, 1):
        for i in range(st): e(f"v_add_f32 v{8+i}, v{8+i}, v{8+i+st}")
    e("v_cvt_pk_bf16_f32 v8, v8, v8")
    e("ds_write_b16 v6, v8")
    e("s_waitcnt lgkmcnt(0)")
    A.label(f"{tag}_nz")
    e("s_barrier")
    idle_tail(A, f"{tag}_out")

def p_start(A):
    e = A.e
    NX = Loader(A, "qkv", SET_A, 130)
    e("v_and_b32 v5, 63, v0"); e("v_lshlrev_b32 v1, 4, v5")
    e(f"s_cmp_ge_u32 s{S_WV}, 4"); e("s_cbranch_scc1 ps_cs")
    e(f"s_lshl_b32 s33, s2, 2"); e(f"s_add_u32 s33, s33, s{S_WV}")
    e("s_lshr_b32 s35, s33, 4"); e("s_and_b32 s34, s33, 15")
    rowmajor_lane_off(A, 2, 3)
    e("s_lshl_b32 s36, s35, 16"); e("s_lshl_b32 s37, s34, 7"); e("s_add_u32 s36, s36, s37"); e(f"s_add_u32 s37, s36, {16*2048}")
    e("s_lshl_b32 s38, s33, 12")
    e("s_waitcnt lgkmcnt(0)")
    srd(A, 8, "s4", "s5", S * D * 2)
    R = 16
    for i in (0, 2, 1, 3):
        so, off = rowmajor_frag(i, "s36", "s37")
        e(f"buffer_load_dwordx4 v[{R+4*i}:{R+4*i+3}], v2, s[8:11], {so} offen offset:{off} nt")
    srd_off(A, FL, "s28", "s29", WS_FL, 128 * FSTR * REP)
    srd_off(A, 12, "s28", "s29", "s38", 4096)
    srd(A, 88, "s28", "s29", 0)
    for r in (130, 132, 134, 140): e(f"v_pk_mov_b32 v[{r}:{r+1}], 0, 0")
    srd(A, 24, "s30", "s31", 256)
    e("s_lshl_b32 s36, s33, 8")
    srd_off(A, 16, "s28", "s29", WS_ST, 64 * 4096)
    e("v_lshrrev_b32 v4, 2, v1")
    e("s_and_b32 s38, s2, 0xf0")
    e("s_waitcnt vmcnt(0)")
    for i in range(4):
        e(f"v_permlane16_swap_b32 v{R+4*i}, v{R+4*i+2}")
        e(f"v_permlane16_swap_b32 v{R+4*i+1}, v{R+4*i+3}")
    e("s_nop 1")
    for i in range(4):
        e(f"buffer_store_dwordx4 v[{R+4*i}:{R+4*i+3}], v1, s[12:15], 0 offen offset:{i*1024}{SC1}")
    stats_emit(A, 16, [R + i for i in range(16)], 8)
    e(f"buffer_store_dword v8, v4, s[16:19], s36 offen{SC1}")
    e("s_barrier")
    e("s_waitcnt vmcnt(0)")
    e("s_barrier")
    e(f"s_cmp_lg_u32 s{S_WV}, 0"); e("s_cbranch_scc1 ps_x1")
    do_signal(e, 1, 2, wait=False, fl=24, off="s38")
    A.label("ps_x1")
    e("s_branch pq")
    A.label("ps_cs")
    e("s_lshr_b32 s45, s2, 2"); e("s_and_b32 s46, s2, 3")
    e(f"v_lshrrev_b32 v2, 3, v5"); e(f"v_mul_u32_u24 v2, {3*D*2}, v2"); e("v_and_b32 v3, 7, v5"); e("v_lshl_add_u32 v2, v3, 4, v2")
    e(f"s_lshl_b32 s36, s46, 2"); e(f"s_add_u32 s36, s36, s{S_WV}"); e("s_sub_u32 s36, s36, 4"); e(f"s_mul_i32 s36, s36, {64*3*D*2}")
    e("s_lshl_b32 s37, s45, 7"); e("s_add_u32 s36, s36, s37")
    e("s_cmp_lt_u32 s2, 192"); e(f"s_cselect_b32 s22, {D*3*D*2}, 0"); e("s_mov_b32 s23, 0x00020000")
    e("s_waitcnt lgkmcnt(0)")
    e("s_mov_b32 s20, s6"); e("s_mov_b32 s21, s7")
    srd_off(A, FL, "s28", "s29", WS_FL, 128 * FSTR * REP)
    e("v_mov_b32 v40, 0"); e(f"v_mul_u32_u24 v41, {FSTR}, v5")
    e(f"s_lshl_b32 s47, s2, 2"); e(f"s_add_u32 s47, s47, s{S_WV}"); e(f"s_add_u32 s47, s47, {1024 - 192*4 - 4}"); e("s_and_b32 s47, s47, 1023")
    e(f"s_mul_i32 s47, s47, {64 * FSTR}")
    e(f"buffer_store_dword v40, v41, s[{FL}:{FL+3}], s47 offen{SC1}")
    def cs_loads(i0, i1):
        for i in range(i0, i1):
            e(f"buffer_load_dwordx4 v[{V_CS+4*i}:{V_CS+4*i+3}], v2, s[20:23], s36 offen")
            e(f"s_add_u32 s36, s36, {8*3*D*2}")
    NX.setup()
    if SV == 0:
        NX.issue()
        e("s_barrier")
        cs_loads(0, 8)
        e("s_barrier")
        NX.issue(); NX.issue()
    elif SV == 1:
        cs_loads(0, 6)
        e("s_barrier")
        cs_loads(6, 8); NX.issue()
        e("s_barrier")
        NX.issue(); NX.issue()
    elif SV == 2:
        cs_loads(0, 8)
        e("s_barrier")
        NX.issue()
        e("s_barrier")
        NX.issue(); NX.issue()
    elif SV == 3:
        e("s_barrier")
        cs_loads(0, 8)
        e("s_barrier")
        NX.issue(); NX.issue(); NX.issue()
    srd(A, 88, "s28", "s29", 0); e("v_pk_mov_b32 v[140:141], 0, 0")
    if TOUCH:
        srd(A, 12, "s28", "s29", 35 * MB)
        e(f"v_lshlrev_b32 v6, {21 if TOUCH == 1 else 19}, v5")
        e(f"s_lshl_b32 s37, s2, 7")
        e("buffer_load_dword v7, v6, s[12:15], s37 offen nt")

def k_mega(A, o):
    e = A.e
    A.begin_kernel(NAME)
    e("s_cmp_ge_u32 s2, 256")
    e(f"s_cbranch_scc1 {NAME}_end")
    if gen.STAMP: e("s_memrealtime s[76:77]")
    e(f"s_load_dwordx4 s[4:7], s[0:1], {KA['x']}")
    e(f"s_load_dwordx2 s[28:29], s[0:1], {KA['ws']}")
    e(f"s_load_dwordx2 s[30:31], s[0:1], {KA['dbg']}")
    e("v_lshrrev_b32 v1, 6, v0")
    e(f"s_mov_b32 s{S_LAYER}, 0"); e(f"s_movk_i32 s{S_SIG}, {DBG_G}"); e(f"s_mov_b32 s{S_PH}, 0")
    e(f"v_readfirstlane_b32 s{S_WV}, v1")
    p_start(A)
    p_qkv(A, "pq", "po", ffn_prefetch(A, 150, o.get("ffn")), o.get("qkv"))
    p_proj(A, "po", D, False, "pu", o.get("wo"))
    p_ffn(A, "pu", "pd", o.get("ffn"))
    p_proj(A, "pd", F, True, "pq", o.get("down"))
    A.label(f"{NAME}_end")
    e("s_endpgm")
    A.add_desc(NAME, 256, 102, 256)
    return dict(name=NAME, grid=256, block=512, lds=163840)

def build_mega(path, stamp_on=False, o=None, single=False):
    gen.STAMP = stamp_on
    uid[0] = 0
    A = Asm()
    mega = k_mega(A, o or {})
    A.launch(mega["name"], mega["grid"], mega["block"], mega["lds"])
    txt = A.text(HEADER)
    if single:
        txt = txt.replace(f"; @launch kernel={NAME} ", "; @launch ").replace(NAME, "interleave_layers__linear_attn_block__swiglu_ffn__prompt_kernel")
    open(path, "w").write(txt)

if __name__ == "__main__":
    if len(sys.argv) > 1:
        import json
        for name, o in json.loads(sys.argv[1]).items():
            SWARM = o.get("swarm", False); TOUCH = o.get("touch", 0); SV = o.get("sv", 0); PS0 = o.get("ps0", 0); PSL = o.get("psl", 0); APOLL = o.get("apoll", 1); NOWAIT = o.get("nowait", 0); REP = o.get("rep", 1); PFL = o.get("pfl", " sc1"); FSTR = o.get("fstr", 256)
            build_mega(f"m_{name}_stamp.s", True, o)
        sys.exit(0)
    build_mega("mega_stamp.s", True)
    build_mega("mega.s", False, single=True)
    DBGOUT = True
    build_mega("mega_dbg.s", True, single=True)
```
